```python
import torch

def _softmax(x, axis=-1):
    return torch.softmax(x, dim=axis)
def _gelu(x):
    return torch.nn.functional.gelu(x, approximate="tanh")
def _silu(x):
    return torch.nn.functional.silu(x)
def _sigmoid(x):
    return torch.sigmoid(x)
def _layernorm(x, axis=-1, eps=1e-5):
    m = x.mean(dim=axis, keepdim=True)
    v = x.var(dim=axis, keepdim=True, unbiased=False)
    return (x - m) / torch.sqrt(v + eps)
def _scatter_add(tgt, idx, src, axis=0):
    return tgt.clone().index_add_(axis, idx, src)
def _segment_sum(src, seg, n):
    out = torch.zeros((n,) + src.shape[1:], dtype=src.dtype)
    return out.index_add_(0, seg, src)
def _pad(x, pw):
    flat = tuple(v for pair in reversed(pw) for v in pair)
    return torch.nn.functional.pad(x, flat)

kernel_name = 'recurrent_scan__spectral_fnet__dense_activation_gelu__prompt'

def setup_inputs():

    _w = (lambda a: (lambda t: t.to(torch.bfloat16) if t.is_floating_point() else t)(torch.as_tensor(a)))
    def _A_setup():
        B, S, D = 1, 2048, 1024
        ns = torch.arange(S)[:, None] * torch.arange(S)[None, :]
        nd = torch.arange(D)[:, None] * torch.arange(D)[None, :]
        Ws_re = torch.cos(-2.0 * torch.pi * ns / S).to(float)
        Ws_im = torch.sin(-2.0 * torch.pi * ns / S).to(float)
        Wd_re = torch.cos(-2.0 * torch.pi * nd / D).to(float)
        Wd_im = torch.sin(-2.0 * torch.pi * nd / D).to(float)
        return {
            "x": _w((lambda *s: torch.randn(*s, dtype=torch.bfloat16) * 0.05)(B, S, D)),
            "dft_seq_re": _w(Ws_re),
            "dft_seq_im": _w(Ws_im),
            "dft_hid_re": _w(Wd_re),
            "dft_hid_im": _w(Wd_im),
        }
    _A_in = _A_setup()

    def _B_setup():
        B, S, D, F = 1, 2048, 1024, 3584
        return {
            "x": _w((lambda *s: torch.randn(*s, dtype=torch.bfloat16) * 0.05)(B, S, D)),
            "w1": _w((lambda *s: torch.randn(*s, dtype=torch.bfloat16) * 0.2)(D, F) * (D ** -0.5)),
            "b1": _w((lambda *s: torch.randn(*s, dtype=torch.bfloat16) * 3.2)(F) * 0.01),
            "w2": _w((lambda *s: torch.randn(*s, dtype=torch.bfloat16) * 0.05)(F, D) * (F ** -0.5)),
            "b2": _w((lambda *s: torch.randn(*s, dtype=torch.bfloat16) * 0.1)(D) * 0.01),
        }
    _B_in = _B_setup()

    return {
        "A_x": _A_in["x"],
        "A_dft_seq_re": _A_in["dft_seq_re"],
        "A_dft_seq_im": _A_in["dft_seq_im"],
        "A_dft_hid_re": _A_in["dft_hid_re"],
        "A_dft_hid_im": _A_in["dft_hid_im"],
        "B_x": _B_in["x"],
        "B_w1": _B_in["w1"],
        "B_b1": _B_in["b1"],
        "B_w2": _B_in["w2"],
        "B_b2": _B_in["b2"],
    }

def reference(A_x, A_dft_seq_re, A_dft_seq_im, A_dft_hid_re, A_dft_hid_im, B_x, B_w1, B_b1, B_w2, B_b2):
    def _A_ref(x, dft_seq_re, dft_seq_im, dft_hid_re, dft_hid_im):
        a = torch.einsum("bsd,ed->bse", x, dft_hid_re)
        b = torch.einsum("bsd,ed->bse", x, dft_hid_im)
        y = torch.einsum("ts,bse->bte", dft_seq_re, a) - torch.einsum("ts,bse->bte", dft_seq_im, b)
        return y

    def _B_ref(x, w1, b1, w2, b2):
        h = torch.einsum("bsd,df->bsf", x, w1) + b1
        h = _gelu(h)
        return torch.einsum("bsf,fd->bsd", h, w2) + b2

    x = A_x
    xn = _layernorm(x, axis=-1)
    s = _A_ref(xn, A_dft_seq_re, A_dft_seq_im, A_dft_hid_re, A_dft_hid_im)
    g = _silu(_B_ref(xn, B_w1, B_b1, B_w2, B_b2))
    return x + s * g
```

```python
import sys, math, struct

KN = "recurrent_scan__spectral_fnet__dense_activation_gelu__prompt"

XF_OFF, XF_SZ = 0, 4 << 20
ABF_OFF, ABF_SZ = 4 << 20, 8 << 20
HF_OFF, HF_SZ = 12 << 20, 128 * 112 * 1024
G_OFF, G_SZ = 28 << 20, 4 << 20
FL_OFF, FL_SZ = 32 << 20, 128 * 128

def f2u(x):
    return struct.unpack("<I", struct.pack("<f", x))[0]

class Prog:
    def __init__(self):
        self.L = []
        self.uid = 0
    def __call__(self, s):
        self.L.append("    " + s)
    def label(self, s):
        self.L.append(s + ":")
    def raw(self, s):
        self.L.append(s)
    def newlabel(self, p="L"):
        self.uid += 1
        return f"{p}_{self.uid}"

def vr(b, n=1):
    return f"v{b}" if n == 1 else f"v[{b}:{b+n-1}]"
def ar(b, n=1):
    return f"a{b}" if n == 1 else f"a[{b}:{b+n-1}]"
def sr(b, n=1):
    return f"s{b}" if n == 1 else f"s[{b}:{b+n-1}]"

class Op:
    __slots__ = ("kind", "text", "tag")
    def __init__(self, kind, text=None, tag=None):
        self.kind, self.text, self.tag = kind, text, tag

def gemm_mainloop(p, name, nstages, NS, NPS, s_cnt,
                  mfmas,
                  reads,
                  dmas,
                  privs,
                  extra=None,
                  read_frac=0.7):
    U = NS
    PD = NPS - 1
    nk = 2 * nstages
    segs = []
    for kappa in range(-2 * NS, nk):
        ops = []
        s, k = divmod(kappa, 2)
        head = []
        if kappa >= 0:
            head.append(Op("wait_vm", tag=("P", kappa)))
        if k == 1 and kappa >= -1 and s + 1 < nstages:
            head.append(Op("wait_vm", tag=("D", s + 1)))
        if kappa >= 0:
            head.append(Op("wait_lgkm0"))
        if k == 1 and kappa >= -1 and s + 1 < nstages:
            head.append(Op("barrier"))
        rd = [Op("lds", t) for t in reads(kappa + 1)] if 0 <= kappa + 1 < nk else []
        vm = []
        ds = s + NS if k == 1 else s - 1 + NS
        if 0 <= ds < nstages:
            d = dmas(ds)
            h = (len(d) + 1) // 2
            part = d[:h] if k == 1 else d[h:]
            for pre, t in part:
                vm.append(([Op("salu", x) for x in pre], Op("vm", t, ("D", ds))))
        pk = kappa + PD
        pv = []
        if 0 <= pk < nk:
            for pre, t in privs(pk):
                pv.append(([Op("salu", x) for x in pre], Op("vm", t, ("P", pk))))
        seq = []
        a, b = list(pv), list(vm)
        while a or b:
            if a: seq.append(a.pop(0))
            if b: seq.append(b.pop(0))
        ex = [Op("valu", t) for t in extra(kappa)] if (extra and kappa >= 0) else []
        mf = [Op("mfma", t) for t in mfmas(kappa)] if kappa >= 0 else []
        ops += head
        if not mf:
            for pre, v in seq:
                ops += pre
                if pre: ops.append(Op("salu", "s_nop 0"))
                ops.append(v)
            ops += rd
        else:
            n = len(mf)
            gaps = [[] for _ in range(n)]
            nr = len(rd)
            span = max(1, int(n * read_frac))
            for i, r in enumerate(rd):
                gaps[min(n - 1, (i * span) // max(1, nr))].append(r)
            nv = len(seq)
            for i, (pre, v) in enumerate(seq):
                g = 1 + ((2 * i + 1) * (n - 1)) // (2 * nv) if nv else 0
                g = min(n - 1, g)
                gaps[g - 1] += pre
                gaps[g].append(v)
            for i, e in enumerate(ex):
                gaps[min(n - 1, (i * n) // len(ex))].append(e)
            for i in range(n):
                ops.append(mf[i])
                ops += gaps[i]
        segs.append(ops)
    vmq = []
    done_upto = 0
    lg_out = 0
    texts = []
    for ops in segs:
        out = []
        pend_vm = None; pend_lg = False
        def flush():
            nonlocal pend_vm, pend_lg
            if pend_vm is not None or pend_lg:
                t = "s_waitcnt"
                if pend_vm is not None: t += f" vmcnt({pend_vm})"
                if pend_lg: t += " lgkmcnt(0)"
                out.append(t)
            pend_vm = None; pend_lg = False
        for o in ops:
            if o.kind == "wait_vm":
                idx = max(i for i, t in enumerate(vmq) if t == o.tag) + 1
                if idx > done_upto:
                    done_upto = idx
                    N = len(vmq) - idx
                    assert N <= 63, N
                    pend_vm = N if pend_vm is None else min(pend_vm, N)
            elif o.kind == "wait_lgkm0":
                if lg_out:
                    pend_lg = True; lg_out = 0
            else:
                flush()
                if o.kind == "vm": vmq.append(o.tag)
                if o.kind == "lds": lg_out += 1
                out.append("s_barrier" if o.kind == "barrier" else o.text)
        flush()
        texts.append(out)
    pro = texts[:2 * NS]
    for t in pro:
        for x in t: p(x)
    body = texts[2 * NS:]
    its = ["\n".join("\n".join(t) for t in body[2 * U * i:2 * U * (i + 1)]) for i in range(nstages // U)]
    i = 0
    while i < len(its):
        j = i
        while j + 1 < len(its) and its[j + 1] == its[i]: j += 1
        cnt = j - i + 1
        if cnt >= 2:
            lab = p.newlabel(name + "_loop")
            p(f"s_mov_b32 {sr(s_cnt)}, {cnt}")
            p.raw(".p2align 6")
            p.label(lab)
            for x in its[i].split("\n"): p(x)
            p(f"s_sub_u32 {sr(s_cnt)}, {sr(s_cnt)}, 1")
            p(f"s_cmp_lg_u32 {sr(s_cnt)}, 0")
            p(f"s_cbranch_scc1 {lab}")
        else:
            for x in its[i].split("\n"): p(x)
        i = j + 1

def srd(p, d, lo, hi, size, add=0):
    if add:
        p(f"s_add_u32 {sr(d)}, {sr(lo)}, {add}")
        p(f"s_addc_u32 {sr(d+1)}, {sr(hi)}, 0")
    else:
        p(f"s_mov_b32 {sr(d)}, {sr(lo)}")
        p(f"s_mov_b32 {sr(d+1)}, {sr(hi)}")
    p(f"s_mov_b32 {sr(d+2)}, {size}")
    p(f"s_mov_b32 {sr(d+3)}, 0x20000")

def kernel_head(p, name):
    p.raw(f".globl {name}")
    p.raw(".p2align 8")
    p.raw(f".type {name},@function")
    p.label(name)

def load_ptrs(p):
    p("s_load_dwordx16 s[16:31], s[0:1], 0")
    p("s_load_dwordx8 s[32:39], s[0:1], 64")
    p("s_load_dwordx2 s[40:41], s[0:1], 96")
S_X, S_CR, S_CI, S_DR, S_DI, S_BX, S_W1, S_B1, S_W2, S_B2, S_OUT, S_DBG, S_WS = 16, 18, 20, 22, 24, 26, 28, 30, 32, 34, 36, 38, 40

def gen_k0(p):
    name = "k0_kernel"
    kernel_head(p, name)
    p("s_cmp_ge_u32 s2, 256"); p("s_cbranch_scc1 k0_end")
    load_ptrs(p)
    p("v_lshrrev_b32 v1, 6, v0")
    p("v_and_b32 v2, 63, v0")
    p("s_lshl_b32 s3, s2, 3")
    p("v_add_u32 v1, s3, v1")
    p("v_lshlrev_b32 v3, 11, v1")
    p("v_lshl_add_u32 v3, v2, 4, v3")
    p("s_waitcnt lgkmcnt(0)")
    srd(p, 4, S_X, S_X + 1, 4194304)
    srd(p, 8, S_WS, S_WS + 1, XF_SZ, XF_OFF)
    srd(p, 12, S_WS, S_WS + 1, FL_SZ, FL_OFF)
    p("buffer_load_dwordx4 v[8:11], v3, s[4:7], 0 offen")
    p("buffer_load_dwordx4 v[12:15], v3, s[4:7], 0 offen offset:1024")
    p("v_mov_b32 v40, 0")
    p("s_lshl_b32 s3, s2, 7")
    p("v_mov_b32 v41, s3")
    p("v_cmp_eq_u32 vcc, 0, v0")
    p("s_and_saveexec_b64 s[44:45], vcc")
    p("s_cbranch_execz k0_nofl")
    p("buffer_store_dword v40, v41, s[12:15], 0 offen")
    p.label("k0_nofl")
    p("s_mov_b64 exec, s[44:45]")
    p("v_lshrrev_b32 v4, 4, v1"); p("v_lshlrev_b32 v4, 15, v4")
    p("v_lshrrev_b32 v5, 2, v2"); p("v_lshl_add_u32 v4, v5, 10, v4")
    p("v_and_b32 v5, 3, v2"); p("v_lshl_add_u32 v4, v5, 8, v4")
    p("v_and_b32 v5, 15, v1"); p("v_lshl_add_u32 v4, v5, 4, v4")
    p("s_waitcnt vmcnt(1)")
    for i in range(4):
        p(f"v_lshlrev_b32 v{16+2*i}, 16, v{8+i}"); p(f"v_and_b32 v{17+2*i}, 0xffff0000, v{8+i}")
    p("s_waitcnt vmcnt(0)")
    for i in range(4, 8):
        p(f"v_lshlrev_b32 v{16+2*i}, 16, v{8+i}"); p(f"v_and_b32 v{17+2*i}, 0xffff0000, v{8+i}")
    def wave_sum(src, tmp, sbase):
        for ctl in ("quad_perm:[1,0,3,2]", "quad_perm:[2,3,0,1]", "row_half_mirror", "row_mirror"):
            p("s_nop 1")
            p(f"v_add_f32_dpp v{tmp}, v{src}, v{src} {ctl} row_mask:0xf bank_mask:0xf")
            p(f"v_mov_b32 v{src}, v{tmp}")
        p("s_nop 0")
        for i in range(4): p(f"v_readlane_b32 s{sbase+i}, v{src}, {16*i}")
        p("s_nop 1")
        p(f"v_mov_b32 v{src}, s{sbase}")
        for i in range(1, 4): p(f"v_add_f32 v{src}, s{sbase+i}, v{src}")
    p("v_add_f32 v32, v16, v17")
    for i in range(1, 8): p(f"v_add_f32 v{32+i}, v{16+2*i}, v{17+2*i}")
    for st in (4, 2, 1):
        for i in range(st): p(f"v_add_f32 v{32+i}, v{32+i}, v{32+i+st}")
    wave_sum(32, 33, 46)
    p(f"v_mul_f32 v32, {hex(f2u(1.0/1024))}, v32")
    for i in range(16):
        p(f"v_sub_f32 v{44+i}, v{16+i}, v32")
    for i in range(8):
        p(f"v_mul_f32 v{34+i}, v{44+2*i}, v{44+2*i}")
        p(f"v_fmac_f32 v{34+i}, v{45+2*i}, v{45+2*i}")
    for st in (4, 2, 1):
        for i in range(st): p(f"v_add_f32 v{34+i}, v{34+i}, v{34+i+st}")
    wave_sum(34, 35, 46)
    p(f"v_mul_f32 v34, {hex(f2u(1.0/1024))}, v34")
    p("v_cvt_pk_bf16_f32 v35, v32, v34")
    p("v_lshlrev_b32 v32, 16, v35")
    p("v_and_b32 v34, 0xffff0000, v35")
    p(f"v_add_f32 v34, {hex(f2u(1e-5))}, v34")
    p("v_cvt_pk_bf16_f32 v34, v34, v34")
    p("v_lshlrev_b32 v34, 16, v34")
    p("v_sqrt_f32 v34, v34")
    p("s_nop 0")
    p("v_cvt_pk_bf16_f32 v34, v34, v34")
    p("v_lshlrev_b32 v34, 16, v34")
    p("v_rcp_f32 v35, v34")
    for i in range(16): p(f"v_sub_f32 v{16+i}, v{16+i}, v32")
    for i in range(8): p(f"v_cvt_pk_bf16_f32 v{8+i}, v{16+2*i}, v{17+2*i}")
    for i in range(8):
        p(f"v_lshlrev_b32 v{16+2*i}, 16, v{8+i}"); p(f"v_and_b32 v{17+2*i}, 0xffff0000, v{8+i}")
    for i in range(16): p(f"v_mul_f32 v{44+i}, v{16+i}, v35")
    for i in range(16): p(f"v_fma_f32 v{16+i}, -v{44+i}, v34, v{16+i}")
    for i in range(16): p(f"v_fmac_f32 v{44+i}, v{16+i}, v35")
    for i in range(8): p(f"v_cvt_pk_bf16_f32 v{8+i}, v{44+2*i}, v{45+2*i}")
    p("v_add_u32 v5, 0x4000, v4")
    p("buffer_store_dwordx4 v[8:11], v4, s[8:11], 0 offen")
    p("buffer_store_dwordx4 v[12:15], v5, s[8:11], 0 offen")
    p.label("k0_end")
    p("s_endpgm")
    return name, 64, 64, 64

def lane_consts(p, V):
    p(f"v_and_b32 v{V['lane']}, 63, v0")
    p(f"v_lshrrev_b32 v{V['t0']}, 6, v0")
    p("s_nop 0")
    p(f"v_readfirstlane_b32 s3, v{V['t0']}")

def addrK_setup(p, V, dst0, dst1, base):
    l, t0, t1 = V['lane'], V['t0'], V['t1']
    p(f"v_and_b32 v{t0}, 15, v{l}")
    p(f"v_lshrrev_b32 v{t1}, 1, v{t0}")
    p(f"v_lshrrev_b32 v{dst0}, 4, v{l}")
    p(f"v_xor_b32 v{t1}, v{t1}, v{dst0}")
    p(f"v_lshlrev_b32 v{t1}, 4, v{t1}")
    p(f"v_lshl_add_u32 v{dst0}, v{t0}, 7, v{t1}")
    if base: p(f"v_add_u32 v{dst0}, {base}, v{dst0}")
    p(f"v_xor_b32 v{dst1}, 64, v{dst0}")

def addrT_setup(p, V, dst4, kpitch, base):
    l, t0, t1, t2 = V['lane'], V['t0'], V['t1'], V['t2']
    p(f"v_lshrrev_b32 v{t0}, 4, v{l}")
    p(f"v_bfe_u32 v{t1}, v{l}, 2, 2")
    p(f"v_lshl_add_u32 v{t2}, v{t0}, 3, v{t1}")
    p(f"v_mul_u32_u24 v{t2}, {kpitch}, v{t2}")
    p(f"v_and_b32 v{t0}, 1, v{t0}"); p(f"v_lshlrev_b32 v{t0}, 1, v{t0}")
    p(f"v_lshrrev_b32 v{t1}, 1, v{t1}"); p(f"v_or_b32 v{t0}, v{t0}, v{t1}")
    p(f"v_lshlrev_b32 v{t0}, 5, v{t0}")
    p(f"v_bfe_u32 v{t1}, v{l}, 1, 1"); p(f"v_lshlrev_b32 v{t1}, 4, v{t1}")
    p(f"v_or_b32 v{t0}, v{t0}, v{t1}")
    p(f"v_and_b32 v{t1}, 1, v{l}"); p(f"v_lshl_add_u32 v{t2}, v{t1}, 3, v{t2}")
    if base: p(f"v_add_u32 v{t2}, {base}, v{t2}")
    for b in range(4):
        p(f"v_xor_b32 v{t1}, {32*b}, v{t0}")
        p(f"v_add_u32 v{dst4+b}, v{t1}, v{t2}")

def voffK_lane(p, V, dst, pitch, par):
    l, t0, t1 = V['lane'], V['t0'], V['t1']
    p(f"v_lshrrev_b32 v{t0}, 4, v{l}")
    if par: p(f"v_or_b32 v{t0}, 4, v{t0}")
    p(f"v_and_b32 v{t1}, 7, v{l}")
    p(f"v_xor_b32 v{t0}, v{t0}, v{t1}")
    p(f"v_lshlrev_b32 v{t0}, 4, v{t0}")
    p(f"v_lshrrev_b32 v{t1}, 3, v{l}")
    p(f"v_mul_u32_u24 v{t1}, {pitch}, v{t1}")
    p(f"v_add_u32 v{dst}, v{t0}, v{t1}")

def voffT8_lane(p, V, dst, pitch, par):
    l, t0, t1 = V['lane'], V['t0'], V['t1']
    p(f"v_bfe_u32 v{t0}, v{l}, 4, 1")
    p(f"v_lshlrev_b32 v{t0}, 1, v{t0}")
    if par: p(f"v_or_b32 v{t0}, 4, v{t0}")
    p(f"v_and_b32 v{t1}, 7, v{l}")
    p(f"v_xor_b32 v{t0}, v{t0}, v{t1}")
    p(f"v_lshlrev_b32 v{t0}, 4, v{t0}")
    p(f"v_lshrrev_b32 v{t1}, 3, v{l}")
    p(f"v_mul_u32_u24 v{t1}, {pitch}, v{t1}")
    p(f"v_add_u32 v{dst}, v{t0}, v{t1}")

MF = "v_mfma_f32_16x16x32_bf16"

C1 = -2.0 * math.sqrt(2.0 / math.pi) * math.log2(math.e)
C2 = C1 * 0.044715

def gen_k1(p, cfg):
    name = "k1_kernel"
    NS, NPS = cfg["k1_ns"], cfg["k1_nps"]
    STG = 24576
    WIN = 49152
    nwin = (NS * STG + WIN - 1) // WIN
    kernel_head(p, name)
    p("s_cmp_ge_u32 s2, 256"); p("s_cbranch_scc1 k1_end")
    load_ptrs(p)
    V = dict(lane=1, t0=2, t1=3, t2=4)
    ACC = 64
    V_VP = 8
    V_VD = 12
    V_AK = 20
    V_AT = 24
    V_BIAS = 32
    A_P = 0
    A_S = NPS * 16
    S_SRDP = 4
    S_SRDS = 44
    S_SOFF = 68
    S_DLT = 74
    S_KP = 80
    S_M0B = 81
    S_CNT = 82
    S_MT, S_NT, S_N0 = 83, 84, 85
    S_T = 86
    lane_consts(p, V)
    p("s_and_b32 s86, s2, 7"); p("s_lshr_b32 s87, s2, 3")
    p("s_and_b32 s88, s86, 1"); p("s_lshl_b32 s88, s88, 2"); p("s_and_b32 s89, s87, 3"); p(f"s_add_u32 s{S_MT}, s88, s89")
    p("s_lshr_b32 s88, s86, 1"); p("s_lshr_b32 s89, s87, 2"); p("s_lshl_b32 s89, s89, 2"); p(f"s_add_u32 s{S_NT}, s88, s89")
    p(f"s_mul_i32 s{S_N0}, s{S_NT}, 176")
    p(f"s_mul_i32 s{S_M0B}, s3, 6144")
    p(f"s_mov_b32 s{S_KP}, 0")
    p(f"s_lshl_b32 s86, s{S_MT}, 4"); p("s_lshl_b32 s87, s3, 2"); p("s_add_u32 s86, s86, s87"); p("s_lshl_b32 s86, s86, 15")
    p(f"v_lshlrev_b32 v{V_VP}, 4, v1"); p(f"v_add_u32 v{V_VP}, s86, v{V_VP}")
    for i in range(1, 4): p(f"v_add_u32 v{V_VP+i}, {32768*i}, v{V_VP}")
    p("s_waitcnt lgkmcnt(0)")
    srd(p, S_SRDP, S_WS, S_WS + 1, XF_SZ, XF_OFF)
    p(f"s_cmp_lt_u32 s{S_NT}, 11"); p("s_cbranch_scc1 k1_typeD")
    p(f"s_cmp_eq_u32 s{S_NT}, 11"); p("s_cbranch_scc1 k1_typeM")
    p("s_branch k1_typeW")

    def slot_D(i, pv):
        d = S_SRDS + 4 * i
        p(f"s_lshl_b32 s87, s86, 3"); p(f"s_add_u32 s87, s87, s{S_N0}")
        p("s_cmp_lt_u32 s87, 1024")
        p(f"s_cselect_b32 s{d}, s{S_DR}, s{S_DI}"); p(f"s_cselect_b32 s{d+1}, s{S_DR+1}, s{S_DI+1}")
        p(f"s_mov_b32 s{d+2}, 2097152"); p(f"s_mov_b32 s{d+3}, 0x20000")
        p("s_and_b32 s87, s87, 1023"); p("s_lshl_b32 s87, s87, 11")
        p(f"v_add_u32 v{V_VD+i}, s87, v{pv[i&1]}")
        p(f"s_mov_b32 s{S_SOFF+i}, 0"); p(f"s_mov_b32 s{S_DLT+i}, 128")
    def slot_dummy(i):
        d = S_SRDS + 4 * i
        p(f"s_mov_b32 s{d}, s{S_W1}"); p(f"s_mov_b32 s{d+1}, s{S_W1+1}")
        p(f"s_mov_b32 s{d+2}, 0"); p(f"s_mov_b32 s{d+3}, 0x20000")
        p(f"v_mov_b32 v{V_VD+i}, 0")
        p(f"s_mov_b32 s{S_SOFF+i}, 0"); p(f"s_mov_b32 s{S_DLT+i}, 0")

    def dmas(stage):
        out = []
        for i in range(6):
            pre = [f"s_add_u32 m0, s{S_M0B}, {(stage % NS) * STG + 1024 * i}"]
            if stage > 0: pre.insert(0, f"s_add_u32 s{S_SOFF+i}, s{S_SOFF+i}, s{S_DLT+i}")
            d = S_SRDS + 4 * i
            out.append((pre, f"buffer_load_dwordx4 v{V_VD+i}, s[{d}:{d+3}], s{S_SOFF+i} offen lds"))
        return out
    def privs(kappa):
        out = []
        for i in range(4):
            pre = []
            if i == 0 and kappa % 4 == 0 and kappa > 0: pre = [f"s_add_u32 s{S_KP}, s{S_KP}, 4096"]
            a = A_P + (kappa % NPS) * 16 + 4 * i
            out.append((pre, f"buffer_load_dwordx4 {ar(a,4)}, v{V_VP+i}, s[{S_SRDP}:{S_SRDP+3}], s{S_KP} offen offset:{(kappa%4)*1024}"))
        return out
    def make(blocks):
        def reads(kappa):
            s, kk = divmod(kappa, 2)
            ring = (s % NS) * STG
            out = []
            for b, bl in enumerate(blocks):
                a = A_S + kk * 44 + 4 * b
                if bl[0] == 'K':
                    off = ring + bl[1]; w = off // WIN
                    out.append(f"ds_read_b128 {ar(a,4)}, v{V_AK+2*w+kk} offset:{off - w*WIN}")
                else:
                    for hh in range(2):
                        off = ring + bl[4] + kk * bl[2] + hh * bl[3]; w = off // WIN
                        out.append(f"ds_read_b64_tr_b16 {ar(a+2*hh,2)}, v{V_AT+4*w+bl[1]} offset:{off - w*WIN}")
            return out
        def mfmas(kappa):
            kk = kappa % 2
            out = []
            for b, bl in enumerate(blocks):
                for i in range(4):
                    acc = ACC + (b * 4 + i) * 4
                    S = ar(A_S + kk * 44 + 4 * b, 4); P = ar(A_P + (kappa % NPS) * 16 + 4 * i, 4)
                    c = vr(acc, 4) if kappa > 0 else "0"
                    if bl[0] == 'K': out.append(f"{MF} {vr(acc,4)}, {P}, {S}, {c}")
                    else: out.append(f"{MF} {vr(acc,4)}, {S}, {P}, {c}")
            return out
        return reads, mfmas

    def epi_D(blocks_idx):
        srd(p, 8, S_WS, S_WS + 1, ABF_SZ, ABF_OFF)
        p("v_lshrrev_b32 v2, 4, v1"); p("v_and_b32 v3, 1, v2"); p("v_lshlrev_b32 v3, 1, v3"); p("v_lshrrev_b32 v2, 1, v2")
        p("v_or_b32 v2, v2, v3"); p("v_lshlrev_b32 v2, 8, v2"); p("v_and_b32 v3, 15, v1"); p("v_lshl_add_u32 v2, v3, 4, v2")
        p(f"s_lshl_b32 s86, s{S_MT}, 3"); p("s_lshl_b32 s87, s3, 1"); p("s_add_u32 s86, s86, s87"); p("s_lshl_b32 s86, s86, 10")
        p("v_add_u32 v2, s86, v2")
        for b in blocks_idx:
            p(f"s_add_u32 s87, s{S_N0}, {16*b}")
            p("s_lshr_b32 s88, s87, 10"); p("s_lshl_b32 s88, s88, 16")
            p("s_and_b32 s87, s87, 1023"); p("s_lshl_b32 s87, s87, 13")
            p("s_add_u32 s87, s87, s88")
            for m in range(2):
                a0 = ACC + (b * 4 + 2 * m) * 4; a1 = a0 + 4
                t = 8 + 4 * m
                p(f"v_cvt_pk_bf16_f32 v{t}, v{a0}, v{a0+1}"); p(f"v_cvt_pk_bf16_f32 v{t+1}, v{a0+2}, v{a0+3}")
                p(f"v_cvt_pk_bf16_f32 v{t+2}, v{a1}, v{a1+1}"); p(f"v_cvt_pk_bf16_f32 v{t+3}, v{a1+2}, v{a1+3}")
            p("s_nop 1")
            for m in range(2):
                t = 8 + 4 * m
                p(f"v_permlane16_swap_b32 v{t}, v{t+2}"); p(f"v_permlane16_swap_b32 v{t+1}, v{t+3}")
            for m in range(2):
                t = 8 + 4 * m
                p(f"buffer_store_dwordx4 v[{t}:{t+3}], v2, s[8:11], s87 offen offset:{1024*m}")
            p("s_nop 1")

    def bias_load(blocks_idx, f0_sgpr):
        srd(p, 12, S_B1, S_B1 + 1, 7168)
        p("v_lshrrev_b32 v2, 4, v1"); p("v_lshlrev_b32 v2, 3, v2")
        p(f"s_lshl_b32 s86, s{f0_sgpr}, 1"); p("v_add_u32 v2, s86, v2")
        for n, b in enumerate(blocks_idx):
            p(f"buffer_load_dwordx2 v[{V_BIAS+2*n}:{V_BIAS+2*n+1}], v2, s[12:15], 0 offen offset:{32*n}")

    def gelu8(src, bias, T):
        n = len(src)
        U_ = T + 4; W_ = T + 4 + n; Pk = T
        for i in range(n // 2): p(f"v_cvt_pk_bf16_f32 v{Pk+i}, v{src[2*i]}, v{src[2*i+1]}")
        for i in range(n // 2):
            p(f"v_lshlrev_b32 v{U_+2*i}, 16, v{Pk+i}"); p(f"v_and_b32 v{U_+2*i+1}, 0xffff0000, v{Pk+i}")
        for i in range(n): p(f"v_add_f32 v{U_+i}, v{U_+i}, v{bias[i]}")
        for i in range(n // 2): p(f"v_cvt_pk_bf16_f32 v{Pk+i}, v{U_+2*i}, v{U_+2*i+1}")
        for i in range(n // 2):
            p(f"v_lshlrev_b32 v{U_+2*i}, 16, v{Pk+i}"); p(f"v_and_b32 v{U_+2*i+1}, 0xffff0000, v{Pk+i}")
        for i in range(n): p(f"v_mul_f32 v{W_+i}, v{U_+i}, v{U_+i}")
        for i in range(n): p(f"v_fma_f32 v{W_+i}, v{W_+i}, s90, v5")
        for i in range(n): p(f"v_mul_f32 v{W_+i}, v{W_+i}, v{U_+i}")
        for i in range(n): p(f"v_exp_f32 v{W_+i}, v{W_+i}")
        for i in range(n): p(f"v_add_f32 v{W_+i}, 1.0, v{W_+i}")
        for i in range(n): p(f"v_rcp_f32 v{W_+i}, v{W_+i}")
        for i in range(n): p(f"v_mul_f32 v{W_+i}, v{W_+i}, v{U_+i}")
        for i in range(n // 2): p(f"v_cvt_pk_bf16_f32 v{Pk+i}, v{W_+2*i}, v{W_+2*i+1}")

    def epi_W(blocks_idx, f0_sgpr):
        srd(p, 8, S_WS, S_WS + 1, HF_SZ, HF_OFF)
        p(f"s_mov_b32 s90, {hex(f2u(C2))}"); p(f"v_mov_b32 v5, {hex(f2u(C1))}")
        p("v_lshrrev_b32 v2, 4, v1"); p("v_and_b32 v3, 1, v2"); p("v_lshlrev_b32 v3, 4, v3"); p("v_lshrrev_b32 v4, 1, v2")
        p("v_lshl_add_u32 v3, v4, 3, v3"); p(f"v_add_u32 v3, s{f0_sgpr}, v3")
        p("v_lshrrev_b32 v4, 5, v3"); p("v_lshlrev_b32 v4, 10, v4"); p("v_bfe_u32 v3, v3, 3, 2"); p("v_lshl_add_u32 v4, v3, 8, v4")
        p("v_and_b32 v3, 15, v1"); p("v_lshl_add_u32 v6, v3, 4, v4")
        nb = len(blocks_idx)
        if nb % 2:
            p(f"v_lshlrev_b32 v4, 2, v2"); p(f"v_add_u32 v4, s{f0_sgpr}, v4"); p(f"v_add_u32 v4, {16*(nb-1)}, v4")
            p("v_lshrrev_b32 v7, 5, v4"); p("v_lshlrev_b32 v7, 10, v7"); p("v_bfe_u32 v2, v4, 3, 2"); p("v_lshl_add_u32 v7, v2, 8, v7")
            p("v_bfe_u32 v2, v4, 2, 1"); p("v_lshl_add_u32 v7, v2, 3, v7"); p("v_lshl_add_u32 v7, v3, 4, v7")
        p(f"s_lshl_b32 s86, s{S_MT}, 4"); p("s_lshl_b32 s87, s3, 2"); p("s_add_u32 s86, s86, s87"); p("s_mul_i32 s86, s86, 114688")
        BF = 240
        T0 = 8
        for n0 in range(0, nb, 2):
            pair = blocks_idx[n0:n0 + 2]
            for k_, b in enumerate(pair):
                for h in range(2):
                    p(f"v_lshlrev_b32 v{BF+4*k_+2*h}, 16, v{V_BIAS+2*(n0+k_)+h}")
                    p(f"v_and_b32 v{BF+4*k_+2*h+1}, 0xffff0000, v{V_BIAS+2*(n0+k_)+h}")
            for i in range(4):
                src = []; bs = []
                for k_, b in enumerate(pair):
                    src += [ACC + (b * 4 + i) * 4 + r for r in range(4)]
                    bs += [BF + 4 * k_ + r for r in range(4)]
                gelu8(src, bs, T0)
                p(f"s_add_u32 s87, s86, {114688*i + 1024*(n0//2) if len(pair)==2 else 114688*i}")
                if len(pair) == 2:
                    p("s_nop 0")
                    p(f"v_permlane16_swap_b32 v{T0}, v{T0+2}"); p(f"v_permlane16_swap_b32 v{T0+1}, v{T0+3}")
                    p(f"buffer_store_dwordx4 v[{T0}:{T0+3}], v6, s[8:11], s87 offen")
                else:
                    p(f"buffer_store_dwordx2 v[{T0}:{T0+1}], v7, s[8:11], s87 offen")
                p("s_nop 1")

    p.label("k1_typeD")
    voffK_lane(p, V, 5, 2048, 0); voffK_lane(p, V, 6, 2048, 1)
    for i in range(6):
        p(f"s_mul_i32 s86, s3, 6"); p(f"s_add_u32 s86, s86, {i}")
        if i >= 4:
            lab = p.newlabel("k1d"); lab2 = p.newlabel("k1d")
            p("s_cmp_ge_u32 s86, 22"); p(f"s_cbranch_scc1 {lab}")
            slot_D(i, (5, 6)); p(f"s_branch {lab2}")
            p.label(lab); slot_dummy(i); p.label(lab2)
        else:
            slot_D(i, (5, 6))
    for w in range(nwin): addrK_setup(p, V, V_AK + 2 * w, V_AK + 2 * w + 1, w * WIN)
    blocks = [('K', 2048 * b) for b in range(11)]
    reads, mfmas = make(blocks)
    gemm_mainloop(p, "k1d", 16, NS, NPS, S_CNT, mfmas, reads, dmas, privs)
    p("s_nop 7"); p("s_nop 7")
    epi_D(range(11))
    p("s_endpgm")
    p.label("k1_typeW")
    p(f"s_sub_u32 s91, s{S_N0}, 2048")
    bias_load(range(11), 91)
    for i in range(6):
        rho, tp = i % 3, (i // 3) & 1
        d = S_SRDS + 4 * i
        p(f"v_add_u32 v2, {64*rho}, v1")
        p("v_mul_u32_u24 v3, 2731, v2"); p("v_lshrrev_b32 v3, 16, v3")
        p("v_mul_u32_u24 v4, 24, v3"); p("v_sub_u32 v2, v2, v4")
        p("v_bfe_u32 v4, v3, 1, 1"); p("v_lshlrev_b32 v4, 1, v4")
        if tp: p("v_or_b32 v4, 4, v4")
        p("v_xor_b32 v2, v2, v4")
        p("v_mul_u32_u24 v3, 7168, v3"); p("v_lshl_add_u32 v3, v2, 4, v3")
        p(f"s_lshl_b32 s86, s3, 1"); p(f"s_add_u32 s86, s86, {i//3}"); p("s_mul_i32 s86, s86, 57344")
        p("s_lshl_b32 s87, s91, 1"); p("s_add_u32 s86, s86, s87")
        p("v_add_u32 v3, s86, v3")
        p("v_cmp_gt_u32 vcc, 22, v2")
        p("v_mov_b32 v4, 0x80000000")
        p("s_nop 0")
        p(f"v_cndmask_b32 v{V_VD+i}, v4, v3, vcc")
        p(f"s_mov_b32 s{d}, s{S_W1}"); p(f"s_mov_b32 s{d+1}, s{S_W1+1}"); p(f"s_mov_b32 s{d+2}, 7340032"); p(f"s_mov_b32 s{d+3}, 0x20000")
        p(f"s_mov_b32 s{S_SOFF+i}, 0"); p(f"s_mov_b32 s{S_DLT+i}, {64*7168}")
    for w in range(nwin): addrT_setup(p, V, V_AT + 4 * w, 384, w * WIN)
    blocks = [('T', b & 3, 32 * 384, 4 * 384, (b >> 2) * 128) for b in range(11)]
    reads, mfmas = make(blocks)
    gemm_mainloop(p, "k1w", 16, NS, NPS, S_CNT, mfmas, reads, dmas, privs)
    p("s_nop 7"); p("s_nop 7")
    epi_W(list(range(11)), 91)
    p("s_endpgm")
    p.label("k1_typeM")
    p("s_mov_b32 s91, 0")
    bias_load(range(4), 91)
    voffK_lane(p, V, 5, 2048, 0); voffK_lane(p, V, 6, 2048, 1)
    voffT8_lane(p, V, 7, 7168, 0); voffT8_lane(p, V, 18, 7168, 1)
    for i in range(6):
        d = S_SRDS + 4 * i
        l1 = p.newlabel("k1m"); l2 = p.newlabel("k1m"); l3 = p.newlabel("k1m")
        p(f"s_mul_i32 s86, s3, 6"); p(f"s_add_u32 s86, s86, {i}")
        p("s_cmp_ge_u32 s86, 22"); p(f"s_cbranch_scc1 {l2}")
        p("s_cmp_ge_u32 s86, 14"); p(f"s_cbranch_scc1 {l1}")
        slot_D(i, (5, 6)); p(f"s_branch {l3}")
        p.label(l1)
        p("s_sub_u32 s87, s86, 14"); p("s_mul_i32 s87, s87, 57344")
        p(f"v_add_u32 v{V_VD+i}, s87, v{(7, 18)[i & 1]}")
        p(f"s_mov_b32 s{d}, s{S_W1}"); p(f"s_mov_b32 s{d+1}, s{S_W1+1}"); p(f"s_mov_b32 s{d+2}, 7340032"); p(f"s_mov_b32 s{d+3}, 0x20000")
        p(f"s_mov_b32 s{S_SOFF+i}, 0"); p(f"s_mov_b32 s{S_DLT+i}, {64*7168}")
        p(f"s_branch {l3}")
        p.label(l2); slot_dummy(i)
        p.label(l3)
    for w in range(nwin):
        addrK_setup(p, V, V_AK + 2 * w, V_AK + 2 * w + 1, w * WIN)
        addrT_setup(p, V, V_AT + 4 * w, 128, w * WIN)
    blocks = [('K', 2048 * b) for b in range(7)] + [('T', b, 4096, 512, 14336) for b in range(4)]
    reads, mfmas = make(blocks)
    gemm_mainloop(p, "k1m", 16, NS, NPS, S_CNT, mfmas, reads, dmas, privs)
    p("s_nop 7"); p("s_nop 7")
    epi_D(range(7))
    epi_W([7, 8, 9, 10], 91)
    p.label("k1_end")
    p("s_endpgm")
    return name, 256 + A_S + 88, 102, 256

def gen_k2(p, cfg):
    name = "k2_kernel"
    NS, NPS = cfg["k2_ns"], cfg["k2_nps"]
    STG = 16384
    WIN = 65536
    nwin = (NS * STG + WIN - 1) // WIN
    kernel_head(p, name)
    p("s_cmp_ge_u32 s2, 256"); p("s_cbranch_scc1 k2_end")
    load_ptrs(p)
    V = dict(lane=1, t0=2, t1=3, t2=4)
    ACC = 128
    V_VP = 8; V_VD = 12; V_AK = 20; V_AT = 20
    A_P = 0; A_S = NPS * 8
    S_SRDP, S_SRDS = 4, 8
    S_SOFF, S_KP, S_M0B, S_CNT, S_TA, S_TB, S_TILE = 44, 45, 46, 47, 48, 49, 50
    lane_consts(p, V)
    p("s_and_b32 s86, s2, 7"); p("s_lshr_b32 s87, s2, 3")
    p("s_and_b32 s88, s86, 1"); p("s_lshl_b32 s88, s88, 2"); p("s_and_b32 s89, s87, 3"); p(f"s_add_u32 s{S_TA}, s88, s89")
    p("s_lshr_b32 s88, s86, 1"); p("s_and_b32 s88, s88, 1"); p("s_lshl_b32 s88, s88, 3"); p("s_lshr_b32 s89, s87, 2"); p(f"s_add_u32 s{S_TB}, s88, s89")
    p(f"s_lshl_b32 s{S_TILE}, s{S_TB}, 3"); p(f"s_add_u32 s{S_TILE}, s{S_TILE}, s{S_TA}")
    p(f"s_lshl_b32 s{S_M0B}, s3, 12")
    p(f"s_mov_b32 s{S_KP}, 0"); p(f"s_mov_b32 s{S_SOFF}, 0")
    p("s_waitcnt lgkmcnt(0)")
    p("s_cmp_ge_u32 s86, 4"); p("s_cbranch_scc1 k2_typeY")

    def privs(kappa):
        out = []
        for i in range(2):
            pre = []
            if i == 0 and kappa % 4 == 0 and kappa > 0: pre = [f"s_add_u32 s{S_KP}, s{S_KP}, 4096"]
            a = A_P + (kappa % NPS) * 8 + 4 * i
            out.append((pre, f"buffer_load_dwordx4 {ar(a,4)}, v{V_VP+i}, s[{S_SRDP}:{S_SRDP+3}], s{S_KP} offen offset:{(kappa%4)*1024}"))
        return out

    srd(p, S_SRDP, S_WS, S_WS + 1, HF_SZ, HF_OFF)
    srd(p, S_SRDS, S_W2, S_W2 + 1, 7340032)
    p(f"s_lshl_b32 s86, s{S_TB}, 3"); p("s_lshl_b32 s87, s3, 1"); p("s_add_u32 s86, s86, s87"); p("s_mul_i32 s86, s86, 114688")
    p(f"v_lshlrev_b32 v{V_VP}, 4, v1"); p(f"v_add_u32 v{V_VP}, s86, v{V_VP}"); p(f"v_add_u32 v{V_VP+1}, 114688, v{V_VP}")
    srd(p, 12, S_B2, S_B2 + 1, 2048)
    p("v_lshrrev_b32 v2, 4, v1"); p("v_lshlrev_b32 v2, 3, v2"); p(f"s_lshl_b32 s86, s{S_TA}, 8"); p("v_add_u32 v2, s86, v2")
    for di in range(8): p(f"buffer_load_dwordx2 v[{32+2*di}:{33+2*di}], v2, s[12:15], 0 offen offset:{32*di}")
    voffT8_lane(p, V, 5, 2048, 0); voffT8_lane(p, V, 6, 2048, 1)
    p("s_and_b32 s86, s3, 1"); p("s_lshl_b32 s86, s86, 16"); p("s_lshr_b32 s87, s3, 1"); p("s_lshl_b32 s87, s87, 7"); p("s_add_u32 s86, s86, s87")
    p(f"s_lshl_b32 s87, s{S_TA}, 8"); p("s_add_u32 s86, s86, s87")
    for i in range(4):
        p(f"v_add_u32 v{V_VD+i}, s86, v{5+(i&1)}")
        if i: p(f"v_add_u32 v{V_VD+i}, {16384*i}, v{V_VD+i}")
    for w in range(nwin): addrT_setup(p, V, V_AT + 4 * w, 128, w * WIN)
    def dmas_o(stage):
        out = []
        for i in range(4):
            pre = [f"s_add_u32 m0, s{S_M0B}, {(stage % NS) * STG + 1024 * i}"]
            if i == 0 and stage > 0: pre.insert(0, f"s_add_u32 s{S_SOFF}, s{S_SOFF}, 131072")
            out.append((pre, f"buffer_load_dwordx4 v{V_VD+i}, s[{S_SRDS}:{S_SRDS+3}], s{S_SOFF} offen lds"))
        return out
    def reads_o(kappa):
        s, kk = divmod(kappa, 2)
        out = []
        for b in range(8):
            for hh in range(2):
                off = (s % NS) * STG + (b >> 2) * 8192 + kk * 4096 + hh * 512; w = off // WIN
                out.append(f"ds_read_b64_tr_b16 {ar(A_S + kk*32 + 4*b + 2*hh, 2)}, v{V_AT+4*w+(b&3)} offset:{off - w*WIN}")
        return out
    def mfmas_o(kappa):
        kk = kappa % 2
        out = []
        for b in range(8):
            for i in range(2):
                acc = ACC + (b * 2 + i) * 4
                c = vr(acc, 4) if kappa > 0 else "0"
                out.append(f"{MF} {vr(acc,4)}, {ar(A_S+kk*32+4*b,4)}, {ar(A_P+(kappa%NPS)*8+4*i,4)}, {c}")
        return out
    gemm_mainloop(p, "k2o", 56, NS, NPS, S_CNT, mfmas_o, reads_o, dmas_o, privs, read_frac=cfg.get("k2o_rf", 0.7))
    p("s_nop 7"); p("s_nop 7")
    srd(p, 8, S_WS, S_WS + 1, G_SZ, G_OFF)
    srd(p, 12, S_WS, S_WS + 1, FL_SZ, FL_OFF)
    p(f"s_lshl_b32 s86, s{S_TILE}, 15"); p("s_lshl_b32 s87, s3, 11"); p("s_add_u32 s86, s86, s87")
    p("v_lshlrev_b32 v2, 4, v1"); p("v_add_u32 v2, s86, v2")
    p(f"s_mov_b32 s90, {hex(f2u(-math.log2(math.e)))}")
    BF = 56
    for m in range(4):
        for k_ in range(2):
            for h in range(2):
                p(f"v_lshlrev_b32 v{BF+4*k_+2*h}, 16, v{32+2*(2*m+k_)+h}")
                p(f"v_and_b32 v{BF+4*k_+2*h+1}, 0xffff0000, v{32+2*(2*m+k_)+h}")
        for sj in range(2):
            src = [ACC + ((2 * m + k_) * 2 + sj) * 4 + r for k_ in range(2) for r in range(4)]
            T = 64 + 24 * sj; U_ = T + 4; W_ = T + 12
            for i in range(4): p(f"v_cvt_pk_bf16_f32 v{T+i}, v{src[2*i]}, v{src[2*i+1]}")
            for i in range(4):
                p(f"v_lshlrev_b32 v{U_+2*i}, 16, v{T+i}"); p(f"v_and_b32 v{U_+2*i+1}, 0xffff0000, v{T+i}")
            for i in range(8): p(f"v_add_f32 v{U_+i}, v{U_+i}, v{BF+i}")
            for i in range(4): p(f"v_cvt_pk_bf16_f32 v{T+i}, v{U_+2*i}, v{U_+2*i+1}")
            for i in range(4):
                p(f"v_lshlrev_b32 v{U_+2*i}, 16, v{T+i}"); p(f"v_and_b32 v{U_+2*i+1}, 0xffff0000, v{T+i}")
            for i in range(8): p(f"v_mul_f32 v{W_+i}, s90, v{U_+i}")
            for i in range(8): p(f"v_exp_f32 v{W_+i}, v{W_+i}")
            for i in range(8): p(f"v_add_f32 v{W_+i}, 1.0, v{W_+i}")
            for i in range(8): p(f"v_rcp_f32 v{W_+i}, v{W_+i}")
            for i in range(8): p(f"v_mul_f32 v{W_+i}, v{W_+i}, v{U_+i}")
            for i in range(4): p(f"v_cvt_pk_bf16_f32 v{T+i}, v{W_+2*i}, v{W_+2*i+1}")
            p("s_nop 1")
            p(f"v_permlane16_swap_b32 v{T}, v{T+2}"); p(f"v_permlane16_swap_b32 v{T+1}, v{T+3}")
            p(f"s_mov_b32 s87, {8192*m + 1024*sj}")
            p(f"buffer_store_dwordx4 v[{T}:{T+3}], v2, s[8:11], s87 offen sc0 sc1")
    p("s_waitcnt vmcnt(0)")
    p("s_barrier")
    p("s_cmp_lg_u32 s3, 0"); p("s_cbranch_scc1 k2_end")
    p(f"s_lshl_b32 s86, s{S_TILE}, 7"); p("v_mov_b32 v2, s86"); p("v_mov_b32 v3, 1")
    p("v_cmp_eq_u32 vcc, 0, v1"); p("s_and_saveexec_b64 s[92:93], vcc")
    p("buffer_store_dword v3, v2, s[12:15], 0 offen sc0 sc1")
    p("s_endpgm")

    p.label("k2_typeY")
    srd(p, S_SRDP, S_WS, S_WS + 1, ABF_SZ, ABF_OFF)
    srd(p, S_SRDS, S_CR, S_CR + 1, 8388608)
    p(f"s_lshl_b32 s86, s{S_TA}, 3"); p("s_lshl_b32 s87, s3, 1"); p("s_add_u32 s86, s86, s87"); p("s_lshl_b32 s86, s86, 17")
    p(f"v_lshlrev_b32 v{V_VP}, 4, v1"); p(f"v_add_u32 v{V_VP}, s86, v{V_VP}"); p(f"v_add_u32 v{V_VP+1}, 131072, v{V_VP}")
    voffK_lane(p, V, 5, 4096, 0); voffK_lane(p, V, 6, 4096, 1)
    p(f"s_lshl_b32 s86, s{S_TB}, 7"); p("s_lshl_b32 s87, s3, 5"); p("s_add_u32 s86, s86, s87"); p("s_lshl_b32 s86, s86, 12")
    for i in range(4):
        p(f"v_add_u32 v{V_VD+i}, s86, v{5+(i&1)}")
        if i: p(f"v_add_u32 v{V_VD+i}, {32768*i}, v{V_VD+i}")
    for w in range(nwin): addrK_setup(p, V, V_AK + 2 * w, V_AK + 2 * w + 1, w * WIN)
    def dmas_y(stage):
        out = []
        for i in range(4):
            pre = [f"s_add_u32 m0, s{S_M0B}, {(stage % NS) * STG + 1024 * i}"]
            if i == 0 and stage > 0:
                if stage == 32:
                    pre = [f"s_mov_b32 s{S_SRDS}, s{S_CI}", f"s_mov_b32 s{S_SRDS+1}, s{S_CI+1}", f"s_mov_b32 s{S_SOFF}, 0"] + pre
                else:
                    pre.insert(0, f"s_add_u32 s{S_SOFF}, s{S_SOFF}, 128")
            out.append((pre, f"buffer_load_dwordx4 v{V_VD+i}, s[{S_SRDS}:{S_SRDS+3}], s{S_SOFF} offen lds"))
        return out
    def reads_y(kappa):
        s, kk = divmod(kappa, 2)
        out = []
        for b in range(8):
            off = (s % NS) * STG + 2048 * b; w = off // WIN
            out.append(f"ds_read_b128 {ar(A_S + kk*32 + 4*b, 4)}, v{V_AK+2*w+kk} offset:{off - w*WIN}")
        return out
    def mfmas_y(kappa):
        kk = kappa % 2
        out = []
        for b in range(8):
            for i in range(2):
                acc = ACC + (64 if kappa >= 64 else 0) + (i * 8 + b) * 4
                c = vr(acc, 4) if kappa not in (0, 64) else "0"
                out.append(f"{MF} {vr(acc,4)}, {ar(A_P+(kappa%NPS)*8+4*i,4)}, {ar(A_S+kk*32+4*b,4)}, {c}")
        return out
    gemm_mainloop(p, "k2y", 64, NS, NPS, S_CNT, mfmas_y, reads_y, dmas_y, privs, read_frac=cfg.get("k2y_rf", 0.7))
    srd(p, 4, S_X, S_X + 1, 4194304)
    srd(p, 8, S_WS, S_WS + 1, G_SZ, G_OFF)
    srd(p, 12, S_WS, S_WS + 1, FL_SZ, FL_OFF)
    srd(p, 52, S_OUT, S_OUT + 1, 4194304)
    p("v_lshrrev_b32 v2, 4, v1"); p("v_and_b32 v3, 1, v2"); p("v_lshlrev_b32 v3, 5, v3"); p("v_lshrrev_b32 v2, 1, v2"); p("v_lshl_add_u32 v3, v2, 4, v3")
    p("v_and_b32 v2, 15, v1"); p("v_lshl_add_u32 v3, v2, 11, v3")
    p(f"s_lshl_b32 s86, s{S_TB}, 18"); p(f"s_lshl_b32 s87, s{S_TA}, 8"); p("s_add_u32 s86, s86, s87"); p("s_lshl_b32 s87, s3, 6"); p("s_add_u32 s86, s86, s87")
    p("v_add_u32 v3, s86, v3")
    XR = 32
    GR = 64
    for tj in range(8):
        p(f"s_mov_b32 s87, {32768*tj}")
        p(f"buffer_load_dwordx4 v[{XR+4*tj}:{XR+4*tj+3}], v3, s[4:7], s87 offen")
    p(f"s_lshl_b32 s86, s{S_TILE}, 7"); p("v_mov_b32 v2, s86")
    p("s_cmp_lg_u32 s3, 0"); p("s_cbranch_scc1 k2y_polled")
    p.label("k2y_poll")
    p("buffer_load_dword v4, v2, s[12:15], 0 offen sc0 sc1")
    p("s_waitcnt vmcnt(0)")
    p("v_readfirstlane_b32 s87, v4")
    p("s_cmp_eq_u32 s87, 1"); p("s_cbranch_scc1 k2y_polled")
    p("s_sleep 2")
    p("s_branch k2y_poll")
    p.label("k2y_polled")
    p("s_barrier")
    p(f"s_lshl_b32 s86, s{S_TILE}, 15"); p("s_lshl_b32 s87, s3, 13"); p("s_add_u32 s86, s86, s87")
    p("v_lshlrev_b32 v2, 4, v1"); p("v_add_u32 v2, s86, v2")
    for tj in range(8):
        p(f"s_mov_b32 s87, {1024*tj}")
        p(f"buffer_load_dwordx4 v[{GR+4*tj}:{GR+4*tj+3}], v2, s[8:11], s87 offen sc0 sc1")
    for tj in range(8):
        T = 96; U_ = 100; W_ = 108
        sp = [ACC + (i * 8 + tj) * 4 + r for i in range(2) for r in range(4)]
        for i in range(4): p(f"v_cvt_pk_bf16_f32 v{T+i}, v{sp[2*i]}, v{sp[2*i+1]}")
        for i in range(4): p(f"v_cvt_pk_bf16_f32 v{T+20+i}, v{sp[2*i]+64}, v{sp[2*i+1]+64}")
        for i in range(4):
            p(f"v_lshlrev_b32 v{U_+2*i}, 16, v{T+i}"); p(f"v_and_b32 v{U_+2*i+1}, 0xffff0000, v{T+i}")
            p(f"v_lshlrev_b32 v{W_+2*i}, 16, v{T+20+i}"); p(f"v_and_b32 v{W_+2*i+1}, 0xffff0000, v{T+20+i}")
        for i in range(8): p(f"v_sub_f32 v{U_+i}, v{U_+i}, v{W_+i}")
        Y = sp[0]
        for i in range(4): p(f"v_cvt_pk_bf16_f32 v{Y+i}, v{U_+2*i}, v{U_+2*i+1}")
        p("s_nop 1")
        p(f"v_permlane16_swap_b32 v{Y}, v{Y+2}"); p(f"v_permlane16_swap_b32 v{Y+1}, v{Y+3}")
    p("s_waitcnt vmcnt(0)")
    for tj in range(8):
        Y = ACC + tj * 4
        U_ = 96; W_ = 104; X_ = 112; T = 120
        for i in range(4):
            p(f"v_lshlrev_b32 v{U_+2*i}, 16, v{Y+i}"); p(f"v_and_b32 v{U_+2*i+1}, 0xffff0000, v{Y+i}")
            p(f"v_lshlrev_b32 v{W_+2*i}, 16, v{GR+4*tj+i}"); p(f"v_and_b32 v{W_+2*i+1}, 0xffff0000, v{GR+4*tj+i}")
            p(f"v_lshlrev_b32 v{X_+2*i}, 16, v{XR+4*tj+i}"); p(f"v_and_b32 v{X_+2*i+1}, 0xffff0000, v{XR+4*tj+i}")
        for i in range(8): p(f"v_mul_f32 v{U_+i}, v{U_+i}, v{W_+i}")
        for i in range(4): p(f"v_cvt_pk_bf16_f32 v{T+i}, v{U_+2*i}, v{U_+2*i+1}")
        for i in range(4):
            p(f"v_lshlrev_b32 v{U_+2*i}, 16, v{T+i}"); p(f"v_and_b32 v{U_+2*i+1}, 0xffff0000, v{T+i}")
        for i in range(8): p(f"v_add_f32 v{U_+i}, v{U_+i}, v{X_+i}")
        for i in range(4): p(f"v_cvt_pk_bf16_f32 v{Y+i}, v{U_+2*i}, v{U_+2*i+1}")
        p(f"s_mov_b32 s87, {32768*tj}")
        p(f"buffer_store_dwordx4 v[{Y}:{Y+3}], v3, s[52:55], s87 offen")
    p.label("k2_end")
    p("s_endpgm")
    return name, 256 + A_S + 64, 102, 256

def generate(cfg, kernels=("k0", "k1", "k2")):
    p = Prog()
    body = Prog()
    info = []
    lds = {"k0": 0, "k1": cfg["k1_ns"] * 24576, "k2": cfg["k2_ns"] * 16384}
    blk = {"k0": 512, "k1": 256, "k2": 256}
    for k in ("k0", "k1", "k2"):
        info.append((k,) + {"k0": lambda: gen_k0(body), "k1": lambda: gen_k1(body, cfg), "k2": lambda: gen_k2(body, cfg)}[k]())
    out = []
    for k in kernels:
        out.append(f"; @launch kernel={k}_kernel grid=(256,1,1) block=({blk[k]},1,1) lds={lds[k]}")
    out.append('.amdgcn_target "amdgcn-amd-amdhsa--gfx950"')
    out.append(".text")
    out += body.L
    out.append('.section .rodata,"a"')
    for k, name, nfv, nfs, acc in info:
        out.append(".p2align 6")
        out.append(f".amdhsa_kernel {name}")
        out.append(f"  .amdhsa_next_free_vgpr {nfv}")
        out.append(f"  .amdhsa_next_free_sgpr {nfs}")
        out.append(f"  .amdhsa_accum_offset {acc}")
        out.append("  .amdhsa_group_segment_fixed_size 0")
        out.append("  .amdhsa_kernarg_size 104")
        out.append("  .amdhsa_user_sgpr_count 2")
        out.append("  .amdhsa_user_sgpr_kernarg_segment_ptr 1")
        out.append("  .amdhsa_system_sgpr_workgroup_id_x 1")
        out.append(".end_amdhsa_kernel")
    return "\n".join(out) + "\n"

DEFAULT = dict(k1_ns=4, k1_nps=8, k2_ns=8, k2_nps=16)

if __name__ == "__main__":
    cfg = dict(DEFAULT)
    fn = sys.argv[1] if len(sys.argv) > 1 else "full.s"
    for a in sys.argv[2:]:
        k, v = a.split("=")
        cfg[k] = float(v) if "." in v else int(v)
    open(fn, "w").write(generate(cfg))
```

```python
import sys, math, struct

KN = "recurrent_scan__spectral_fnet__dense_activation_gelu__prompt"

XF_OFF, XF_SZ = 0, 4 << 20
ABF_OFF, ABF_SZ = 4 << 20, 8 << 20
HF_OFF, HF_SZ = 12 << 20, 128 * 112 * 1024
G_OFF, G_SZ = 28 << 20, 4 << 20
FL_OFF, FL_SZ = 32 << 20, 128 * 128

def f2u(x):
    return struct.unpack("<I", struct.pack("<f", x))[0]

class Prog:
    def __init__(self):
        self.L = []
        self.uid = 0
    def __call__(self, s):
        self.L.append("    " + s)
    def label(self, s):
        self.L.append(s + ":")
    def raw(self, s):
        self.L.append(s)
    def newlabel(self, p="L"):
        self.uid += 1
        return f"{p}_{self.uid}"

def vr(b, n=1):
    return f"v{b}" if n == 1 else f"v[{b}:{b+n-1}]"
def ar(b, n=1):
    return f"a{b}" if n == 1 else f"a[{b}:{b+n-1}]"
def sr(b, n=1):
    return f"s{b}" if n == 1 else f"s[{b}:{b+n-1}]"

CFG = {}
class Op:
    __slots__ = ("kind", "text", "tag")
    def __init__(self, kind, text=None, tag=None):
        self.kind, self.text, self.tag = kind, text, tag

def gemm_mainloop(p, name, nstages, NS, NPS, s_cnt,
                  mfmas,
                  reads,
                  dmas,
                  privs,
                  extra=None,
                  read_frac=0.7, pf=None, hook=None, dma_first=None, st1=1, st2=2):
    U = NS * NPS // math.gcd(NS * 2, NPS) if (2 * NS) % NPS else NS
    U = NS
    while (2 * U) % NPS: U += NS
    if nstages % U: U = nstages
    PD = NPS - 1
    nk = 2 * nstages
    segs = []
    K0_ = -max(2 * NS, NPS)
    for kappa in range(K0_, nk):
        ops = []
        s, k = divmod(kappa, 2)
        head = []
        if kappa >= 0:
            head.append(Op("wait_vm", tag=("P", kappa)))
        if k == 1 and kappa >= -1 and s + 1 < nstages:
            head.append(Op("wait_vm", tag=("D", s + 1)))
        if kappa >= 0:
            head.append(Op("wait_lgkm0"))
        if k == 1 and kappa >= -1 and s + 1 < nstages:
            head.append(Op("barrier"))
        rd = [Op("lds", t) for t in reads(kappa + 1)] if 0 <= kappa + 1 < nk else []
        vm = []
        ds = s + NS if k == 1 else s - 1 + NS
        if 0 <= ds < nstages:
            d = dmas(ds)
            h = (len(d) + 1) // 2
            part = d[:h] if k == 1 else d[h:]
            for pre, t in part:
                vm.append(([Op("salu", x) for x in pre], Op("vm", t, ("D", ds))))
        pk = kappa + PD
        pv = []
        if 0 <= pk < nk:
            for pre, t in privs(pk):
                pv.append(([Op("salu", x) for x in pre], Op("vm", t, ("P", pk))))
        seq = []
        a, b = list(pv), list(vm)
        while a or b:
            if a: seq.append(a.pop(0))
            if b: seq.append(b.pop(0))
        if pf and kappa >= 0:
            for pre, t in pf(kappa):
                seq.append(([Op("salu", x) for x in pre], Op("vm", t, ("F", kappa))))
        ex = [Op("valu", t) for t in extra(kappa)] if (extra and kappa >= 0) else []
        mf = [Op("mfma", t) for t in mfmas(kappa)] if kappa >= 0 else []
        ops += head
        if not mf:
            for pre, v in seq:
                ops += pre
                if pre: ops.append(Op("salu", "s_nop 0"))
                ops.append(v)
            ops += rd
        else:
            n = len(mf)
            gaps = [[] for _ in range(n)]
            nr = len(rd)
            span = max(1, int(n * read_frac))
            for i, r in enumerate(rd):
                gaps[min(n - 1, (i * span) // max(1, nr))].append(r)
            nv = len(seq); lastg = -1
            for i, (pre, v) in enumerate(seq):
                g = 1 + ((2 * i + 1) * (n - 1)) // (2 * nv) if nv else 0
                g = min(n - 1, g)
                assert g != lastg; lastg = g
                gaps[g - 1] += pre
                gaps[g].append(v)
            for i, e in enumerate(ex):
                gaps[min(n - 1, (i * n) // len(ex))].append(e)
            for i in range(n):
                ops.append(mf[i])
                ops += gaps[i]
        if CFG.get("abl_nomfma"): ops = [o for o in ops if o.kind != "mfma"]
        if CFG.get("abl_nolds"): ops = [o for o in ops if o.kind != "lds"]
        if CFG.get("abl_nodma"): ops = [o for o in ops if not (o.kind in ("vm", "wait_vm") and o.tag[0] == "D")]
        if CFG.get("abl_nopriv"): ops = [o for o in ops if not (o.kind in ("vm", "wait_vm") and o.tag[0] == "P")]
        if CFG.get("abl_nobar"): ops = [o for o in ops if o.kind != "barrier"]
        segs.append(ops)
    if hook is not None:
        npro = -K0_ - 1
        dm, pv_ = [], []
        for ops in segs[:npro]:
            cur = []
            for o in ops:
                cur.append(o)
                if o.kind == "vm":
                    (dm if o.tag[0] == "D" else pv_).extend(cur); cur = []
            assert not cur
        segs[:npro] = [dm + [Op("hook")] + pv_] + [[] for _ in range(npro - 1)]
    vmq = []
    done_upto = 0
    lg_out = 0
    texts = []
    for ops in segs:
        out = []
        pend_vm = None; pend_lg = False
        def flush():
            nonlocal pend_vm, pend_lg
            if pend_vm is not None or pend_lg:
                t = "s_waitcnt"
                if pend_vm is not None: t += f" vmcnt({pend_vm})"
                if pend_lg: t += " lgkmcnt(0)"
                out.append(t)
            pend_vm = None; pend_lg = False
        for o in ops:
            if o.kind == "wait_vm":
                idx = max(i for i, t in enumerate(vmq) if t == o.tag) + 1
                if idx > done_upto:
                    done_upto = idx
                    N = len(vmq) - idx
                    assert N <= 63, N
                    pend_vm = N if pend_vm is None else min(pend_vm, N)
            elif o.kind == "wait_lgkm0":
                if lg_out:
                    pend_lg = True; lg_out = 0
            else:
                flush()
                if o.kind == "vm": vmq.append(o.tag)
                if o.kind == "lds": lg_out += 1
                out.append("s_barrier" if o.kind == "barrier" else ("@HOOK" if o.kind == "hook" else o.text))
        flush()
        texts.append(out)
    pro = texts[:-K0_]
    if hook is None: stamp(p, st1)
    for t in pro:
        for x in t:
            if x == "@HOOK":
                hook(); stamp(p, st1)
            else: p(x)
    body = texts[-K0_:]
    its = ["\n".join("\n".join(t) for t in body[2 * U * i:2 * U * (i + 1)]) for i in range(nstages // U)]
    i = 0
    while i < len(its):
        j = i
        while j + 1 < len(its) and its[j + 1] == its[i]: j += 1
        cnt = j - i + 1
        if cnt >= 2:
            lab = p.newlabel(name + "_loop")
            p(f"s_mov_b32 {sr(s_cnt)}, {cnt}")
            p.raw(".p2align 6")
            p.label(lab)
            for x in its[i].split("\n"): p(x)
            p(f"s_sub_u32 {sr(s_cnt)}, {sr(s_cnt)}, 1")
            p(f"s_cmp_lg_u32 {sr(s_cnt)}, 0")
            p(f"s_cbranch_scc1 {lab}")
        else:
            for x in its[i].split("\n"): p(x)
        i = j + 1
    stamp(p, st2)

TS_OFF = 40 << 20
def tsreg(i):
    return (98, 99, 100, 101, 42, 43)[i]
def stamp(p, idx):
    if not CFG.get("ts"): return
    p(f"s_memrealtime s[{96}:{97}]")
    p("s_waitcnt lgkmcnt(0)")
    p(f"v_writelane_b32 v255, s96, {idx}") if False else None
    p(f"s_mov_b32 s{tsreg(idx)}, s96")
    if idx in (1, 2) and CFG.get("ts_cbase") and not CFG.get("ts_noclk"):
        p("s_memtime s[96:97]"); p("s_waitcnt lgkmcnt(0)"); p(f"s_mov_b32 s{CFG['ts_cbase']+idx-1}, s96")
def stamp_store(p, kidx, n):
    if not CFG.get("ts"): return
    lab = p.newlabel("ts")
    p("s_cmp_lg_u32 s3, 0"); p(f"s_cbranch_scc1 {lab}")
    srd(p, 92, S_WS, S_WS + 1, 1 << 20, TS_OFF)
    p(f"s_lshl_b32 s96, s2, 5"); p(f"s_add_u32 s96, s96, {kidx * 8192}")
    p("v_mov_b32 v2, s96")
    p("s_mov_b64 exec, 1")
    for i in range(n):
        p(f"v_mov_b32 v3, s{tsreg(i)}")
        p(f"buffer_store_dword v3, v2, s[92:95], 0 offen offset:{4*i}")
    if CFG.get("ts_cbase") and not CFG.get("ts_noclk"):
        for i in range(2):
            p(f"v_mov_b32 v3, s{CFG['ts_cbase']+i}")
            p(f"buffer_store_dword v3, v2, s[92:95], 0 offen offset:{16+4*i}")
    p("s_mov_b64 exec, -1")
    p.label(lab)

def srd(p, d, lo, hi, size, add=0):
    if add:
        p(f"s_add_u32 {sr(d)}, {sr(lo)}, {add}")
        p(f"s_addc_u32 {sr(d+1)}, {sr(hi)}, 0")
    else:
        p(f"s_mov_b32 {sr(d)}, {sr(lo)}")
        p(f"s_mov_b32 {sr(d+1)}, {sr(hi)}")
    p(f"s_mov_b32 {sr(d+2)}, {size}")
    p(f"s_mov_b32 {sr(d+3)}, 0x20000")

def kernel_head(p, name):
    p.raw(f".globl {name}")
    p.raw(".p2align 8")
    p.raw(f".type {name},@function")
    p.label(name)

def load_ptrs(p):
    p("s_load_dwordx16 s[16:31], s[0:1], 0")
    p("s_load_dwordx8 s[32:39], s[0:1], 64")
    p("s_load_dwordx2 s[40:41], s[0:1], 96")
S_X, S_CR, S_CI, S_DR, S_DI, S_BX, S_W1, S_B1, S_W2, S_B2, S_OUT, S_DBG, S_WS = 16, 18, 20, 22, 24, 26, 28, 30, 32, 34, 36, 38, 40

def gen_k0(p):
    name = "k0_kernel"
    kernel_head(p, name)
    p("s_cmp_ge_u32 s2, 256"); p("s_cbranch_scc1 k0_end")
    load_ptrs(p)
    p("v_lshrrev_b32 v1, 6, v0")
    p("v_and_b32 v2, 63, v0")
    p("s_lshl_b32 s3, s2, 3")
    p("v_add_u32 v1, s3, v1")
    p("v_lshlrev_b32 v3, 11, v1")
    p("v_lshl_add_u32 v3, v2, 4, v3")
    p("s_waitcnt lgkmcnt(0)")
    stamp(p, 0); stamp(p, 1)
    srd(p, 4, S_X, S_X + 1, 4194304)
    srd(p, 8, S_WS, S_WS + 1, XF_SZ, XF_OFF)
    srd(p, 12, S_WS, S_WS + 1, FL_SZ, FL_OFF)
    p("buffer_load_dwordx4 v[8:11], v3, s[4:7], 0 offen")
    p("buffer_load_dwordx4 v[12:15], v3, s[4:7], 0 offen offset:1024")
    if CFG.get("pf0", 1) == 2:
        srd(p, 48, S_DR, S_DR + 1, 2097152); srd(p, 52, S_DI, S_DI + 1, 2097152); srd(p, 56, S_W1, S_W1 + 1, 7340032)
        p("v_lshlrev_b32 v60, 10, v1"); p("v_lshl_add_u32 v60, v2, 7, v60")
        p("v_mul_u32_u24 v61, 3584, v1"); p("v_lshl_add_u32 v61, v2, 7, v61")
        p("s_mov_b64 exec, 0xff")
        p("buffer_load_dword v64, v60, s[48:51], 0 offen")
        p("buffer_load_dword v65, v60, s[52:55], 0 offen")
        p("s_mov_b64 exec, 0xfffffff")
        p("buffer_load_dword v66, v61, s[56:59], 0 offen")
        p("s_mov_b64 exec, -1")
    elif CFG.get("pf0", 1):
        srd(p, 48, S_DR, S_DR + 1, 2097152); srd(p, 52, S_DI, S_DI + 1, 2097152); srd(p, 56, S_W1, S_W1 + 1, 7340032)
        p("v_lshlrev_b32 v60, 10, v1"); p("v_lshl_add_u32 v60, v2, 4, v60")
        p("v_mul_u32_u24 v61, 3584, v1"); p("v_lshl_add_u32 v61, v2, 4, v61")
        p("buffer_load_dwordx4 v[64:67], v60, s[48:51], 0 offen")
        p("buffer_load_dwordx4 v[68:71], v60, s[52:55], 0 offen")
        for i in range(3): p(f"buffer_load_dwordx4 v[{72+4*i}:{75+4*i}], v61, s[56:59], 0 offen offset:{1024*i}")
        p("v_cmp_gt_u32 vcc, 32, v2"); p("s_and_saveexec_b64 s[44:45], vcc")
        p("buffer_load_dwordx4 v[84:87], v61, s[56:59], 0 offen offset:3072")
        p("s_mov_b64 exec, s[44:45]")
    p("v_mov_b32 v40, 0")
    p("s_lshl_b32 s3, s2, 7")
    if CFG.get("k0_fullflag"):
        p("v_lshl_add_u32 v41, v0, 2, s3")
        p("v_cmp_gt_u32 vcc, 32, v0")
    else:
        p("v_mov_b32 v41, s3")
        p("v_cmp_eq_u32 vcc, 0, v0")
    p("s_and_saveexec_b64 s[44:45], vcc")
    p("s_cbranch_execz k0_nofl")
    p("buffer_store_dword v40, v41, s[12:15], 0 offen")
    p.label("k0_nofl")
    p("s_mov_b64 exec, s[44:45]")
    p("v_lshrrev_b32 v4, 4, v1"); p("v_lshlrev_b32 v4, 15, v4")
    p("v_lshrrev_b32 v5, 2, v2"); p("v_lshl_add_u32 v4, v5, 10, v4")
    p("v_and_b32 v5, 3, v2"); p("v_lshl_add_u32 v4, v5, 8, v4")
    p("v_and_b32 v5, 15, v1"); p("v_lshl_add_u32 v4, v5, 4, v4")
    npf = {0: 0, 1: 6, 2: 3}[CFG.get("pf0", 1)]
    p(f"s_waitcnt vmcnt({npf+1})")
    for i in range(4):
        p(f"v_lshlrev_b32 v{16+2*i}, 16, v{8+i}"); p(f"v_and_b32 v{17+2*i}, 0xffff0000, v{8+i}")
    p(f"s_waitcnt vmcnt({npf})")
    for i in range(4, 8):
        p(f"v_lshlrev_b32 v{16+2*i}, 16, v{8+i}"); p(f"v_and_b32 v{17+2*i}, 0xffff0000, v{8+i}")
    def wave_sum(src, tmp, sbase):
        for ctl in ("quad_perm:[1,0,3,2]", "quad_perm:[2,3,0,1]", "row_half_mirror", "row_mirror"):
            p("s_nop 1")
            p(f"v_add_f32_dpp v{tmp}, v{src}, v{src} {ctl} row_mask:0xf bank_mask:0xf")
            p(f"v_mov_b32 v{src}, v{tmp}")
        p("s_nop 0")
        for i in range(4): p(f"v_readlane_b32 s{sbase+i}, v{src}, {16*i}")
        p("s_nop 1")
        p(f"v_mov_b32 v{src}, s{sbase}")
        for i in range(1, 4): p(f"v_add_f32 v{src}, s{sbase+i}, v{src}")
    p("v_add_f32 v32, v16, v17")
    for i in range(1, 8): p(f"v_add_f32 v{32+i}, v{16+2*i}, v{17+2*i}")
    for st in (4, 2, 1):
        for i in range(st): p(f"v_add_f32 v{32+i}, v{32+i}, v{32+i+st}")
    wave_sum(32, 33, 46)
    p(f"v_mul_f32 v32, {hex(f2u(1.0/1024))}, v32")
    for i in range(16):
        p(f"v_sub_f32 v{44+i}, v{16+i}, v32")
    for i in range(8):
        p(f"v_mul_f32 v{34+i}, v{44+2*i}, v{44+2*i}")
        p(f"v_fmac_f32 v{34+i}, v{45+2*i}, v{45+2*i}")
    for st in (4, 2, 1):
        for i in range(st): p(f"v_add_f32 v{34+i}, v{34+i}, v{34+i+st}")
    wave_sum(34, 35, 46)
    p(f"v_mul_f32 v34, {hex(f2u(1.0/1024))}, v34")
    p("v_cvt_pk_bf16_f32 v35, v32, v34")
    p("v_lshlrev_b32 v32, 16, v35")
    p("v_and_b32 v34, 0xffff0000, v35")
    p(f"v_add_f32 v34, {hex(f2u(1e-5))}, v34")
    p("v_cvt_pk_bf16_f32 v34, v34, v34")
    p("v_lshlrev_b32 v34, 16, v34")
    p("v_sqrt_f32 v34, v34")
    p("s_nop 0")
    p("v_cvt_pk_bf16_f32 v34, v34, v34")
    p("v_lshlrev_b32 v34, 16, v34")
    p("v_rcp_f32 v35, v34")
    for i in range(16): p(f"v_sub_f32 v{16+i}, v{16+i}, v32")
    for i in range(8): p(f"v_cvt_pk_bf16_f32 v{8+i}, v{16+2*i}, v{17+2*i}")
    for i in range(8):
        p(f"v_lshlrev_b32 v{16+2*i}, 16, v{8+i}"); p(f"v_and_b32 v{17+2*i}, 0xffff0000, v{8+i}")
    for i in range(16): p(f"v_mul_f32 v{44+i}, v{16+i}, v35")
    for i in range(16): p(f"v_fma_f32 v{16+i}, -v{44+i}, v34, v{16+i}")
    for i in range(16): p(f"v_fmac_f32 v{44+i}, v{16+i}, v35")
    for i in range(8): p(f"v_cvt_pk_bf16_f32 v{8+i}, v{44+2*i}, v{45+2*i}")
    p("v_add_u32 v5, 0x4000, v4")
    stamp(p, 2)
    p("buffer_store_dwordx4 v[8:11], v4, s[8:11], 0 offen")
    p("buffer_store_dwordx4 v[12:15], v5, s[8:11], 0 offen")
    if CFG.get("ts"):
        p("s_waitcnt vmcnt(0)"); p("s_barrier")
        p("v_lshrrev_b32 v1, 6, v0"); p("s_nop 0"); p("v_readfirstlane_b32 s3, v1")
    stamp(p, 3); stamp_store(p, 0, 4)
    p.label("k0_end")
    p("s_endpgm")
    return name, 88, 102, 88

def lane_consts(p, V):
    p(f"v_and_b32 v{V['lane']}, 63, v0")
    p(f"v_lshrrev_b32 v{V['t0']}, 6, v0")
    p("s_nop 0")
    p(f"v_readfirstlane_b32 s3, v{V['t0']}")

def addrK_setup(p, V, dst0, dst1, base):
    l, t0, t1 = V['lane'], V['t0'], V['t1']
    p(f"v_and_b32 v{t0}, 15, v{l}")
    p(f"v_lshrrev_b32 v{t1}, 1, v{t0}")
    p(f"v_lshrrev_b32 v{dst0}, 4, v{l}")
    p(f"v_xor_b32 v{t1}, v{t1}, v{dst0}")
    p(f"v_lshlrev_b32 v{t1}, 4, v{t1}")
    p(f"v_lshl_add_u32 v{dst0}, v{t0}, 7, v{t1}")
    if base: p(f"v_add_u32 v{dst0}, {base}, v{dst0}")
    p(f"v_xor_b32 v{dst1}, 64, v{dst0}")

def addrT_setup(p, V, dst4, kpitch, base):
    l, t0, t1, t2 = V['lane'], V['t0'], V['t1'], V['t2']
    p(f"v_lshrrev_b32 v{t0}, 4, v{l}")
    p(f"v_bfe_u32 v{t1}, v{l}, 2, 2")
    p(f"v_lshl_add_u32 v{t2}, v{t0}, 3, v{t1}")
    p(f"v_mul_u32_u24 v{t2}, {kpitch}, v{t2}")
    p(f"v_and_b32 v{t0}, 1, v{t0}"); p(f"v_lshlrev_b32 v{t0}, 1, v{t0}")
    p(f"v_lshrrev_b32 v{t1}, 1, v{t1}"); p(f"v_or_b32 v{t0}, v{t0}, v{t1}")
    p(f"v_lshlrev_b32 v{t0}, 5, v{t0}")
    p(f"v_bfe_u32 v{t1}, v{l}, 1, 1"); p(f"v_lshlrev_b32 v{t1}, 4, v{t1}")
    p(f"v_or_b32 v{t0}, v{t0}, v{t1}")
    p(f"v_and_b32 v{t1}, 1, v{l}"); p(f"v_lshl_add_u32 v{t2}, v{t1}, 3, v{t2}")
    if base: p(f"v_add_u32 v{t2}, {base}, v{t2}")
    for b in range(4):
        p(f"v_xor_b32 v{t1}, {32*b}, v{t0}")
        p(f"v_add_u32 v{dst4+b}, v{t1}, v{t2}")

def voffK_lane(p, V, dst, pitch, par):
    l, t0, t1 = V['lane'], V['t0'], V['t1']
    p(f"v_lshrrev_b32 v{t0}, 4, v{l}")
    if par: p(f"v_or_b32 v{t0}, 4, v{t0}")
    p(f"v_and_b32 v{t1}, 7, v{l}")
    p(f"v_xor_b32 v{t0}, v{t0}, v{t1}")
    p(f"v_lshlrev_b32 v{t0}, 4, v{t0}")
    p(f"v_lshrrev_b32 v{t1}, 3, v{l}")
    p(f"v_mul_u32_u24 v{t1}, {pitch}, v{t1}")
    p(f"v_add_u32 v{dst}, v{t0}, v{t1}")

def voffT8_lane(p, V, dst, pitch, par):
    l, t0, t1 = V['lane'], V['t0'], V['t1']
    p(f"v_bfe_u32 v{t0}, v{l}, 4, 1")
    p(f"v_lshlrev_b32 v{t0}, 1, v{t0}")
    if par: p(f"v_or_b32 v{t0}, 4, v{t0}")
    p(f"v_and_b32 v{t1}, 7, v{l}")
    p(f"v_xor_b32 v{t0}, v{t0}, v{t1}")
    p(f"v_lshlrev_b32 v{t0}, 4, v{t0}")
    p(f"v_lshrrev_b32 v{t1}, 3, v{l}")
    p(f"v_mul_u32_u24 v{t1}, {pitch}, v{t1}")
    p(f"v_add_u32 v{dst}, v{t0}, v{t1}")

MF = "v_mfma_f32_16x16x32_bf16"

C1 = -2.0 * math.sqrt(2.0 / math.pi) * math.log2(math.e)
C2 = C1 * 0.044715

def gen_k1(p, cfg):
    name = "k1_kernel"
    NS, NPS = cfg["k1_ns"], cfg["k1_nps"]
    STG = 24576
    WIN = 49152
    nwin = (NS * STG + WIN - 1) // WIN
    kernel_head(p, name)
    p("s_cmp_ge_u32 s2, 256"); p("s_cbranch_scc1 k1_end")
    load_ptrs(p)
    V = dict(lane=1, t0=2, t1=3, t2=4)
    ACC = 64
    V_VP = 8
    V_VD = 12
    V_AK = 20
    V_AT = 24
    V_BIAS = 32
    A_P = 0
    A_S = NPS * 16
    S_SRDP = 4
    S_SRDS = 44
    S_SOFF = 68
    S_DLT = 74
    S_KP = 80
    S_M0B = 81
    S_CNT = 82
    S_MT, S_NT, S_N0 = 83, 84, 85
    S_T = 86
    lane_consts(p, V)
    p("s_and_b32 s86, s2, 7"); p("s_lshr_b32 s87, s2, 3")
    p("s_and_b32 s88, s86, 1"); p("s_lshl_b32 s88, s88, 2"); p("s_and_b32 s89, s87, 3"); p(f"s_add_u32 s{S_MT}, s88, s89")
    p("s_lshr_b32 s88, s86, 1"); p("s_lshr_b32 s89, s87, 2"); p("s_lshl_b32 s89, s89, 2"); p(f"s_add_u32 s{S_NT}, s88, s89")
    p(f"s_mul_i32 s{S_N0}, s{S_NT}, 176")
    p(f"s_mul_i32 s{S_M0B}, s3, 6144")
    p(f"s_mov_b32 s{S_KP}, 0")
    p(f"s_lshl_b32 s86, s{S_MT}, 4"); p("s_lshl_b32 s87, s3, 2"); p("s_add_u32 s86, s86, s87"); p("s_lshl_b32 s86, s86, 15")
    p(f"v_lshlrev_b32 v{V_VP}, 4, v1"); p(f"v_add_u32 v{V_VP}, s86, v{V_VP}")
    for i in range(1, 4): p(f"v_add_u32 v{V_VP+i}, {32768*i}, v{V_VP}")
    p("s_lshl_b32 s86, s2, 2"); p("s_add_u32 s86, s86, s3"); p("s_lshl_b32 s87, s86, 13"); p("s_mul_i32 s86, s86, 7168")
    p("v_lshlrev_b32 v55, 4, v1"); p("v_add_u32 v54, s87, v55"); p("v_add_u32 v55, s86, v55"); p("s_mov_b32 s92, 4096")
    p("s_waitcnt lgkmcnt(0)")
    stamp(p, 0)
    srd(p, S_SRDP, S_WS, S_WS + 1, XF_SZ, XF_OFF)
    p(f"s_cmp_lt_u32 s{S_NT}, 11"); p("s_cbranch_scc1 k1_typeD")
    p(f"s_cmp_eq_u32 s{S_NT}, 11"); p("s_cbranch_scc1 k1_typeM")
    p("s_branch k1_typeW")

    def slot_D(i, pv):
        d = S_SRDS + 4 * i
        p(f"s_lshl_b32 s87, s86, 3"); p(f"s_add_u32 s87, s87, s{S_N0}")
        p("s_cmp_lt_u32 s87, 1024")
        p(f"s_cselect_b32 s{d}, s{S_DR}, s{S_DI}"); p(f"s_cselect_b32 s{d+1}, s{S_DR+1}, s{S_DI+1}")
        p(f"s_mov_b32 s{d+2}, 2097152"); p(f"s_mov_b32 s{d+3}, 0x20000")
        p("s_and_b32 s87, s87, 1023"); p("s_lshl_b32 s87, s87, 11")
        p(f"v_add_u32 v{V_VD+i}, s87, v{pv[i&1]}")
        p(f"s_mov_b32 s{S_SOFF+i}, 0"); p(f"s_mov_b32 s{S_DLT+i}, 128")
    def slot_dummy(i):
        d = S_SRDS + 4 * i
        p(f"s_mov_b32 s{d}, s{S_W1}"); p(f"s_mov_b32 s{d+1}, s{S_W1+1}")
        p(f"s_mov_b32 s{d+2}, 0"); p(f"s_mov_b32 s{d+3}, 0x20000")
        p(f"v_mov_b32 v{V_VD+i}, 0")
        p(f"s_mov_b32 s{S_SOFF+i}, 0"); p(f"s_mov_b32 s{S_DLT+i}, 0")

    def dmas(stage):
        out = []
        for i in range(6):
            pre = [f"s_add_u32 m0, s{S_M0B}, {(stage % NS) * STG + 1024 * i}"]
            if stage > 0: pre.insert(0, f"s_add_u32 s{S_SOFF+i}, s{S_SOFF+i}, s{S_DLT+i}")
            d = S_SRDS + 4 * i
            out.append((pre, f"buffer_load_dwordx4 v{V_VD+i}, s[{d}:{d+3}], s{S_SOFF+i} offen lds"))
        return out
    def privs(kappa):
        out = []
        for i in range(4):
            pre = []
            if i == 0 and kappa % 4 == 0 and kappa > 0: pre = [f"s_add_u32 s{S_KP}, s{S_KP}, 4096"]
            a = A_P + (kappa % NPS) * 16 + 4 * i
            out.append((pre, f"buffer_load_dwordx4 {ar(a,4)}, v{V_VP+i}, s[{S_SRDP}:{S_SRDP+3}], s{S_KP} offen offset:{(kappa%4)*1024}"))
        return out
    def pf(kappa):
        if not cfg.get("pf1", 1): return []
        j = kappa - cfg.get("pf1_start", 0)
        if j < 0 or j >= 23: return []
        m, jj = (0, j) if j < 8 else ((1, j - 8) if j < 16 else (2, j - 16))
        pre = []
        if jj == 0:
            b = (S_CR, S_CI, S_W2)[m]
            pre = [f"s_mov_b32 s8, s{b}", f"s_mov_b32 s9, s{b+1}", f"s_mov_b32 s10, {(8388608, 8388608, 7340032)[m]}", "s_mov_b32 s11, 0x20000"]
        return [(pre, f"buffer_load_dwordx4 v[56:59], v{54 if m < 2 else 55}, s[8:11], {'s92' if jj >= 4 else '0'} offen offset:{(jj%4)*1024}")]
    def make(blocks):
        def reads(kappa):
            s, kk = divmod(kappa, 2)
            ring = (s % NS) * STG
            out = []
            for b, bl in enumerate(blocks):
                a = A_S + kk * 44 + 4 * b
                if bl[0] == 'K':
                    off = ring + bl[1]; w = off // WIN
                    out.append(f"ds_read_b128 {ar(a,4)}, v{V_AK+2*w+kk} offset:{off - w*WIN}")
                else:
                    for hh in range(2):
                        off = ring + bl[4] + kk * bl[2] + hh * bl[3]; w = off // WIN
                        out.append(f"ds_read_b64_tr_b16 {ar(a+2*hh,2)}, v{V_AT+4*w+bl[1]} offset:{off - w*WIN}")
            return out
        def mfmas(kappa):
            kk = kappa % 2
            out = []
            for b, bl in enumerate(blocks):
                for i in range(4):
                    acc = ACC + (b * 4 + i) * 4
                    S = ar(A_S + kk * 44 + 4 * b, 4); P = ar(A_P + (kappa % NPS) * 16 + 4 * i, 4)
                    c = vr(acc, 4) if kappa > 0 else "0"
                    if bl[0] == 'K': out.append(f"{MF} {vr(acc,4)}, {P}, {S}, {c}")
                    else: out.append(f"{MF} {vr(acc,4)}, {S}, {P}, {c}")
            return out
        return reads, mfmas

    def epi_D(blocks_idx):
        srd(p, 8, S_WS, S_WS + 1, ABF_SZ, ABF_OFF)
        p("v_lshrrev_b32 v2, 4, v1"); p("v_and_b32 v3, 1, v2"); p("v_lshlrev_b32 v3, 1, v3"); p("v_lshrrev_b32 v2, 1, v2")
        p("v_or_b32 v2, v2, v3"); p("v_lshlrev_b32 v2, 8, v2"); p("v_and_b32 v3, 15, v1"); p("v_lshl_add_u32 v2, v3, 4, v2")
        p(f"s_lshl_b32 s86, s{S_MT}, 3"); p("s_lshl_b32 s87, s3, 1"); p("s_add_u32 s86, s86, s87"); p("s_lshl_b32 s86, s86, 10")
        p("v_add_u32 v2, s86, v2")
        for b in blocks_idx:
            p(f"s_add_u32 s87, s{S_N0}, {16*b}")
            p("s_lshr_b32 s88, s87, 10"); p("s_lshl_b32 s88, s88, 16")
            p("s_and_b32 s87, s87, 1023"); p("s_lshl_b32 s87, s87, 13")
            p("s_add_u32 s87, s87, s88")
            for m in range(2):
                a0 = ACC + (b * 4 + 2 * m) * 4; a1 = a0 + 4
                t = 8 + 4 * m
                p(f"v_cvt_pk_bf16_f32 v{t}, v{a0}, v{a0+1}"); p(f"v_cvt_pk_bf16_f32 v{t+1}, v{a0+2}, v{a0+3}")
                p(f"v_cvt_pk_bf16_f32 v{t+2}, v{a1}, v{a1+1}"); p(f"v_cvt_pk_bf16_f32 v{t+3}, v{a1+2}, v{a1+3}")
            p("s_nop 1")
            for m in range(2):
                t = 8 + 4 * m
                p(f"v_permlane16_swap_b32 v{t}, v{t+2}"); p(f"v_permlane16_swap_b32 v{t+1}, v{t+3}")
            for m in range(2):
                t = 8 + 4 * m
                p(f"buffer_store_dwordx4 v[{t}:{t+3}], v2, s[8:11], s87 offen offset:{1024*m}")
            p("s_nop 1")

    def bias_load(blocks_idx, f0_sgpr):
        srd(p, 12, S_B1, S_B1 + 1, 7168)
        p("v_lshrrev_b32 v2, 4, v1"); p("v_lshlrev_b32 v2, 3, v2")
        p(f"s_lshl_b32 s86, s{f0_sgpr}, 1"); p("v_add_u32 v2, s86, v2")
        for n, b in enumerate(blocks_idx):
            p(f"buffer_load_dwordx2 v[{V_BIAS+2*n}:{V_BIAS+2*n+1}], v2, s[12:15], 0 offen offset:{32*n}")

    def gelu8(src, bias, T):
        n = len(src)
        U_ = T + 4; W_ = T + 4 + n; Pk = T
        for i in range(n // 2): p(f"v_cvt_pk_bf16_f32 v{Pk+i}, v{src[2*i]}, v{src[2*i+1]}")
        for i in range(n // 2):
            p(f"v_lshlrev_b32 v{U_+2*i}, 16, v{Pk+i}"); p(f"v_and_b32 v{U_+2*i+1}, 0xffff0000, v{Pk+i}")
        for i in range(n): p(f"v_add_f32 v{U_+i}, v{U_+i}, v{bias[i]}")
        for i in range(n // 2): p(f"v_cvt_pk_bf16_f32 v{Pk+i}, v{U_+2*i}, v{U_+2*i+1}")
        for i in range(n // 2):
            p(f"v_lshlrev_b32 v{U_+2*i}, 16, v{Pk+i}"); p(f"v_and_b32 v{U_+2*i+1}, 0xffff0000, v{Pk+i}")
        for i in range(n): p(f"v_mul_f32 v{W_+i}, v{U_+i}, v{U_+i}")
        for i in range(n): p(f"v_fma_f32 v{W_+i}, v{W_+i}, s90, v5")
        for i in range(n): p(f"v_mul_f32 v{W_+i}, v{W_+i}, v{U_+i}")
        for i in range(n): p(f"v_exp_f32 v{W_+i}, v{W_+i}")
        for i in range(n): p(f"v_add_f32 v{W_+i}, 1.0, v{W_+i}")
        for i in range(n): p(f"v_rcp_f32 v{W_+i}, v{W_+i}")
        for i in range(n): p(f"v_mul_f32 v{W_+i}, v{W_+i}, v{U_+i}")
        for i in range(n // 2): p(f"v_cvt_pk_bf16_f32 v{Pk+i}, v{W_+2*i}, v{W_+2*i+1}")

    def epi_W(blocks_idx, f0_sgpr):
        srd(p, 8, S_WS, S_WS + 1, HF_SZ, HF_OFF)
        p(f"s_mov_b32 s90, {hex(f2u(C2))}"); p(f"v_mov_b32 v5, {hex(f2u(C1))}")
        p("v_lshrrev_b32 v2, 4, v1"); p("v_and_b32 v3, 1, v2"); p("v_lshlrev_b32 v3, 4, v3"); p("v_lshrrev_b32 v4, 1, v2")
        p("v_lshl_add_u32 v3, v4, 3, v3"); p(f"v_add_u32 v3, s{f0_sgpr}, v3")
        p("v_lshrrev_b32 v4, 5, v3"); p("v_lshlrev_b32 v4, 10, v4"); p("v_bfe_u32 v3, v3, 3, 2"); p("v_lshl_add_u32 v4, v3, 8, v4")
        p("v_and_b32 v3, 15, v1"); p("v_lshl_add_u32 v6, v3, 4, v4")
        nb = len(blocks_idx)
        if nb % 2:
            p(f"v_lshlrev_b32 v4, 2, v2"); p(f"v_add_u32 v4, s{f0_sgpr}, v4"); p(f"v_add_u32 v4, {16*(nb-1)}, v4")
            p("v_lshrrev_b32 v7, 5, v4"); p("v_lshlrev_b32 v7, 10, v7"); p("v_bfe_u32 v2, v4, 3, 2"); p("v_lshl_add_u32 v7, v2, 8, v7")
            p("v_bfe_u32 v2, v4, 2, 1"); p("v_lshl_add_u32 v7, v2, 3, v7"); p("v_lshl_add_u32 v7, v3, 4, v7")
        p(f"s_lshl_b32 s86, s{S_MT}, 4"); p("s_lshl_b32 s87, s3, 2"); p("s_add_u32 s86, s86, s87"); p("s_mul_i32 s86, s86, 114688")
        BF = 240
        T0 = 8
        for n0 in range(0, nb, 2):
            pair = blocks_idx[n0:n0 + 2]
            for k_, b in enumerate(pair):
                for h in range(2):
                    p(f"v_lshlrev_b32 v{BF+4*k_+2*h}, 16, v{V_BIAS+2*(n0+k_)+h}")
                    p(f"v_and_b32 v{BF+4*k_+2*h+1}, 0xffff0000, v{V_BIAS+2*(n0+k_)+h}")
            for i in range(4):
                src = []; bs = []
                for k_, b in enumerate(pair):
                    src += [ACC + (b * 4 + i) * 4 + r for r in range(4)]
                    bs += [BF + 4 * k_ + r for r in range(4)]
                gelu8(src, bs, T0)
                p(f"s_add_u32 s87, s86, {114688*i + 1024*(n0//2) if len(pair)==2 else 114688*i}")
                if len(pair) == 2:
                    p("s_nop 0")
                    p(f"v_permlane16_swap_b32 v{T0}, v{T0+2}"); p(f"v_permlane16_swap_b32 v{T0+1}, v{T0+3}")
                    p(f"buffer_store_dwordx4 v[{T0}:{T0+3}], v6, s[8:11], s87 offen")
                else:
                    p(f"buffer_store_dwordx2 v[{T0}:{T0+1}], v7, s[8:11], s87 offen")
                p("s_nop 1")

    p.label("k1_typeD")
    voffK_lane(p, V, 5, 2048, 0); voffK_lane(p, V, 6, 2048, 1)
    for i in range(6):
        p(f"s_mul_i32 s86, s3, 6"); p(f"s_add_u32 s86, s86, {i}")
        if i >= 4:
            lab = p.newlabel("k1d"); lab2 = p.newlabel("k1d")
            p("s_cmp_ge_u32 s86, 22"); p(f"s_cbranch_scc1 {lab}")
            slot_D(i, (5, 6)); p(f"s_branch {lab2}")
            p.label(lab); slot_dummy(i); p.label(lab2)
        else:
            slot_D(i, (5, 6))
    for w in range(nwin): addrK_setup(p, V, V_AK + 2 * w, V_AK + 2 * w + 1, w * WIN)
    blocks = [('K', 2048 * b) for b in range(11)]
    reads, mfmas = make(blocks)
    gemm_mainloop(p, "k1d", 16, NS, NPS, S_CNT, mfmas, reads, dmas, privs, pf=pf)
    p("s_nop 7"); p("s_nop 7")
    epi_D(range(11))
    if CFG.get("ts"): p("s_waitcnt vmcnt(0)")
    stamp(p, 3); stamp_store(p, 1, 4)
    p("s_endpgm")
    p.label("k1_typeW")
    p(f"s_sub_u32 s91, s{S_N0}, 2048")
    bias_load(range(11), 91)
    for i in range(6):
        rho, tp = i % 3, (i // 3) & 1
        d = S_SRDS + 4 * i
        p(f"v_add_u32 v2, {64*rho}, v1")
        p("v_mul_u32_u24 v3, 2731, v2"); p("v_lshrrev_b32 v3, 16, v3")
        p("v_mul_u32_u24 v4, 24, v3"); p("v_sub_u32 v2, v2, v4")
        p("v_bfe_u32 v4, v3, 1, 1"); p("v_lshlrev_b32 v4, 1, v4")
        if tp: p("v_or_b32 v4, 4, v4")
        p("v_xor_b32 v2, v2, v4")
        p("v_mul_u32_u24 v3, 7168, v3"); p("v_lshl_add_u32 v3, v2, 4, v3")
        p(f"s_lshl_b32 s86, s3, 1"); p(f"s_add_u32 s86, s86, {i//3}"); p("s_mul_i32 s86, s86, 57344")
        p("s_lshl_b32 s87, s91, 1"); p("s_add_u32 s86, s86, s87")
        p("v_add_u32 v3, s86, v3")
        p("v_cmp_gt_u32 vcc, 22, v2")
        p("v_mov_b32 v4, 0x80000000")
        p("s_nop 0")
        p(f"v_cndmask_b32 v{V_VD+i}, v4, v3, vcc")
        p(f"s_mov_b32 s{d}, s{S_W1}"); p(f"s_mov_b32 s{d+1}, s{S_W1+1}"); p(f"s_mov_b32 s{d+2}, 7340032"); p(f"s_mov_b32 s{d+3}, 0x20000")
        p(f"s_mov_b32 s{S_SOFF+i}, 0"); p(f"s_mov_b32 s{S_DLT+i}, {64*7168}")
    for w in range(nwin): addrT_setup(p, V, V_AT + 4 * w, 384, w * WIN)
    blocks = [('T', b & 3, 32 * 384, 4 * 384, (b >> 2) * 128) for b in range(11)]
    reads, mfmas = make(blocks)
    gemm_mainloop(p, "k1w", 16, NS, NPS, S_CNT, mfmas, reads, dmas, privs, pf=pf)
    p("s_nop 7"); p("s_nop 7")
    epi_W(list(range(11)), 91)
    if CFG.get("ts"): p("s_waitcnt vmcnt(0)")
    stamp(p, 3); stamp_store(p, 1, 4)
    p("s_endpgm")
    p.label("k1_typeM")
    p("s_mov_b32 s91, 0")
    bias_load(range(4), 91)
    voffK_lane(p, V, 5, 2048, 0); voffK_lane(p, V, 6, 2048, 1)
    voffT8_lane(p, V, 7, 7168, 0); voffT8_lane(p, V, 18, 7168, 1)
    for i in range(6):
        d = S_SRDS + 4 * i
        l1 = p.newlabel("k1m"); l2 = p.newlabel("k1m"); l3 = p.newlabel("k1m")
        p(f"s_mul_i32 s86, s3, 6"); p(f"s_add_u32 s86, s86, {i}")
        p("s_cmp_ge_u32 s86, 22"); p(f"s_cbranch_scc1 {l2}")
        p("s_cmp_ge_u32 s86, 14"); p(f"s_cbranch_scc1 {l1}")
        slot_D(i, (5, 6)); p(f"s_branch {l3}")
        p.label(l1)
        p("s_sub_u32 s87, s86, 14"); p("s_mul_i32 s87, s87, 57344")
        p(f"v_add_u32 v{V_VD+i}, s87, v{(7, 18)[i & 1]}")
        p(f"s_mov_b32 s{d}, s{S_W1}"); p(f"s_mov_b32 s{d+1}, s{S_W1+1}"); p(f"s_mov_b32 s{d+2}, 7340032"); p(f"s_mov_b32 s{d+3}, 0x20000")
        p(f"s_mov_b32 s{S_SOFF+i}, 0"); p(f"s_mov_b32 s{S_DLT+i}, {64*7168}")
        p(f"s_branch {l3}")
        p.label(l2); slot_dummy(i)
        p.label(l3)
    for w in range(nwin):
        addrK_setup(p, V, V_AK + 2 * w, V_AK + 2 * w + 1, w * WIN)
        addrT_setup(p, V, V_AT + 4 * w, 128, w * WIN)
    blocks = [('K', 2048 * b) for b in range(7)] + [('T', b, 4096, 512, 14336) for b in range(4)]
    reads, mfmas = make(blocks)
    gemm_mainloop(p, "k1m", 16, NS, NPS, S_CNT, mfmas, reads, dmas, privs, pf=pf)
    p("s_nop 7"); p("s_nop 7")
    epi_D(range(7))
    epi_W([7, 8, 9, 10], 91)
    if CFG.get("ts"): p("s_waitcnt vmcnt(0)")
    stamp(p, 3); stamp_store(p, 1, 4)
    p.label("k1_end")
    p("s_endpgm")
    return name, 256 + A_S + 88, 102, 256

def gen_k2(p, cfg):
    name = "k2_kernel"
    NS, NPS = cfg["k2_ns"], cfg["k2_nps"]
    STG = 16384
    WIN = 65536
    nwin = (NS * STG + WIN - 1) // WIN
    kernel_head(p, name)
    p("s_cmp_ge_u32 s2, 256"); p("s_cbranch_scc1 k2_end")
    load_ptrs(p)
    V = dict(lane=1, t0=2, t1=3, t2=4)
    ACC = 128
    V_VP = 8; V_VD = 12; V_AK = 20; V_AT = 20
    A_P = 0; A_S = NPS * 8
    S_SRDP, S_SRDS = 4, 8
    S_SOFF, S_KP, S_M0B, S_CNT, S_TA, S_TB, S_TILE = 44, 45, 46, 47, 48, 49, 50
    lane_consts(p, V)
    p("s_and_b32 s86, s2, 7"); p("s_lshr_b32 s87, s2, 3")
    p("s_and_b32 s88, s86, 1"); p("s_lshl_b32 s88, s88, 2"); p("s_and_b32 s89, s87, 3"); p(f"s_add_u32 s{S_TA}, s88, s89")
    p("s_lshr_b32 s88, s86, 1"); p("s_and_b32 s88, s88, 1"); p("s_lshl_b32 s88, s88, 3"); p("s_lshr_b32 s89, s87, 2"); p(f"s_add_u32 s{S_TB}, s88, s89")
    p(f"s_lshl_b32 s{S_TILE}, s{S_TB}, 3"); p(f"s_add_u32 s{S_TILE}, s{S_TILE}, s{S_TA}")
    p(f"s_lshl_b32 s{S_M0B}, s3, 12")
    p(f"s_mov_b32 s{S_KP}, 0"); p(f"s_mov_b32 s{S_SOFF}, 0")
    p("s_waitcnt lgkmcnt(0)")
    stamp(p, 0)
    p("s_cmp_ge_u32 s86, 4"); p("s_cbranch_scc1 k2_typeY")

    def privs(kappa):
        out = []
        for i in range(2):
            pre = []
            if i == 0 and kappa % 4 == 0 and kappa > 0: pre = [f"s_add_u32 s{S_KP}, s{S_KP}, 4096"]
            a = A_P + (kappa % NPS) * 8 + 4 * i
            out.append((pre, f"buffer_load_dwordx4 {ar(a,4)}, v{V_VP+i}, s[{S_SRDP}:{S_SRDP+3}], s{S_KP} offen offset:{(kappa%4)*1024}"))
        return out

    srd(p, S_SRDP, S_WS, S_WS + 1, HF_SZ, HF_OFF)
    srd(p, S_SRDS, S_W2, S_W2 + 1, 7340032)
    p(f"s_lshl_b32 s86, s{S_TB}, 3"); p("s_lshl_b32 s87, s3, 1"); p("s_add_u32 s86, s86, s87"); p("s_mul_i32 s86, s86, 114688")
    p(f"v_lshlrev_b32 v{V_VP}, 4, v1"); p(f"v_add_u32 v{V_VP}, s86, v{V_VP}"); p(f"v_add_u32 v{V_VP+1}, 114688, v{V_VP}")
    srd(p, 12, S_B2, S_B2 + 1, 2048)
    p("v_lshrrev_b32 v2, 4, v1"); p("v_lshlrev_b32 v2, 3, v2"); p(f"s_lshl_b32 s86, s{S_TA}, 8"); p("v_add_u32 v2, s86, v2")
    for di in range(8): p(f"buffer_load_dwordx2 v[{32+2*di}:{33+2*di}], v2, s[12:15], 0 offen offset:{32*di}")
    voffT8_lane(p, V, 5, 2048, 0); voffT8_lane(p, V, 6, 2048, 1)
    p("s_and_b32 s86, s3, 1"); p("s_lshl_b32 s86, s86, 16"); p("s_lshr_b32 s87, s3, 1"); p("s_lshl_b32 s87, s87, 7"); p("s_add_u32 s86, s86, s87")
    p(f"s_lshl_b32 s87, s{S_TA}, 8"); p("s_add_u32 s86, s86, s87")
    for i in range(4):
        p(f"v_add_u32 v{V_VD+i}, s86, v{5+(i&1)}")
        if i: p(f"v_add_u32 v{V_VD+i}, {16384*i}, v{V_VD+i}")
    for w in range(nwin): addrT_setup(p, V, V_AT + 4 * w, 128, w * WIN)
    def dmas_o(stage):
        out = []
        for i in range(4):
            pre = [f"s_add_u32 m0, s{S_M0B}, {(stage % NS) * STG + 1024 * i}"]
            if i == 0 and stage > 0: pre.insert(0, f"s_add_u32 s{S_SOFF}, s{S_SOFF}, 131072")
            out.append((pre, f"buffer_load_dwordx4 v{V_VD+i}, s[{S_SRDS}:{S_SRDS+3}], s{S_SOFF} offen lds"))
        return out
    def reads_o(kappa):
        s, kk = divmod(kappa, 2)
        out = []
        for b in range(8):
            for hh in range(2):
                off = (s % NS) * STG + (b >> 2) * 8192 + kk * 4096 + hh * 512; w = off // WIN
                out.append(f"ds_read_b64_tr_b16 {ar(A_S + kk*32 + 4*b + 2*hh, 2)}, v{V_AT+4*w+(b&3)} offset:{off - w*WIN}")
        return out
    def mfmas_o(kappa):
        kk = kappa % 2
        out = []
        for b in range(8):
            for i in range(2):
                acc = ACC + (b * 2 + i) * 4
                c = vr(acc, 4) if kappa > 0 else "0"
                out.append(f"{MF} {vr(acc,4)}, {ar(A_S+kk*32+4*b,4)}, {ar(A_P+(kappa%NPS)*8+4*i,4)}, {c}")
        return out
    gemm_mainloop(p, "k2o", 56, NS, NPS, S_CNT, mfmas_o, reads_o, dmas_o, privs, read_frac=cfg.get("k2o_rf", 0.7))
    p("s_nop 7"); p("s_nop 7")
    srd(p, 8, S_WS, S_WS + 1, G_SZ, G_OFF)
    srd(p, 12, S_WS, S_WS + 1, FL_SZ, FL_OFF)
    p(f"s_lshl_b32 s86, s{S_TILE}, 15"); p("s_lshl_b32 s87, s3, 11"); p("s_add_u32 s86, s86, s87")
    p("v_lshlrev_b32 v2, 4, v1"); p("v_add_u32 v2, s86, v2")
    p(f"s_mov_b32 s90, {hex(f2u(-math.log2(math.e)))}")
    BF = 56
    for m in range(4):
        for k_ in range(2):
            for h in range(2):
                p(f"v_lshlrev_b32 v{BF+4*k_+2*h}, 16, v{32+2*(2*m+k_)+h}")
                p(f"v_and_b32 v{BF+4*k_+2*h+1}, 0xffff0000, v{32+2*(2*m+k_)+h}")
        for sj in range(2):
            src = [ACC + ((2 * m + k_) * 2 + sj) * 4 + r for k_ in range(2) for r in range(4)]
            T = 64 + 24 * sj; U_ = T + 4; W_ = T + 12
            for i in range(4): p(f"v_cvt_pk_bf16_f32 v{T+i}, v{src[2*i]}, v{src[2*i+1]}")
            for i in range(4):
                p(f"v_lshlrev_b32 v{U_+2*i}, 16, v{T+i}"); p(f"v_and_b32 v{U_+2*i+1}, 0xffff0000, v{T+i}")
            for i in range(8): p(f"v_add_f32 v{U_+i}, v{U_+i}, v{BF+i}")
            for i in range(4): p(f"v_cvt_pk_bf16_f32 v{T+i}, v{U_+2*i}, v{U_+2*i+1}")
            for i in range(4):
                p(f"v_lshlrev_b32 v{U_+2*i}, 16, v{T+i}"); p(f"v_and_b32 v{U_+2*i+1}, 0xffff0000, v{T+i}")
            for i in range(8): p(f"v_mul_f32 v{W_+i}, s90, v{U_+i}")
            for i in range(8): p(f"v_exp_f32 v{W_+i}, v{W_+i}")
            for i in range(8): p(f"v_add_f32 v{W_+i}, 1.0, v{W_+i}")
            for i in range(8): p(f"v_rcp_f32 v{W_+i}, v{W_+i}")
            for i in range(8): p(f"v_mul_f32 v{W_+i}, v{W_+i}, v{U_+i}")
            for i in range(4): p(f"v_cvt_pk_bf16_f32 v{T+i}, v{W_+2*i}, v{W_+2*i+1}")
            p("s_nop 1")
            p(f"v_permlane16_swap_b32 v{T}, v{T+2}"); p(f"v_permlane16_swap_b32 v{T+1}, v{T+3}")
            p(f"s_mov_b32 s87, {8192*m + 1024*sj}")
            p(f"buffer_store_dwordx4 v[{T}:{T+3}], v2, s[8:11], s87 offen sc0 sc1")
    p("s_waitcnt vmcnt(0)")
    p("s_barrier")
    if CFG.get("ts"): p("s_waitcnt vmcnt(0)")
    stamp(p, 3); stamp_store(p, 2, 4)
    p("s_cmp_lg_u32 s3, 0"); p("s_cbranch_scc1 k2_end")
    p(f"s_lshl_b32 s86, s{S_TILE}, 7"); p("v_mov_b32 v2, s86"); p("v_mov_b32 v3, 1")
    p("v_cmp_eq_u32 vcc, 0, v1"); p("s_and_saveexec_b64 s[92:93], vcc")
    p("buffer_store_dword v3, v2, s[12:15], 0 offen sc0 sc1")
    p("s_endpgm")

    p.label("k2_typeY")
    srd(p, S_SRDP, S_WS, S_WS + 1, ABF_SZ, ABF_OFF)
    srd(p, S_SRDS, S_CR, S_CR + 1, 8388608)
    p(f"s_lshl_b32 s86, s{S_TA}, 3"); p("s_lshl_b32 s87, s3, 1"); p("s_add_u32 s86, s86, s87"); p("s_lshl_b32 s86, s86, 17")
    p(f"v_lshlrev_b32 v{V_VP}, 4, v1"); p(f"v_add_u32 v{V_VP}, s86, v{V_VP}"); p(f"v_add_u32 v{V_VP+1}, 131072, v{V_VP}")
    voffK_lane(p, V, 5, 4096, 0); voffK_lane(p, V, 6, 4096, 1)
    p(f"s_lshl_b32 s86, s{S_TB}, 7"); p("s_lshl_b32 s87, s3, 5"); p("s_add_u32 s86, s86, s87"); p("s_lshl_b32 s86, s86, 12")
    for i in range(4):
        p(f"v_add_u32 v{V_VD+i}, s86, v{5+(i&1)}")
        if i: p(f"v_add_u32 v{V_VD+i}, {32768*i}, v{V_VD+i}")
    for w in range(nwin): addrK_setup(p, V, V_AK + 2 * w, V_AK + 2 * w + 1, w * WIN)
    def dmas_y(stage):
        out = []
        for i in range(4):
            pre = [f"s_add_u32 m0, s{S_M0B}, {(stage % NS) * STG + 1024 * i}"]
            if i == 0 and stage > 0:
                if stage == 32:
                    pre = [f"s_mov_b32 s{S_SRDS}, s{S_CI}", f"s_mov_b32 s{S_SRDS+1}, s{S_CI+1}", f"s_mov_b32 s{S_SOFF}, 0"] + pre
                else:
                    pre.insert(0, f"s_add_u32 s{S_SOFF}, s{S_SOFF}, 128")
            out.append((pre, f"buffer_load_dwordx4 v{V_VD+i}, s[{S_SRDS}:{S_SRDS+3}], s{S_SOFF} offen lds"))
        return out
    def reads_y(kappa):
        s, kk = divmod(kappa, 2)
        out = []
        for b in range(8):
            off = (s % NS) * STG + 2048 * b; w = off // WIN
            out.append(f"ds_read_b128 {ar(A_S + kk*32 + 4*b, 4)}, v{V_AK+2*w+kk} offset:{off - w*WIN}")
        return out
    def mfmas_y(kappa):
        kk = kappa % 2
        out = []
        for b in range(8):
            for i in range(2):
                acc = ACC + (64 if kappa >= 64 else 0) + (i * 8 + b) * 4
                c = vr(acc, 4) if kappa not in (0, 64) else "0"
                out.append(f"{MF} {vr(acc,4)}, {ar(A_P+(kappa%NPS)*8+4*i,4)}, {ar(A_S+kk*32+4*b,4)}, {c}")
        return out
    gemm_mainloop(p, "k2y", 64, NS, NPS, S_CNT, mfmas_y, reads_y, dmas_y, privs, read_frac=cfg.get("k2y_rf", 0.7))
    srd(p, 4, S_X, S_X + 1, 4194304)
    srd(p, 8, S_WS, S_WS + 1, G_SZ, G_OFF)
    srd(p, 12, S_WS, S_WS + 1, FL_SZ, FL_OFF)
    srd(p, 52, S_OUT, S_OUT + 1, 4194304)
    p("v_lshrrev_b32 v2, 4, v1"); p("v_and_b32 v3, 1, v2"); p("v_lshlrev_b32 v3, 5, v3"); p("v_lshrrev_b32 v2, 1, v2"); p("v_lshl_add_u32 v3, v2, 4, v3")
    p("v_and_b32 v2, 15, v1"); p("v_lshl_add_u32 v3, v2, 11, v3")
    p(f"s_lshl_b32 s86, s{S_TB}, 18"); p(f"s_lshl_b32 s87, s{S_TA}, 8"); p("s_add_u32 s86, s86, s87"); p("s_lshl_b32 s87, s3, 6"); p("s_add_u32 s86, s86, s87")
    p("v_add_u32 v3, s86, v3")
    XR = 32
    GR = 64
    for tj in range(8):
        p(f"s_mov_b32 s87, {32768*tj}")
        p(f"buffer_load_dwordx4 v[{XR+4*tj}:{XR+4*tj+3}], v3, s[4:7], s87 offen")
    p(f"s_lshl_b32 s86, s{S_TILE}, 7"); p("v_mov_b32 v2, s86")
    p("s_cmp_lg_u32 s3, 0"); p("s_cbranch_scc1 k2y_polled")
    p.label("k2y_poll")
    p("buffer_load_dword v4, v2, s[12:15], 0 offen sc0 sc1")
    p("s_waitcnt vmcnt(0)")
    p("v_readfirstlane_b32 s87, v4")
    p("s_cmp_eq_u32 s87, 1"); p("s_cbranch_scc1 k2y_polled")
    p("s_sleep 2")
    p("s_branch k2y_poll")
    p.label("k2y_polled")
    p("s_barrier")
    p(f"s_lshl_b32 s86, s{S_TILE}, 15"); p("s_lshl_b32 s87, s3, 13"); p("s_add_u32 s86, s86, s87")
    p("v_lshlrev_b32 v2, 4, v1"); p("v_add_u32 v2, s86, v2")
    for tj in range(8):
        p(f"s_mov_b32 s87, {1024*tj}")
        p(f"buffer_load_dwordx4 v[{GR+4*tj}:{GR+4*tj+3}], v2, s[8:11], s87 offen sc0 sc1")
    for tj in range(8):
        T = 96; U_ = 100; W_ = 108
        sp = [ACC + (i * 8 + tj) * 4 + r for i in range(2) for r in range(4)]
        for i in range(4): p(f"v_cvt_pk_bf16_f32 v{T+i}, v{sp[2*i]}, v{sp[2*i+1]}")
        for i in range(4): p(f"v_cvt_pk_bf16_f32 v{T+20+i}, v{sp[2*i]+64}, v{sp[2*i+1]+64}")
        for i in range(4):
            p(f"v_lshlrev_b32 v{U_+2*i}, 16, v{T+i}"); p(f"v_and_b32 v{U_+2*i+1}, 0xffff0000, v{T+i}")
            p(f"v_lshlrev_b32 v{W_+2*i}, 16, v{T+20+i}"); p(f"v_and_b32 v{W_+2*i+1}, 0xffff0000, v{T+20+i}")
        for i in range(8): p(f"v_sub_f32 v{U_+i}, v{U_+i}, v{W_+i}")
        Y = sp[0]
        for i in range(4): p(f"v_cvt_pk_bf16_f32 v{Y+i}, v{U_+2*i}, v{U_+2*i+1}")
        p("s_nop 1")
        p(f"v_permlane16_swap_b32 v{Y}, v{Y+2}"); p(f"v_permlane16_swap_b32 v{Y+1}, v{Y+3}")
    p("s_waitcnt vmcnt(0)")
    for tj in range(8):
        Y = ACC + tj * 4
        U_ = 96; W_ = 104; X_ = 112; T = 120
        for i in range(4):
            p(f"v_lshlrev_b32 v{U_+2*i}, 16, v{Y+i}"); p(f"v_and_b32 v{U_+2*i+1}, 0xffff0000, v{Y+i}")
            p(f"v_lshlrev_b32 v{W_+2*i}, 16, v{GR+4*tj+i}"); p(f"v_and_b32 v{W_+2*i+1}, 0xffff0000, v{GR+4*tj+i}")
            p(f"v_lshlrev_b32 v{X_+2*i}, 16, v{XR+4*tj+i}"); p(f"v_and_b32 v{X_+2*i+1}, 0xffff0000, v{XR+4*tj+i}")
        for i in range(8): p(f"v_mul_f32 v{U_+i}, v{U_+i}, v{W_+i}")
        for i in range(4): p(f"v_cvt_pk_bf16_f32 v{T+i}, v{U_+2*i}, v{U_+2*i+1}")
        for i in range(4):
            p(f"v_lshlrev_b32 v{U_+2*i}, 16, v{T+i}"); p(f"v_and_b32 v{U_+2*i+1}, 0xffff0000, v{T+i}")
        for i in range(8): p(f"v_add_f32 v{U_+i}, v{U_+i}, v{X_+i}")
        for i in range(4): p(f"v_cvt_pk_bf16_f32 v{Y+i}, v{U_+2*i}, v{U_+2*i+1}")
        p(f"s_mov_b32 s87, {32768*tj}")
        p(f"buffer_store_dwordx4 v[{Y}:{Y+3}], v3, s[52:55], s87 offen")
    if CFG.get("ts"): p("s_waitcnt vmcnt(0)")
    stamp(p, 3); stamp_store(p, 2, 4)
    p.label("k2_end")
    p("s_endpgm")
    return name, 256 + A_S + 64, 102, 256

def generate(cfg, kernels=("k0", "k1", "k2")):
    CFG.clear(); CFG.update(cfg); CFG["ts_sbase"] = 98
    p = Prog()
    body = Prog()
    info = []
    lds = {"k0": 0, "k1": cfg["k1_ns"] * 24576, "k2": cfg["k2_ns"] * 16384}
    blk = {"k0": 512, "k1": 256, "k2": 256}
    for k in ("k0", "k1", "k2"):
        info.append((k,) + {"k0": lambda: gen_k0(body), "k1": lambda: gen_k1(body, cfg), "k2": lambda: gen_k2(body, cfg)}[k]())
    out = []
    for k in kernels:
        out.append(f"; @launch kernel={k}_kernel grid=(256,1,1) block=({blk[k]},1,1) lds={lds[k]}")
    out.append('.amdgcn_target "amdgcn-amd-amdhsa--gfx950"')
    out.append(".text")
    out += body.L
    out.append('.section .rodata,"a"')
    for k, name, nfv, nfs, acc in info:
        out.append(".p2align 6")
        out.append(f".amdhsa_kernel {name}")
        out.append(f"  .amdhsa_next_free_vgpr {nfv}")
        out.append(f"  .amdhsa_next_free_sgpr {nfs}")
        out.append(f"  .amdhsa_accum_offset {acc}")
        out.append("  .amdhsa_group_segment_fixed_size 0")
        out.append("  .amdhsa_kernarg_size 104")
        out.append("  .amdhsa_user_sgpr_count 2")
        out.append("  .amdhsa_user_sgpr_kernarg_segment_ptr 1")
        out.append("  .amdhsa_system_sgpr_workgroup_id_x 1")
        out.append(".end_amdhsa_kernel")
    return "\n".join(out) + "\n"

DEFAULT = dict(k1_ns=4, k1_nps=8, k2_ns=8, k2_nps=16)

if __name__ == "__main__":
    cfg = dict(DEFAULT)
    fn = sys.argv[1] if len(sys.argv) > 1 else "full.s"
    for a in sys.argv[2:]:
        k, v = a.split("=")
        cfg[k] = float(v) if "." in v else int(v)
    kern = ("k0", "k1", "k2", "k2") if cfg.get("k2twice") else ("k0", "k1", "k2")
    open(fn, "w").write(generate(cfg, kern))
```

```python
import sys, math
import gen
from gen import *

PP_OFF = 28 << 20
QP_OFF = 32 << 20
O1_OFF = 36 << 20
O2_OFF = 44 << 20
gen.FL_OFF = FL2_OFF = 52 << 20
gen.FL_SZ = FL2_SZ = 256 * 128
gen.TS_OFF = 56 << 20

def gelu_batch(p, src, bias, T, n, s_c2, v_c1):
    Pk = T; U_ = T + n // 2; W_ = U_ + n
    for i in range(n // 2): p(f"v_cvt_pk_bf16_f32 v{Pk+i}, v{src[2*i]}, v{src[2*i+1]}")
    for i in range(n // 2):
        p(f"v_lshlrev_b32 v{U_+2*i}, 16, v{Pk+i}"); p(f"v_and_b32 v{U_+2*i+1}, 0xffff0000, v{Pk+i}")
    for i in range(n): p(f"v_add_f32 v{U_+i}, v{U_+i}, v{bias[i]}")
    for i in range(n // 2): p(f"v_cvt_pk_bf16_f32 v{Pk+i}, v{U_+2*i}, v{U_+2*i+1}")
    for i in range(n // 2):
        p(f"v_lshlrev_b32 v{U_+2*i}, 16, v{Pk+i}"); p(f"v_and_b32 v{U_+2*i+1}, 0xffff0000, v{Pk+i}")
    for i in range(n): p(f"v_mul_f32 v{W_+i}, v{U_+i}, v{U_+i}")
    for i in range(n): p(f"v_fma_f32 v{W_+i}, v{W_+i}, s{s_c2}, v{v_c1}")
    for i in range(n): p(f"v_mul_f32 v{W_+i}, v{W_+i}, v{U_+i}")
    for i in range(n): p(f"v_exp_f32 v{W_+i}, v{W_+i}")
    for i in range(n): p(f"v_add_f32 v{W_+i}, 1.0, v{W_+i}")
    for i in range(n): p(f"v_rcp_f32 v{W_+i}, v{W_+i}")
    for i in range(n): p(f"v_mul_f32 v{W_+i}, v{W_+i}, v{U_+i}")
    for i in range(n // 2): p(f"v_cvt_pk_bf16_f32 v{Pk+i}, v{W_+2*i}, v{W_+2*i+1}")

def fin(p, k):
    if CFG.get("ts"): p("s_waitcnt vmcnt(0)")
    stamp(p, 3); stamp_store(p, k, 4)

def gen_k1(p, cfg):
    name = "k1_kernel"
    NS, NPS = cfg["k1_ns"], cfg["k1_nps"]
    STG = 24576; WIN = 65536
    nwin = (NS * STG + WIN - 1) // WIN
    BIAS_LDS = NS * STG
    K1ST = {0: "", 1: " sc1", 2: " nt", 3: " sc0 sc1"}[cfg.get("k1st", 0)]
    kernel_head(p, name)
    p("s_cmp_ge_u32 s2, 256"); p("s_cbranch_scc1 k1_end")
    load_ptrs(p)
    V = dict(lane=1, t0=2, t1=3, t2=4)
    V_VP, V_VD, V_PF, V_DUM, V_AK, V_AT = 8, 10, 13, 16, 20, 24
    assert nwin <= 2
    ACC = 32; SH = 120
    A_P = 0
    S_SRDP, S_SRDS, S_SOFF, S_DLT = 4, 44, 56, 59
    S_KP, S_M0B, S_CNT, S_MT, S_NT, S_N0 = 80, 81, 82, 83, 84, 85
    lane_consts(p, V)
    p("s_and_b32 s86, s2, 7"); p("s_lshr_b32 s87, s2, 3")
    p("s_and_b32 s88, s86, 1"); p("s_lshl_b32 s88, s88, 2"); p("s_and_b32 s89, s87, 3"); p(f"s_add_u32 s{S_MT}, s88, s89")
    p("s_lshr_b32 s88, s86, 1"); p("s_lshr_b32 s89, s87, 2"); p("s_lshl_b32 s89, s89, 2"); p(f"s_add_u32 s{S_NT}, s88, s89")
    p(f"s_mul_i32 s{S_N0}, s{S_NT}, 176")
    p(f"s_mul_i32 s{S_M0B}, s3, 3072")
    p(f"s_mov_b32 s{S_KP}, 0")
    p(f"s_lshl_b32 s86, s{S_MT}, 4"); p("s_lshl_b32 s87, s3, 1"); p("s_add_u32 s86, s86, s87"); p("s_lshl_b32 s86, s86, 15")
    p(f"v_lshlrev_b32 v{V_VP}, 4, v1"); p(f"v_add_u32 v{V_VP}, s86, v{V_VP}"); p(f"v_add_u32 v{V_VP+1}, 32768, v{V_VP}")
    p("s_lshl_b32 s86, s2, 3"); p("s_add_u32 s86, s86, s3"); p("s_lshl_b32 s87, s86, 12"); p("s_mul_i32 s86, s86, 3584")
    if cfg.get("pf1", 1) == 2:
        p(f"v_lshlrev_b32 v{V_PF+1}, 7, v1"); p(f"v_add_u32 v{V_PF}, s87, v{V_PF+1}"); p(f"v_add_u32 v{V_PF+1}, s86, v{V_PF+1}")
        p("v_mov_b32 v2, 0x80000000")
        p("v_cmp_gt_u32 vcc, 32, v1"); p("s_nop 1"); p(f"v_cndmask_b32 v{V_PF}, v2, v{V_PF}, vcc")
        p("v_cmp_gt_u32 vcc, 28, v1"); p("s_nop 1"); p(f"v_cndmask_b32 v{V_PF+1}, v2, v{V_PF+1}, vcc")
    else:
        p(f"v_lshlrev_b32 v{V_PF+1}, 4, v1"); p(f"v_add_u32 v{V_PF}, s87, v{V_PF+1}"); p(f"v_add_u32 v{V_PF+1}, s86, v{V_PF+1}")
    p("s_waitcnt lgkmcnt(0)")
    stamp(p, 0)
    srd(p, S_SRDP, S_WS, S_WS + 1, XF_SZ, XF_OFF)
    p(f"s_cmp_lt_u32 s{S_NT}, 11"); p("s_cbranch_scc1 k1_typeD")
    p(f"s_cmp_eq_u32 s{S_NT}, 11"); p("s_cbranch_scc1 k1_typeM")
    p("s_branch k1_typeW")

    def slot_D(i, pv):
        d = S_SRDS + 4 * i
        p(f"s_lshl_b32 s87, s86, 3"); p(f"s_add_u32 s87, s87, s{S_N0}")
        p("s_cmp_lt_u32 s87, 1024")
        p(f"s_cselect_b32 s{d}, s{S_DR}, s{S_DI}"); p(f"s_cselect_b32 s{d+1}, s{S_DR+1}, s{S_DI+1}")
        p(f"s_mov_b32 s{d+2}, 2097152"); p(f"s_mov_b32 s{d+3}, 0x20000")
        p("s_and_b32 s87, s87, 1023"); p("s_lshl_b32 s87, s87, 11")
        p("s_and_b32 s88, s86, 1"); p("s_lshl_b32 s88, s88, 6")
        p(f"v_xor_b32 v{V_VD+i}, s88, v{pv}")
        p(f"v_add_u32 v{V_VD+i}, s87, v{V_VD+i}")
        p(f"s_mov_b32 s{S_SOFF+i}, 0"); p(f"s_mov_b32 s{S_DLT+i}, 128")
    def slot_dummy(i):
        d = S_SRDS + 4 * i
        p(f"s_mov_b32 s{d}, s{S_W1}"); p(f"s_mov_b32 s{d+1}, s{S_W1+1}")
        p(f"s_mov_b32 s{d+2}, 0"); p(f"s_mov_b32 s{d+3}, 0x20000")
        p(f"v_mov_b32 v{V_VD+i}, 0")
        p(f"s_mov_b32 s{S_SOFF+i}, 0"); p(f"s_mov_b32 s{S_DLT+i}, 0")
    def dmas(stage):
        out = []
        for i in range(3):
            pre = [f"s_add_u32 m0, s{S_M0B}, {(stage % NS) * STG + 1024 * i}"]
            if stage > 0: pre.insert(0, f"s_add_u32 s{S_SOFF+i}, s{S_SOFF+i}, s{S_DLT+i}")
            d = S_SRDS + 4 * i
            out.append((pre, f"buffer_load_dwordx4 v{V_VD+i}, s[{d}:{d+3}], s{S_SOFF+i} offen lds"))
        return out
    def privs(kappa):
        out = []
        for i in range(2):
            pre = []
            if i == 0 and kappa % 4 == 0 and kappa > 0: pre = [f"s_add_u32 s{S_KP}, s{S_KP}, 4096"]
            a = A_P + (kappa % NPS) * 8 + 4 * i
            out.append((pre, f"buffer_load_dwordx4 {ar(a,4)}, v{V_VP+i}, s[{S_SRDP}:{S_SRDP+3}], s{S_KP} offen offset:{(kappa%4)*1024}"))
        return out
    def pf(kappa):
        if cfg.get("pf1", 1) == 2:
            ks = cfg.get("pf1_ks", (2, 10, 18))
            if kappa not in ks: return []
            m = ks.index(kappa)
            b = (S_CR, S_CI, S_W2)[m]
            pre = [f"s_mov_b32 s8, s{b}", f"s_mov_b32 s9, s{b+1}", f"s_mov_b32 s10, {(8388608, 8388608, 7340032)[m]}", "s_mov_b32 s11, 0x20000"]
            return [(pre, f"buffer_load_dword v{V_DUM}, v{V_PF + (1 if m == 2 else 0)}, s[8:11], 0 offen")]
        if not cfg.get("pf1", 1): return []
        st = cfg.get("pf1_step", 2)
        j = kappa - cfg.get("pf1_start", 0)
        if j < 0 or j % st or j // st >= 12: return []
        j //= st
        m, jj = divmod(j, 4)
        pre = []
        if jj == 0:
            b = (S_CR, S_CI, S_W2)[m]
            pre = [f"s_mov_b32 s8, s{b}", f"s_mov_b32 s9, s{b+1}", f"s_mov_b32 s10, {(8388608, 8388608, 7340032)[m]}", "s_mov_b32 s11, 0x20000"]
        return [(pre, f"buffer_load_dwordx4 v[{V_DUM}:{V_DUM+3}], v{V_PF + (1 if m == 2 else 0)}, s[8:11], 0 offen offset:{jj*1024}")]
    def make(blocks):
        def reads(kappa):
            s, kk = divmod(kappa, 2)
            ring = (s % NS) * STG
            out = []
            for b, bl in enumerate(blocks):
                a = SH + kk * 44 + 4 * b
                if bl[0] == 'K':
                    off = ring + bl[1]; w = off // WIN
                    out.append(f"ds_read_b128 {vr(a,4)}, v{V_AK+2*w+kk} offset:{off - w*WIN}")
                else:
                    for hh in range(2):
                        off = ring + bl[4] + kk * bl[2] + hh * bl[3]; w = off // WIN
                        out.append(f"ds_read_b64_tr_b16 {vr(a+2*hh,2)}, v{V_AT+4*w+bl[1]} offset:{off - w*WIN}")
            return out
        def mfmas(kappa):
            kk = kappa % 2
            out = []
            for b, bl in enumerate(blocks):
                for i in range(2):
                    acc = ACC + (b * 2 + i) * 4
                    S = vr(SH + kk * 44 + 4 * b, 4); P = ar(A_P + (kappa % NPS) * 8 + 4 * i, 4)
                    c = vr(acc, 4) if kappa > 0 else "0"
                    if bl[0] == 'K': out.append(f"{MF} {vr(acc,4)}, {P}, {S}, {c}")
                    else: out.append(f"{MF} {vr(acc,4)}, {S}, {P}, {c}")
            return out
        return reads, mfmas

    def epi_D(blocks_idx):
        srd(p, 8, S_WS, S_WS + 1, ABF_SZ, ABF_OFF)
        p("v_lshrrev_b32 v2, 4, v1"); p("v_and_b32 v3, 1, v2"); p("v_lshlrev_b32 v3, 1, v3"); p("v_lshrrev_b32 v2, 1, v2")
        p("v_or_b32 v2, v2, v3"); p("v_lshlrev_b32 v2, 8, v2"); p("v_and_b32 v3, 15, v1"); p("v_lshl_add_u32 v2, v3, 4, v2")
        p(f"s_lshl_b32 s86, s{S_MT}, 3"); p("s_add_u32 s86, s86, s3"); p("s_lshl_b32 s86, s86, 10")
        p("v_add_u32 v2, s86, v2")
        for n, b in enumerate(blocks_idx):
            t = SH + 4 * n
            a0 = ACC + b * 8; a1 = a0 + 4
            p(f"v_cvt_pk_bf16_f32 v{t}, v{a0}, v{a0+1}"); p(f"v_cvt_pk_bf16_f32 v{t+1}, v{a0+2}, v{a0+3}")
            p(f"v_cvt_pk_bf16_f32 v{t+2}, v{a1}, v{a1+1}"); p(f"v_cvt_pk_bf16_f32 v{t+3}, v{a1+2}, v{a1+3}")
            p(f"s_add_u32 s87, s{S_N0}, {16*b}")
            p("s_lshr_b32 s88, s87, 10"); p("s_lshl_b32 s88, s88, 16")
            p("s_and_b32 s87, s87, 1023"); p("s_lshl_b32 s87, s87, 13")
            p("s_add_u32 s87, s87, s88")
            p(f"v_permlane16_swap_b32 v{t}, v{t+2}"); p(f"v_permlane16_swap_b32 v{t+1}, v{t+3}")
            p(f"buffer_store_dwordx4 v[{t}:{t+3}], v2, s[8:11], s87 offen{K1ST}")

    def bias_dma(f0_sgpr):
        srd(p, 12, S_B1, S_B1 + 1, 7168)
        p("v_lshlrev_b32 v2, 4, v1")
        p(f"s_lshl_b32 s86, s{f0_sgpr}, 1")
        p("s_lshl_b32 s87, s3, 10"); p(f"s_add_u32 m0, s87, {BIAS_LDS}")
        p("s_nop 0")
        p("buffer_load_dwordx4 v2, s[12:15], s86 offen lds")

    def epi_W(blocks_idx, f0_sgpr):
        srd(p, 8, S_WS, S_WS + 1, HF_SZ, HF_OFF)
        nb = len(blocks_idx)
        BP = 8
        p("v_lshrrev_b32 v2, 4, v1")
        p("s_lshl_b32 s87, s3, 10"); p(f"s_add_u32 s87, s87, {BIAS_LDS}")
        p("v_lshlrev_b32 v3, 3, v2"); p("v_add_u32 v3, s87, v3")
        for n in range(nb): p(f"ds_read_b64 v[{BP+2*n}:{BP+2*n+1}], v3 offset:{32*n}")
        p(f"s_mov_b32 s90, {hex(f2u(C2))}"); p(f"v_mov_b32 v5, {hex(f2u(C1))}")
        p("v_and_b32 v3, 1, v2"); p("v_lshlrev_b32 v3, 4, v3"); p("v_lshrrev_b32 v4, 1, v2")
        p("v_lshl_add_u32 v3, v4, 3, v3"); p(f"v_add_u32 v3, s{f0_sgpr}, v3")
        p("v_lshrrev_b32 v4, 5, v3"); p("v_lshlrev_b32 v4, 10, v4"); p("v_bfe_u32 v3, v3, 3, 2"); p("v_lshl_add_u32 v4, v3, 8, v4")
        p("v_and_b32 v3, 15, v1"); p("v_lshl_add_u32 v6, v3, 4, v4")
        if nb % 2:
            p(f"v_lshlrev_b32 v4, 2, v2"); p(f"v_add_u32 v4, s{f0_sgpr}, v4"); p(f"v_add_u32 v4, {16*(nb-1)}, v4")
            p("v_lshrrev_b32 v7, 5, v4"); p("v_lshlrev_b32 v7, 10, v7"); p("v_bfe_u32 v2, v4, 3, 2"); p("v_lshl_add_u32 v7, v2, 8, v7")
            p("v_bfe_u32 v2, v4, 2, 1"); p("v_lshl_add_u32 v7, v2, 3, v7"); p("v_lshl_add_u32 v7, v3, 4, v7")
        p(f"s_lshl_b32 s86, s{S_MT}, 4"); p("s_lshl_b32 s87, s3, 1"); p("s_add_u32 s86, s86, s87"); p("s_mul_i32 s86, s86, 114688")
        p("s_waitcnt lgkmcnt(0)")
        BF = SH
        for n0 in range(0, nb, 2):
            pair = blocks_idx[n0:n0 + 2]
            for k_, b in enumerate(pair):
                for h in range(2):
                    p(f"v_lshlrev_b32 v{BF+4*k_+2*h}, 16, v{BP+2*(n0+k_)+h}")
                    p(f"v_and_b32 v{BF+4*k_+2*h+1}, 0xffff0000, v{BP+2*(n0+k_)+h}")
            src = []; bs = []
            for i in range(2):
                for k_, b in enumerate(pair):
                    src += [ACC + (b * 2 + i) * 4 + r for r in range(4)]
                    bs += [BF + 4 * k_ + r for r in range(4)]
            T0 = SH + 8 + (40 if (n0 // 2) % 2 else 0)
            gelu_batch(p, src, bs, T0, len(src), 90, 5)
            for i in range(2):
                p(f"s_add_u32 s87, s86, {114688*i + (1024*(n0//2) if len(pair)==2 else 0)}")
                if len(pair) == 2:
                    t = T0 + 4 * i
                    if i == 0: p("s_nop 0")
                    p(f"v_permlane16_swap_b32 v{t}, v{t+2}"); p(f"v_permlane16_swap_b32 v{t+1}, v{t+3}")
                    p(f"buffer_store_dwordx4 v[{t}:{t+3}], v6, s[8:11], s87 offen{K1ST}")
                else:
                    t = T0 + 2 * i
                    p(f"buffer_store_dwordx2 v[{t}:{t+1}], v7, s[8:11], s87 offen{K1ST}")

    def sigma(i):
        p(f"s_mul_i32 s86, s3, 3"); p(f"s_add_u32 s86, s86, {i}")
    p.label("k1_typeD")
    voffK_lane(p, V, 5, 2048, 0)
    for i in range(3):
        sigma(i)
        if i >= 1:
            lab = p.newlabel("k1d"); lab2 = p.newlabel("k1d")
            p("s_cmp_ge_u32 s86, 22"); p(f"s_cbranch_scc1 {lab}")
            slot_D(i, 5); p(f"s_branch {lab2}")
            p.label(lab); slot_dummy(i); p.label(lab2)
        else:
            slot_D(i, 5)
    for w in range(nwin): addrK_setup(p, V, V_AK + 2 * w, V_AK + 2 * w + 1, w * WIN)
    blocks = [('K', 2048 * b) for b in range(11)]
    reads, mfmas = make(blocks)
    gemm_mainloop(p, "k1d", 16, NS, NPS, S_CNT, mfmas, reads, dmas, privs, pf=pf, read_frac=cfg.get("k1_rf", 0.7))
    p("s_nop 7"); p("s_nop 7")
    epi_D(list(range(11)))
    fin(p, 1)
    p("s_endpgm")
    p.label("k1_typeW")
    p(f"s_sub_u32 s91, s{S_N0}, 2048")
    bias_dma(91)
    p("s_and_b32 s88, s3, 1"); p("s_lshl_b32 s88, s88, 2")
    for i in range(3):
        d = S_SRDS + 4 * i
        p(f"v_add_u32 v2, {64*i}, v1")
        p("v_mul_u32_u24 v3, 2731, v2"); p("v_lshrrev_b32 v3, 16, v3")
        p("v_mul_u32_u24 v4, 24, v3"); p("v_sub_u32 v2, v2, v4")
        p("v_bfe_u32 v4, v3, 1, 1"); p("v_lshlrev_b32 v4, 1, v4"); p("v_or_b32 v4, s88, v4")
        p("v_xor_b32 v2, v2, v4")
        p("v_mul_u32_u24 v3, 7168, v3"); p("v_lshl_add_u32 v3, v2, 4, v3")
        p("s_mul_i32 s86, s3, 57344")
        p("s_lshl_b32 s87, s91, 1"); p("s_add_u32 s86, s86, s87")
        p("v_add_u32 v3, s86, v3")
        p("v_cmp_gt_u32 vcc, 22, v2")
        p("v_mov_b32 v4, 0x80000000")
        p("s_nop 0")
        p(f"v_cndmask_b32 v{V_VD+i}, v4, v3, vcc")
        p(f"s_mov_b32 s{d}, s{S_W1}"); p(f"s_mov_b32 s{d+1}, s{S_W1+1}"); p(f"s_mov_b32 s{d+2}, 7340032"); p(f"s_mov_b32 s{d+3}, 0x20000")
        p(f"s_mov_b32 s{S_SOFF+i}, 0"); p(f"s_mov_b32 s{S_DLT+i}, {64*7168}")
    for w in range(nwin): addrT_setup(p, V, V_AT + 4 * w, 384, w * WIN)
    blocks = [('T', b & 3, 32 * 384, 4 * 384, (b >> 2) * 128) for b in range(11)]
    reads, mfmas = make(blocks)
    gemm_mainloop(p, "k1w", 16, NS, NPS, S_CNT, mfmas, reads, dmas, privs, pf=pf, read_frac=cfg.get("k1_rf", 0.7))
    p("s_nop 7"); p("s_nop 7")
    epi_W(list(range(11)), 91)
    fin(p, 1)
    p("s_endpgm")
    p.label("k1_typeM")
    p("s_mov_b32 s91, 0")
    bias_dma(91)
    voffK_lane(p, V, 5, 2048, 0)
    voffT8_lane(p, V, 7, 7168, 0)
    for i in range(3):
        d = S_SRDS + 4 * i
        l1 = p.newlabel("k1m"); l2 = p.newlabel("k1m"); l3 = p.newlabel("k1m")
        sigma(i)
        p("s_cmp_ge_u32 s86, 22"); p(f"s_cbranch_scc1 {l2}")
        p("s_cmp_ge_u32 s86, 14"); p(f"s_cbranch_scc1 {l1}")
        slot_D(i, 5); p(f"s_branch {l3}")
        p.label(l1)
        p("s_sub_u32 s87, s86, 14"); p("s_mul_i32 s87, s87, 57344")
        p("s_and_b32 s88, s86, 1"); p("s_lshl_b32 s88, s88, 6")
        p(f"v_xor_b32 v{V_VD+i}, s88, v7")
        p(f"v_add_u32 v{V_VD+i}, s87, v{V_VD+i}")
        p(f"s_mov_b32 s{d}, s{S_W1}"); p(f"s_mov_b32 s{d+1}, s{S_W1+1}"); p(f"s_mov_b32 s{d+2}, 7340032"); p(f"s_mov_b32 s{d+3}, 0x20000")
        p(f"s_mov_b32 s{S_SOFF+i}, 0"); p(f"s_mov_b32 s{S_DLT+i}, {64*7168}")
        p(f"s_branch {l3}")
        p.label(l2); slot_dummy(i)
        p.label(l3)
    for w in range(nwin):
        addrK_setup(p, V, V_AK + 2 * w, V_AK + 2 * w + 1, w * WIN)
        addrT_setup(p, V, V_AT + 4 * w, 128, w * WIN)
    blocks = [('K', 2048 * b) for b in range(7)] + [('T', b, 4096, 512, 14336) for b in range(4)]
    reads, mfmas = make(blocks)
    gemm_mainloop(p, "k1m", 16, NS, NPS, S_CNT, mfmas, reads, dmas, privs, pf=pf, read_frac=cfg.get("k1_rf", 0.7))
    p("s_nop 7"); p("s_nop 7")
    epi_D(list(range(7)))
    p("s_nop 1")
    epi_W([7, 8, 9, 10], 91)
    fin(p, 1)
    p.label("k1_end")
    p("s_endpgm")
    return name, 208 + NPS * 8, 102, 208

def gen_k2(p, cfg):
    name = "k2_kernel"
    NS, NPS = cfg["k2_ns"], cfg["k2_nps"]
    STG = 16384; WIN = 65536
    SC = {0: " sc0 sc1", 1: " sc1"}[cfg.get("k2sc", 1)]
    nwin = (NS * STG + WIN - 1) // WIN
    kernel_head(p, name)
    p("s_cmp_ge_u32 s2, 256"); p("s_cbranch_scc1 k2_end")
    load_ptrs(p)
    V = dict(lane=1, t0=2, t1=3, t2=4)
    V_VP, V_VD, V_AK, V_AT = 8, 10, 20, 20
    ACC = 32; SH = 96
    A_P = 0
    S_SRDP, S_SRDS = 4, 8
    S_SOFF, S_KP, S_M0B, S_CNT, S_TA, S_TB, S_ROLE, S_FLAG = 44, 45, 46, 47, 48, 49, 50, 51
    S_R, S_C, S_RG, S_CG = 56, 57, 58, 59
    lane_consts(p, V)
    p("s_and_b32 s86, s2, 7"); p("s_lshr_b32 s87, s2, 3")
    p(f"s_lshr_b32 s{S_ROLE}, s86, 1"); p("s_and_b32 s88, s86, 1")
    p(f"s_lshl_b32 s{S_M0B}, s3, 11")
    p("s_waitcnt lgkmcnt(0)")
    stamp(p, 0)
    p(f"s_cmp_lt_u32 s{S_ROLE}, 2"); p("s_cbranch_scc1 k2_typeY")

    def privs(kappa):
        out = []
        for i in range(2):
            pre = []
            if i == 0 and kappa % 4 == 0 and kappa > 0: pre = [f"s_add_u32 s{S_KP}, s{S_KP}, 4096"]
            a = A_P + (kappa % NPS) * 8 + 4 * i
            out.append((pre, f"buffer_load_dwordx4 {ar(a,4)}, v{V_VP+i}, s[{S_SRDP}:{S_SRDP+3}], s{S_KP} offen offset:{(kappa%4)*1024}"))
        return out
    def mk_dmas(delta):
        def dmas(stage):
            out = []
            for i in range(2):
                pre = [f"s_add_u32 m0, s{S_M0B}, {(stage % NS) * STG + 1024 * i}"]
                if i == 0 and stage > 0: pre.insert(0, f"s_add_u32 s{S_SOFF}, s{S_SOFF}, {delta}")
                out.append((pre, f"buffer_load_dwordx4 v{V_VD+i}, s[{S_SRDS}:{S_SRDS+3}], s{S_SOFF} offen lds"))
            return out
        return dmas

    p("s_lshl_b32 s88, s88, 2"); p("s_and_b32 s89, s87, 3"); p(f"s_add_u32 s{S_TB}, s88, s89"); p(f"s_lshr_b32 s{S_TA}, s87, 2")
    p(f"s_and_b32 s89, s{S_ROLE}, 1")
    p(f"s_mul_i32 s{S_KP}, s89, {56*1024}")
    p(f"s_mul_i32 s{S_SOFF}, s89, {1792*2048}")
    srd(p, S_SRDP, S_WS, S_WS + 1, HF_SZ, HF_OFF)
    srd(p, S_SRDS, S_W2, S_W2 + 1, 7340032)
    p(f"s_lshl_b32 s86, s{S_TB}, 4"); p("s_lshl_b32 s87, s3, 1"); p("s_add_u32 s86, s86, s87"); p("s_mul_i32 s86, s86, 114688")
    p(f"v_lshlrev_b32 v{V_VP}, 4, v1"); p(f"v_add_u32 v{V_VP}, s86, v{V_VP}"); p(f"v_add_u32 v{V_VP+1}, 114688, v{V_VP}")
    voffT8_lane(p, V, 5, 2048, 0)
    p("s_and_b32 s86, s3, 3"); p("s_lshl_b32 s86, s86, 15"); p("s_lshr_b32 s87, s3, 2"); p("s_lshl_b32 s87, s87, 7"); p("s_add_u32 s86, s86, s87")
    p(f"s_lshl_b32 s87, s{S_TA}, 8"); p("s_add_u32 s86, s86, s87")
    p(f"v_add_u32 v{V_VD}, s86, v5")
    p(f"v_xor_b32 v{V_VD+1}, 64, v{V_VD}"); p(f"v_add_u32 v{V_VD+1}, 16384, v{V_VD+1}")
    for w in range(nwin): addrT_setup(p, V, V_AT + 4 * w, 128, w * WIN)
    def reads_o(kappa):
        s, kk = divmod(kappa, 2)
        out = []
        for b in range(8):
            for hh in range(2):
                off = (s % NS) * STG + (b >> 2) * 8192 + kk * 4096 + hh * 512; w = off // WIN
                out.append(f"ds_read_b64_tr_b16 {vr(SH + kk*32 + 4*b + 2*hh, 2)}, v{V_AT+4*w+(b&3)} offset:{off - w*WIN}")
        return out
    def mfmas_o(kappa):
        kk = kappa % 2
        out = []
        if cfg.get("fake32"):
            for b in range(4):
                for h in range(2):
                    acc = ACC + b * 16
                    c = vr(acc, 16) if (kappa > 0 or h) else "0"
                    out.append(f"v_mfma_f32_32x32x16_bf16 {vr(acc,16)}, {vr(SH+kk*32+4*(2*b+h),4)}, {ar(A_P+(kappa%NPS)*8+4*h,4)}, {c}")
            return out
        for b in range(8):
            for i in range(2):
                acc = ACC + (b * 2 + i) * 4
                c = vr(acc, 4) if kappa > 0 else "0"
                out.append(f"{MF} {vr(acc,4)}, {vr(SH+kk*32+4*b,4)}, {ar(A_P+(kappa%NPS)*8+4*i,4)}, {c}")
        return out
    gemm_mainloop(p, "k2o", 28, NS, NPS, S_CNT, mfmas_o, reads_o, mk_dmas(131072), privs, read_frac=cfg.get("k2o_rf", 0.7))
    p(f"s_and_b32 s89, s{S_ROLE}, 1"); p("s_lshl_b32 s89, s89, 23"); p(f"s_add_u32 s89, s89, {O1_OFF}")
    p(f"s_add_u32 s8, s{S_WS}, s89"); p(f"s_addc_u32 s9, s{S_WS+1}, 0"); p("s_mov_b32 s10, 8388608"); p("s_mov_b32 s11, 0x20000")
    p("v_and_b32 v2, 15, v1"); p("v_lshlrev_b32 v2, 12, v2"); p("v_lshrrev_b32 v3, 4, v1"); p("v_lshl_add_u32 v2, v3, 4, v2")
    p(f"s_lshl_b32 s86, s{S_TB}, 20"); p("s_lshl_b32 s87, s3, 17"); p("s_add_u32 s86, s86, s87"); p(f"s_lshl_b32 s87, s{S_TA}, 9"); p("s_add_u32 s86, s86, s87")
    p("v_add_u32 v2, s86, v2"); p("v_add_u32 v3, 0x10000, v2")
    p("s_nop 6")
    for b in range(8):
        for i in range(2):
            acc = ACC + (b * 2 + i) * 4
            p(f"buffer_store_dwordx4 {vr(acc,4)}, v{2+i}, s[8:11], 0 offen offset:{64*b}{SC}")
    p(f"s_lshl_b32 s86, s{S_TB}, 3"); p(f"s_add_u32 s86, s86, s{S_TA}"); p(f"s_lshl_b32 s87, s{S_ROLE}, 6"); p(f"s_add_u32 s{S_FLAG}, s86, s87")
    p(f"s_mov_b32 s{S_R}, s{S_TB}"); p(f"s_lshr_b32 s{S_C}, s{S_TA}, 1"); p(f"s_and_b32 s{S_CG}, s{S_TA}, 1")
    p(f"s_and_b32 s86, s{S_ROLE}, 1"); p("s_lshl_b32 s86, s86, 1"); p(f"s_add_u32 s{S_RG}, s86, 1")
    p("s_branch k2_publish")

    p.label("k2_typeY")
    p("s_lshl_b32 s88, s88, 3"); p("s_lshr_b32 s89, s87, 2"); p(f"s_add_u32 s{S_TB}, s88, s89"); p(f"s_and_b32 s{S_TA}, s87, 3")
    p(f"s_lshl_b32 s{S_KP}, s{S_ROLE}, 16")
    p(f"s_mov_b32 s{S_SOFF}, 0")
    srd(p, S_SRDP, S_WS, S_WS + 1, ABF_SZ, ABF_OFF)
    p(f"s_cmp_eq_u32 s{S_ROLE}, 0")
    p(f"s_cselect_b32 s{S_SRDS}, s{S_CR}, s{S_CI}"); p(f"s_cselect_b32 s{S_SRDS+1}, s{S_CR+1}, s{S_CI+1}")
    p(f"s_mov_b32 s{S_SRDS+2}, 8388608"); p(f"s_mov_b32 s{S_SRDS+3}, 0x20000")
    p(f"s_lshl_b32 s86, s{S_TA}, 4"); p("s_lshl_b32 s87, s3, 1"); p("s_add_u32 s86, s86, s87"); p("s_lshl_b32 s86, s86, 17")
    p(f"v_lshlrev_b32 v{V_VP}, 4, v1"); p(f"v_add_u32 v{V_VP}, s86, v{V_VP}"); p(f"v_add_u32 v{V_VP+1}, 131072, v{V_VP}")
    voffK_lane(p, V, 5, 4096, 0)
    p(f"s_lshl_b32 s86, s{S_TB}, 7"); p("s_lshl_b32 s87, s3, 4"); p("s_add_u32 s86, s86, s87"); p("s_lshl_b32 s86, s86, 12")
    p(f"v_add_u32 v{V_VD}, s86, v5")
    p(f"v_xor_b32 v{V_VD+1}, 64, v{V_VD}"); p(f"v_add_u32 v{V_VD+1}, 32768, v{V_VD+1}")
    for w in range(nwin): addrK_setup(p, V, V_AK + 2 * w, V_AK + 2 * w + 1, w * WIN)
    def reads_y(kappa):
        s, kk = divmod(kappa, 2)
        out = []
        for b in range(8):
            off = (s % NS) * STG + 2048 * b; w = off // WIN
            out.append(f"ds_read_b128 {vr(SH + kk*32 + 4*b, 4)}, v{V_AK+2*w+kk} offset:{off - w*WIN}")
        return out
    def mfmas_y(kappa):
        kk = kappa % 2
        out = []
        if cfg.get("fake32"):
            for b in range(4):
                for h in range(2):
                    acc = ACC + b * 16
                    c = vr(acc, 16) if (kappa > 0 or h) else "0"
                    out.append(f"v_mfma_f32_32x32x16_bf16 {vr(acc,16)}, {ar(A_P+(kappa%NPS)*8+4*h,4)}, {vr(SH+kk*32+4*(2*b+h),4)}, {c}")
            return out
        for b in range(8):
            for i in range(2):
                acc = ACC + (i * 8 + b) * 4
                c = vr(acc, 4) if kappa > 0 else "0"
                out.append(f"{MF} {vr(acc,4)}, {ar(A_P+(kappa%NPS)*8+4*i,4)}, {vr(SH+kk*32+4*b,4)}, {c}")
        return out
    gemm_mainloop(p, "k2y", 32, NS, NPS, S_CNT, mfmas_y, reads_y, mk_dmas(128), privs, read_frac=cfg.get("k2y_rf", 0.7))
    p(f"s_lshl_b32 s89, s{S_ROLE}, 22"); p(f"s_add_u32 s89, s89, {PP_OFF}")
    p(f"s_add_u32 s8, s{S_WS}, s89"); p(f"s_addc_u32 s9, s{S_WS+1}, 0"); p("s_mov_b32 s10, 4194304"); p("s_mov_b32 s11, 0x20000")
    p("v_lshrrev_b32 v2, 4, v1"); p("v_and_b32 v3, 1, v2"); p("v_lshlrev_b32 v3, 5, v3"); p("v_lshrrev_b32 v2, 1, v2"); p("v_lshl_add_u32 v3, v2, 4, v3")
    p("v_and_b32 v2, 15, v1"); p("v_lshl_add_u32 v3, v2, 11, v3")
    p(f"s_lshl_b32 s86, s{S_TB}, 18"); p(f"s_lshl_b32 s87, s{S_TA}, 9"); p("s_add_u32 s86, s86, s87"); p("s_lshl_b32 s87, s3, 6"); p("s_add_u32 s86, s86, s87")
    p("v_add_u32 v3, s86, v3")
    for tj in range(8):
        t = SH + 4 * tj
        a0 = ACC + tj * 4; a1 = ACC + (8 + tj) * 4
        p(f"v_cvt_pk_bf16_f32 v{t}, v{a0}, v{a0+1}"); p(f"v_cvt_pk_bf16_f32 v{t+1}, v{a0+2}, v{a0+3}")
        p(f"v_cvt_pk_bf16_f32 v{t+2}, v{a1}, v{a1+1}"); p(f"v_cvt_pk_bf16_f32 v{t+3}, v{a1+2}, v{a1+3}")
        p(f"s_mov_b32 s87, {32768*tj}"); p("s_nop 0")
        p(f"v_permlane16_swap_b32 v{t}, v{t+2}"); p(f"v_permlane16_swap_b32 v{t+1}, v{t+3}")
        p(f"buffer_store_dwordx4 v[{t}:{t+3}], v3, s[8:11], s87 offen{SC}")
    p(f"s_lshl_b32 s86, s{S_TB}, 2"); p(f"s_add_u32 s86, s86, s{S_TA}"); p(f"s_lshl_b32 s87, s{S_ROLE}, 6"); p(f"s_add_u32 s{S_FLAG}, s86, s87")
    p(f"s_lshr_b32 s{S_R}, s{S_TB}, 1"); p(f"s_mov_b32 s{S_C}, s{S_TA}"); p(f"s_mov_b32 s{S_CG}, s{S_ROLE}")
    p(f"s_and_b32 s86, s{S_TB}, 1"); p(f"s_lshl_b32 s{S_RG}, s86, 1")

    p.label("k2_publish")
    stamp(p, 2)
    srd(p, 12, S_WS, S_WS + 1, FL2_SZ, FL2_OFF)
    srd(p, 4, S_X, S_X + 1, 4194304)
    srd(p, 60, S_B2, S_B2 + 1, 2048)
    srd(p, 64, S_WS, S_WS + 1, 4194304, PP_OFF)
    srd(p, 68, S_WS, S_WS + 1, 4194304, QP_OFF)
    srd(p, 72, S_WS, S_WS + 1, 8388608, O1_OFF)
    srd(p, 76, S_WS, S_WS + 1, 8388608, O2_OFF)
    srd(p, 52, S_OUT, S_OUT + 1, 4194304)
    p(f"s_lshl_b32 s86, s{S_R}, 8"); p(f"s_lshl_b32 s87, s{S_RG}, 6"); p("s_add_u32 s86, s86, s87"); p("s_lshl_b32 s86, s86, 10")
    p(f"s_lshl_b32 s87, s{S_C}, 8"); p(f"s_lshl_b32 s88, s{S_CG}, 7"); p("s_add_u32 s87, s87, s88")
    p("v_and_b32 v4, 15, v0"); p("v_lshlrev_b32 v4, 3, v4"); p("v_add_u32 v4, s87, v4")
    p("v_lshrrev_b32 v5, 4, v0"); p("v_lshl_add_u32 v5, v5, 10, v4"); p("v_add_u32 v5, s86, v5")
    p("v_lshlrev_b32 v4, 1, v4")
    p("v_lshlrev_b32 v6, 2, v5")
    p("v_lshlrev_b32 v5, 1, v5")
    p("s_mov_b32 s90, 65536"); p("s_mov_b32 s91, 131072")
    p("s_waitcnt vmcnt(0)")
    p("s_barrier")
    XR, BR, O1R, O2R, PR, QR = 32, 40, 44, 60, 76, 84
    p(f"buffer_load_dwordx4 v[{XR}:{XR+3}], v5, s[4:7], 0 offen")
    p(f"buffer_load_dwordx4 v[{XR+4}:{XR+7}], v5, s[4:7], s90 offen")
    p(f"buffer_load_dwordx4 v[{BR}:{BR+3}], v4, s[60:63], 0 offen")
    p("s_cmp_lg_u32 s3, 0"); p("s_cbranch_scc1 k2_w_o")
    p(f"s_lshl_b32 s86, s{S_FLAG}, 7"); p("v_mov_b32 v2, s86"); p("v_mov_b32 v3, 1")
    p("s_mov_b64 exec, 1")
    p(f"buffer_store_dword v3, v2, s[12:15], 0 offen{SC}")
    p("s_mov_b64 exec, -1")
    p("v_and_b32 v2, 1, v1"); p("v_lshlrev_b32 v2, 13, v2")
    p(f"s_lshl_b32 s86, s{S_R}, 3"); p(f"s_lshl_b32 s87, s{S_C}, 1"); p("s_add_u32 s86, s86, s87"); p(f"s_add_u32 s86, s86, s{S_CG}"); p("s_add_u32 s86, s86, 128"); p("s_lshl_b32 s86, s86, 7")
    p("v_add_u32 v7, s86, v2")
    p(f"s_lshl_b32 s86, s{S_R}, 1"); p(f"s_lshr_b32 s87, s{S_RG}, 1"); p("s_add_u32 s86, s86, s87"); p("s_lshl_b32 s86, s86, 2"); p(f"s_add_u32 s86, s86, s{S_C}"); p("s_lshl_b32 s86, s86, 7")
    p("v_add_u32 v8, s86, v2")
    p.label("k2_poll_o")
    p(f"buffer_load_dword v9, v7, s[12:15], 0 offen{SC}")
    p("s_waitcnt vmcnt(0)")
    p("v_cmp_ne_u32 vcc, 1, v9")
    p("s_cbranch_vccz k2_w_o")
    p("s_sleep 1")
    p("s_branch k2_poll_o")
    p.label("k2_w_o")
    p("s_barrier")
    for ps in range(2):
        so = "0" if ps == 0 else "s91"
        p(f"buffer_load_dwordx4 v[{O1R+8*ps}:{O1R+8*ps+3}], v6, s[72:75], {so} offen{SC}")
        p(f"buffer_load_dwordx4 v[{O1R+8*ps+4}:{O1R+8*ps+7}], v6, s[72:75], {so} offen offset:16{SC}")
        p(f"buffer_load_dwordx4 v[{O2R+8*ps}:{O2R+8*ps+3}], v6, s[76:79], {so} offen{SC}")
        p(f"buffer_load_dwordx4 v[{O2R+8*ps+4}:{O2R+8*ps+7}], v6, s[76:79], {so} offen offset:16{SC}")
    p(f"s_mov_b32 s92, {hex(f2u(-math.log2(math.e)))}")
    p("s_waitcnt vmcnt(0)")
    B_ = 96; U_ = 104; W_ = 120; T = 136; GR = 144
    for i in range(4):
        p(f"v_lshlrev_b32 v{B_+2*i}, 16, v{BR+i}"); p(f"v_and_b32 v{B_+2*i+1}, 0xffff0000, v{BR+i}")
    for i in range(16): p(f"v_add_f32 v{U_+i}, v{O1R+i}, v{O2R+i}")
    for i in range(8): p(f"v_cvt_pk_bf16_f32 v{T+i}, v{U_+2*i}, v{U_+2*i+1}")
    for i in range(8):
        p(f"v_lshlrev_b32 v{U_+2*i}, 16, v{T+i}"); p(f"v_and_b32 v{U_+2*i+1}, 0xffff0000, v{T+i}")
    for i in range(16): p(f"v_add_f32 v{U_+i}, v{U_+i}, v{B_+(i%8)}")
    for i in range(8): p(f"v_cvt_pk_bf16_f32 v{T+i}, v{U_+2*i}, v{U_+2*i+1}")
    for i in range(8):
        p(f"v_lshlrev_b32 v{U_+2*i}, 16, v{T+i}"); p(f"v_and_b32 v{U_+2*i+1}, 0xffff0000, v{T+i}")
    for i in range(16): p(f"v_mul_f32 v{W_+i}, s92, v{U_+i}")
    for i in range(16): p(f"v_exp_f32 v{W_+i}, v{W_+i}")
    for i in range(16): p(f"v_add_f32 v{W_+i}, 1.0, v{W_+i}")
    for i in range(16): p(f"v_rcp_f32 v{W_+i}, v{W_+i}")
    for i in range(16): p(f"v_mul_f32 v{W_+i}, v{W_+i}, v{U_+i}")
    for i in range(8): p(f"v_cvt_pk_bf16_f32 v{T+i}, v{W_+2*i}, v{W_+2*i+1}")
    for i in range(8):
        p(f"v_lshlrev_b32 v{GR+2*i}, 16, v{T+i}"); p(f"v_and_b32 v{GR+2*i+1}, 0xffff0000, v{T+i}")
    for i in range(8):
        p(f"v_lshlrev_b32 v{O1R+2*i}, 16, v{XR+i}"); p(f"v_and_b32 v{O1R+2*i+1}, 0xffff0000, v{XR+i}")
    p("s_cmp_lg_u32 s3, 0"); p("s_cbranch_scc1 k2_w_y")
    p.label("k2_poll_y")
    p(f"buffer_load_dword v9, v8, s[12:15], 0 offen{SC}")
    p("s_waitcnt vmcnt(0)")
    p("v_cmp_ne_u32 vcc, 1, v9")
    p("s_cbranch_vccz k2_w_y")
    p("s_sleep 1")
    p("s_branch k2_poll_y")
    p.label("k2_w_y")
    p("s_barrier")
    for ps in range(2):
        so = "0" if ps == 0 else "s90"
        p(f"buffer_load_dwordx4 v[{PR+4*ps}:{PR+4*ps+3}], v5, s[64:67], {so} offen{SC}")
        p(f"buffer_load_dwordx4 v[{QR+4*ps}:{QR+4*ps+3}], v5, s[68:71], {so} offen{SC}")
    p("s_waitcnt vmcnt(0)")
    for i in range(8):
        p(f"v_lshlrev_b32 v{U_+2*i}, 16, v{PR+i}"); p(f"v_and_b32 v{U_+2*i+1}, 0xffff0000, v{PR+i}")
        p(f"v_lshlrev_b32 v{W_+2*i}, 16, v{QR+i}"); p(f"v_and_b32 v{W_+2*i+1}, 0xffff0000, v{QR+i}")
    for i in range(16): p(f"v_sub_f32 v{U_+i}, v{U_+i}, v{W_+i}")
    for i in range(8): p(f"v_cvt_pk_bf16_f32 v{T+i}, v{U_+2*i}, v{U_+2*i+1}")
    for i in range(8):
        p(f"v_lshlrev_b32 v{U_+2*i}, 16, v{T+i}"); p(f"v_and_b32 v{U_+2*i+1}, 0xffff0000, v{T+i}")
    for i in range(16): p(f"v_mul_f32 v{U_+i}, v{U_+i}, v{GR+i}")
    for i in range(8): p(f"v_cvt_pk_bf16_f32 v{T+i}, v{U_+2*i}, v{U_+2*i+1}")
    for i in range(8):
        p(f"v_lshlrev_b32 v{U_+2*i}, 16, v{T+i}"); p(f"v_and_b32 v{U_+2*i+1}, 0xffff0000, v{T+i}")
    for i in range(16): p(f"v_add_f32 v{U_+i}, v{U_+i}, v{O1R+i}")
    for i in range(8): p(f"v_cvt_pk_bf16_f32 v{T+i}, v{U_+2*i}, v{U_+2*i+1}")
    p(f"buffer_store_dwordx4 v[{T}:{T+3}], v5, s[52:55], 0 offen")
    p(f"buffer_store_dwordx4 v[{T+4}:{T+7}], v5, s[52:55], s90 offen")
    fin(p, 2)
    p.label("k2_end")
    p("s_endpgm")
    return name, 160 + NPS * 8, 102, 160

def generate(cfg, kernels=("k0", "k1", "k2")):
    CFG.clear(); CFG.update(cfg); CFG["ts_sbase"] = 98
    body = Prog()
    info = []
    lds = {"k0": 0, "k1": cfg["k1_ns"] * 24576 + 8192, "k2": cfg["k2_ns"] * 16384}
    blk = {"k0": 512, "k1": 512, "k2": 512}
    info.append(("k0",) + gen.gen_k0(body)); CFG["ts_cbase"] = 64; info.append(("k1",) + gen_k1(body, cfg)); CFG["ts_cbase"] = 80; info.append(("k2",) + gen_k2(body, cfg))
    out = ["; FNet (dense DFT matmuls) + GELU FFN fused block; generated by dev/gen2.py"]
    for k in kernels:
        out.append(f"; @launch kernel={k}_kernel grid=(256,1,1) block=({blk[k]},1,1) lds={lds[k]}")
    out.append('.amdgcn_target "amdgcn-amd-amdhsa--gfx950"')
    out.append(".text")
    out += body.L
    out.append('.section .rodata,"a"')
    for k, name, nfv, nfs, acc in info:
        out += [".p2align 6", f".amdhsa_kernel {name}", f"  .amdhsa_next_free_vgpr {nfv}", f"  .amdhsa_next_free_sgpr {nfs}",
                f"  .amdhsa_accum_offset {acc}", "  .amdhsa_group_segment_fixed_size 0", "  .amdhsa_kernarg_size 104",
                "  .amdhsa_user_sgpr_count 2", "  .amdhsa_user_sgpr_kernarg_segment_ptr 1", "  .amdhsa_system_sgpr_workgroup_id_x 1",
                ".end_amdhsa_kernel"]
    return "\n".join(out) + "\n"

DEFAULT = dict(k1_ns=4, k1_nps=4, k2_ns=4, k2_nps=8)
if __name__ == "__main__":
    cfg = dict(DEFAULT)
    fn = sys.argv[1] if len(sys.argv) > 1 else "full2.s"
    for a in sys.argv[2:]:
        k, v = a.split("=")
        cfg[k] = float(v) if "." in v else int(v)
    kern = ("k0", "k1", "k2", "k2") if cfg.get("k2twice") else ("k0", "k1", "k2")
    open(fn, "w").write(generate(cfg, kern))
```

```python
import sys, math
import gen, gen2
from gen import *
from gen2 import gelu_batch, PP_OFF, QP_OFF, O1_OFF, O2_OFF, FL2_OFF, FL2_SZ


def gen_kf(p, cfg):
    name = "kf_kernel"
    NS1, NS2, NPS2 = cfg["k1_ns"], cfg["k2_ns"], cfg["k2_nps"]
    STG1, STG2, WIN = 24576, 16384, 65536
    BIAS_LDS = 131072
    SC = " sc1"
    kernel_head(p, name)
    p("s_cmp_ge_u32 s2, 256"); p("s_cbranch_scc1 kf_end")
    load_ptrs(p)
    V = dict(lane=1, t0=2, t1=3, t2=4)
    V_VP, V_VD, V_PF, V_DUM, V_AK, V_AT = 8, 10, 13, 15, 16, 20
    V_VD2 = 30
    ACC = 32
    S_SRDP, S_SRDS, S_SOFF, S_DLT = 4, 44, 56, 59
    S_KP, S_M0B, S_CNT, S_MT, S_NT, S_N0 = 80, 81, 82, 83, 84, 85
    S2_SRDS, S2_SOFF, S2_M0B, S_TA, S_TB, S_ROLE, S_X7, S_M = 64, 68, 69, 70, 71, 72, 73, 74
    lane_consts(p, V)
    p(f"s_and_b32 s{S_X7}, s2, 7"); p("s_lshr_b32 s87, s2, 3"); p(f"s_lshr_b32 s{S_M}, s87, 1"); p("s_and_b32 s75, s87, 1")
    p(f"s_and_b32 s88, s{S_X7}, 1"); p("s_lshl_b32 s88, s88, 2"); p(f"s_and_b32 s89, s{S_M}, 3"); p(f"s_add_u32 s{S_MT}, s88, s89")
    p(f"s_lshr_b32 s88, s{S_X7}, 1"); p("s_lshl_b32 s88, s88, 2"); p(f"s_lshr_b32 s89, s{S_M}, 2"); p(f"s_add_u32 s{S_NT}, s88, s89")
    p(f"s_mul_i32 s{S_M0B}, s3, 3072"); p(f"s_lshl_b32 s{S2_M0B}, s3, 11")
    p(f"s_mov_b32 s{S_KP}, 0")
    p(f"s_lshl_b32 s86, s{S_MT}, 4"); p("s_lshl_b32 s87, s3, 1"); p("s_add_u32 s86, s86, s87"); p("s_lshl_b32 s86, s86, 15")
    p(f"v_lshlrev_b32 v{V_VP}, 4, v1"); p(f"v_add_u32 v{V_VP}, s86, v{V_VP}"); p(f"v_add_u32 v{V_VP+1}, 32768, v{V_VP}")
    p("s_lshl_b32 s86, s2, 3"); p("s_add_u32 s86, s86, s3"); p("s_lshl_b32 s87, s86, 12"); p("s_mul_i32 s86, s86, 3584")
    p(f"v_lshlrev_b32 v{V_PF+1}, 7, v1"); p(f"v_add_u32 v{V_PF}, s87, v{V_PF+1}"); p(f"v_add_u32 v{V_PF+1}, s86, v{V_PF+1}")
    p("v_mov_b32 v2, 0x80000000")
    p("v_cmp_gt_u32 vcc, 32, v1"); p("s_nop 1"); p(f"v_cndmask_b32 v{V_PF}, v2, v{V_PF}, vcc")
    p("v_cmp_gt_u32 vcc, 28, v1"); p("s_nop 1"); p(f"v_cndmask_b32 v{V_PF+1}, v2, v{V_PF+1}, vcc")
    p("s_waitcnt lgkmcnt(0)")
    stamp(p, 0)
    srd(p, S_SRDP, S_WS, S_WS + 1, XF_SZ, XF_OFF)
    p("s_cmp_eq_u32 s75, 1"); p("s_cbranch_scc1 kf_typeO")

    def slot_D(i, pv):
        d = S_SRDS + 4 * i
        p(f"s_lshl_b32 s87, s86, 3"); p(f"s_add_u32 s87, s87, s{S_N0}")
        p("s_cmp_lt_u32 s87, 1024")
        p(f"s_cselect_b32 s{d}, s{S_DR}, s{S_DI}"); p(f"s_cselect_b32 s{d+1}, s{S_DR+1}, s{S_DI+1}")
        p(f"s_mov_b32 s{d+2}, 2097152"); p(f"s_mov_b32 s{d+3}, 0x20000")
        p("s_and_b32 s87, s87, 1023"); p("s_lshl_b32 s87, s87, 11")
        p("s_and_b32 s88, s86, 1"); p("s_lshl_b32 s88, s88, 6")
        p(f"v_xor_b32 v{V_VD+i}, s88, v{pv}")
        p(f"v_add_u32 v{V_VD+i}, s87, v{V_VD+i}")
        p(f"s_mov_b32 s{S_SOFF+i}, 0"); p(f"s_mov_b32 s{S_DLT+i}, 128")
    def slot_dummy(i):
        d = S_SRDS + 4 * i
        p(f"s_mov_b32 s{d}, s{S_W1}"); p(f"s_mov_b32 s{d+1}, s{S_W1+1}")
        p(f"s_mov_b32 s{d+2}, 0"); p(f"s_mov_b32 s{d+3}, 0x20000")
        p(f"v_mov_b32 v{V_VD+i}, 0")
        p(f"s_mov_b32 s{S_SOFF+i}, 0"); p(f"s_mov_b32 s{S_DLT+i}, 0")
    def sigma(i):
        p(f"s_mul_i32 s86, s3, 3"); p(f"s_add_u32 s86, s86, {i}")
    def dmas1(stage):
        out = []
        for i in range(3):
            pre = [f"s_add_u32 m0, s{S_M0B}, {(stage % NS1) * STG1 + 1024 * i}"]
            if stage > 0: pre.insert(0, f"s_add_u32 s{S_SOFF+i}, s{S_SOFF+i}, s{S_DLT+i}")
            d = S_SRDS + 4 * i
            out.append((pre, f"buffer_load_dwordx4 v{V_VD+i}, s[{d}:{d+3}], s{S_SOFF+i} offen lds"))
        return out
    def pf(kappa):
        if not cfg.get("pf1", 2): return []
        ks = cfg.get("pf1_ks", (2, 10, 18))
        if kappa not in ks: return []
        m = ks.index(kappa)
        b = (S_CR, S_CI, S_W2)[m]
        pre = [f"s_mov_b32 s8, s{b}", f"s_mov_b32 s9, s{b+1}", f"s_mov_b32 s10, {(8388608, 8388608, 7340032)[m]}", "s_mov_b32 s11, 0x20000"]
        return [(pre, f"buffer_load_dword v{V_DUM}, v{V_PF + (1 if m == 2 else 0)}, s[8:11], 0 offen")]
    def mkpreg(vbase, nv):
        def f(r):
            return vr(vbase + r, 4) if r < nv else ar(r - nv, 4)
        return f
    def phase1(tag, blocks):
        nb = len(blocks)
        SH = ACC + nb * 8
        PV = SH + nb * 8
        nv = 224 - PV
        NPS = (nv + 32) // 8
        NPS = min(NPS, cfg.get("k1_nps", 8))
        preg = mkpreg(PV, nv)
        def privs(kappa):
            out = []
            for i in range(2):
                pre = []
                if i == 0 and kappa % 4 == 0 and kappa > 0: pre = [f"s_add_u32 s{S_KP}, s{S_KP}, 4096"]
                out.append((pre, f"buffer_load_dwordx4 {preg((kappa % NPS) * 8 + 4 * i)}, v{V_VP+i}, s[{S_SRDP}:{S_SRDP+3}], s{S_KP} offen offset:{(kappa%4)*1024}"))
            return out
        def reads(kappa):
            s, kk = divmod(kappa, 2)
            ring = (s % NS1) * STG1
            out = []
            for b, bl in enumerate(blocks):
                a = SH + kk * nb * 4 + 4 * b
                if bl[0] == 'K':
                    off = ring + bl[1]; w = off // WIN
                    out.append(f"ds_read_b128 {vr(a,4)}, v{V_AK+2*w+kk} offset:{off - w*WIN}")
                else:
                    for hh in range(2):
                        off = ring + bl[4] + kk * bl[2] + hh * bl[3]; w = off // WIN
                        out.append(f"ds_read_b64_tr_b16 {vr(a+2*hh,2)}, v{V_AT+4*w+bl[1]} offset:{off - w*WIN}")
            return out
        def mfmas(kappa):
            kk = kappa % 2
            out = []
            for b, bl in enumerate(blocks):
                for i in range(2):
                    acc = ACC + (b * 2 + i) * 4
                    S = vr(SH + kk * nb * 4 + 4 * b, 4); P = preg((kappa % NPS) * 8 + 4 * i)
                    c = vr(acc, 4) if kappa > 0 else "0"
                    out.append(f"{MF} {vr(acc,4)}, {P}, {S}, {c}" if bl[0] == 'K' else f"{MF} {vr(acc,4)}, {S}, {P}, {c}")
            return out
        tm = cfg.get("tsmode", 0)
        gemm_mainloop(p, tag, 16, NS1, NPS, S_CNT, mfmas, reads, dmas1, privs, pf=pf, read_frac=cfg.get("k1_rf", 0.7), st1=(1, 0, 0)[tm], st2=(2, 0, 0)[tm])
        p("s_barrier")
        return SH

    def epi_D(blocks_idx, SH):
        srd(p, 8, S_WS, S_WS + 1, ABF_SZ, ABF_OFF)
        p("v_lshrrev_b32 v2, 4, v1"); p("v_and_b32 v3, 1, v2"); p("v_lshlrev_b32 v3, 1, v3"); p("v_lshrrev_b32 v2, 1, v2")
        p("v_or_b32 v2, v2, v3"); p("v_lshlrev_b32 v2, 8, v2"); p("v_and_b32 v3, 15, v1"); p("v_lshl_add_u32 v2, v3, 4, v2")
        p(f"s_lshl_b32 s86, s{S_MT}, 3"); p("s_add_u32 s86, s86, s3"); p("s_lshl_b32 s86, s86, 10")
        p("v_add_u32 v2, s86, v2")
        for n, b in enumerate(blocks_idx):
            t = SH + 4 * n
            a0 = ACC + b * 8; a1 = a0 + 4
            p(f"v_cvt_pk_bf16_f32 v{t}, v{a0}, v{a0+1}"); p(f"v_cvt_pk_bf16_f32 v{t+1}, v{a0+2}, v{a0+3}")
            p(f"v_cvt_pk_bf16_f32 v{t+2}, v{a1}, v{a1+1}"); p(f"v_cvt_pk_bf16_f32 v{t+3}, v{a1+2}, v{a1+3}")
            p(f"s_add_u32 s87, s{S_N0}, {16*b}")
            p("s_lshr_b32 s88, s87, 10"); p("s_lshl_b32 s88, s88, 16")
            p("s_and_b32 s87, s87, 1023"); p("s_lshl_b32 s87, s87, 13")
            p("s_add_u32 s87, s87, s88")
            p(f"v_permlane16_swap_b32 v{t}, v{t+2}"); p(f"v_permlane16_swap_b32 v{t+1}, v{t+3}")
            p(f"buffer_store_dwordx4 v[{t}:{t+3}], v2, s[8:11], s87 offen{SC}")
    def bias_dma(f0):
        srd(p, 12, S_B1, S_B1 + 1, 7168)
        p("v_lshlrev_b32 v2, 4, v1")
        p(f"s_lshl_b32 s86, s{f0}, 1")
        p("s_lshl_b32 s87, s3, 10"); p(f"s_add_u32 m0, s87, {BIAS_LDS}")
        p("s_nop 0")
        p("buffer_load_dwordx4 v2, s[12:15], s86 offen lds")
    def epi_W(blocks_idx, f0, SH):
        srd(p, 8, S_WS, S_WS + 1, HF_SZ, HF_OFF)
        nb = len(blocks_idx)
        assert nb % 2 == 0
        BP = 6
        p("v_lshrrev_b32 v2, 4, v1")
        p("s_lshl_b32 s87, s3, 10"); p(f"s_add_u32 s87, s87, {BIAS_LDS}")
        p("v_lshlrev_b32 v3, 3, v2"); p("v_add_u32 v3, s87, v3")
        for n in range(nb): p(f"ds_read_b64 v[{BP+2*n}:{BP+2*n+1}], v3 offset:{32*n}")
        p(f"s_mov_b32 s90, {hex(f2u(C2))}"); p(f"v_mov_b32 v5, {hex(f2u(C1))}")
        p("v_and_b32 v3, 1, v2"); p("v_lshlrev_b32 v3, 1, v3"); p("v_lshrrev_b32 v4, 1, v2"); p("v_or_b32 v3, v3, v4")
        p("v_lshlrev_b32 v3, 8, v3"); p("v_and_b32 v4, 15, v1"); p("v_lshl_add_u32 v4, v4, 4, v3")
        p(f"s_lshl_b32 s86, s{S_MT}, 4"); p("s_lshl_b32 s87, s3, 1"); p("s_add_u32 s86, s86, s87"); p("s_mul_i32 s86, s86, 114688")
        p(f"s_lshl_b32 s87, s{f0}, 5"); p("s_add_u32 s86, s86, s87")
        p("s_waitcnt lgkmcnt(0)")
        BF = SH
        for n0 in range(0, nb, 2):
            pair = blocks_idx[n0:n0 + 2]
            for k_ in range(2):
                for h in range(2):
                    p(f"v_lshlrev_b32 v{BF+4*k_+2*h}, 16, v{BP+2*(n0+k_)+h}")
                    p(f"v_and_b32 v{BF+4*k_+2*h+1}, 0xffff0000, v{BP+2*(n0+k_)+h}")
            src = []; bs = []
            for i in range(2):
                for k_, b in enumerate(pair):
                    src += [ACC + (b * 2 + i) * 4 + r for r in range(4)]
                    bs += [BF + 4 * k_ + r for r in range(4)]
            T0 = SH + 8 + (40 if (n0 // 2) % 2 else 0)
            gelu_batch(p, src, bs, T0, 16, 90, 5)
            for i in range(2):
                p(f"s_add_u32 s87, s86, {114688*i + 1024*(n0//2)}")
                t = T0 + 4 * i
                if i == 0: p("s_nop 0")
                p(f"v_permlane16_swap_b32 v{t}, v{t+2}"); p(f"v_permlane16_swap_b32 v{t+1}, v{t+3}")
                p(f"buffer_store_dwordx4 v[{t}:{t+3}], v4, s[8:11], s87 offen{SC}")
    def setup_W(nchunks, f0):
        p("s_and_b32 s88, s3, 1"); p("s_lshl_b32 s88, s88, 2")
        for i in range(3):
            d = S_SRDS + 4 * i
            p(f"v_add_u32 v2, {64*i}, v1")
            p("v_mul_u32_u24 v3, 2731, v2"); p("v_lshrrev_b32 v3, 16, v3")
            p("v_mul_u32_u24 v4, 24, v3"); p("v_sub_u32 v2, v2, v4")
            p("v_bfe_u32 v4, v3, 1, 1"); p("v_lshlrev_b32 v4, 1, v4"); p("v_or_b32 v4, s88, v4")
            p("v_xor_b32 v2, v2, v4")
            p("v_mul_u32_u24 v3, 7168, v3"); p("v_lshl_add_u32 v3, v2, 4, v3")
            p("s_mul_i32 s86, s3, 57344")
            p(f"s_lshl_b32 s87, s{f0}, 1"); p("s_add_u32 s86, s86, s87")
            if nchunks < 24:
                p("v_add_u32 v3, s86, v3")
                p(f"v_cmp_gt_u32 vcc, {nchunks}, v2")
                p("v_mov_b32 v4, 0x80000000")
                p("s_nop 0")
                p(f"v_cndmask_b32 v{V_VD+i}, v4, v3, vcc")
            else:
                p(f"v_add_u32 v{V_VD+i}, s86, v3")
            p(f"s_mov_b32 s{d}, s{S_W1}"); p(f"s_mov_b32 s{d+1}, s{S_W1+1}"); p(f"s_mov_b32 s{d+2}, 7340032"); p(f"s_mov_b32 s{d+3}, 0x20000")
            p(f"s_mov_b32 s{S_SOFF+i}, 0"); p(f"s_mov_b32 s{S_DLT+i}, {64*7168}")
        for w in range(2): addrT_setup(p, V, V_AT + 4 * w, 384, w * WIN)
    def publish1(dflag, widx_sgpr):
        if cfg.get("tsmode") == 1: stamp(p, 1)
        p("s_waitcnt vmcnt(0)")
        p("s_barrier")
        if cfg.get("tsmode") == 1: stamp(p, 2)
        lab = p.newlabel("pub")
        p("s_cmp_lg_u32 s3, 0"); p(f"s_cbranch_scc1 {lab}")
        srd(p, 12, S_WS, S_WS + 1, FL2_SZ, FL2_OFF)
        p("v_mov_b32 v3, 1")
        p("s_mov_b64 exec, 1")
        if dflag:
            p(f"s_lshl_b32 s86, s{S_NT}, 7"); p(f"s_lshl_b32 s87, s{S_MT}, 2"); p("s_add_u32 s86, s86, s87"); p("v_mov_b32 v2, s86")
            p(f"buffer_store_dword v3, v2, s[12:15], 0 offen offset:32{SC}")
        if widx_sgpr is not None:
            p(f"s_lshl_b32 s86, s{S_MT}, 7"); p(f"s_lshl_b32 s87, s{widx_sgpr}, 2"); p("s_add_u32 s86, s86, s87"); p("v_mov_b32 v2, s86")
            p(f"buffer_store_dword v3, v2, s[12:15], 0 offen offset:{2048+32}{SC}")
        p("s_mov_b64 exec, -1")
        p.label(lab)

    V2_VP, V2_A = 8, 20
    SH2 = 96
    preg2 = mkpreg(160, 64)
    S2_SRDP, S2_KP = 4, 80
    def privs2(kappa):
        out = []
        for i in range(2):
            pre = []
            if i == 0 and kappa % 4 == 0 and kappa > 0: pre = [f"s_add_u32 s{S2_KP}, s{S2_KP}, 4096"]
            out.append((pre, f"buffer_load_dwordx4 {preg2((kappa % NPS2) * 8 + 4 * i)}, v{V2_VP+i}, s[{S2_SRDP}:{S2_SRDP+3}], s{S2_KP} offen offset:{(kappa%4)*1024}{SC}"))
        return out
    def mk_dmas2(delta):
        def dmas(stage):
            out = []
            for i in range(2):
                pre = [f"s_add_u32 m0, s{S2_M0B}, {(stage % NS2) * STG2 + 1024 * i}"]
                if i == 0 and stage > 0: pre.insert(0, f"s_add_u32 s{S2_SOFF}, s{S2_SOFF}, {delta}")
                out.append((pre, f"buffer_load_dwordx4 v{V_VD2+i}, s[{S2_SRDS}:{S2_SRDS+3}], s{S2_SOFF} offen lds"))
            return out
        return dmas
    def reads_o(kappa):
        s, kk = divmod(kappa, 2)
        out = []
        for b in range(8):
            for hh in range(2):
                off = (s % NS2) * STG2 + (b >> 2) * 8192 + kk * 4096 + hh * 512; w = off // WIN
                out.append(f"ds_read_b64_tr_b16 {vr(SH2 + kk*32 + 4*b + 2*hh, 2)}, v{V2_A+4*w+(b&3)} offset:{off - w*WIN}")
        return out
    def mfmas_o(kappa):
        kk = kappa % 2
        return [f"{MF} {vr(ACC+(b*2+i)*4,4)}, {vr(SH2+kk*32+4*b,4)}, {preg2((kappa%NPS2)*8+4*i)}, {vr(ACC+(b*2+i)*4,4) if kappa > 0 else '0'}"
                for b in range(8) for i in range(2)]
    def reads_y(kappa):
        s, kk = divmod(kappa, 2)
        out = []
        for b in range(8):
            off = (s % NS2) * STG2 + 2048 * b; w = off // WIN
            out.append(f"ds_read_b128 {vr(SH2 + kk*32 + 4*b, 4)}, v{V2_A+2*w+kk} offset:{off - w*WIN}")
        return out
    def mfmas_y(kappa):
        kk = kappa % 2
        return [f"{MF} {vr(ACC+(i*8+b)*4,4)}, {preg2((kappa%NPS2)*8+4*i)}, {vr(SH2+kk*32+4*b,4)}, {vr(ACC+(i*8+b)*4,4) if kappa > 0 else '0'}"
                for b in range(8) for i in range(2)]
    def split_loop(tag, nst, mf, rd, dm, rf):
        tp = Prog(); tp.uid = p.uid
        gemm_mainloop(tp, tag, nst, NS2, NPS2, S_CNT, mf, rd, dm, privs2, read_frac=rf, hook=lambda: tp.raw("@SPLIT"), st1=(3, 3, 0)[cfg.get("tsmode", 0)], st2=(4, 4, 0)[cfg.get("tsmode", 0)])
        p.uid = tp.uid
        i = tp.L.index("@SPLIT")
        return tp.L[:i], tp.L[i + 1:]
    Y_pre, Y_rest = split_loop("kfy", 32, mfmas_y, reads_y, mk_dmas2(128), cfg.get("k2y_rf", 0.7))
    O_pre, O_rest = split_loop("kfo", 28, mfmas_o, reads_o, mk_dmas2(131072), cfg.get("k2o_rf", 0.7))

    p(f"s_and_b32 s{S_ROLE}, s{S_X7}, 1")
    p(f"s_lshr_b32 s88, s{S_X7}, 1"); p("s_lshl_b32 s88, s88, 2"); p(f"s_lshr_b32 s89, s{S_M}, 2"); p(f"s_add_u32 s{S_TB}, s88, s89"); p(f"s_and_b32 s{S_TA}, s{S_M}, 3")
    p(f"s_mov_b32 s{S2_SOFF}, 0")
    p(f"s_cmp_eq_u32 s{S_ROLE}, 0")
    p(f"s_cselect_b32 s{S2_SRDS}, s{S_CR}, s{S_CI}"); p(f"s_cselect_b32 s{S2_SRDS+1}, s{S_CR+1}, s{S_CI+1}")
    p(f"s_mov_b32 s{S2_SRDS+2}, 8388608"); p(f"s_mov_b32 s{S2_SRDS+3}, 0x20000")
    voffK_lane(p, V, 5, 4096, 0)
    p(f"s_lshl_b32 s86, s{S_TB}, 7"); p("s_lshl_b32 s87, s3, 4"); p("s_add_u32 s86, s86, s87"); p("s_lshl_b32 s86, s86, 12")
    p(f"v_add_u32 v{V_VD2}, s86, v5")
    p(f"v_xor_b32 v{V_VD2+1}, 64, v{V_VD2}"); p(f"v_add_u32 v{V_VD2+1}, 32768, v{V_VD2+1}")
    p(f"s_mul_i32 s{S_N0}, s{S_NT}, 160")
    p(f"s_cmp_gt_u32 s{S_NT}, 12"); p("s_cbranch_scc1 kf_W160")
    p(f"s_cmp_eq_u32 s{S_NT}, 12"); p("s_cbranch_scc1 kf_M160")
    voffK_lane(p, V, 5, 2048, 0)
    for i in range(3):
        sigma(i)
        lab = p.newlabel("kfd"); lab2 = p.newlabel("kfd")
        p("s_cmp_ge_u32 s86, 20"); p(f"s_cbranch_scc1 {lab}")
        slot_D(i, 5); p(f"s_branch {lab2}")
        p.label(lab); slot_dummy(i); p.label(lab2)
    for w in range(2): addrK_setup(p, V, V_AK + 2 * w, V_AK + 2 * w + 1, w * WIN)
    SH = phase1("kfd", [('K', 2048 * b) for b in range(10)])
    p.L += Y_pre
    epi_D(list(range(10)), SH)
    publish1(True, None)
    p("s_branch kf_Y2")
    p.label("kf_M160")
    p("s_mov_b32 s91, 0")
    bias_dma(91)
    voffK_lane(p, V, 5, 2048, 0)
    voffT8_lane(p, V, 7, 7168, 0)
    for i in range(3):
        d = S_SRDS + 4 * i
        l1 = p.newlabel("kfm"); l3 = p.newlabel("kfm")
        sigma(i)
        p("s_cmp_ge_u32 s86, 16"); p(f"s_cbranch_scc1 {l1}")
        slot_D(i, 5); p(f"s_branch {l3}")
        p.label(l1)
        p("s_sub_u32 s87, s86, 16"); p("s_mul_i32 s87, s87, 57344")
        p("s_and_b32 s88, s86, 1"); p("s_lshl_b32 s88, s88, 6")
        p(f"v_xor_b32 v{V_VD+i}, s88, v7")
        p(f"v_add_u32 v{V_VD+i}, s87, v{V_VD+i}")
        p(f"s_mov_b32 s{d}, s{S_W1}"); p(f"s_mov_b32 s{d+1}, s{S_W1+1}"); p(f"s_mov_b32 s{d+2}, 7340032"); p(f"s_mov_b32 s{d+3}, 0x20000")
        p(f"s_mov_b32 s{S_SOFF+i}, 0"); p(f"s_mov_b32 s{S_DLT+i}, {64*7168}")
        p.label(l3)
    for w in range(2):
        addrK_setup(p, V, V_AK + 2 * w, V_AK + 2 * w + 1, w * WIN)
        addrT_setup(p, V, V_AT + 4 * w, 128, w * WIN)
    SH = phase1("kfm", [('K', 2048 * b) for b in range(8)] + [('T', b, 4096, 512, 16384) for b in range(2)])
    p.L += Y_pre
    epi_D(list(range(8)), SH)
    p("s_nop 1")
    epi_W([8, 9], 91, SH)
    p("s_mov_b32 s91, 0")
    publish1(True, 91)
    p("s_branch kf_Y2")
    p.label("kf_W160")
    p(f"s_sub_u32 s91, s{S_N0}, 2048")
    bias_dma(91)
    setup_W(20, 91)
    SH = phase1("kfw", [('T', b & 3, 32 * 384, 4 * 384, (b >> 2) * 128) for b in range(10)])
    p.L += Y_pre
    epi_W(list(range(10)), 91, SH)
    p(f"s_sub_u32 s91, s{S_NT}, 12")
    publish1(False, 91)
    p.label("kf_Y2")
    p(f"s_lshl_b32 s{S2_KP}, s{S_ROLE}, 16")
    srd(p, S2_SRDP, S_WS, S_WS + 1, ABF_SZ, ABF_OFF)
    p(f"s_lshl_b32 s86, s{S_TA}, 4"); p("s_lshl_b32 s87, s3, 1"); p("s_add_u32 s86, s86, s87"); p("s_lshl_b32 s86, s86, 17")
    p(f"v_lshlrev_b32 v{V2_VP}, 4, v1"); p(f"v_add_u32 v{V2_VP}, s86, v{V2_VP}"); p(f"v_add_u32 v{V2_VP+1}, 131072, v{V2_VP}")
    for w in range(2): addrK_setup(p, V, V2_A + 2 * w, V2_A + 2 * w + 1, w * WIN)
    p("s_cmp_lg_u32 s3, 0"); p("s_cbranch_scc1 kf_Y2w")
    p("v_min_u32 v2, 51, v1"); p("v_lshrrev_b32 v3, 2, v2"); p("v_and_b32 v2, 3, v2"); p("v_lshlrev_b32 v2, 3, v2"); p("v_lshl_add_u32 v2, v3, 7, v2")
    p.label("kf_Y2p")
    p(f"buffer_load_dwordx2 v[4:5], v2, s[12:15], 0 offen offset:32{SC}")
    p("s_waitcnt vmcnt(0)")
    p("v_and_b32 v4, v4, v5")
    p("v_cmp_ne_u32 vcc, 1, v4")
    p("s_cbranch_vccz kf_Y2w")
    p("s_sleep 1")
    p("s_branch kf_Y2p")
    p.label("kf_Y2w")
    p("s_barrier")
    p.L += Y_rest
    S_FLAG, S_R, S_C, S_RG, S_CG = 51, 56, 57, 58, 59
    p(f"s_lshl_b32 s89, s{S_ROLE}, 22"); p(f"s_add_u32 s89, s89, {PP_OFF}")
    p(f"s_add_u32 s8, s{S_WS}, s89"); p(f"s_addc_u32 s9, s{S_WS+1}, 0"); p("s_mov_b32 s10, 4194304"); p("s_mov_b32 s11, 0x20000")
    p("v_lshrrev_b32 v2, 4, v1"); p("v_and_b32 v3, 1, v2"); p("v_lshlrev_b32 v3, 5, v3"); p("v_lshrrev_b32 v2, 1, v2"); p("v_lshl_add_u32 v3, v2, 4, v3")
    p("v_and_b32 v2, 15, v1"); p("v_lshl_add_u32 v3, v2, 11, v3")
    p(f"s_lshl_b32 s86, s{S_TB}, 18"); p(f"s_lshl_b32 s87, s{S_TA}, 9"); p("s_add_u32 s86, s86, s87"); p("s_lshl_b32 s87, s3, 6"); p("s_add_u32 s86, s86, s87")
    p("v_add_u32 v3, s86, v3")
    for tj in range(8):
        t = SH2 + 4 * tj
        a0 = ACC + tj * 4; a1 = ACC + (8 + tj) * 4
        p(f"v_cvt_pk_bf16_f32 v{t}, v{a0}, v{a0+1}"); p(f"v_cvt_pk_bf16_f32 v{t+1}, v{a0+2}, v{a0+3}")
        p(f"v_cvt_pk_bf16_f32 v{t+2}, v{a1}, v{a1+1}"); p(f"v_cvt_pk_bf16_f32 v{t+3}, v{a1+2}, v{a1+3}")
        p(f"s_mov_b32 s87, {32768*tj}"); p("s_nop 0")
        p(f"v_permlane16_swap_b32 v{t}, v{t+2}"); p(f"v_permlane16_swap_b32 v{t+1}, v{t+3}")
        p(f"buffer_store_dwordx4 v[{t}:{t+3}], v3, s[8:11], s87 offen{SC}")
    p(f"s_lshl_b32 s86, s{S_TB}, 2"); p(f"s_add_u32 s86, s86, s{S_TA}"); p(f"s_lshl_b32 s87, s{S_ROLE}, 6"); p(f"s_add_u32 s{S_FLAG}, s86, s87")
    p(f"s_lshr_b32 s{S_R}, s{S_TB}, 1"); p(f"s_mov_b32 s{S_C}, s{S_TA}"); p(f"s_mov_b32 s{S_CG}, s{S_ROLE}")
    p(f"s_and_b32 s86, s{S_TB}, 1"); p(f"s_lshl_b32 s{S_RG}, s86, 1")
    p("s_branch kf_publish")

    p.label("kf_typeO")
    p(f"s_and_b32 s89, s{S_X7}, 1"); p(f"s_add_u32 s{S_ROLE}, s89, 2")
    p(f"s_lshr_b32 s88, s{S_X7}, 1"); p("s_lshl_b32 s88, s88, 1"); p(f"s_lshr_b32 s87, s{S_M}, 3"); p(f"s_add_u32 s{S_TB}, s88, s87"); p(f"s_and_b32 s{S_TA}, s{S_M}, 7")
    p(f"s_mul_i32 s{S2_SOFF}, s89, {1792*2048}")
    srd(p, S2_SRDS, S_W2, S_W2 + 1, 7340032)
    voffT8_lane(p, V, 5, 2048, 0)
    p("s_and_b32 s86, s3, 3"); p("s_lshl_b32 s86, s86, 15"); p("s_lshr_b32 s87, s3, 2"); p("s_lshl_b32 s87, s87, 7"); p("s_add_u32 s86, s86, s87")
    p(f"s_lshl_b32 s87, s{S_TA}, 8"); p("s_add_u32 s86, s86, s87")
    p(f"v_add_u32 v{V_VD2}, s86, v5")
    p(f"v_xor_b32 v{V_VD2+1}, 64, v{V_VD2}"); p(f"v_add_u32 v{V_VD2+1}, 16384, v{V_VD2+1}")
    p(f"s_mul_i32 s91, s{S_NT}, 192"); p("s_add_u32 s91, s91, 512")
    bias_dma(91)
    setup_W(24, 91)
    SH = phase1("kfW", [('T', b & 3, 32 * 384, 4 * 384, (b >> 2) * 128) for b in range(12)])
    p.L += O_pre
    epi_W(list(range(12)), 91, SH)
    p(f"s_add_u32 s91, s{S_NT}, 4")
    publish1(False, 91)
    p(f"s_and_b32 s89, s{S_ROLE}, 1"); p(f"s_mul_i32 s{S2_KP}, s89, {56*1024}")
    srd(p, S2_SRDP, S_WS, S_WS + 1, HF_SZ, HF_OFF)
    p(f"s_lshl_b32 s86, s{S_TB}, 4"); p("s_lshl_b32 s87, s3, 1"); p("s_add_u32 s86, s86, s87"); p("s_mul_i32 s86, s86, 114688")
    p(f"v_lshlrev_b32 v{V2_VP}, 4, v1"); p(f"v_add_u32 v{V2_VP}, s86, v{V2_VP}"); p(f"v_add_u32 v{V2_VP+1}, 114688, v{V2_VP}")
    for w in range(2): addrT_setup(p, V, V2_A + 4 * w, 128, w * WIN)
    p("s_cmp_lg_u32 s3, 0"); p("s_cbranch_scc1 kf_O2w")
    p("v_min_u32 v2, 19, v1"); p("v_lshlrev_b32 v2, 2, v2"); p(f"s_lshl_b32 s86, s{S_TB}, 7"); p("v_add_u32 v2, s86, v2")
    p.label("kf_O2p")
    p(f"buffer_load_dword v4, v2, s[12:15], 0 offen offset:{2048+32}{SC}")
    p("s_waitcnt vmcnt(0)")
    p("v_cmp_ne_u32 vcc, 1, v4")
    p("s_cbranch_vccz kf_O2w")
    p("s_sleep 1")
    p("s_branch kf_O2p")
    p.label("kf_O2w")
    p("s_barrier")
    p.L += O_rest
    p(f"s_and_b32 s89, s{S_ROLE}, 1"); p("s_lshl_b32 s89, s89, 23"); p(f"s_add_u32 s89, s89, {O1_OFF}")
    p(f"s_add_u32 s8, s{S_WS}, s89"); p(f"s_addc_u32 s9, s{S_WS+1}, 0"); p("s_mov_b32 s10, 8388608"); p("s_mov_b32 s11, 0x20000")
    p("v_and_b32 v2, 15, v1"); p("v_lshlrev_b32 v2, 12, v2"); p("v_lshrrev_b32 v3, 4, v1"); p("v_lshl_add_u32 v2, v3, 4, v2")
    p(f"s_lshl_b32 s86, s{S_TB}, 20"); p("s_lshl_b32 s87, s3, 17"); p("s_add_u32 s86, s86, s87"); p(f"s_lshl_b32 s87, s{S_TA}, 9"); p("s_add_u32 s86, s86, s87")
    p("v_add_u32 v2, s86, v2"); p("v_add_u32 v3, 0x10000, v2")
    p("s_nop 6")
    for b in range(8):
        for i in range(2):
            acc = ACC + (b * 2 + i) * 4
            p(f"buffer_store_dwordx4 {vr(acc,4)}, v{2+i}, s[8:11], 0 offen offset:{64*b}{SC}")
    p(f"s_lshl_b32 s86, s{S_TB}, 3"); p(f"s_add_u32 s86, s86, s{S_TA}"); p(f"s_lshl_b32 s87, s{S_ROLE}, 6"); p(f"s_add_u32 s{S_FLAG}, s86, s87")
    p(f"s_mov_b32 s{S_R}, s{S_TB}"); p(f"s_lshr_b32 s{S_C}, s{S_TA}, 1"); p(f"s_and_b32 s{S_CG}, s{S_TA}, 1")
    p(f"s_and_b32 s86, s{S_ROLE}, 1"); p("s_lshl_b32 s86, s86, 1"); p(f"s_add_u32 s{S_RG}, s86, 1")

    p.label("kf_publish")
    srd(p, 12, S_WS, S_WS + 1, FL2_SZ, FL2_OFF)
    srd(p, 4, S_X, S_X + 1, 4194304)
    srd(p, 60, S_B2, S_B2 + 1, 2048)
    srd(p, 64, S_WS, S_WS + 1, 4194304, PP_OFF)
    srd(p, 68, S_WS, S_WS + 1, 4194304, QP_OFF)
    srd(p, 72, S_WS, S_WS + 1, 8388608, O1_OFF)
    srd(p, 76, S_WS, S_WS + 1, 8388608, O2_OFF)
    srd(p, 52, S_OUT, S_OUT + 1, 4194304)
    p(f"s_lshl_b32 s86, s{S_R}, 8"); p(f"s_lshl_b32 s87, s{S_RG}, 6"); p("s_add_u32 s86, s86, s87"); p("s_lshl_b32 s86, s86, 10")
    p(f"s_lshl_b32 s87, s{S_C}, 8"); p(f"s_lshl_b32 s88, s{S_CG}, 7"); p("s_add_u32 s87, s87, s88")
    p("v_and_b32 v4, 15, v0"); p("v_lshlrev_b32 v4, 3, v4"); p("v_add_u32 v4, s87, v4")
    p("v_lshrrev_b32 v5, 4, v0"); p("v_lshl_add_u32 v5, v5, 10, v4"); p("v_add_u32 v5, s86, v5")
    p("v_lshlrev_b32 v4, 1, v4"); p("v_lshlrev_b32 v6, 2, v5"); p("v_lshlrev_b32 v5, 1, v5")
    p("s_mov_b32 s90, 65536"); p("s_mov_b32 s91, 131072")
    if cfg.get("tsmode") == 2: stamp(p, 1)
    p("s_waitcnt vmcnt(0)")
    p("s_barrier")
    if cfg.get("tsmode") == 2: stamp(p, 2)
    XR, BR, O1R, O2R, PR, QR = 32, 40, 44, 60, 76, 84
    p(f"buffer_load_dwordx4 v[{XR}:{XR+3}], v5, s[4:7], 0 offen")
    p(f"buffer_load_dwordx4 v[{XR+4}:{XR+7}], v5, s[4:7], s90 offen")
    p(f"buffer_load_dwordx4 v[{BR}:{BR+3}], v4, s[60:63], 0 offen")
    p("s_cmp_lg_u32 s3, 0"); p("s_cbranch_scc1 kf_w_o")
    p(f"s_lshl_b32 s86, s{S_FLAG}, 7"); p("v_mov_b32 v2, s86"); p("v_mov_b32 v3, 1")
    p("s_mov_b64 exec, 1")
    p(f"buffer_store_dword v3, v2, s[12:15], 0 offen{SC}")
    p("s_mov_b64 exec, -1")
    p("v_and_b32 v2, 1, v1"); p("v_lshlrev_b32 v2, 13, v2")
    p(f"s_lshl_b32 s86, s{S_R}, 3"); p(f"s_lshl_b32 s87, s{S_C}, 1"); p("s_add_u32 s86, s86, s87"); p(f"s_add_u32 s86, s86, s{S_CG}"); p("s_add_u32 s86, s86, 128"); p("s_lshl_b32 s86, s86, 7")
    p("v_add_u32 v7, s86, v2")
    p(f"s_lshl_b32 s86, s{S_R}, 1"); p(f"s_lshr_b32 s87, s{S_RG}, 1"); p("s_add_u32 s86, s86, s87"); p("s_lshl_b32 s86, s86, 2"); p(f"s_add_u32 s86, s86, s{S_C}"); p("s_lshl_b32 s86, s86, 7")
    p("v_add_u32 v8, s86, v2")
    p.label("kf_poll_o")
    p(f"buffer_load_dword v9, v7, s[12:15], 0 offen{SC}")
    p("s_waitcnt vmcnt(0)")
    p("v_cmp_ne_u32 vcc, 1, v9")
    p("s_cbranch_vccz kf_w_o")
    p("s_sleep 1")
    p("s_branch kf_poll_o")
    p.label("kf_w_o")
    p("s_barrier")
    if cfg.get("tsmode") == 2: stamp(p, 3)
    for ps in range(2):
        so = "0" if ps == 0 else "s91"
        p(f"buffer_load_dwordx4 v[{O1R+8*ps}:{O1R+8*ps+3}], v6, s[72:75], {so} offen{SC}")
        p(f"buffer_load_dwordx4 v[{O1R+8*ps+4}:{O1R+8*ps+7}], v6, s[72:75], {so} offen offset:16{SC}")
        p(f"buffer_load_dwordx4 v[{O2R+8*ps}:{O2R+8*ps+3}], v6, s[76:79], {so} offen{SC}")
        p(f"buffer_load_dwordx4 v[{O2R+8*ps+4}:{O2R+8*ps+7}], v6, s[76:79], {so} offen offset:16{SC}")
    p(f"s_mov_b32 s92, {hex(f2u(-math.log2(math.e)))}")
    p("s_waitcnt vmcnt(0)")
    B_ = 96; U_ = 104; W_ = 120; T = 136; GR = 144
    for i in range(4):
        p(f"v_lshlrev_b32 v{B_+2*i}, 16, v{BR+i}"); p(f"v_and_b32 v{B_+2*i+1}, 0xffff0000, v{BR+i}")
    for i in range(16): p(f"v_add_f32 v{U_+i}, v{O1R+i}, v{O2R+i}")
    for i in range(8): p(f"v_cvt_pk_bf16_f32 v{T+i}, v{U_+2*i}, v{U_+2*i+1}")
    for i in range(8):
        p(f"v_lshlrev_b32 v{U_+2*i}, 16, v{T+i}"); p(f"v_and_b32 v{U_+2*i+1}, 0xffff0000, v{T+i}")
    for i in range(16): p(f"v_add_f32 v{U_+i}, v{U_+i}, v{B_+(i%8)}")
    for i in range(8): p(f"v_cvt_pk_bf16_f32 v{T+i}, v{U_+2*i}, v{U_+2*i+1}")
    for i in range(8):
        p(f"v_lshlrev_b32 v{U_+2*i}, 16, v{T+i}"); p(f"v_and_b32 v{U_+2*i+1}, 0xffff0000, v{T+i}")
    for i in range(16): p(f"v_mul_f32 v{W_+i}, s92, v{U_+i}")
    for i in range(16): p(f"v_exp_f32 v{W_+i}, v{W_+i}")
    for i in range(16): p(f"v_add_f32 v{W_+i}, 1.0, v{W_+i}")
    for i in range(16): p(f"v_rcp_f32 v{W_+i}, v{W_+i}")
    for i in range(16): p(f"v_mul_f32 v{W_+i}, v{W_+i}, v{U_+i}")
    for i in range(8): p(f"v_cvt_pk_bf16_f32 v{T+i}, v{W_+2*i}, v{W_+2*i+1}")
    for i in range(8):
        p(f"v_lshlrev_b32 v{GR+2*i}, 16, v{T+i}"); p(f"v_and_b32 v{GR+2*i+1}, 0xffff0000, v{T+i}")
    for i in range(8):
        p(f"v_lshlrev_b32 v{O1R+2*i}, 16, v{XR+i}"); p(f"v_and_b32 v{O1R+2*i+1}, 0xffff0000, v{XR+i}")
    p("s_cmp_lg_u32 s3, 0"); p("s_cbranch_scc1 kf_w_y")
    p.label("kf_poll_y")
    p(f"buffer_load_dword v9, v8, s[12:15], 0 offen{SC}")
    p("s_waitcnt vmcnt(0)")
    p("v_cmp_ne_u32 vcc, 1, v9")
    p("s_cbranch_vccz kf_w_y")
    p("s_sleep 1")
    p("s_branch kf_poll_y")
    p.label("kf_w_y")
    p("s_barrier")
    if cfg.get("tsmode") == 2: stamp(p, 4)
    for ps in range(2):
        so = "0" if ps == 0 else "s90"
        p(f"buffer_load_dwordx4 v[{PR+4*ps}:{PR+4*ps+3}], v5, s[64:67], {so} offen{SC}")
        p(f"buffer_load_dwordx4 v[{QR+4*ps}:{QR+4*ps+3}], v5, s[68:71], {so} offen{SC}")
    p("s_waitcnt vmcnt(0)")
    for i in range(8):
        p(f"v_lshlrev_b32 v{U_+2*i}, 16, v{PR+i}"); p(f"v_and_b32 v{U_+2*i+1}, 0xffff0000, v{PR+i}")
        p(f"v_lshlrev_b32 v{W_+2*i}, 16, v{QR+i}"); p(f"v_and_b32 v{W_+2*i+1}, 0xffff0000, v{QR+i}")
    for i in range(16): p(f"v_sub_f32 v{U_+i}, v{U_+i}, v{W_+i}")
    for i in range(8): p(f"v_cvt_pk_bf16_f32 v{T+i}, v{U_+2*i}, v{U_+2*i+1}")
    for i in range(8):
        p(f"v_lshlrev_b32 v{U_+2*i}, 16, v{T+i}"); p(f"v_and_b32 v{U_+2*i+1}, 0xffff0000, v{T+i}")
    for i in range(16): p(f"v_mul_f32 v{U_+i}, v{U_+i}, v{GR+i}")
    for i in range(8): p(f"v_cvt_pk_bf16_f32 v{T+i}, v{U_+2*i}, v{U_+2*i+1}")
    for i in range(8):
        p(f"v_lshlrev_b32 v{U_+2*i}, 16, v{T+i}"); p(f"v_and_b32 v{U_+2*i+1}, 0xffff0000, v{T+i}")
    for i in range(16): p(f"v_add_f32 v{U_+i}, v{U_+i}, v{O1R+i}")
    for i in range(8): p(f"v_cvt_pk_bf16_f32 v{T+i}, v{U_+2*i}, v{U_+2*i+1}")
    p(f"buffer_store_dwordx4 v[{T}:{T+3}], v5, s[52:55], 0 offen")
    p(f"buffer_store_dwordx4 v[{T+4}:{T+7}], v5, s[52:55], s90 offen")
    if CFG.get("ts"): p("s_waitcnt vmcnt(0)")
    stamp(p, 5); stamp_store(p, 1, 6)
    p.label("kf_end")
    p("s_endpgm")
    return name, 256, 102, 224

def generate(cfg):
    CFG.clear(); CFG.update(cfg); CFG["ts_noclk"] = 1; CFG["k0_fullflag"] = 1
    body = Prog()
    info = [("k0",) + gen.gen_k0(body), ("kf",) + gen_kf(body, cfg)]
    lds = {"k0": 0, "kf": 131072 + 8192}
    out = ["; FNet (dense DFT matmuls) + GELU FFN fused block; generated by dev/gen3.py"]
    for k in ("k0", "kf"):
        out.append(f"; @launch kernel={k}_kernel grid=(256,1,1) block=(512,1,1) lds={lds[k]}")
    out.append('.amdgcn_target "amdgcn-amd-amdhsa--gfx950"')
    out.append(".text")
    out += body.L
    out.append('.section .rodata,"a"')
    for k, name, nfv, nfs, acc in info:
        out += [".p2align 6", f".amdhsa_kernel {name}", f"  .amdhsa_next_free_vgpr {nfv}", f"  .amdhsa_next_free_sgpr {nfs}",
                f"  .amdhsa_accum_offset {acc}", "  .amdhsa_group_segment_fixed_size 0", "  .amdhsa_kernarg_size 104",
                "  .amdhsa_user_sgpr_count 2", "  .amdhsa_user_sgpr_kernarg_segment_ptr 1", "  .amdhsa_system_sgpr_workgroup_id_x 1",
                ".end_amdhsa_kernel"]
    return "\n".join(out) + "\n"

DEFAULT = dict(k1_ns=5, k1_nps=8, k2_ns=8, k2_nps=12, pf0=2, pf1=2)
if __name__ == "__main__":
    cfg = dict(DEFAULT)
    fn = sys.argv[1] if len(sys.argv) > 1 else "full3.s"
    for a in sys.argv[2:]:
        k, v = a.split("=")
        cfg[k] = float(v) if "." in v else int(v)
    open(fn, "w").write(generate(cfg))
```

```python
import sys, math
import gen, gen2
from gen import *
from gen2 import gelu_batch, PP_OFF, QP_OFF, O1_OFF, O2_OFF, FL2_OFF, FL2_SZ


def gen_kf(p, cfg):
    name = "kf_kernel"
    NS1, NS2, NPS2 = cfg["k1_ns"], cfg["k2_ns"], cfg["k2_nps"]
    STG1, STG2, WIN = 24576, 16384, 65536
    BIAS_LDS = 131072
    SC = " sc1"
    kernel_head(p, name)
    p("s_cmp_ge_u32 s2, 256"); p("s_cbranch_scc1 kf_end")
    load_ptrs(p)
    V = dict(lane=1, t0=2, t1=3, t2=4)
    V_VP, V_VD, V_PF, V_DUM, V_AK, V_AT = 8, 10, 13, 15, 16, 20
    V_VD2 = 30
    ACC = 32
    S_SRDP, S_SRDS, S_SOFF, S_DLT = 4, 44, 56, 59
    S_KP, S_M0B, S_CNT, S_MT, S_NT, S_N0 = 80, 81, 82, 83, 84, 85
    S2_SRDS, S2_SOFF, S2_M0B, S_TA, S_TB, S_ROLE, S_X7, S_M = 64, 68, 69, 70, 71, 72, 73, 74
    lane_consts(p, V)
    p(f"s_and_b32 s{S_X7}, s2, 7"); p("s_lshr_b32 s87, s2, 3"); p(f"s_lshr_b32 s{S_M}, s87, 1"); p("s_and_b32 s75, s87, 1")
    p(f"s_and_b32 s88, s{S_X7}, 1"); p("s_lshl_b32 s88, s88, 2"); p(f"s_and_b32 s89, s{S_M}, 3"); p(f"s_add_u32 s{S_MT}, s88, s89")
    p(f"s_lshr_b32 s88, s{S_X7}, 1"); p("s_lshl_b32 s88, s88, 2"); p(f"s_lshr_b32 s89, s{S_M}, 2"); p(f"s_add_u32 s{S_NT}, s88, s89")
    p(f"s_mul_i32 s{S_M0B}, s3, 3072"); p(f"s_lshl_b32 s{S2_M0B}, s3, 11")
    p(f"s_mov_b32 s{S_KP}, 0")
    p(f"s_lshl_b32 s86, s{S_MT}, 4"); p("s_lshl_b32 s87, s3, 1"); p("s_add_u32 s86, s86, s87"); p("s_lshl_b32 s86, s86, 15")
    p(f"v_lshlrev_b32 v{V_VP}, 4, v1"); p(f"v_add_u32 v{V_VP}, s86, v{V_VP}"); p(f"v_add_u32 v{V_VP+1}, 32768, v{V_VP}")
    p("s_lshl_b32 s86, s2, 3"); p("s_add_u32 s86, s86, s3"); p("s_lshl_b32 s87, s86, 12"); p("s_mul_i32 s86, s86, 3584")
    p(f"v_lshlrev_b32 v{V_PF+1}, 7, v1"); p(f"v_add_u32 v{V_PF}, s87, v{V_PF+1}"); p(f"v_add_u32 v{V_PF+1}, s86, v{V_PF+1}")
    p("v_mov_b32 v2, 0x80000000")
    p("v_cmp_gt_u32 vcc, 32, v1"); p("s_nop 1"); p(f"v_cndmask_b32 v{V_PF}, v2, v{V_PF}, vcc")
    p("v_cmp_gt_u32 vcc, 28, v1"); p("s_nop 1"); p(f"v_cndmask_b32 v{V_PF+1}, v2, v{V_PF+1}, vcc")
    p("s_waitcnt lgkmcnt(0)")
    stamp(p, 0)
    srd(p, S_SRDP, S_WS, S_WS + 1, XF_SZ, XF_OFF)
    p("s_cmp_eq_u32 s75, 1"); p("s_cbranch_scc1 kf_typeO")

    def slot_D(i, pv):
        d = S_SRDS + 4 * i
        p(f"s_lshl_b32 s87, s86, 3"); p(f"s_add_u32 s87, s87, s{S_N0}")
        p("s_cmp_lt_u32 s87, 1024")
        p(f"s_cselect_b32 s{d}, s{S_DR}, s{S_DI}"); p(f"s_cselect_b32 s{d+1}, s{S_DR+1}, s{S_DI+1}")
        p(f"s_mov_b32 s{d+2}, 2097152"); p(f"s_mov_b32 s{d+3}, 0x20000")
        p("s_and_b32 s87, s87, 1023"); p("s_lshl_b32 s87, s87, 11")
        p("s_and_b32 s88, s86, 1"); p("s_lshl_b32 s88, s88, 6")
        p(f"v_xor_b32 v{V_VD+i}, s88, v{pv}")
        p(f"v_add_u32 v{V_VD+i}, s87, v{V_VD+i}")
        p(f"s_mov_b32 s{S_SOFF+i}, 0"); p(f"s_mov_b32 s{S_DLT+i}, 128")
    def slot_dummy(i):
        d = S_SRDS + 4 * i
        p(f"s_mov_b32 s{d}, s{S_W1}"); p(f"s_mov_b32 s{d+1}, s{S_W1+1}")
        p(f"s_mov_b32 s{d+2}, 0"); p(f"s_mov_b32 s{d+3}, 0x20000")
        p(f"v_mov_b32 v{V_VD+i}, 0")
        p(f"s_mov_b32 s{S_SOFF+i}, 0"); p(f"s_mov_b32 s{S_DLT+i}, 0")
    def sigma(i):
        p(f"s_mul_i32 s86, s3, 3"); p(f"s_add_u32 s86, s86, {i}")
    def dmas1(stage):
        out = []
        for i in range(3):
            pre = [f"s_add_u32 m0, s{S_M0B}, {(stage % NS1) * STG1 + 1024 * i}"]
            if stage > 0: pre.insert(0, f"s_add_u32 s{S_SOFF+i}, s{S_SOFF+i}, s{S_DLT+i}")
            d = S_SRDS + 4 * i
            out.append((pre, f"buffer_load_dwordx4 v{V_VD+i}, s[{d}:{d+3}], s{S_SOFF+i} offen lds"))
        return out
    def pf(kappa):
        if not cfg.get("pf1", 2): return []
        ks = cfg.get("pf1_ks", (2, 10, 18))
        if kappa not in ks: return []
        m = ks.index(kappa)
        b = (S_CR, S_CI, S_W2)[m]
        pre = [f"s_mov_b32 s8, s{b}", f"s_mov_b32 s9, s{b+1}", f"s_mov_b32 s10, {(8388608, 8388608, 7340032)[m]}", "s_mov_b32 s11, 0x20000"]
        return [(pre, f"buffer_load_dword v{V_DUM}, v{V_PF + (1 if m == 2 else 0)}, s[8:11], 0 offen")]
    def mkpreg(vbase, nv):
        def f(r):
            return vr(vbase + r, 4) if r < nv else ar(r - nv, 4)
        return f
    def phase1(tag, blocks):
        nb = len(blocks)
        SH = ACC + nb * 8
        PV = SH + nb * 8
        nv = 224 - PV
        NPS = (nv + 32) // 8
        NPS = min(NPS, cfg.get("k1_nps", 8))
        preg = mkpreg(PV, nv)
        def privs(kappa):
            out = []
            for i in range(2):
                pre = []
                if i == 0 and kappa % 4 == 0 and kappa > 0: pre = [f"s_add_u32 s{S_KP}, s{S_KP}, 4096"]
                out.append((pre, f"buffer_load_dwordx4 {preg((kappa % NPS) * 8 + 4 * i)}, v{V_VP+i}, s[{S_SRDP}:{S_SRDP+3}], s{S_KP} offen offset:{(kappa%4)*1024}"))
            return out
        def reads(kappa):
            s, kk = divmod(kappa, 2)
            ring = (s % NS1) * STG1
            out = []
            for b, bl in enumerate(blocks):
                a = SH + kk * nb * 4 + 4 * b
                if bl[0] == 'K':
                    off = ring + bl[1]; w = off // WIN
                    out.append(f"ds_read_b128 {vr(a,4)}, v{V_AK+2*w+kk} offset:{off - w*WIN}")
                else:
                    for hh in range(2):
                        off = ring + bl[4] + kk * bl[2] + hh * bl[3]; w = off // WIN
                        out.append(f"ds_read_b64_tr_b16 {vr(a+2*hh,2)}, v{V_AT+4*w+bl[1]} offset:{off - w*WIN}")
            return out
        def mfmas(kappa):
            kk = kappa % 2
            out = []
            for b, bl in enumerate(blocks):
                for i in range(2):
                    acc = ACC + (b * 2 + i) * 4
                    S = vr(SH + kk * nb * 4 + 4 * b, 4); P = preg((kappa % NPS) * 8 + 4 * i)
                    c = vr(acc, 4) if kappa > 0 else "0"
                    out.append(f"{MF} {vr(acc,4)}, {P}, {S}, {c}" if bl[0] == 'K' else f"{MF} {vr(acc,4)}, {S}, {P}, {c}")
            return out
        gemm_mainloop(p, tag, 16, NS1, NPS, S_CNT, mfmas, reads, dmas1, privs, pf=pf, read_frac=cfg.get("k1_rf", 0.7))
        p("s_barrier")
        return SH

    def epi_D(blocks_idx, SH):
        srd(p, 8, S_WS, S_WS + 1, ABF_SZ, ABF_OFF)
        p("v_lshrrev_b32 v2, 4, v1"); p("v_and_b32 v3, 1, v2"); p("v_lshlrev_b32 v3, 1, v3"); p("v_lshrrev_b32 v2, 1, v2")
        p("v_or_b32 v2, v2, v3"); p("v_lshlrev_b32 v2, 8, v2"); p("v_and_b32 v3, 15, v1"); p("v_lshl_add_u32 v2, v3, 4, v2")
        p(f"s_lshl_b32 s86, s{S_MT}, 3"); p("s_add_u32 s86, s86, s3"); p("s_lshl_b32 s86, s86, 10")
        p("v_add_u32 v2, s86, v2")
        for n, b in enumerate(blocks_idx):
            t = SH + 4 * n
            a0 = ACC + b * 8; a1 = a0 + 4
            p(f"v_cvt_pk_bf16_f32 v{t}, v{a0}, v{a0+1}"); p(f"v_cvt_pk_bf16_f32 v{t+1}, v{a0+2}, v{a0+3}")
            p(f"v_cvt_pk_bf16_f32 v{t+2}, v{a1}, v{a1+1}"); p(f"v_cvt_pk_bf16_f32 v{t+3}, v{a1+2}, v{a1+3}")
            p(f"s_add_u32 s87, s{S_N0}, {16*b}")
            p("s_lshr_b32 s88, s87, 10"); p("s_lshl_b32 s88, s88, 16")
            p("s_and_b32 s87, s87, 1023"); p("s_lshl_b32 s87, s87, 13")
            p("s_add_u32 s87, s87, s88")
            p(f"v_permlane16_swap_b32 v{t}, v{t+2}"); p(f"v_permlane16_swap_b32 v{t+1}, v{t+3}")
            p(f"buffer_store_dwordx4 v[{t}:{t+3}], v2, s[8:11], s87 offen{SC}")
    def bias_dma(f0):
        srd(p, 12, S_B1, S_B1 + 1, 7168)
        p("v_lshlrev_b32 v2, 4, v1")
        p(f"s_lshl_b32 s86, s{f0}, 1")
        p("s_lshl_b32 s87, s3, 10"); p(f"s_add_u32 m0, s87, {BIAS_LDS}")
        p("s_nop 0")
        p("buffer_load_dwordx4 v2, s[12:15], s86 offen lds")
    def epi_W(blocks_idx, f0, SH):
        srd(p, 8, S_WS, S_WS + 1, HF_SZ, HF_OFF)
        nb = len(blocks_idx)
        assert nb % 2 == 0
        BP = 6
        p("v_lshrrev_b32 v2, 4, v1")
        p("s_lshl_b32 s87, s3, 10"); p(f"s_add_u32 s87, s87, {BIAS_LDS}")
        p("v_lshlrev_b32 v3, 3, v2"); p("v_add_u32 v3, s87, v3")
        for n in range(nb): p(f"ds_read_b64 v[{BP+2*n}:{BP+2*n+1}], v3 offset:{32*n}")
        p(f"s_mov_b32 s90, {hex(f2u(C2))}"); p(f"v_mov_b32 v5, {hex(f2u(C1))}")
        p("v_and_b32 v3, 1, v2"); p("v_lshlrev_b32 v3, 1, v3"); p("v_lshrrev_b32 v4, 1, v2"); p("v_or_b32 v3, v3, v4")
        p("v_lshlrev_b32 v3, 8, v3"); p("v_and_b32 v4, 15, v1"); p("v_lshl_add_u32 v4, v4, 4, v3")
        p(f"s_lshl_b32 s86, s{S_MT}, 4"); p("s_lshl_b32 s87, s3, 1"); p("s_add_u32 s86, s86, s87"); p("s_mul_i32 s86, s86, 114688")
        p(f"s_lshl_b32 s87, s{f0}, 5"); p("s_add_u32 s86, s86, s87")
        p("s_waitcnt lgkmcnt(0)")
        BF = SH
        for n0 in range(0, nb, 2):
            pair = blocks_idx[n0:n0 + 2]
            for k_ in range(2):
                for h in range(2):
                    p(f"v_lshlrev_b32 v{BF+4*k_+2*h}, 16, v{BP+2*(n0+k_)+h}")
                    p(f"v_and_b32 v{BF+4*k_+2*h+1}, 0xffff0000, v{BP+2*(n0+k_)+h}")
            src = []; bs = []
            for i in range(2):
                for k_, b in enumerate(pair):
                    src += [ACC + (b * 2 + i) * 4 + r for r in range(4)]
                    bs += [BF + 4 * k_ + r for r in range(4)]
            T0 = SH + 8 + (40 if (n0 // 2) % 2 else 0)
            gelu_batch(p, src, bs, T0, 16, 90, 5)
            for i in range(2):
                p(f"s_add_u32 s87, s86, {114688*i + 1024*(n0//2)}")
                t = T0 + 4 * i
                if i == 0: p("s_nop 0")
                p(f"v_permlane16_swap_b32 v{t}, v{t+2}"); p(f"v_permlane16_swap_b32 v{t+1}, v{t+3}")
                p(f"buffer_store_dwordx4 v[{t}:{t+3}], v4, s[8:11], s87 offen{SC}")
    def setup_W(nchunks, f0):
        p("s_and_b32 s88, s3, 1"); p("s_lshl_b32 s88, s88, 2")
        for i in range(3):
            d = S_SRDS + 4 * i
            p(f"v_add_u32 v2, {64*i}, v1")
            p("v_mul_u32_u24 v3, 2731, v2"); p("v_lshrrev_b32 v3, 16, v3")
            p("v_mul_u32_u24 v4, 24, v3"); p("v_sub_u32 v2, v2, v4")
            p("v_bfe_u32 v4, v3, 1, 1"); p("v_lshlrev_b32 v4, 1, v4"); p("v_or_b32 v4, s88, v4")
            p("v_xor_b32 v2, v2, v4")
            p("v_mul_u32_u24 v3, 7168, v3"); p("v_lshl_add_u32 v3, v2, 4, v3")
            p("s_mul_i32 s86, s3, 57344")
            p(f"s_lshl_b32 s87, s{f0}, 1"); p("s_add_u32 s86, s86, s87")
            if nchunks < 24:
                p("v_add_u32 v3, s86, v3")
                p(f"v_cmp_gt_u32 vcc, {nchunks}, v2")
                p("v_mov_b32 v4, 0x80000000")
                p("s_nop 0")
                p(f"v_cndmask_b32 v{V_VD+i}, v4, v3, vcc")
            else:
                p(f"v_add_u32 v{V_VD+i}, s86, v3")
            p(f"s_mov_b32 s{d}, s{S_W1}"); p(f"s_mov_b32 s{d+1}, s{S_W1+1}"); p(f"s_mov_b32 s{d+2}, 7340032"); p(f"s_mov_b32 s{d+3}, 0x20000")
            p(f"s_mov_b32 s{S_SOFF+i}, 0"); p(f"s_mov_b32 s{S_DLT+i}, {64*7168}")
        for w in range(2): addrT_setup(p, V, V_AT + 4 * w, 384, w * WIN)
    def publish1(dflag, widx_sgpr):
        p("s_waitcnt vmcnt(0)")
        p("s_barrier")
        lab = p.newlabel("pub")
        p("s_cmp_lg_u32 s3, 0"); p(f"s_cbranch_scc1 {lab}")
        srd(p, 12, S_WS, S_WS + 1, FL2_SZ, FL2_OFF)
        p("v_mov_b32 v3, 1")
        p("s_mov_b64 exec, 1")
        if dflag:
            p(f"s_lshl_b32 s86, s{S_NT}, 7"); p(f"s_lshl_b32 s87, s{S_MT}, 2"); p("s_add_u32 s86, s86, s87"); p("v_mov_b32 v2, s86")
            p(f"buffer_store_dword v3, v2, s[12:15], 0 offen offset:32{SC}")
        if widx_sgpr is not None:
            p(f"s_lshl_b32 s86, s{S_MT}, 7"); p(f"s_lshl_b32 s87, s{widx_sgpr}, 2"); p("s_add_u32 s86, s86, s87"); p("v_mov_b32 v2, s86")
            p(f"buffer_store_dword v3, v2, s[12:15], 0 offen offset:{2048+32}{SC}")
        p("s_mov_b64 exec, -1")
        p.label(lab)

    V2_VP, V2_A = 8, 20
    SH2 = 96
    preg2 = mkpreg(160, 64)
    S2_SRDP, S2_KP = 4, 80
    def privs2(kappa):
        out = []
        for i in range(2):
            pre = []
            if i == 0 and kappa % 4 == 0 and kappa > 0: pre = [f"s_add_u32 s{S2_KP}, s{S2_KP}, 4096"]
            out.append((pre, f"buffer_load_dwordx4 {preg2((kappa % NPS2) * 8 + 4 * i)}, v{V2_VP+i}, s[{S2_SRDP}:{S2_SRDP+3}], s{S2_KP} offen offset:{(kappa%4)*1024}{SC}"))
        return out
    def mk_dmas2(delta):
        def dmas(stage):
            out = []
            for i in range(2):
                pre = [f"s_add_u32 m0, s{S2_M0B}, {(stage % NS2) * STG2 + 1024 * i}"]
                if i == 0 and stage > 0: pre.insert(0, f"s_add_u32 s{S2_SOFF}, s{S2_SOFF}, {delta}")
                out.append((pre, f"buffer_load_dwordx4 v{V_VD2+i}, s[{S2_SRDS}:{S2_SRDS+3}], s{S2_SOFF} offen lds"))
            return out
        return dmas
    def reads_o(kappa):
        s, kk = divmod(kappa, 2)
        out = []
        for b in range(8):
            for hh in range(2):
                off = (s % NS2) * STG2 + (b >> 2) * 8192 + kk * 4096 + hh * 512; w = off // WIN
                out.append(f"ds_read_b64_tr_b16 {vr(SH2 + kk*32 + 4*b + 2*hh, 2)}, v{V2_A+4*w+(b&3)} offset:{off - w*WIN}")
        return out
    def mfmas_o(kappa):
        kk = kappa % 2
        return [f"{MF} {vr(ACC+(b*2+i)*4,4)}, {vr(SH2+kk*32+4*b,4)}, {preg2((kappa%NPS2)*8+4*i)}, {vr(ACC+(b*2+i)*4,4) if kappa > 0 else '0'}"
                for b in range(8) for i in range(2)]
    def reads_y(kappa):
        s, kk = divmod(kappa, 2)
        out = []
        for b in range(8):
            off = (s % NS2) * STG2 + 2048 * b; w = off // WIN
            out.append(f"ds_read_b128 {vr(SH2 + kk*32 + 4*b, 4)}, v{V2_A+2*w+kk} offset:{off - w*WIN}")
        return out
    def mfmas_y(kappa):
        kk = kappa % 2
        return [f"{MF} {vr(ACC+(i*8+b)*4,4)}, {preg2((kappa%NPS2)*8+4*i)}, {vr(SH2+kk*32+4*b,4)}, {vr(ACC+(i*8+b)*4,4) if kappa > 0 else '0'}"
                for b in range(8) for i in range(2)]
    def split_loop(tag, nst, mf, rd, dm, rf):
        tp = Prog(); tp.uid = p.uid
        gemm_mainloop(tp, tag, nst, NS2, NPS2, S_CNT, mf, rd, dm, privs2, read_frac=rf, hook=lambda: tp.raw("@SPLIT"), st1=3, st2=4)
        p.uid = tp.uid
        i = tp.L.index("@SPLIT")
        return tp.L[:i], tp.L[i + 1:]
    Y_pre, Y_rest = split_loop("kfy", 32, mfmas_y, reads_y, mk_dmas2(128), cfg.get("k2y_rf", 0.7))
    O_pre, O_rest = split_loop("kfo", 28, mfmas_o, reads_o, mk_dmas2(131072), cfg.get("k2o_rf", 0.7))

    p(f"s_and_b32 s{S_ROLE}, s{S_X7}, 1")
    p(f"s_lshr_b32 s88, s{S_X7}, 1"); p("s_lshl_b32 s88, s88, 2"); p(f"s_lshr_b32 s89, s{S_M}, 2"); p(f"s_add_u32 s{S_TB}, s88, s89"); p(f"s_and_b32 s{S_TA}, s{S_M}, 3")
    p(f"s_mov_b32 s{S2_SOFF}, 0")
    p(f"s_cmp_eq_u32 s{S_ROLE}, 0")
    p(f"s_cselect_b32 s{S2_SRDS}, s{S_CR}, s{S_CI}"); p(f"s_cselect_b32 s{S2_SRDS+1}, s{S_CR+1}, s{S_CI+1}")
    p(f"s_mov_b32 s{S2_SRDS+2}, 8388608"); p(f"s_mov_b32 s{S2_SRDS+3}, 0x20000")
    voffK_lane(p, V, 5, 4096, 0)
    p(f"s_lshl_b32 s86, s{S_TB}, 7"); p("s_lshl_b32 s87, s3, 4"); p("s_add_u32 s86, s86, s87"); p("s_lshl_b32 s86, s86, 12")
    p(f"v_add_u32 v{V_VD2}, s86, v5")
    p(f"v_xor_b32 v{V_VD2+1}, 64, v{V_VD2}"); p(f"v_add_u32 v{V_VD2+1}, 32768, v{V_VD2+1}")
    p(f"s_mul_i32 s{S_N0}, s{S_NT}, 160")
    p(f"s_cmp_gt_u32 s{S_NT}, 12"); p("s_cbranch_scc1 kf_W160")
    p(f"s_cmp_eq_u32 s{S_NT}, 12"); p("s_cbranch_scc1 kf_M160")
    voffK_lane(p, V, 5, 2048, 0)
    for i in range(3):
        sigma(i)
        lab = p.newlabel("kfd"); lab2 = p.newlabel("kfd")
        p("s_cmp_ge_u32 s86, 20"); p(f"s_cbranch_scc1 {lab}")
        slot_D(i, 5); p(f"s_branch {lab2}")
        p.label(lab); slot_dummy(i); p.label(lab2)
    for w in range(2): addrK_setup(p, V, V_AK + 2 * w, V_AK + 2 * w + 1, w * WIN)
    SH = phase1("kfd", [('K', 2048 * b) for b in range(10)])
    p.L += Y_pre
    epi_D(list(range(10)), SH)
    publish1(True, None)
    p("s_branch kf_Y2")
    p.label("kf_M160")
    p("s_mov_b32 s91, 0")
    bias_dma(91)
    voffK_lane(p, V, 5, 2048, 0)
    voffT8_lane(p, V, 7, 7168, 0)
    for i in range(3):
        d = S_SRDS + 4 * i
        l1 = p.newlabel("kfm"); l3 = p.newlabel("kfm")
        sigma(i)
        p("s_cmp_ge_u32 s86, 16"); p(f"s_cbranch_scc1 {l1}")
        slot_D(i, 5); p(f"s_branch {l3}")
        p.label(l1)
        p("s_sub_u32 s87, s86, 16"); p("s_mul_i32 s87, s87, 57344")
        p("s_and_b32 s88, s86, 1"); p("s_lshl_b32 s88, s88, 6")
        p(f"v_xor_b32 v{V_VD+i}, s88, v7")
        p(f"v_add_u32 v{V_VD+i}, s87, v{V_VD+i}")
        p(f"s_mov_b32 s{d}, s{S_W1}"); p(f"s_mov_b32 s{d+1}, s{S_W1+1}"); p(f"s_mov_b32 s{d+2}, 7340032"); p(f"s_mov_b32 s{d+3}, 0x20000")
        p(f"s_mov_b32 s{S_SOFF+i}, 0"); p(f"s_mov_b32 s{S_DLT+i}, {64*7168}")
        p.label(l3)
    for w in range(2):
        addrK_setup(p, V, V_AK + 2 * w, V_AK + 2 * w + 1, w * WIN)
        addrT_setup(p, V, V_AT + 4 * w, 128, w * WIN)
    SH = phase1("kfm", [('K', 2048 * b) for b in range(8)] + [('T', b, 4096, 512, 16384) for b in range(2)])
    p.L += Y_pre
    epi_D(list(range(8)), SH)
    p("s_nop 1")
    epi_W([8, 9], 91, SH)
    p("s_mov_b32 s91, 0")
    publish1(True, 91)
    p("s_branch kf_Y2")
    p.label("kf_W160")
    p(f"s_sub_u32 s91, s{S_N0}, 2048")
    bias_dma(91)
    setup_W(20, 91)
    SH = phase1("kfw", [('T', b & 3, 32 * 384, 4 * 384, (b >> 2) * 128) for b in range(10)])
    p.L += Y_pre
    epi_W(list(range(10)), 91, SH)
    p(f"s_sub_u32 s91, s{S_NT}, 12")
    publish1(False, 91)
    p.label("kf_Y2")
    p(f"s_lshl_b32 s{S2_KP}, s{S_ROLE}, 16")
    srd(p, S2_SRDP, S_WS, S_WS + 1, ABF_SZ, ABF_OFF)
    p(f"s_lshl_b32 s86, s{S_TA}, 4"); p("s_lshl_b32 s87, s3, 1"); p("s_add_u32 s86, s86, s87"); p("s_lshl_b32 s86, s86, 17")
    p(f"v_lshlrev_b32 v{V2_VP}, 4, v1"); p(f"v_add_u32 v{V2_VP}, s86, v{V2_VP}"); p(f"v_add_u32 v{V2_VP+1}, 131072, v{V2_VP}")
    for w in range(2): addrK_setup(p, V, V2_A + 2 * w, V2_A + 2 * w + 1, w * WIN)
    p("s_cmp_lg_u32 s3, 0"); p("s_cbranch_scc1 kf_Y2w")
    p("v_min_u32 v2, 51, v1"); p("v_lshrrev_b32 v3, 2, v2"); p("v_and_b32 v2, 3, v2"); p("v_lshlrev_b32 v2, 3, v2"); p("v_lshl_add_u32 v2, v3, 7, v2")
    p.label("kf_Y2p")
    p(f"buffer_load_dwordx2 v[4:5], v2, s[12:15], 0 offen offset:32{SC}")
    p("s_waitcnt vmcnt(0)")
    p("v_and_b32 v4, v4, v5")
    p("v_cmp_ne_u32 vcc, 1, v4")
    p("s_cbranch_vccz kf_Y2w")
    p("s_sleep 1")
    p("s_branch kf_Y2p")
    p.label("kf_Y2w")
    p("s_barrier")
    p.L += Y_rest
    S_FLAG, S_R, S_C, S_RG, S_CG = 51, 56, 57, 58, 59
    p(f"s_lshl_b32 s89, s{S_ROLE}, 22"); p(f"s_add_u32 s89, s89, {PP_OFF}")
    p(f"s_add_u32 s8, s{S_WS}, s89"); p(f"s_addc_u32 s9, s{S_WS+1}, 0"); p("s_mov_b32 s10, 4194304"); p("s_mov_b32 s11, 0x20000")
    p("v_lshrrev_b32 v2, 4, v1"); p("v_and_b32 v3, 1, v2"); p("v_lshlrev_b32 v3, 5, v3"); p("v_lshrrev_b32 v2, 1, v2"); p("v_lshl_add_u32 v3, v2, 4, v3")
    p("v_and_b32 v2, 15, v1"); p("v_lshl_add_u32 v3, v2, 11, v3")
    p(f"s_lshl_b32 s86, s{S_TB}, 18"); p(f"s_lshl_b32 s87, s{S_TA}, 9"); p("s_add_u32 s86, s86, s87"); p("s_lshl_b32 s87, s3, 6"); p("s_add_u32 s86, s86, s87")
    p("v_add_u32 v3, s86, v3")
    for tj in range(8):
        t = SH2 + 4 * tj
        a0 = ACC + tj * 4; a1 = ACC + (8 + tj) * 4
        p(f"v_cvt_pk_bf16_f32 v{t}, v{a0}, v{a0+1}"); p(f"v_cvt_pk_bf16_f32 v{t+1}, v{a0+2}, v{a0+3}")
        p(f"v_cvt_pk_bf16_f32 v{t+2}, v{a1}, v{a1+1}"); p(f"v_cvt_pk_bf16_f32 v{t+3}, v{a1+2}, v{a1+3}")
        p(f"s_mov_b32 s87, {32768*tj}"); p("s_nop 0")
        p(f"v_permlane16_swap_b32 v{t}, v{t+2}"); p(f"v_permlane16_swap_b32 v{t+1}, v{t+3}")
        p(f"buffer_store_dwordx4 v[{t}:{t+3}], v3, s[8:11], s87 offen{SC}")
    p(f"s_lshl_b32 s86, s{S_TB}, 2"); p(f"s_add_u32 s86, s86, s{S_TA}"); p(f"s_lshl_b32 s87, s{S_ROLE}, 6"); p(f"s_add_u32 s{S_FLAG}, s86, s87")
    p(f"s_lshr_b32 s{S_R}, s{S_TB}, 1"); p(f"s_mov_b32 s{S_C}, s{S_TA}"); p(f"s_mov_b32 s{S_CG}, s{S_ROLE}")
    p(f"s_and_b32 s86, s{S_TB}, 1"); p(f"s_lshl_b32 s{S_RG}, s86, 1")
    p("s_branch kf_publish")

    p.label("kf_typeO")
    p(f"s_and_b32 s89, s{S_X7}, 1"); p(f"s_add_u32 s{S_ROLE}, s89, 2")
    p(f"s_lshr_b32 s88, s{S_X7}, 1"); p("s_lshl_b32 s88, s88, 1"); p(f"s_lshr_b32 s87, s{S_M}, 3"); p(f"s_add_u32 s{S_TB}, s88, s87"); p(f"s_and_b32 s{S_TA}, s{S_M}, 7")
    p(f"s_mul_i32 s{S2_SOFF}, s89, {1792*2048}")
    srd(p, S2_SRDS, S_W2, S_W2 + 1, 7340032)
    voffT8_lane(p, V, 5, 2048, 0)
    p("s_and_b32 s86, s3, 3"); p("s_lshl_b32 s86, s86, 15"); p("s_lshr_b32 s87, s3, 2"); p("s_lshl_b32 s87, s87, 7"); p("s_add_u32 s86, s86, s87")
    p(f"s_lshl_b32 s87, s{S_TA}, 8"); p("s_add_u32 s86, s86, s87")
    p(f"v_add_u32 v{V_VD2}, s86, v5")
    p(f"v_xor_b32 v{V_VD2+1}, 64, v{V_VD2}"); p(f"v_add_u32 v{V_VD2+1}, 16384, v{V_VD2+1}")
    p(f"s_mul_i32 s91, s{S_NT}, 192"); p("s_add_u32 s91, s91, 512")
    bias_dma(91)
    setup_W(24, 91)
    SH = phase1("kfW", [('T', b & 3, 32 * 384, 4 * 384, (b >> 2) * 128) for b in range(12)])
    p.L += O_pre
    epi_W(list(range(12)), 91, SH)
    p(f"s_add_u32 s91, s{S_NT}, 4")
    publish1(False, 91)
    p(f"s_and_b32 s89, s{S_ROLE}, 1"); p(f"s_mul_i32 s{S2_KP}, s89, {56*1024}")
    srd(p, S2_SRDP, S_WS, S_WS + 1, HF_SZ, HF_OFF)
    p(f"s_lshl_b32 s86, s{S_TB}, 4"); p("s_lshl_b32 s87, s3, 1"); p("s_add_u32 s86, s86, s87"); p("s_mul_i32 s86, s86, 114688")
    p(f"v_lshlrev_b32 v{V2_VP}, 4, v1"); p(f"v_add_u32 v{V2_VP}, s86, v{V2_VP}"); p(f"v_add_u32 v{V2_VP+1}, 114688, v{V2_VP}")
    for w in range(2): addrT_setup(p, V, V2_A + 4 * w, 128, w * WIN)
    p("s_cmp_lg_u32 s3, 0"); p("s_cbranch_scc1 kf_O2w")
    p("v_min_u32 v2, 19, v1"); p("v_lshlrev_b32 v2, 2, v2"); p(f"s_lshl_b32 s86, s{S_TB}, 7"); p("v_add_u32 v2, s86, v2")
    p.label("kf_O2p")
    p(f"buffer_load_dword v4, v2, s[12:15], 0 offen offset:{2048+32}{SC}")
    p("s_waitcnt vmcnt(0)")
    p("v_cmp_ne_u32 vcc, 1, v4")
    p("s_cbranch_vccz kf_O2w")
    p("s_sleep 1")
    p("s_branch kf_O2p")
    p.label("kf_O2w")
    p("s_barrier")
    p.L += O_rest
    p(f"s_and_b32 s89, s{S_ROLE}, 1"); p("s_lshl_b32 s89, s89, 23"); p(f"s_add_u32 s89, s89, {O1_OFF}")
    p(f"s_add_u32 s8, s{S_WS}, s89"); p(f"s_addc_u32 s9, s{S_WS+1}, 0"); p("s_mov_b32 s10, 8388608"); p("s_mov_b32 s11, 0x20000")
    p("v_and_b32 v2, 15, v1"); p("v_lshlrev_b32 v2, 12, v2"); p("v_lshrrev_b32 v3, 4, v1"); p("v_lshl_add_u32 v2, v3, 4, v2")
    p(f"s_lshl_b32 s86, s{S_TB}, 20"); p("s_lshl_b32 s87, s3, 17"); p("s_add_u32 s86, s86, s87"); p(f"s_lshl_b32 s87, s{S_TA}, 9"); p("s_add_u32 s86, s86, s87")
    p("v_add_u32 v2, s86, v2"); p("v_add_u32 v3, 0x10000, v2")
    p("s_nop 6")
    for b in range(8):
        for i in range(2):
            acc = ACC + (b * 2 + i) * 4
            p(f"buffer_store_dwordx4 {vr(acc,4)}, v{2+i}, s[8:11], 0 offen offset:{64*b}{SC}")
    p(f"s_lshl_b32 s86, s{S_TB}, 3"); p(f"s_add_u32 s86, s86, s{S_TA}"); p(f"s_lshl_b32 s87, s{S_ROLE}, 6"); p(f"s_add_u32 s{S_FLAG}, s86, s87")
    p(f"s_mov_b32 s{S_R}, s{S_TB}"); p(f"s_lshr_b32 s{S_C}, s{S_TA}, 1"); p(f"s_and_b32 s{S_CG}, s{S_TA}, 1")
    p(f"s_and_b32 s86, s{S_ROLE}, 1"); p("s_lshl_b32 s86, s86, 1"); p(f"s_add_u32 s{S_RG}, s86, 1")

    p.label("kf_publish")
    srd(p, 12, S_WS, S_WS + 1, FL2_SZ, FL2_OFF)
    srd(p, 4, S_X, S_X + 1, 4194304)
    srd(p, 60, S_B2, S_B2 + 1, 2048)
    srd(p, 64, S_WS, S_WS + 1, 4194304, PP_OFF)
    srd(p, 68, S_WS, S_WS + 1, 4194304, QP_OFF)
    srd(p, 72, S_WS, S_WS + 1, 8388608, O1_OFF)
    srd(p, 76, S_WS, S_WS + 1, 8388608, O2_OFF)
    srd(p, 52, S_OUT, S_OUT + 1, 4194304)
    p(f"s_lshl_b32 s86, s{S_R}, 8"); p(f"s_lshl_b32 s87, s{S_RG}, 6"); p("s_add_u32 s86, s86, s87"); p("s_lshl_b32 s86, s86, 10")
    p(f"s_lshl_b32 s87, s{S_C}, 8"); p(f"s_lshl_b32 s88, s{S_CG}, 7"); p("s_add_u32 s87, s87, s88")
    p("v_and_b32 v4, 15, v0"); p("v_lshlrev_b32 v4, 3, v4"); p("v_add_u32 v4, s87, v4")
    p("v_lshrrev_b32 v5, 4, v0"); p("v_lshl_add_u32 v5, v5, 10, v4"); p("v_add_u32 v5, s86, v5")
    p("v_lshlrev_b32 v4, 1, v4"); p("v_lshlrev_b32 v6, 2, v5"); p("v_lshlrev_b32 v5, 1, v5")
    p("s_mov_b32 s90, 65536"); p("s_mov_b32 s91, 131072")
    p("s_waitcnt vmcnt(0)")
    p("s_barrier")
    XR, BR, O1R, O2R, PR, QR = 32, 40, 44, 60, 76, 84
    p(f"buffer_load_dwordx4 v[{XR}:{XR+3}], v5, s[4:7], 0 offen")
    p(f"buffer_load_dwordx4 v[{XR+4}:{XR+7}], v5, s[4:7], s90 offen")
    p(f"buffer_load_dwordx4 v[{BR}:{BR+3}], v4, s[60:63], 0 offen")
    p("s_cmp_lg_u32 s3, 0"); p("s_cbranch_scc1 kf_w_o")
    p(f"s_lshl_b32 s86, s{S_FLAG}, 7"); p("v_mov_b32 v2, s86"); p("v_mov_b32 v3, 1")
    p("s_mov_b64 exec, 1")
    p(f"buffer_store_dword v3, v2, s[12:15], 0 offen{SC}")
    p("s_mov_b64 exec, -1")
    p("v_and_b32 v2, 1, v1"); p("v_lshlrev_b32 v2, 13, v2")
    p(f"s_lshl_b32 s86, s{S_R}, 3"); p(f"s_lshl_b32 s87, s{S_C}, 1"); p("s_add_u32 s86, s86, s87"); p(f"s_add_u32 s86, s86, s{S_CG}"); p("s_add_u32 s86, s86, 128"); p("s_lshl_b32 s86, s86, 7")
    p("v_add_u32 v7, s86, v2")
    p(f"s_lshl_b32 s86, s{S_R}, 1"); p(f"s_lshr_b32 s87, s{S_RG}, 1"); p("s_add_u32 s86, s86, s87"); p("s_lshl_b32 s86, s86, 2"); p(f"s_add_u32 s86, s86, s{S_C}"); p("s_lshl_b32 s86, s86, 7")
    p("v_add_u32 v8, s86, v2")
    p.label("kf_poll_o")
    p(f"buffer_load_dword v9, v7, s[12:15], 0 offen{SC}")
    p("s_waitcnt vmcnt(0)")
    p("v_cmp_ne_u32 vcc, 1, v9")
    p("s_cbranch_vccz kf_w_o")
    p("s_sleep 1")
    p("s_branch kf_poll_o")
    p.label("kf_w_o")
    p("s_barrier")
    for ps in range(2):
        so = "0" if ps == 0 else "s91"
        p(f"buffer_load_dwordx4 v[{O1R+8*ps}:{O1R+8*ps+3}], v6, s[72:75], {so} offen{SC}")
        p(f"buffer_load_dwordx4 v[{O1R+8*ps+4}:{O1R+8*ps+7}], v6, s[72:75], {so} offen offset:16{SC}")
        p(f"buffer_load_dwordx4 v[{O2R+8*ps}:{O2R+8*ps+3}], v6, s[76:79], {so} offen{SC}")
        p(f"buffer_load_dwordx4 v[{O2R+8*ps+4}:{O2R+8*ps+7}], v6, s[76:79], {so} offen offset:16{SC}")
    p(f"s_mov_b32 s92, {hex(f2u(-math.log2(math.e)))}")
    p("s_waitcnt vmcnt(0)")
    B_ = 96; U_ = 104; W_ = 120; T = 136; GR = 144
    for i in range(4):
        p(f"v_lshlrev_b32 v{B_+2*i}, 16, v{BR+i}"); p(f"v_and_b32 v{B_+2*i+1}, 0xffff0000, v{BR+i}")
    for i in range(16): p(f"v_add_f32 v{U_+i}, v{O1R+i}, v{O2R+i}")
    for i in range(8): p(f"v_cvt_pk_bf16_f32 v{T+i}, v{U_+2*i}, v{U_+2*i+1}")
    for i in range(8):
        p(f"v_lshlrev_b32 v{U_+2*i}, 16, v{T+i}"); p(f"v_and_b32 v{U_+2*i+1}, 0xffff0000, v{T+i}")
    for i in range(16): p(f"v_add_f32 v{U_+i}, v{U_+i}, v{B_+(i%8)}")
    for i in range(8): p(f"v_cvt_pk_bf16_f32 v{T+i}, v{U_+2*i}, v{U_+2*i+1}")
    for i in range(8):
        p(f"v_lshlrev_b32 v{U_+2*i}, 16, v{T+i}"); p(f"v_and_b32 v{U_+2*i+1}, 0xffff0000, v{T+i}")
    for i in range(16): p(f"v_mul_f32 v{W_+i}, s92, v{U_+i}")
    for i in range(16): p(f"v_exp_f32 v{W_+i}, v{W_+i}")
    for i in range(16): p(f"v_add_f32 v{W_+i}, 1.0, v{W_+i}")
    for i in range(16): p(f"v_rcp_f32 v{W_+i}, v{W_+i}")
    for i in range(16): p(f"v_mul_f32 v{W_+i}, v{W_+i}, v{U_+i}")
    for i in range(8): p(f"v_cvt_pk_bf16_f32 v{T+i}, v{W_+2*i}, v{W_+2*i+1}")
    for i in range(8):
        p(f"v_lshlrev_b32 v{GR+2*i}, 16, v{T+i}"); p(f"v_and_b32 v{GR+2*i+1}, 0xffff0000, v{T+i}")
    for i in range(8):
        p(f"v_lshlrev_b32 v{O1R+2*i}, 16, v{XR+i}"); p(f"v_and_b32 v{O1R+2*i+1}, 0xffff0000, v{XR+i}")
    p("s_cmp_lg_u32 s3, 0"); p("s_cbranch_scc1 kf_w_y")
    p.label("kf_poll_y")
    p(f"buffer_load_dword v9, v8, s[12:15], 0 offen{SC}")
    p("s_waitcnt vmcnt(0)")
    p("v_cmp_ne_u32 vcc, 1, v9")
    p("s_cbranch_vccz kf_w_y")
    p("s_sleep 1")
    p("s_branch kf_poll_y")
    p.label("kf_w_y")
    p("s_barrier")
    for ps in range(2):
        so = "0" if ps == 0 else "s90"
        p(f"buffer_load_dwordx4 v[{PR+4*ps}:{PR+4*ps+3}], v5, s[64:67], {so} offen{SC}")
        p(f"buffer_load_dwordx4 v[{QR+4*ps}:{QR+4*ps+3}], v5, s[68:71], {so} offen{SC}")
    p("s_waitcnt vmcnt(0)")
    for i in range(8):
        p(f"v_lshlrev_b32 v{U_+2*i}, 16, v{PR+i}"); p(f"v_and_b32 v{U_+2*i+1}, 0xffff0000, v{PR+i}")
        p(f"v_lshlrev_b32 v{W_+2*i}, 16, v{QR+i}"); p(f"v_and_b32 v{W_+2*i+1}, 0xffff0000, v{QR+i}")
    for i in range(16): p(f"v_sub_f32 v{U_+i}, v{U_+i}, v{W_+i}")
    for i in range(8): p(f"v_cvt_pk_bf16_f32 v{T+i}, v{U_+2*i}, v{U_+2*i+1}")
    for i in range(8):
        p(f"v_lshlrev_b32 v{U_+2*i}, 16, v{T+i}"); p(f"v_and_b32 v{U_+2*i+1}, 0xffff0000, v{T+i}")
    for i in range(16): p(f"v_mul_f32 v{U_+i}, v{U_+i}, v{GR+i}")
    for i in range(8): p(f"v_cvt_pk_bf16_f32 v{T+i}, v{U_+2*i}, v{U_+2*i+1}")
    for i in range(8):
        p(f"v_lshlrev_b32 v{U_+2*i}, 16, v{T+i}"); p(f"v_and_b32 v{U_+2*i+1}, 0xffff0000, v{T+i}")
    for i in range(16): p(f"v_add_f32 v{U_+i}, v{U_+i}, v{O1R+i}")
    for i in range(8): p(f"v_cvt_pk_bf16_f32 v{T+i}, v{U_+2*i}, v{U_+2*i+1}")
    p(f"buffer_store_dwordx4 v[{T}:{T+3}], v5, s[52:55], 0 offen")
    p(f"buffer_store_dwordx4 v[{T+4}:{T+7}], v5, s[52:55], s90 offen")
    if CFG.get("ts"): p("s_waitcnt vmcnt(0)")
    stamp(p, 5); stamp_store(p, 1, 6)
    p.label("kf_end")
    p("s_endpgm")
    return name, 256, 102, 224

def generate(cfg):
    CFG.clear(); CFG.update(cfg); CFG["ts_noclk"] = 1; CFG["k0_fullflag"] = 1
    body = Prog()
    info = [("k0",) + gen.gen_k0(body), ("kf",) + gen_kf(body, cfg)]
    lds = {"k0": 0, "kf": 131072 + 8192}
    out = ["; FNet (dense DFT matmuls) + GELU FFN fused block; generated by dev/gen3.py"]
    for k in ("k0", "kf"):
        out.append(f"; @launch kernel={k}_kernel grid=(256,1,1) block=(512,1,1) lds={lds[k]}")
    out.append('.amdgcn_target "amdgcn-amd-amdhsa--gfx950"')
    out.append(".text")
    out += body.L
    out.append('.section .rodata,"a"')
    for k, name, nfv, nfs, acc in info:
        out += [".p2align 6", f".amdhsa_kernel {name}", f"  .amdhsa_next_free_vgpr {nfv}", f"  .amdhsa_next_free_sgpr {nfs}",
                f"  .amdhsa_accum_offset {acc}", "  .amdhsa_group_segment_fixed_size 0", "  .amdhsa_kernarg_size 104",
                "  .amdhsa_user_sgpr_count 2", "  .amdhsa_user_sgpr_kernarg_segment_ptr 1", "  .amdhsa_system_sgpr_workgroup_id_x 1",
                ".end_amdhsa_kernel"]
    return "\n".join(out) + "\n"

DEFAULT = dict(k1_ns=5, k1_nps=8, k2_ns=8, k2_nps=12, pf0=2, pf1=2)
if __name__ == "__main__":
    cfg = dict(DEFAULT)
    fn = sys.argv[1] if len(sys.argv) > 1 else "full3.s"
    for a in sys.argv[2:]:
        k, v = a.split("=")
        cfg[k] = float(v) if "." in v else int(v)
    open(fn, "w").write(generate(cfg))
```

```python
import sys, math, struct

KN = "recurrent_scan__spectral_fnet__dense_activation_gelu__prompt"

import os
WSB = int(os.environ.get("WSB", "0")) << 20
XF_OFF, XF_SZ = WSB + 0, 4 << 20
ABF_OFF, ABF_SZ = WSB + (4 << 20), 8 << 20
HF_OFF, HF_SZ = WSB + (12 << 20), 128 * 112 * 1024
G_OFF, G_SZ = WSB + (28 << 20), 4 << 20
FL_OFF, FL_SZ = WSB + (32 << 20), 128 * 128

def f2u(x):
    return struct.unpack("<I", struct.pack("<f", x))[0]

class Prog:
    def __init__(self):
        self.L = []
        self.uid = 0
    def __call__(self, s):
        self.L.append("    " + s)
    def label(self, s):
        self.L.append(s + ":")
    def raw(self, s):
        self.L.append(s)
    def newlabel(self, p="L"):
        self.uid += 1
        return f"{p}_{self.uid}"

def vr(b, n=1):
    return f"v{b}" if n == 1 else f"v[{b}:{b+n-1}]"
def ar(b, n=1):
    return f"a{b}" if n == 1 else f"a[{b}:{b+n-1}]"
def sr(b, n=1):
    return f"s{b}" if n == 1 else f"s[{b}:{b+n-1}]"

CFG = {}
class Op:
    __slots__ = ("kind", "text", "tag")
    def __init__(self, kind, text=None, tag=None):
        self.kind, self.text, self.tag = kind, text, tag

def gemm_mainloop(p, name, nstages, NS, NPS, s_cnt,
                  mfmas,
                  reads,
                  dmas,
                  privs,
                  extra=None,
                  read_frac=0.7, pf=None, hook=None, dma_first=None, st1=1, st2=2, hook_after_priv=False, hook_vm=0, flag_at=None):
    U = NS * NPS // math.gcd(NS * 2, NPS) if (2 * NS) % NPS else NS
    U = NS
    while (2 * U) % NPS: U += NS
    if nstages % U: U = nstages
    PD = NPS - 1
    nk = 2 * nstages
    segs = []
    K0_ = -max(2 * NS, NPS)
    for kappa in range(K0_, nk):
        ops = []
        s, k = divmod(kappa, 2)
        head = []
        if kappa >= 0:
            head.append(Op("wait_vm", tag=("P", kappa)))
        if k == 1 and kappa >= -1 and s + 1 < nstages:
            head.append(Op("wait_vm", tag=("D", s + 1)))
        if flag_at and kappa == flag_at[0]:
            head.append(Op("wait_vm", tag=("S", 0)))
        if kappa >= 0:
            head.append(Op("wait_lgkm0"))
        if k == 1 and kappa >= -1 and s + 1 < nstages:
            head.append(Op("barrier"))
        if flag_at and kappa == flag_at[0]:
            assert k == 1
            for x in flag_at[1]: head.append(Op("salu", x))
            head.append(Op("vm", flag_at[2], ("G", 0)))
            for x in flag_at[3]: head.append(Op("salu", x))
        rd = [Op("lds", t) for t in reads(kappa + 1)] if 0 <= kappa + 1 < nk else []
        vm = []
        ds = s + NS if k == 1 else s - 1 + NS
        if 0 <= ds < nstages:
            d = dmas(ds)
            h = (len(d) + 1) // 2
            part = d[:h] if k == 1 else d[h:]
            for pre, t in part:
                vm.append(([Op("salu", x) for x in pre], Op("vm", t, ("D", ds))))
        pk = kappa + PD
        pv = []
        if 0 <= pk < nk:
            for pre, t in privs(pk):
                pv.append(([Op("salu", x) for x in pre], Op("vm", t, ("P", pk))))
        seq = []
        a, b = list(pv), list(vm)
        while a or b:
            if a: seq.append(a.pop(0))
            if b: seq.append(b.pop(0))
        if pf and kappa >= 0:
            for pre, t in pf(kappa):
                seq.append(([Op("salu", x) for x in pre], Op("vm", t, ("F", kappa))))
        ex = [Op("valu", t) for t in extra(kappa)] if (extra and kappa >= 0) else []
        mf = [Op("mfma", t) for t in mfmas(kappa)] if kappa >= 0 else []
        ops += head
        if not mf:
            for pre, v in seq:
                ops += pre
                if pre: ops.append(Op("salu", "s_nop 0"))
                ops.append(v)
            ops += rd
        else:
            n = len(mf)
            gaps = [[] for _ in range(n)]
            nr = len(rd)
            span = max(1, int(n * read_frac))
            for i, r in enumerate(rd):
                gaps[min(n - 1, (i * span) // max(1, nr))].append(r)
            nv = len(seq); lastg = -1
            for i, (pre, v) in enumerate(seq):
                g = 1 + ((2 * i + 1) * (n - 1)) // (2 * nv) if nv else 0
                g = min(n - 1, g)
                assert g != lastg; lastg = g
                gaps[g - 1] += pre
                gaps[g].append(v)
            for i, e in enumerate(ex):
                gaps[min(n - 1, (i * n) // len(ex))].append(e)
            for i in range(n):
                ops.append(mf[i])
                ops += gaps[i]
        if CFG.get("abl_nomfma"): ops = [o for o in ops if o.kind != "mfma"]
        if CFG.get("abl_nolds"): ops = [o for o in ops if o.kind != "lds"]
        if CFG.get("abl_nodma"): ops = [o for o in ops if not (o.kind in ("vm", "wait_vm") and o.tag[0] == "D")]
        if CFG.get("abl_nopriv"): ops = [o for o in ops if not (o.kind in ("vm", "wait_vm") and o.tag[0] == "P")]
        if CFG.get("abl_nobar"): ops = [o for o in ops if o.kind != "barrier"]
        segs.append(ops)
    if hook is not None:
        npro = -K0_ - 1
        dm, pv_ = [], []
        for ops in segs[:npro]:
            cur = []
            for o in ops:
                cur.append(o)
                if o.kind == "vm":
                    (dm if o.tag[0] == "D" else pv_).extend(cur); cur = []
            assert not cur
        if CFG.get("late2"): segs[:npro] = [[Op("hook")] + dm + pv_] + [[] for _ in range(npro - 1)]
        else: segs[:npro] = [(dm + pv_ + [Op("hook")]) if hook_after_priv else (dm + [Op("hook")] + pv_)] + [[] for _ in range(npro - 1)]
    vmq = []
    done_upto = 0
    lg_out = 0
    texts = []
    for ops in segs:
        out = []
        pend_vm = None; pend_lg = False
        def flush():
            nonlocal pend_vm, pend_lg
            if pend_vm is not None or pend_lg:
                t = "s_waitcnt"
                if pend_vm is not None: t += f" vmcnt({pend_vm})"
                if pend_lg: t += " lgkmcnt(0)"
                out.append(t)
            pend_vm = None; pend_lg = False
        for o in ops:
            if o.kind == "wait_vm":
                idx = max(i for i, t in enumerate(vmq) if t == o.tag) + 1
                if idx > done_upto:
                    done_upto = idx
                    N = len(vmq) - idx
                    assert N <= 63, N
                    pend_vm = N if pend_vm is None else min(pend_vm, N)
            elif o.kind == "wait_lgkm0":
                if lg_out:
                    pend_lg = True; lg_out = 0
            else:
                flush()
                if o.kind == "vm": vmq.append(o.tag)
                if o.kind == "hook": vmq.extend([("S", 0)] * hook_vm)
                if o.kind == "lds": lg_out += 1
                out.append("s_barrier" if o.kind == "barrier" else ("@HOOK" if o.kind == "hook" else o.text))
        flush()
        texts.append(out)
    pro = texts[:-K0_]
    if hook is None: stamp(p, st1)
    for t in pro:
        for x in t:
            if x == "@HOOK":
                hook(); stamp(p, st1)
            else: p(x)
    body = texts[-K0_:]
    its = ["\n".join("\n".join(t) for t in body[2 * U * i:2 * U * (i + 1)]) for i in range(nstages // U)]
    i = 0
    while i < len(its):
        j = i
        while j + 1 < len(its) and its[j + 1] == its[i]: j += 1
        cnt = j - i + 1
        if cnt >= 2:
            lab = p.newlabel(name + "_loop")
            p(f"s_mov_b32 {sr(s_cnt)}, {cnt}")
            p.raw(".p2align 6")
            p.label(lab)
            for x in its[i].split("\n"): p(x)
            p(f"s_sub_u32 {sr(s_cnt)}, {sr(s_cnt)}, 1")
            p(f"s_cmp_lg_u32 {sr(s_cnt)}, 0")
            p(f"s_cbranch_scc1 {lab}")
        else:
            for x in its[i].split("\n"): p(x)
        i = j + 1
    stamp(p, st2)

TS_OFF = 40 << 20
def tsreg(i):
    return (98, 99, 100, 101, 42, 43)[i]
def stamp(p, idx):
    if not CFG.get("ts"): return
    p(f"s_memrealtime s[{96}:{97}]")
    p("s_waitcnt lgkmcnt(0)")
    p(f"v_writelane_b32 v255, s96, {idx}") if False else None
    p(f"s_mov_b32 s{tsreg(idx)}, s96")
    if idx in (1, 2) and CFG.get("ts_cbase") and not CFG.get("ts_noclk"):
        p("s_memtime s[96:97]"); p("s_waitcnt lgkmcnt(0)"); p(f"s_mov_b32 s{CFG['ts_cbase']+idx-1}, s96")
def stamp_store(p, kidx, n):
    if not CFG.get("ts"): return
    lab = p.newlabel("ts")
    p("s_cmp_lg_u32 s3, 0"); p(f"s_cbranch_scc1 {lab}")
    srd(p, 92, S_WS, S_WS + 1, 1 << 20, TS_OFF)
    p(f"s_lshl_b32 s96, s2, 5"); p(f"s_add_u32 s96, s96, {kidx * 8192}")
    p("v_mov_b32 v2, s96")
    p("s_mov_b64 exec, 1")
    for i in range(n):
        p(f"v_mov_b32 v3, s{tsreg(i)}")
        p(f"buffer_store_dword v3, v2, s[92:95], 0 offen offset:{4*i}")
    if CFG.get("ts_cbase") and not CFG.get("ts_noclk"):
        for i in range(2):
            p(f"v_mov_b32 v3, s{CFG['ts_cbase']+i}")
            p(f"buffer_store_dword v3, v2, s[92:95], 0 offen offset:{16+4*i}")
    p("s_mov_b64 exec, -1")
    p.label(lab)

def srd(p, d, lo, hi, size, add=0):
    if add:
        p(f"s_add_u32 {sr(d)}, {sr(lo)}, {add}")
        p(f"s_addc_u32 {sr(d+1)}, {sr(hi)}, 0")
    else:
        p(f"s_mov_b32 {sr(d)}, {sr(lo)}")
        p(f"s_mov_b32 {sr(d+1)}, {sr(hi)}")
    p(f"s_mov_b32 {sr(d+2)}, {size}")
    p(f"s_mov_b32 {sr(d+3)}, 0x20000")

def kernel_head(p, name):
    p.raw(f".globl {name}")
    p.raw(".p2align 8")
    p.raw(f".type {name},@function")
    p.label(name)

def load_ptrs(p):
    p("s_load_dwordx16 s[16:31], s[0:1], 0")
    p("s_load_dwordx8 s[32:39], s[0:1], 64")
    p("s_load_dwordx2 s[40:41], s[0:1], 96")
S_X, S_CR, S_CI, S_DR, S_DI, S_BX, S_W1, S_B1, S_W2, S_B2, S_OUT, S_DBG, S_WS = 16, 18, 20, 22, 24, 26, 28, 30, 32, 34, 36, 38, 40

def gen_k0(p):
    name = "k0_kernel"
    kernel_head(p, name)
    p("s_cmp_ge_u32 s2, 256"); p("s_cbranch_scc1 k0_end")
    load_ptrs(p)
    p("v_lshrrev_b32 v1, 6, v0")
    p("v_and_b32 v2, 63, v0")
    p("s_lshl_b32 s3, s2, 3")
    p("v_add_u32 v1, s3, v1")
    p("v_lshlrev_b32 v3, 11, v1")
    p("v_lshl_add_u32 v3, v2, 4, v3")
    p("s_waitcnt lgkmcnt(0)")
    stamp(p, 0); stamp(p, 1)
    srd(p, 4, S_X, S_X + 1, 4194304)
    srd(p, 8, S_WS, S_WS + 1, XF_SZ, XF_OFF)
    srd(p, 12, S_WS, S_WS + 1, FL_SZ, FL_OFF)
    p("buffer_load_dwordx4 v[8:11], v3, s[4:7], 0 offen")
    p("buffer_load_dwordx4 v[12:15], v3, s[4:7], 0 offen offset:1024")
    if CFG.get("pf0", 1) == 2:
        srd(p, 48, S_DR, S_DR + 1, 2097152); srd(p, 52, S_DI, S_DI + 1, 2097152); srd(p, 56, S_W1, S_W1 + 1, 7340032)
        p("v_lshlrev_b32 v60, 10, v1"); p("v_lshl_add_u32 v60, v2, 7, v60")
        p("v_mul_u32_u24 v61, 3584, v1"); p("v_lshl_add_u32 v61, v2, 7, v61")
        p("s_mov_b64 exec, 0xff")
        p("buffer_load_dword v64, v60, s[48:51], 0 offen")
        p("buffer_load_dword v65, v60, s[52:55], 0 offen")
        p("s_mov_b64 exec, 0xfffffff")
        p("buffer_load_dword v66, v61, s[56:59], 0 offen")
        p("s_mov_b64 exec, -1")
    elif CFG.get("pf0", 1):
        srd(p, 48, S_DR, S_DR + 1, 2097152); srd(p, 52, S_DI, S_DI + 1, 2097152); srd(p, 56, S_W1, S_W1 + 1, 7340032)
        p("v_lshlrev_b32 v60, 10, v1"); p("v_lshl_add_u32 v60, v2, 4, v60")
        p("v_mul_u32_u24 v61, 3584, v1"); p("v_lshl_add_u32 v61, v2, 4, v61")
        p("buffer_load_dwordx4 v[64:67], v60, s[48:51], 0 offen")
        p("buffer_load_dwordx4 v[68:71], v60, s[52:55], 0 offen")
        for i in range(3): p(f"buffer_load_dwordx4 v[{72+4*i}:{75+4*i}], v61, s[56:59], 0 offen offset:{1024*i}")
        p("v_cmp_gt_u32 vcc, 32, v2"); p("s_and_saveexec_b64 s[44:45], vcc")
        p("buffer_load_dwordx4 v[84:87], v61, s[56:59], 0 offen offset:3072")
        p("s_mov_b64 exec, s[44:45]")
    p("v_mov_b32 v40, 0")
    p("s_lshl_b32 s3, s2, 7")
    if CFG.get("k0_fullflag"):
        p("v_lshl_add_u32 v41, v0, 2, s3")
        p("v_cmp_gt_u32 vcc, 32, v0")
    else:
        p("v_mov_b32 v41, s3")
        p("v_cmp_eq_u32 vcc, 0, v0")
    p("s_and_saveexec_b64 s[44:45], vcc")
    p("s_cbranch_execz k0_nofl")
    p("buffer_store_dword v40, v41, s[12:15], 0 offen")
    p.label("k0_nofl")
    p("s_mov_b64 exec, s[44:45]")
    p("v_lshrrev_b32 v4, 4, v1"); p("v_lshlrev_b32 v4, 15, v4")
    p("v_lshrrev_b32 v5, 2, v2"); p("v_lshl_add_u32 v4, v5, 10, v4")
    p("v_and_b32 v5, 3, v2"); p("v_lshl_add_u32 v4, v5, 8, v4")
    p("v_and_b32 v5, 15, v1"); p("v_lshl_add_u32 v4, v5, 4, v4")
    npf = {0: 0, 1: 6, 2: 3}[CFG.get("pf0", 1)]
    p(f"s_waitcnt vmcnt({npf+1})")
    for i in range(4):
        p(f"v_lshlrev_b32 v{16+2*i}, 16, v{8+i}"); p(f"v_and_b32 v{17+2*i}, 0xffff0000, v{8+i}")
    p(f"s_waitcnt vmcnt({npf})")
    for i in range(4, 8):
        p(f"v_lshlrev_b32 v{16+2*i}, 16, v{8+i}"); p(f"v_and_b32 v{17+2*i}, 0xffff0000, v{8+i}")
    def wave_sum(src, tmp, sbase):
        for ctl in ("quad_perm:[1,0,3,2]", "quad_perm:[2,3,0,1]", "row_half_mirror", "row_mirror"):
            p("s_nop 1")
            p(f"v_add_f32_dpp v{tmp}, v{src}, v{src} {ctl} row_mask:0xf bank_mask:0xf")
            p(f"v_mov_b32 v{src}, v{tmp}")
        p("s_nop 0")
        for i in range(4): p(f"v_readlane_b32 s{sbase+i}, v{src}, {16*i}")
        p("s_nop 1")
        p(f"v_mov_b32 v{src}, s{sbase}")
        for i in range(1, 4): p(f"v_add_f32 v{src}, s{sbase+i}, v{src}")
    p("v_add_f32 v32, v16, v17")
    for i in range(1, 8): p(f"v_add_f32 v{32+i}, v{16+2*i}, v{17+2*i}")
    for st in (4, 2, 1):
        for i in range(st): p(f"v_add_f32 v{32+i}, v{32+i}, v{32+i+st}")
    wave_sum(32, 33, 46)
    p(f"v_mul_f32 v32, {hex(f2u(1.0/1024))}, v32")
    for i in range(16):
        p(f"v_sub_f32 v{44+i}, v{16+i}, v32")
    for i in range(8):
        p(f"v_mul_f32 v{34+i}, v{44+2*i}, v{44+2*i}")
        p(f"v_fmac_f32 v{34+i}, v{45+2*i}, v{45+2*i}")
    for st in (4, 2, 1):
        for i in range(st): p(f"v_add_f32 v{34+i}, v{34+i}, v{34+i+st}")
    wave_sum(34, 35, 46)
    p(f"v_mul_f32 v34, {hex(f2u(1.0/1024))}, v34")
    p("v_cvt_pk_bf16_f32 v35, v32, v34")
    p("v_lshlrev_b32 v32, 16, v35")
    p("v_and_b32 v34, 0xffff0000, v35")
    p(f"v_add_f32 v34, {hex(f2u(1e-5))}, v34")
    p("v_cvt_pk_bf16_f32 v34, v34, v34")
    p("v_lshlrev_b32 v34, 16, v34")
    p("v_sqrt_f32 v34, v34")
    p("s_nop 0")
    p("v_cvt_pk_bf16_f32 v34, v34, v34")
    p("v_lshlrev_b32 v34, 16, v34")
    p("v_rcp_f32 v35, v34")
    for i in range(16): p(f"v_sub_f32 v{16+i}, v{16+i}, v32")
    for i in range(8): p(f"v_cvt_pk_bf16_f32 v{8+i}, v{16+2*i}, v{17+2*i}")
    for i in range(8):
        p(f"v_lshlrev_b32 v{16+2*i}, 16, v{8+i}"); p(f"v_and_b32 v{17+2*i}, 0xffff0000, v{8+i}")
    for i in range(16): p(f"v_mul_f32 v{44+i}, v{16+i}, v35")
    for i in range(16): p(f"v_fma_f32 v{16+i}, -v{44+i}, v34, v{16+i}")
    for i in range(16): p(f"v_fmac_f32 v{44+i}, v{16+i}, v35")
    for i in range(8): p(f"v_cvt_pk_bf16_f32 v{8+i}, v{44+2*i}, v{45+2*i}")
    p("v_add_u32 v5, 0x4000, v4")
    stamp(p, 2)
    p("buffer_store_dwordx4 v[8:11], v4, s[8:11], 0 offen")
    p("buffer_store_dwordx4 v[12:15], v5, s[8:11], 0 offen")
    if CFG.get("ts"):
        p("s_waitcnt vmcnt(0)"); p("s_barrier")
        p("v_lshrrev_b32 v1, 6, v0"); p("s_nop 0"); p("v_readfirstlane_b32 s3, v1")
    stamp(p, 3); stamp_store(p, 0, 4)
    p.label("k0_end")
    p("s_endpgm")
    return name, 88, 102, 88

def lane_consts(p, V):
    p(f"v_and_b32 v{V['lane']}, 63, v0")
    p(f"v_lshrrev_b32 v{V['t0']}, 6, v0")
    p("s_nop 0")
    p(f"v_readfirstlane_b32 s3, v{V['t0']}")

def addrK_setup(p, V, dst0, dst1, base):
    l, t0, t1 = V['lane'], V['t0'], V['t1']
    p(f"v_and_b32 v{t0}, 15, v{l}")
    p(f"v_lshrrev_b32 v{t1}, 1, v{t0}")
    p(f"v_lshrrev_b32 v{dst0}, 4, v{l}")
    p(f"v_xor_b32 v{t1}, v{t1}, v{dst0}")
    p(f"v_lshlrev_b32 v{t1}, 4, v{t1}")
    p(f"v_lshl_add_u32 v{dst0}, v{t0}, 7, v{t1}")
    if base: p(f"v_add_u32 v{dst0}, {base}, v{dst0}")
    p(f"v_xor_b32 v{dst1}, 64, v{dst0}")

def addrT_setup(p, V, dst4, kpitch, base):
    l, t0, t1, t2 = V['lane'], V['t0'], V['t1'], V['t2']
    p(f"v_lshrrev_b32 v{t0}, 4, v{l}")
    p(f"v_bfe_u32 v{t1}, v{l}, 2, 2")
    p(f"v_lshl_add_u32 v{t2}, v{t0}, 3, v{t1}")
    p(f"v_mul_u32_u24 v{t2}, {kpitch}, v{t2}")
    p(f"v_and_b32 v{t0}, 1, v{t0}"); p(f"v_lshlrev_b32 v{t0}, 1, v{t0}")
    p(f"v_lshrrev_b32 v{t1}, 1, v{t1}"); p(f"v_or_b32 v{t0}, v{t0}, v{t1}")
    p(f"v_lshlrev_b32 v{t0}, 5, v{t0}")
    p(f"v_bfe_u32 v{t1}, v{l}, 1, 1"); p(f"v_lshlrev_b32 v{t1}, 4, v{t1}")
    p(f"v_or_b32 v{t0}, v{t0}, v{t1}")
    p(f"v_and_b32 v{t1}, 1, v{l}"); p(f"v_lshl_add_u32 v{t2}, v{t1}, 3, v{t2}")
    if base: p(f"v_add_u32 v{t2}, {base}, v{t2}")
    for b in range(4):
        p(f"v_xor_b32 v{t1}, {32*b}, v{t0}")
        p(f"v_add_u32 v{dst4+b}, v{t1}, v{t2}")

def voffK_lane(p, V, dst, pitch, par):
    l, t0, t1 = V['lane'], V['t0'], V['t1']
    p(f"v_lshrrev_b32 v{t0}, 4, v{l}")
    if par: p(f"v_or_b32 v{t0}, 4, v{t0}")
    p(f"v_and_b32 v{t1}, 7, v{l}")
    p(f"v_xor_b32 v{t0}, v{t0}, v{t1}")
    p(f"v_lshlrev_b32 v{t0}, 4, v{t0}")
    p(f"v_lshrrev_b32 v{t1}, 3, v{l}")
    p(f"v_mul_u32_u24 v{t1}, {pitch}, v{t1}")
    p(f"v_add_u32 v{dst}, v{t0}, v{t1}")

def voffT8_lane(p, V, dst, pitch, par):
    l, t0, t1 = V['lane'], V['t0'], V['t1']
    p(f"v_bfe_u32 v{t0}, v{l}, 4, 1")
    p(f"v_lshlrev_b32 v{t0}, 1, v{t0}")
    if par: p(f"v_or_b32 v{t0}, 4, v{t0}")
    p(f"v_and_b32 v{t1}, 7, v{l}")
    p(f"v_xor_b32 v{t0}, v{t0}, v{t1}")
    p(f"v_lshlrev_b32 v{t0}, 4, v{t0}")
    p(f"v_lshrrev_b32 v{t1}, 3, v{l}")
    p(f"v_mul_u32_u24 v{t1}, {pitch}, v{t1}")
    p(f"v_add_u32 v{dst}, v{t0}, v{t1}")

MF = "v_mfma_f32_16x16x32_bf16"

C1 = -2.0 * math.sqrt(2.0 / math.pi) * math.log2(math.e)
C2 = C1 * 0.044715

def gen_k1(p, cfg):
    name = "k1_kernel"
    NS, NPS = cfg["k1_ns"], cfg["k1_nps"]
    STG = 24576
    WIN = 49152
    nwin = (NS * STG + WIN - 1) // WIN
    kernel_head(p, name)
    p("s_cmp_ge_u32 s2, 256"); p("s_cbranch_scc1 k1_end")
    load_ptrs(p)
    V = dict(lane=1, t0=2, t1=3, t2=4)
    ACC = 64
    V_VP = 8
    V_VD = 12
    V_AK = 20
    V_AT = 24
    V_BIAS = 32
    A_P = 0
    A_S = NPS * 16
    S_SRDP = 4
    S_SRDS = 44
    S_SOFF = 68
    S_DLT = 74
    S_KP = 80
    S_M0B = 81
    S_CNT = 82
    S_MT, S_NT, S_N0 = 83, 84, 85
    S_T = 86
    lane_consts(p, V)
    p("s_and_b32 s86, s2, 7"); p("s_lshr_b32 s87, s2, 3")
    p("s_and_b32 s88, s86, 1"); p("s_lshl_b32 s88, s88, 2"); p("s_and_b32 s89, s87, 3"); p(f"s_add_u32 s{S_MT}, s88, s89")
    p("s_lshr_b32 s88, s86, 1"); p("s_lshr_b32 s89, s87, 2"); p("s_lshl_b32 s89, s89, 2"); p(f"s_add_u32 s{S_NT}, s88, s89")
    p(f"s_mul_i32 s{S_N0}, s{S_NT}, 176")
    p(f"s_mul_i32 s{S_M0B}, s3, 6144")
    p(f"s_mov_b32 s{S_KP}, 0")
    p(f"s_lshl_b32 s86, s{S_MT}, 4"); p("s_lshl_b32 s87, s3, 2"); p("s_add_u32 s86, s86, s87"); p("s_lshl_b32 s86, s86, 15")
    p(f"v_lshlrev_b32 v{V_VP}, 4, v1"); p(f"v_add_u32 v{V_VP}, s86, v{V_VP}")
    for i in range(1, 4): p(f"v_add_u32 v{V_VP+i}, {32768*i}, v{V_VP}")
    p("s_lshl_b32 s86, s2, 2"); p("s_add_u32 s86, s86, s3"); p("s_lshl_b32 s87, s86, 13"); p("s_mul_i32 s86, s86, 7168")
    p("v_lshlrev_b32 v55, 4, v1"); p("v_add_u32 v54, s87, v55"); p("v_add_u32 v55, s86, v55"); p("s_mov_b32 s92, 4096")
    p("s_waitcnt lgkmcnt(0)")
    stamp(p, 0)
    srd(p, S_SRDP, S_WS, S_WS + 1, XF_SZ, XF_OFF)
    p(f"s_cmp_lt_u32 s{S_NT}, 11"); p("s_cbranch_scc1 k1_typeD")
    p(f"s_cmp_eq_u32 s{S_NT}, 11"); p("s_cbranch_scc1 k1_typeM")
    p("s_branch k1_typeW")

    def slot_D(i, pv):
        d = S_SRDS + 4 * i
        p(f"s_lshl_b32 s87, s86, 3"); p(f"s_add_u32 s87, s87, s{S_N0}")
        p("s_cmp_lt_u32 s87, 1024")
        p(f"s_cselect_b32 s{d}, s{S_DR}, s{S_DI}"); p(f"s_cselect_b32 s{d+1}, s{S_DR+1}, s{S_DI+1}")
        p(f"s_mov_b32 s{d+2}, 2097152"); p(f"s_mov_b32 s{d+3}, 0x20000")
        p("s_and_b32 s87, s87, 1023"); p("s_lshl_b32 s87, s87, 11")
        p(f"v_add_u32 v{V_VD+i}, s87, v{pv[i&1]}")
        p(f"s_mov_b32 s{S_SOFF+i}, 0"); p(f"s_mov_b32 s{S_DLT+i}, 128")
    def slot_dummy(i):
        d = S_SRDS + 4 * i
        p(f"s_mov_b32 s{d}, s{S_W1}"); p(f"s_mov_b32 s{d+1}, s{S_W1+1}")
        p(f"s_mov_b32 s{d+2}, 0"); p(f"s_mov_b32 s{d+3}, 0x20000")
        p(f"v_mov_b32 v{V_VD+i}, 0")
        p(f"s_mov_b32 s{S_SOFF+i}, 0"); p(f"s_mov_b32 s{S_DLT+i}, 0")

    def dmas(stage):
        out = []
        for i in range(6):
            pre = [f"s_add_u32 m0, s{S_M0B}, {(stage % NS) * STG + 1024 * i}"]
            if stage > 0: pre.insert(0, f"s_add_u32 s{S_SOFF+i}, s{S_SOFF+i}, s{S_DLT+i}")
            d = S_SRDS + 4 * i
            out.append((pre, f"buffer_load_dwordx4 v{V_VD+i}, s[{d}:{d+3}], s{S_SOFF+i} offen lds"))
        return out
    def privs(kappa):
        out = []
        for i in range(4):
            pre = []
            if i == 0 and kappa % 4 == 0 and kappa > 0: pre = [f"s_add_u32 s{S_KP}, s{S_KP}, 4096"]
            a = A_P + (kappa % NPS) * 16 + 4 * i
            out.append((pre, f"buffer_load_dwordx4 {ar(a,4)}, v{V_VP+i}, s[{S_SRDP}:{S_SRDP+3}], s{S_KP} offen offset:{(kappa%4)*1024}"))
        return out
    def pf(kappa):
        if not cfg.get("pf1", 1): return []
        j = kappa - cfg.get("pf1_start", 0)
        if j < 0 or j >= 23: return []
        m, jj = (0, j) if j < 8 else ((1, j - 8) if j < 16 else (2, j - 16))
        pre = []
        if jj == 0:
            b = (S_CR, S_CI, S_W2)[m]
            pre = [f"s_mov_b32 s8, s{b}", f"s_mov_b32 s9, s{b+1}", f"s_mov_b32 s10, {(8388608, 8388608, 7340032)[m]}", "s_mov_b32 s11, 0x20000"]
        return [(pre, f"buffer_load_dwordx4 v[56:59], v{54 if m < 2 else 55}, s[8:11], {'s92' if jj >= 4 else '0'} offen offset:{(jj%4)*1024}")]
    def make(blocks):
        def reads(kappa):
            s, kk = divmod(kappa, 2)
            ring = (s % NS) * STG
            out = []
            for b, bl in enumerate(blocks):
                a = A_S + kk * 44 + 4 * b
                if bl[0] == 'K':
                    off = ring + bl[1]; w = off // WIN
                    out.append(f"ds_read_b128 {ar(a,4)}, v{V_AK+2*w+kk} offset:{off - w*WIN}")
                else:
                    for hh in range(2):
                        off = ring + bl[4] + kk * bl[2] + hh * bl[3]; w = off // WIN
                        out.append(f"ds_read_b64_tr_b16 {ar(a+2*hh,2)}, v{V_AT+4*w+bl[1]} offset:{off - w*WIN}")
            return out
        def mfmas(kappa):
            kk = kappa % 2
            out = []
            for b, bl in enumerate(blocks):
                for i in range(4):
                    acc = ACC + (b * 4 + i) * 4
                    S = ar(A_S + kk * 44 + 4 * b, 4); P = ar(A_P + (kappa % NPS) * 16 + 4 * i, 4)
                    c = vr(acc, 4) if kappa > 0 else "0"
                    if bl[0] == 'K': out.append(f"{MF} {vr(acc,4)}, {P}, {S}, {c}")
                    else: out.append(f"{MF} {vr(acc,4)}, {S}, {P}, {c}")
            return out
        return reads, mfmas

    def epi_D(blocks_idx):
        srd(p, 8, S_WS, S_WS + 1, ABF_SZ, ABF_OFF)
        p("v_lshrrev_b32 v2, 4, v1"); p("v_and_b32 v3, 1, v2"); p("v_lshlrev_b32 v3, 1, v3"); p("v_lshrrev_b32 v2, 1, v2")
        p("v_or_b32 v2, v2, v3"); p("v_lshlrev_b32 v2, 8, v2"); p("v_and_b32 v3, 15, v1"); p("v_lshl_add_u32 v2, v3, 4, v2")
        p(f"s_lshl_b32 s86, s{S_MT}, 3"); p("s_lshl_b32 s87, s3, 1"); p("s_add_u32 s86, s86, s87"); p("s_lshl_b32 s86, s86, 10")
        p("v_add_u32 v2, s86, v2")
        for b in blocks_idx:
            p(f"s_add_u32 s87, s{S_N0}, {16*b}")
            p("s_lshr_b32 s88, s87, 10"); p("s_lshl_b32 s88, s88, 16")
            p("s_and_b32 s87, s87, 1023"); p("s_lshl_b32 s87, s87, 13")
            p("s_add_u32 s87, s87, s88")
            for m in range(2):
                a0 = ACC + (b * 4 + 2 * m) * 4; a1 = a0 + 4
                t = 8 + 4 * m
                p(f"v_cvt_pk_bf16_f32 v{t}, v{a0}, v{a0+1}"); p(f"v_cvt_pk_bf16_f32 v{t+1}, v{a0+2}, v{a0+3}")
                p(f"v_cvt_pk_bf16_f32 v{t+2}, v{a1}, v{a1+1}"); p(f"v_cvt_pk_bf16_f32 v{t+3}, v{a1+2}, v{a1+3}")
            p("s_nop 1")
            for m in range(2):
                t = 8 + 4 * m
                p(f"v_permlane16_swap_b32 v{t}, v{t+2}"); p(f"v_permlane16_swap_b32 v{t+1}, v{t+3}")
            for m in range(2):
                t = 8 + 4 * m
                p(f"buffer_store_dwordx4 v[{t}:{t+3}], v2, s[8:11], s87 offen offset:{1024*m}")
            p("s_nop 1")

    def bias_load(blocks_idx, f0_sgpr):
        srd(p, 12, S_B1, S_B1 + 1, 7168)
        p("v_lshrrev_b32 v2, 4, v1"); p("v_lshlrev_b32 v2, 3, v2")
        p(f"s_lshl_b32 s86, s{f0_sgpr}, 1"); p("v_add_u32 v2, s86, v2")
        for n, b in enumerate(blocks_idx):
            p(f"buffer_load_dwordx2 v[{V_BIAS+2*n}:{V_BIAS+2*n+1}], v2, s[12:15], 0 offen offset:{32*n}")

    def gelu8(src, bias, T):
        n = len(src)
        U_ = T + 4; W_ = T + 4 + n; Pk = T
        for i in range(n // 2): p(f"v_cvt_pk_bf16_f32 v{Pk+i}, v{src[2*i]}, v{src[2*i+1]}")
        for i in range(n // 2):
            p(f"v_lshlrev_b32 v{U_+2*i}, 16, v{Pk+i}"); p(f"v_and_b32 v{U_+2*i+1}, 0xffff0000, v{Pk+i}")
        for i in range(n): p(f"v_add_f32 v{U_+i}, v{U_+i}, v{bias[i]}")
        for i in range(n // 2): p(f"v_cvt_pk_bf16_f32 v{Pk+i}, v{U_+2*i}, v{U_+2*i+1}")
        for i in range(n // 2):
            p(f"v_lshlrev_b32 v{U_+2*i}, 16, v{Pk+i}"); p(f"v_and_b32 v{U_+2*i+1}, 0xffff0000, v{Pk+i}")
        for i in range(n): p(f"v_mul_f32 v{W_+i}, v{U_+i}, v{U_+i}")
        for i in range(n): p(f"v_fma_f32 v{W_+i}, v{W_+i}, s90, v5")
        for i in range(n): p(f"v_mul_f32 v{W_+i}, v{W_+i}, v{U_+i}")
        for i in range(n): p(f"v_exp_f32 v{W_+i}, v{W_+i}")
        for i in range(n): p(f"v_add_f32 v{W_+i}, 1.0, v{W_+i}")
        for i in range(n): p(f"v_rcp_f32 v{W_+i}, v{W_+i}")
        for i in range(n): p(f"v_mul_f32 v{W_+i}, v{W_+i}, v{U_+i}")
        for i in range(n // 2): p(f"v_cvt_pk_bf16_f32 v{Pk+i}, v{W_+2*i}, v{W_+2*i+1}")

    def epi_W(blocks_idx, f0_sgpr):
        srd(p, 8, S_WS, S_WS + 1, HF_SZ, HF_OFF)
        p(f"s_mov_b32 s90, {hex(f2u(C2))}"); p(f"v_mov_b32 v5, {hex(f2u(C1))}")
        p("v_lshrrev_b32 v2, 4, v1"); p("v_and_b32 v3, 1, v2"); p("v_lshlrev_b32 v3, 4, v3"); p("v_lshrrev_b32 v4, 1, v2")
        p("v_lshl_add_u32 v3, v4, 3, v3"); p(f"v_add_u32 v3, s{f0_sgpr}, v3")
        p("v_lshrrev_b32 v4, 5, v3"); p("v_lshlrev_b32 v4, 10, v4"); p("v_bfe_u32 v3, v3, 3, 2"); p("v_lshl_add_u32 v4, v3, 8, v4")
        p("v_and_b32 v3, 15, v1"); p("v_lshl_add_u32 v6, v3, 4, v4")
        nb = len(blocks_idx)
        if nb % 2:
            p(f"v_lshlrev_b32 v4, 2, v2"); p(f"v_add_u32 v4, s{f0_sgpr}, v4"); p(f"v_add_u32 v4, {16*(nb-1)}, v4")
            p("v_lshrrev_b32 v7, 5, v4"); p("v_lshlrev_b32 v7, 10, v7"); p("v_bfe_u32 v2, v4, 3, 2"); p("v_lshl_add_u32 v7, v2, 8, v7")
            p("v_bfe_u32 v2, v4, 2, 1"); p("v_lshl_add_u32 v7, v2, 3, v7"); p("v_lshl_add_u32 v7, v3, 4, v7")
        p(f"s_lshl_b32 s86, s{S_MT}, 4"); p("s_lshl_b32 s87, s3, 2"); p("s_add_u32 s86, s86, s87"); p("s_mul_i32 s86, s86, 114688")
        BF = 240
        T0 = 8
        for n0 in range(0, nb, 2):
            pair = blocks_idx[n0:n0 + 2]
            for k_, b in enumerate(pair):
                for h in range(2):
                    p(f"v_lshlrev_b32 v{BF+4*k_+2*h}, 16, v{V_BIAS+2*(n0+k_)+h}")
                    p(f"v_and_b32 v{BF+4*k_+2*h+1}, 0xffff0000, v{V_BIAS+2*(n0+k_)+h}")
            for i in range(4):
                src = []; bs = []
                for k_, b in enumerate(pair):
                    src += [ACC + (b * 4 + i) * 4 + r for r in range(4)]
                    bs += [BF + 4 * k_ + r for r in range(4)]
                gelu8(src, bs, T0)
                p(f"s_add_u32 s87, s86, {114688*i + 1024*(n0//2) if len(pair)==2 else 114688*i}")
                if len(pair) == 2:
                    p("s_nop 0")
                    p(f"v_permlane16_swap_b32 v{T0}, v{T0+2}"); p(f"v_permlane16_swap_b32 v{T0+1}, v{T0+3}")
                    p(f"buffer_store_dwordx4 v[{T0}:{T0+3}], v6, s[8:11], s87 offen")
                else:
                    p(f"buffer_store_dwordx2 v[{T0}:{T0+1}], v7, s[8:11], s87 offen")
                p("s_nop 1")

    p.label("k1_typeD")
    voffK_lane(p, V, 5, 2048, 0); voffK_lane(p, V, 6, 2048, 1)
    for i in range(6):
        p(f"s_mul_i32 s86, s3, 6"); p(f"s_add_u32 s86, s86, {i}")
        if i >= 4:
            lab = p.newlabel("k1d"); lab2 = p.newlabel("k1d")
            p("s_cmp_ge_u32 s86, 22"); p(f"s_cbranch_scc1 {lab}")
            slot_D(i, (5, 6)); p(f"s_branch {lab2}")
            p.label(lab); slot_dummy(i); p.label(lab2)
        else:
            slot_D(i, (5, 6))
    for w in range(nwin): addrK_setup(p, V, V_AK + 2 * w, V_AK + 2 * w + 1, w * WIN)
    blocks = [('K', 2048 * b) for b in range(11)]
    reads, mfmas = make(blocks)
    gemm_mainloop(p, "k1d", 16, NS, NPS, S_CNT, mfmas, reads, dmas, privs, pf=pf)
    p("s_nop 7"); p("s_nop 7")
    epi_D(range(11))
    if CFG.get("ts"): p("s_waitcnt vmcnt(0)")
    stamp(p, 3); stamp_store(p, 1, 4)
    p("s_endpgm")
    p.label("k1_typeW")
    p(f"s_sub_u32 s91, s{S_N0}, 2048")
    bias_load(range(11), 91)
    for i in range(6):
        rho, tp = i % 3, (i // 3) & 1
        d = S_SRDS + 4 * i
        p(f"v_add_u32 v2, {64*rho}, v1")
        p("v_mul_u32_u24 v3, 2731, v2"); p("v_lshrrev_b32 v3, 16, v3")
        p("v_mul_u32_u24 v4, 24, v3"); p("v_sub_u32 v2, v2, v4")
        p("v_bfe_u32 v4, v3, 1, 1"); p("v_lshlrev_b32 v4, 1, v4")
        if tp: p("v_or_b32 v4, 4, v4")
        p("v_xor_b32 v2, v2, v4")
        p("v_mul_u32_u24 v3, 7168, v3"); p("v_lshl_add_u32 v3, v2, 4, v3")
        p(f"s_lshl_b32 s86, s3, 1"); p(f"s_add_u32 s86, s86, {i//3}"); p("s_mul_i32 s86, s86, 57344")
        p("s_lshl_b32 s87, s91, 1"); p("s_add_u32 s86, s86, s87")
        p("v_add_u32 v3, s86, v3")
        p("v_cmp_gt_u32 vcc, 22, v2")
        p("v_mov_b32 v4, 0x80000000")
        p("s_nop 0")
        p(f"v_cndmask_b32 v{V_VD+i}, v4, v3, vcc")
        p(f"s_mov_b32 s{d}, s{S_W1}"); p(f"s_mov_b32 s{d+1}, s{S_W1+1}"); p(f"s_mov_b32 s{d+2}, 7340032"); p(f"s_mov_b32 s{d+3}, 0x20000")
        p(f"s_mov_b32 s{S_SOFF+i}, 0"); p(f"s_mov_b32 s{S_DLT+i}, {64*7168}")
    for w in range(nwin): addrT_setup(p, V, V_AT + 4 * w, 384, w * WIN)
    blocks = [('T', b & 3, 32 * 384, 4 * 384, (b >> 2) * 128) for b in range(11)]
    reads, mfmas = make(blocks)
    gemm_mainloop(p, "k1w", 16, NS, NPS, S_CNT, mfmas, reads, dmas, privs, pf=pf)
    p("s_nop 7"); p("s_nop 7")
    epi_W(list(range(11)), 91)
    if CFG.get("ts"): p("s_waitcnt vmcnt(0)")
    stamp(p, 3); stamp_store(p, 1, 4)
    p("s_endpgm")
    p.label("k1_typeM")
    p("s_mov_b32 s91, 0")
    bias_load(range(4), 91)
    voffK_lane(p, V, 5, 2048, 0); voffK_lane(p, V, 6, 2048, 1)
    voffT8_lane(p, V, 7, 7168, 0); voffT8_lane(p, V, 18, 7168, 1)
    for i in range(6):
        d = S_SRDS + 4 * i
        l1 = p.newlabel("k1m"); l2 = p.newlabel("k1m"); l3 = p.newlabel("k1m")
        p(f"s_mul_i32 s86, s3, 6"); p(f"s_add_u32 s86, s86, {i}")
        p("s_cmp_ge_u32 s86, 22"); p(f"s_cbranch_scc1 {l2}")
        p("s_cmp_ge_u32 s86, 14"); p(f"s_cbranch_scc1 {l1}")
        slot_D(i, (5, 6)); p(f"s_branch {l3}")
        p.label(l1)
        p("s_sub_u32 s87, s86, 14"); p("s_mul_i32 s87, s87, 57344")
        p(f"v_add_u32 v{V_VD+i}, s87, v{(7, 18)[i & 1]}")
        p(f"s_mov_b32 s{d}, s{S_W1}"); p(f"s_mov_b32 s{d+1}, s{S_W1+1}"); p(f"s_mov_b32 s{d+2}, 7340032"); p(f"s_mov_b32 s{d+3}, 0x20000")
        p(f"s_mov_b32 s{S_SOFF+i}, 0"); p(f"s_mov_b32 s{S_DLT+i}, {64*7168}")
        p(f"s_branch {l3}")
        p.label(l2); slot_dummy(i)
        p.label(l3)
    for w in range(nwin):
        addrK_setup(p, V, V_AK + 2 * w, V_AK + 2 * w + 1, w * WIN)
        addrT_setup(p, V, V_AT + 4 * w, 128, w * WIN)
    blocks = [('K', 2048 * b) for b in range(7)] + [('T', b, 4096, 512, 14336) for b in range(4)]
    reads, mfmas = make(blocks)
    gemm_mainloop(p, "k1m", 16, NS, NPS, S_CNT, mfmas, reads, dmas, privs, pf=pf)
    p("s_nop 7"); p("s_nop 7")
    epi_D(range(7))
    epi_W([7, 8, 9, 10], 91)
    if CFG.get("ts"): p("s_waitcnt vmcnt(0)")
    stamp(p, 3); stamp_store(p, 1, 4)
    p.label("k1_end")
    p("s_endpgm")
    return name, 256 + A_S + 88, 102, 256

def gen_k2(p, cfg):
    name = "k2_kernel"
    NS, NPS = cfg["k2_ns"], cfg["k2_nps"]
    STG = 16384
    WIN = 65536
    nwin = (NS * STG + WIN - 1) // WIN
    kernel_head(p, name)
    p("s_cmp_ge_u32 s2, 256"); p("s_cbranch_scc1 k2_end")
    load_ptrs(p)
    V = dict(lane=1, t0=2, t1=3, t2=4)
    ACC = 128
    V_VP = 8; V_VD = 12; V_AK = 20; V_AT = 20
    A_P = 0; A_S = NPS * 8
    S_SRDP, S_SRDS = 4, 8
    S_SOFF, S_KP, S_M0B, S_CNT, S_TA, S_TB, S_TILE = 44, 45, 46, 47, 48, 49, 50
    lane_consts(p, V)
    p("s_and_b32 s86, s2, 7"); p("s_lshr_b32 s87, s2, 3")
    p("s_and_b32 s88, s86, 1"); p("s_lshl_b32 s88, s88, 2"); p("s_and_b32 s89, s87, 3"); p(f"s_add_u32 s{S_TA}, s88, s89")
    p("s_lshr_b32 s88, s86, 1"); p("s_and_b32 s88, s88, 1"); p("s_lshl_b32 s88, s88, 3"); p("s_lshr_b32 s89, s87, 2"); p(f"s_add_u32 s{S_TB}, s88, s89")
    p(f"s_lshl_b32 s{S_TILE}, s{S_TB}, 3"); p(f"s_add_u32 s{S_TILE}, s{S_TILE}, s{S_TA}")
    p(f"s_lshl_b32 s{S_M0B}, s3, 12")
    p(f"s_mov_b32 s{S_KP}, 0"); p(f"s_mov_b32 s{S_SOFF}, 0")
    p("s_waitcnt lgkmcnt(0)")
    stamp(p, 0)
    p("s_cmp_ge_u32 s86, 4"); p("s_cbranch_scc1 k2_typeY")

    def privs(kappa):
        out = []
        for i in range(2):
            pre = []
            if i == 0 and kappa % 4 == 0 and kappa > 0: pre = [f"s_add_u32 s{S_KP}, s{S_KP}, 4096"]
            a = A_P + (kappa % NPS) * 8 + 4 * i
            out.append((pre, f"buffer_load_dwordx4 {ar(a,4)}, v{V_VP+i}, s[{S_SRDP}:{S_SRDP+3}], s{S_KP} offen offset:{(kappa%4)*1024}"))
        return out

    srd(p, S_SRDP, S_WS, S_WS + 1, HF_SZ, HF_OFF)
    srd(p, S_SRDS, S_W2, S_W2 + 1, 7340032)
    p(f"s_lshl_b32 s86, s{S_TB}, 3"); p("s_lshl_b32 s87, s3, 1"); p("s_add_u32 s86, s86, s87"); p("s_mul_i32 s86, s86, 114688")
    p(f"v_lshlrev_b32 v{V_VP}, 4, v1"); p(f"v_add_u32 v{V_VP}, s86, v{V_VP}"); p(f"v_add_u32 v{V_VP+1}, 114688, v{V_VP}")
    srd(p, 12, S_B2, S_B2 + 1, 2048)
    p("v_lshrrev_b32 v2, 4, v1"); p("v_lshlrev_b32 v2, 3, v2"); p(f"s_lshl_b32 s86, s{S_TA}, 8"); p("v_add_u32 v2, s86, v2")
    for di in range(8): p(f"buffer_load_dwordx2 v[{32+2*di}:{33+2*di}], v2, s[12:15], 0 offen offset:{32*di}")
    voffT8_lane(p, V, 5, 2048, 0); voffT8_lane(p, V, 6, 2048, 1)
    p("s_and_b32 s86, s3, 1"); p("s_lshl_b32 s86, s86, 16"); p("s_lshr_b32 s87, s3, 1"); p("s_lshl_b32 s87, s87, 7"); p("s_add_u32 s86, s86, s87")
    p(f"s_lshl_b32 s87, s{S_TA}, 8"); p("s_add_u32 s86, s86, s87")
    for i in range(4):
        p(f"v_add_u32 v{V_VD+i}, s86, v{5+(i&1)}")
        if i: p(f"v_add_u32 v{V_VD+i}, {16384*i}, v{V_VD+i}")
    for w in range(nwin): addrT_setup(p, V, V_AT + 4 * w, 128, w * WIN)
    def dmas_o(stage):
        out = []
        for i in range(4):
            pre = [f"s_add_u32 m0, s{S_M0B}, {(stage % NS) * STG + 1024 * i}"]
            if i == 0 and stage > 0: pre.insert(0, f"s_add_u32 s{S_SOFF}, s{S_SOFF}, 131072")
            out.append((pre, f"buffer_load_dwordx4 v{V_VD+i}, s[{S_SRDS}:{S_SRDS+3}], s{S_SOFF} offen lds"))
        return out
    def reads_o(kappa):
        s, kk = divmod(kappa, 2)
        out = []
        for b in range(8):
            for hh in range(2):
                off = (s % NS) * STG + (b >> 2) * 8192 + kk * 4096 + hh * 512; w = off // WIN
                out.append(f"ds_read_b64_tr_b16 {ar(A_S + kk*32 + 4*b + 2*hh, 2)}, v{V_AT+4*w+(b&3)} offset:{off - w*WIN}")
        return out
    def mfmas_o(kappa):
        kk = kappa % 2
        out = []
        for b in range(8):
            for i in range(2):
                acc = ACC + (b * 2 + i) * 4
                c = vr(acc, 4) if kappa > 0 else "0"
                out.append(f"{MF} {vr(acc,4)}, {ar(A_S+kk*32+4*b,4)}, {ar(A_P+(kappa%NPS)*8+4*i,4)}, {c}")
        return out
    gemm_mainloop(p, "k2o", 56, NS, NPS, S_CNT, mfmas_o, reads_o, dmas_o, privs, read_frac=cfg.get("k2o_rf", 0.7))
    p("s_nop 7"); p("s_nop 7")
    srd(p, 8, S_WS, S_WS + 1, G_SZ, G_OFF)
    srd(p, 12, S_WS, S_WS + 1, FL_SZ, FL_OFF)
    p(f"s_lshl_b32 s86, s{S_TILE}, 15"); p("s_lshl_b32 s87, s3, 11"); p("s_add_u32 s86, s86, s87")
    p("v_lshlrev_b32 v2, 4, v1"); p("v_add_u32 v2, s86, v2")
    p(f"s_mov_b32 s90, {hex(f2u(-math.log2(math.e)))}")
    BF = 56
    for m in range(4):
        for k_ in range(2):
            for h in range(2):
                p(f"v_lshlrev_b32 v{BF+4*k_+2*h}, 16, v{32+2*(2*m+k_)+h}")
                p(f"v_and_b32 v{BF+4*k_+2*h+1}, 0xffff0000, v{32+2*(2*m+k_)+h}")
        for sj in range(2):
            src = [ACC + ((2 * m + k_) * 2 + sj) * 4 + r for k_ in range(2) for r in range(4)]
            T = 64 + 24 * sj; U_ = T + 4; W_ = T + 12
            for i in range(4): p(f"v_cvt_pk_bf16_f32 v{T+i}, v{src[2*i]}, v{src[2*i+1]}")
            for i in range(4):
                p(f"v_lshlrev_b32 v{U_+2*i}, 16, v{T+i}"); p(f"v_and_b32 v{U_+2*i+1}, 0xffff0000, v{T+i}")
            for i in range(8): p(f"v_add_f32 v{U_+i}, v{U_+i}, v{BF+i}")
            for i in range(4): p(f"v_cvt_pk_bf16_f32 v{T+i}, v{U_+2*i}, v{U_+2*i+1}")
            for i in range(4):
                p(f"v_lshlrev_b32 v{U_+2*i}, 16, v{T+i}"); p(f"v_and_b32 v{U_+2*i+1}, 0xffff0000, v{T+i}")
            for i in range(8): p(f"v_mul_f32 v{W_+i}, s90, v{U_+i}")
            for i in range(8): p(f"v_exp_f32 v{W_+i}, v{W_+i}")
            for i in range(8): p(f"v_add_f32 v{W_+i}, 1.0, v{W_+i}")
            for i in range(8): p(f"v_rcp_f32 v{W_+i}, v{W_+i}")
            for i in range(8): p(f"v_mul_f32 v{W_+i}, v{W_+i}, v{U_+i}")
            for i in range(4): p(f"v_cvt_pk_bf16_f32 v{T+i}, v{W_+2*i}, v{W_+2*i+1}")
            p("s_nop 1")
            p(f"v_permlane16_swap_b32 v{T}, v{T+2}"); p(f"v_permlane16_swap_b32 v{T+1}, v{T+3}")
            p(f"s_mov_b32 s87, {8192*m + 1024*sj}")
            p(f"buffer_store_dwordx4 v[{T}:{T+3}], v2, s[8:11], s87 offen sc0 sc1")
    p("s_waitcnt vmcnt(0)")
    p("s_barrier")
    if CFG.get("ts"): p("s_waitcnt vmcnt(0)")
    stamp(p, 3); stamp_store(p, 2, 4)
    p("s_cmp_lg_u32 s3, 0"); p("s_cbranch_scc1 k2_end")
    p(f"s_lshl_b32 s86, s{S_TILE}, 7"); p("v_mov_b32 v2, s86"); p("v_mov_b32 v3, 1")
    p("v_cmp_eq_u32 vcc, 0, v1"); p("s_and_saveexec_b64 s[92:93], vcc")
    p("buffer_store_dword v3, v2, s[12:15], 0 offen sc0 sc1")
    p("s_endpgm")

    p.label("k2_typeY")
    srd(p, S_SRDP, S_WS, S_WS + 1, ABF_SZ, ABF_OFF)
    srd(p, S_SRDS, S_CR, S_CR + 1, 8388608)
    p(f"s_lshl_b32 s86, s{S_TA}, 3"); p("s_lshl_b32 s87, s3, 1"); p("s_add_u32 s86, s86, s87"); p("s_lshl_b32 s86, s86, 17")
    p(f"v_lshlrev_b32 v{V_VP}, 4, v1"); p(f"v_add_u32 v{V_VP}, s86, v{V_VP}"); p(f"v_add_u32 v{V_VP+1}, 131072, v{V_VP}")
    voffK_lane(p, V, 5, 4096, 0); voffK_lane(p, V, 6, 4096, 1)
    p(f"s_lshl_b32 s86, s{S_TB}, 7"); p("s_lshl_b32 s87, s3, 5"); p("s_add_u32 s86, s86, s87"); p("s_lshl_b32 s86, s86, 12")
    for i in range(4):
        p(f"v_add_u32 v{V_VD+i}, s86, v{5+(i&1)}")
        if i: p(f"v_add_u32 v{V_VD+i}, {32768*i}, v{V_VD+i}")
    for w in range(nwin): addrK_setup(p, V, V_AK + 2 * w, V_AK + 2 * w + 1, w * WIN)
    def dmas_y(stage):
        out = []
        for i in range(4):
            pre = [f"s_add_u32 m0, s{S_M0B}, {(stage % NS) * STG + 1024 * i}"]
            if i == 0 and stage > 0:
                if stage == 32:
                    pre = [f"s_mov_b32 s{S_SRDS}, s{S_CI}", f"s_mov_b32 s{S_SRDS+1}, s{S_CI+1}", f"s_mov_b32 s{S_SOFF}, 0"] + pre
                else:
                    pre.insert(0, f"s_add_u32 s{S_SOFF}, s{S_SOFF}, 128")
            out.append((pre, f"buffer_load_dwordx4 v{V_VD+i}, s[{S_SRDS}:{S_SRDS+3}], s{S_SOFF} offen lds"))
        return out
    def reads_y(kappa):
        s, kk = divmod(kappa, 2)
        out = []
        for b in range(8):
            off = (s % NS) * STG + 2048 * b; w = off // WIN
            out.append(f"ds_read_b128 {ar(A_S + kk*32 + 4*b, 4)}, v{V_AK+2*w+kk} offset:{off - w*WIN}")
        return out
    def mfmas_y(kappa):
        kk = kappa % 2
        out = []
        for b in range(8):
            for i in range(2):
                acc = ACC + (64 if kappa >= 64 else 0) + (i * 8 + b) * 4
                c = vr(acc, 4) if kappa not in (0, 64) else "0"
                out.append(f"{MF} {vr(acc,4)}, {ar(A_P+(kappa%NPS)*8+4*i,4)}, {ar(A_S+kk*32+4*b,4)}, {c}")
        return out
    gemm_mainloop(p, "k2y", 64, NS, NPS, S_CNT, mfmas_y, reads_y, dmas_y, privs, read_frac=cfg.get("k2y_rf", 0.7))
    srd(p, 4, S_X, S_X + 1, 4194304)
    srd(p, 8, S_WS, S_WS + 1, G_SZ, G_OFF)
    srd(p, 12, S_WS, S_WS + 1, FL_SZ, FL_OFF)
    srd(p, 52, S_OUT, S_OUT + 1, 4194304)
    p("v_lshrrev_b32 v2, 4, v1"); p("v_and_b32 v3, 1, v2"); p("v_lshlrev_b32 v3, 5, v3"); p("v_lshrrev_b32 v2, 1, v2"); p("v_lshl_add_u32 v3, v2, 4, v3")
    p("v_and_b32 v2, 15, v1"); p("v_lshl_add_u32 v3, v2, 11, v3")
    p(f"s_lshl_b32 s86, s{S_TB}, 18"); p(f"s_lshl_b32 s87, s{S_TA}, 8"); p("s_add_u32 s86, s86, s87"); p("s_lshl_b32 s87, s3, 6"); p("s_add_u32 s86, s86, s87")
    p("v_add_u32 v3, s86, v3")
    XR = 32
    GR = 64
    for tj in range(8):
        p(f"s_mov_b32 s87, {32768*tj}")
        p(f"buffer_load_dwordx4 v[{XR+4*tj}:{XR+4*tj+3}], v3, s[4:7], s87 offen")
    p(f"s_lshl_b32 s86, s{S_TILE}, 7"); p("v_mov_b32 v2, s86")
    p("s_cmp_lg_u32 s3, 0"); p("s_cbranch_scc1 k2y_polled")
    p.label("k2y_poll")
    p("buffer_load_dword v4, v2, s[12:15], 0 offen sc0 sc1")
    p("s_waitcnt vmcnt(0)")
    p("v_readfirstlane_b32 s87, v4")
    p("s_cmp_eq_u32 s87, 1"); p("s_cbranch_scc1 k2y_polled")
    p("s_sleep 2")
    p("s_branch k2y_poll")
    p.label("k2y_polled")
    p("s_barrier")
    p(f"s_lshl_b32 s86, s{S_TILE}, 15"); p("s_lshl_b32 s87, s3, 13"); p("s_add_u32 s86, s86, s87")
    p("v_lshlrev_b32 v2, 4, v1"); p("v_add_u32 v2, s86, v2")
    for tj in range(8):
        p(f"s_mov_b32 s87, {1024*tj}")
        p(f"buffer_load_dwordx4 v[{GR+4*tj}:{GR+4*tj+3}], v2, s[8:11], s87 offen sc0 sc1")
    for tj in range(8):
        T = 96; U_ = 100; W_ = 108
        sp = [ACC + (i * 8 + tj) * 4 + r for i in range(2) for r in range(4)]
        for i in range(4): p(f"v_cvt_pk_bf16_f32 v{T+i}, v{sp[2*i]}, v{sp[2*i+1]}")
        for i in range(4): p(f"v_cvt_pk_bf16_f32 v{T+20+i}, v{sp[2*i]+64}, v{sp[2*i+1]+64}")
        for i in range(4):
            p(f"v_lshlrev_b32 v{U_+2*i}, 16, v{T+i}"); p(f"v_and_b32 v{U_+2*i+1}, 0xffff0000, v{T+i}")
            p(f"v_lshlrev_b32 v{W_+2*i}, 16, v{T+20+i}"); p(f"v_and_b32 v{W_+2*i+1}, 0xffff0000, v{T+20+i}")
        for i in range(8): p(f"v_sub_f32 v{U_+i}, v{U_+i}, v{W_+i}")
        Y = sp[0]
        for i in range(4): p(f"v_cvt_pk_bf16_f32 v{Y+i}, v{U_+2*i}, v{U_+2*i+1}")
        p("s_nop 1")
        p(f"v_permlane16_swap_b32 v{Y}, v{Y+2}"); p(f"v_permlane16_swap_b32 v{Y+1}, v{Y+3}")
    p("s_waitcnt vmcnt(0)")
    for tj in range(8):
        Y = ACC + tj * 4
        U_ = 96; W_ = 104; X_ = 112; T = 120
        for i in range(4):
            p(f"v_lshlrev_b32 v{U_+2*i}, 16, v{Y+i}"); p(f"v_and_b32 v{U_+2*i+1}, 0xffff0000, v{Y+i}")
            p(f"v_lshlrev_b32 v{W_+2*i}, 16, v{GR+4*tj+i}"); p(f"v_and_b32 v{W_+2*i+1}, 0xffff0000, v{GR+4*tj+i}")
            p(f"v_lshlrev_b32 v{X_+2*i}, 16, v{XR+4*tj+i}"); p(f"v_and_b32 v{X_+2*i+1}, 0xffff0000, v{XR+4*tj+i}")
        for i in range(8): p(f"v_mul_f32 v{U_+i}, v{U_+i}, v{W_+i}")
        for i in range(4): p(f"v_cvt_pk_bf16_f32 v{T+i}, v{U_+2*i}, v{U_+2*i+1}")
        for i in range(4):
            p(f"v_lshlrev_b32 v{U_+2*i}, 16, v{T+i}"); p(f"v_and_b32 v{U_+2*i+1}, 0xffff0000, v{T+i}")
        for i in range(8): p(f"v_add_f32 v{U_+i}, v{U_+i}, v{X_+i}")
        for i in range(4): p(f"v_cvt_pk_bf16_f32 v{Y+i}, v{U_+2*i}, v{U_+2*i+1}")
        p(f"s_mov_b32 s87, {32768*tj}")
        p(f"buffer_store_dwordx4 v[{Y}:{Y+3}], v3, s[52:55], s87 offen")
    if CFG.get("ts"): p("s_waitcnt vmcnt(0)")
    stamp(p, 3); stamp_store(p, 2, 4)
    p.label("k2_end")
    p("s_endpgm")
    return name, 256 + A_S + 64, 102, 256

def generate(cfg, kernels=("k0", "k1", "k2")):
    CFG.clear(); CFG.update(cfg); CFG["ts_sbase"] = 98
    p = Prog()
    body = Prog()
    info = []
    lds = {"k0": 0, "k1": cfg["k1_ns"] * 24576, "k2": cfg["k2_ns"] * 16384}
    blk = {"k0": 512, "k1": 256, "k2": 256}
    for k in ("k0", "k1", "k2"):
        info.append((k,) + {"k0": lambda: gen_k0(body), "k1": lambda: gen_k1(body, cfg), "k2": lambda: gen_k2(body, cfg)}[k]())
    out = []
    for k in kernels:
        out.append(f"; @launch kernel={k}_kernel grid=(256,1,1) block=({blk[k]},1,1) lds={lds[k]}")
    out.append('.amdgcn_target "amdgcn-amd-amdhsa--gfx950"')
    out.append(".text")
    out += body.L
    out.append('.section .rodata,"a"')
    for k, name, nfv, nfs, acc in info:
        out.append(".p2align 6")
        out.append(f".amdhsa_kernel {name}")
        out.append(f"  .amdhsa_next_free_vgpr {nfv}")
        out.append(f"  .amdhsa_next_free_sgpr {nfs}")
        out.append(f"  .amdhsa_accum_offset {acc}")
        out.append("  .amdhsa_group_segment_fixed_size 0")
        out.append("  .amdhsa_kernarg_size 104")
        out.append("  .amdhsa_user_sgpr_count 2")
        out.append("  .amdhsa_user_sgpr_kernarg_segment_ptr 1")
        out.append("  .amdhsa_system_sgpr_workgroup_id_x 1")
        out.append(".end_amdhsa_kernel")
    return "\n".join(out) + "\n"

DEFAULT = dict(k1_ns=4, k1_nps=8, k2_ns=8, k2_nps=16)

if __name__ == "__main__":
    cfg = dict(DEFAULT)
    fn = sys.argv[1] if len(sys.argv) > 1 else "full.s"
    for a in sys.argv[2:]:
        k, v = a.split("=")
        cfg[k] = float(v) if "." in v else int(v)
    kern = ("k0", "k1", "k2", "k2") if cfg.get("k2twice") else ("k0", "k1", "k2")
    open(fn, "w").write(generate(cfg, kern))
```

```python
import sys, math
import gen
from gen import *

PP_OFF = WSB + (28 << 20)
QP_OFF = WSB + (32 << 20)
O1_OFF = WSB + (36 << 20)
O2_OFF = WSB + (44 << 20)
gen.FL_OFF = FL2_OFF = WSB + (52 << 20)
gen.FL_SZ = FL2_SZ = 256 * 128
gen.TS_OFF = WSB + (56 << 20)

def gelu_batch(p, src, bias, T, n, s_c2, v_c1):
    Pk = T; U_ = T + n // 2; W_ = U_ + n
    for i in range(n // 2): p(f"v_cvt_pk_bf16_f32 v{Pk+i}, v{src[2*i]}, v{src[2*i+1]}")
    for i in range(n // 2):
        p(f"v_lshlrev_b32 v{U_+2*i}, 16, v{Pk+i}"); p(f"v_and_b32 v{U_+2*i+1}, 0xffff0000, v{Pk+i}")
    for i in range(n): p(f"v_add_f32 v{U_+i}, v{U_+i}, v{bias[i]}")
    for i in range(n // 2): p(f"v_cvt_pk_bf16_f32 v{Pk+i}, v{U_+2*i}, v{U_+2*i+1}")
    for i in range(n // 2):
        p(f"v_lshlrev_b32 v{U_+2*i}, 16, v{Pk+i}"); p(f"v_and_b32 v{U_+2*i+1}, 0xffff0000, v{Pk+i}")
    for i in range(n): p(f"v_mul_f32 v{W_+i}, v{U_+i}, v{U_+i}")
    for i in range(n): p(f"v_fma_f32 v{W_+i}, v{W_+i}, s{s_c2}, v{v_c1}")
    for i in range(n): p(f"v_mul_f32 v{W_+i}, v{W_+i}, v{U_+i}")
    for i in range(n): p(f"v_exp_f32 v{W_+i}, v{W_+i}")
    for i in range(n): p(f"v_add_f32 v{W_+i}, 1.0, v{W_+i}")
    for i in range(n): p(f"v_rcp_f32 v{W_+i}, v{W_+i}")
    for i in range(n): p(f"v_mul_f32 v{W_+i}, v{W_+i}, v{U_+i}")
    for i in range(n // 2): p(f"v_cvt_pk_bf16_f32 v{Pk+i}, v{W_+2*i}, v{W_+2*i+1}")

def fin(p, k):
    if CFG.get("ts"): p("s_waitcnt vmcnt(0)")
    stamp(p, 3); stamp_store(p, k, 4)

def gen_k1(p, cfg):
    name = "k1_kernel"
    NS, NPS = cfg["k1_ns"], cfg["k1_nps"]
    STG = 24576; WIN = 65536
    nwin = (NS * STG + WIN - 1) // WIN
    BIAS_LDS = NS * STG
    K1ST = {0: "", 1: " sc1", 2: " nt", 3: " sc0 sc1"}[cfg.get("k1st", 0)]
    kernel_head(p, name)
    p("s_cmp_ge_u32 s2, 256"); p("s_cbranch_scc1 k1_end")
    load_ptrs(p)
    V = dict(lane=1, t0=2, t1=3, t2=4)
    V_VP, V_VD, V_PF, V_DUM, V_AK, V_AT = 8, 10, 13, 16, 20, 24
    assert nwin <= 2
    ACC = 32; SH = 120
    A_P = 0
    S_SRDP, S_SRDS, S_SOFF, S_DLT = 4, 44, 56, 59
    S_KP, S_M0B, S_CNT, S_MT, S_NT, S_N0 = 80, 81, 82, 83, 84, 85
    lane_consts(p, V)
    p("s_and_b32 s86, s2, 7"); p("s_lshr_b32 s87, s2, 3")
    p("s_and_b32 s88, s86, 1"); p("s_lshl_b32 s88, s88, 2"); p("s_and_b32 s89, s87, 3"); p(f"s_add_u32 s{S_MT}, s88, s89")
    p("s_lshr_b32 s88, s86, 1"); p("s_lshr_b32 s89, s87, 2"); p("s_lshl_b32 s89, s89, 2"); p(f"s_add_u32 s{S_NT}, s88, s89")
    p(f"s_mul_i32 s{S_N0}, s{S_NT}, 176")
    p(f"s_mul_i32 s{S_M0B}, s3, 3072")
    p(f"s_mov_b32 s{S_KP}, 0")
    p(f"s_lshl_b32 s86, s{S_MT}, 4"); p("s_lshl_b32 s87, s3, 1"); p("s_add_u32 s86, s86, s87"); p("s_lshl_b32 s86, s86, 15")
    p(f"v_lshlrev_b32 v{V_VP}, 4, v1"); p(f"v_add_u32 v{V_VP}, s86, v{V_VP}"); p(f"v_add_u32 v{V_VP+1}, 32768, v{V_VP}")
    p("s_lshl_b32 s86, s2, 3"); p("s_add_u32 s86, s86, s3"); p("s_lshl_b32 s87, s86, 12"); p("s_mul_i32 s86, s86, 3584")
    if cfg.get("pf1", 1) == 2:
        p(f"v_lshlrev_b32 v{V_PF+1}, 7, v1"); p(f"v_add_u32 v{V_PF}, s87, v{V_PF+1}"); p(f"v_add_u32 v{V_PF+1}, s86, v{V_PF+1}")
        p("v_mov_b32 v2, 0x80000000")
        p("v_cmp_gt_u32 vcc, 32, v1"); p("s_nop 1"); p(f"v_cndmask_b32 v{V_PF}, v2, v{V_PF}, vcc")
        p("v_cmp_gt_u32 vcc, 28, v1"); p("s_nop 1"); p(f"v_cndmask_b32 v{V_PF+1}, v2, v{V_PF+1}, vcc")
    else:
        p(f"v_lshlrev_b32 v{V_PF+1}, 4, v1"); p(f"v_add_u32 v{V_PF}, s87, v{V_PF+1}"); p(f"v_add_u32 v{V_PF+1}, s86, v{V_PF+1}")
    p("s_waitcnt lgkmcnt(0)")
    stamp(p, 0)
    srd(p, S_SRDP, S_WS, S_WS + 1, XF_SZ, XF_OFF)
    p(f"s_cmp_lt_u32 s{S_NT}, 11"); p("s_cbranch_scc1 k1_typeD")
    p(f"s_cmp_eq_u32 s{S_NT}, 11"); p("s_cbranch_scc1 k1_typeM")
    p("s_branch k1_typeW")

    def slot_D(i, pv):
        d = S_SRDS + 4 * i
        p(f"s_lshl_b32 s87, s86, 3"); p(f"s_add_u32 s87, s87, s{S_N0}")
        p("s_cmp_lt_u32 s87, 1024")
        p(f"s_cselect_b32 s{d}, s{S_DR}, s{S_DI}"); p(f"s_cselect_b32 s{d+1}, s{S_DR+1}, s{S_DI+1}")
        p(f"s_mov_b32 s{d+2}, 2097152"); p(f"s_mov_b32 s{d+3}, 0x20000")
        p("s_and_b32 s87, s87, 1023"); p("s_lshl_b32 s87, s87, 11")
        p("s_and_b32 s88, s86, 1"); p("s_lshl_b32 s88, s88, 6")
        p(f"v_xor_b32 v{V_VD+i}, s88, v{pv}")
        p(f"v_add_u32 v{V_VD+i}, s87, v{V_VD+i}")
        p(f"s_mov_b32 s{S_SOFF+i}, 0"); p(f"s_mov_b32 s{S_DLT+i}, 128")
    def slot_dummy(i):
        d = S_SRDS + 4 * i
        p(f"s_mov_b32 s{d}, s{S_W1}"); p(f"s_mov_b32 s{d+1}, s{S_W1+1}")
        p(f"s_mov_b32 s{d+2}, 0"); p(f"s_mov_b32 s{d+3}, 0x20000")
        p(f"v_mov_b32 v{V_VD+i}, 0")
        p(f"s_mov_b32 s{S_SOFF+i}, 0"); p(f"s_mov_b32 s{S_DLT+i}, 0")
    def dmas(stage):
        out = []
        for i in range(3):
            pre = [f"s_add_u32 m0, s{S_M0B}, {(stage % NS) * STG + 1024 * i}"]
            if stage > 0: pre.insert(0, f"s_add_u32 s{S_SOFF+i}, s{S_SOFF+i}, s{S_DLT+i}")
            d = S_SRDS + 4 * i
            out.append((pre, f"buffer_load_dwordx4 v{V_VD+i}, s[{d}:{d+3}], s{S_SOFF+i} offen lds"))
        return out
    def privs(kappa):
        out = []
        for i in range(2):
            pre = []
            if i == 0 and kappa % 4 == 0 and kappa > 0: pre = [f"s_add_u32 s{S_KP}, s{S_KP}, 4096"]
            a = A_P + (kappa % NPS) * 8 + 4 * i
            out.append((pre, f"buffer_load_dwordx4 {ar(a,4)}, v{V_VP+i}, s[{S_SRDP}:{S_SRDP+3}], s{S_KP} offen offset:{(kappa%4)*1024}"))
        return out
    def pf(kappa):
        if cfg.get("pf1", 1) == 2:
            ks = cfg.get("pf1_ks", (2, 10, 18))
            if kappa not in ks: return []
            m = ks.index(kappa)
            b = (S_CR, S_CI, S_W2)[m]
            pre = [f"s_mov_b32 s8, s{b}", f"s_mov_b32 s9, s{b+1}", f"s_mov_b32 s10, {(8388608, 8388608, 7340032)[m]}", "s_mov_b32 s11, 0x20000"]
            return [(pre, f"buffer_load_dword v{V_DUM}, v{V_PF + (1 if m == 2 else 0)}, s[8:11], 0 offen")]
        if not cfg.get("pf1", 1): return []
        st = cfg.get("pf1_step", 2)
        j = kappa - cfg.get("pf1_start", 0)
        if j < 0 or j % st or j // st >= 12: return []
        j //= st
        m, jj = divmod(j, 4)
        pre = []
        if jj == 0:
            b = (S_CR, S_CI, S_W2)[m]
            pre = [f"s_mov_b32 s8, s{b}", f"s_mov_b32 s9, s{b+1}", f"s_mov_b32 s10, {(8388608, 8388608, 7340032)[m]}", "s_mov_b32 s11, 0x20000"]
        return [(pre, f"buffer_load_dwordx4 v[{V_DUM}:{V_DUM+3}], v{V_PF + (1 if m == 2 else 0)}, s[8:11], 0 offen offset:{jj*1024}")]
    def make(blocks):
        def reads(kappa):
            s, kk = divmod(kappa, 2)
            ring = (s % NS) * STG
            out = []
            for b, bl in enumerate(blocks):
                a = SH + kk * 44 + 4 * b
                if bl[0] == 'K':
                    off = ring + bl[1]; w = off // WIN
                    out.append(f"ds_read_b128 {vr(a,4)}, v{V_AK+2*w+kk} offset:{off - w*WIN}")
                else:
                    for hh in range(2):
                        off = ring + bl[4] + kk * bl[2] + hh * bl[3]; w = off // WIN
                        out.append(f"ds_read_b64_tr_b16 {vr(a+2*hh,2)}, v{V_AT+4*w+bl[1]} offset:{off - w*WIN}")
            return out
        def mfmas(kappa):
            kk = kappa % 2
            out = []
            for b, bl in enumerate(blocks):
                for i in range(2):
                    acc = ACC + (b * 2 + i) * 4
                    S = vr(SH + kk * 44 + 4 * b, 4); P = ar(A_P + (kappa % NPS) * 8 + 4 * i, 4)
                    c = vr(acc, 4) if kappa > 0 else "0"
                    if bl[0] == 'K': out.append(f"{MF} {vr(acc,4)}, {P}, {S}, {c}")
                    else: out.append(f"{MF} {vr(acc,4)}, {S}, {P}, {c}")
            return out
        return reads, mfmas

    def epi_D(blocks_idx):
        srd(p, 8, S_WS, S_WS + 1, ABF_SZ, ABF_OFF)
        p("v_lshrrev_b32 v2, 4, v1"); p("v_and_b32 v3, 1, v2"); p("v_lshlrev_b32 v3, 1, v3"); p("v_lshrrev_b32 v2, 1, v2")
        p("v_or_b32 v2, v2, v3"); p("v_lshlrev_b32 v2, 8, v2"); p("v_and_b32 v3, 15, v1"); p("v_lshl_add_u32 v2, v3, 4, v2")
        p(f"s_lshl_b32 s86, s{S_MT}, 3"); p("s_add_u32 s86, s86, s3"); p("s_lshl_b32 s86, s86, 10")
        p("v_add_u32 v2, s86, v2")
        for n, b in enumerate(blocks_idx):
            t = SH + 4 * n
            a0 = ACC + b * 8; a1 = a0 + 4
            p(f"v_cvt_pk_bf16_f32 v{t}, v{a0}, v{a0+1}"); p(f"v_cvt_pk_bf16_f32 v{t+1}, v{a0+2}, v{a0+3}")
            p(f"v_cvt_pk_bf16_f32 v{t+2}, v{a1}, v{a1+1}"); p(f"v_cvt_pk_bf16_f32 v{t+3}, v{a1+2}, v{a1+3}")
            p(f"s_add_u32 s87, s{S_N0}, {16*b}")
            p("s_lshr_b32 s88, s87, 10"); p("s_lshl_b32 s88, s88, 16")
            p("s_and_b32 s87, s87, 1023"); p("s_lshl_b32 s87, s87, 13")
            p("s_add_u32 s87, s87, s88")
            p(f"v_permlane16_swap_b32 v{t}, v{t+2}"); p(f"v_permlane16_swap_b32 v{t+1}, v{t+3}")
            p(f"buffer_store_dwordx4 v[{t}:{t+3}], v2, s[8:11], s87 offen{K1ST}")

    def bias_dma(f0_sgpr):
        srd(p, 12, S_B1, S_B1 + 1, 7168)
        p("v_lshlrev_b32 v2, 4, v1")
        p(f"s_lshl_b32 s86, s{f0_sgpr}, 1")
        p("s_lshl_b32 s87, s3, 10"); p(f"s_add_u32 m0, s87, {BIAS_LDS}")
        p("s_nop 0")
        p("buffer_load_dwordx4 v2, s[12:15], s86 offen lds")

    def epi_W(blocks_idx, f0_sgpr):
        srd(p, 8, S_WS, S_WS + 1, HF_SZ, HF_OFF)
        nb = len(blocks_idx)
        BP = 8
        p("v_lshrrev_b32 v2, 4, v1")
        p("s_lshl_b32 s87, s3, 10"); p(f"s_add_u32 s87, s87, {BIAS_LDS}")
        p("v_lshlrev_b32 v3, 3, v2"); p("v_add_u32 v3, s87, v3")
        for n in range(nb): p(f"ds_read_b64 v[{BP+2*n}:{BP+2*n+1}], v3 offset:{32*n}")
        p(f"s_mov_b32 s90, {hex(f2u(C2))}"); p(f"v_mov_b32 v5, {hex(f2u(C1))}")
        p("v_and_b32 v3, 1, v2"); p("v_lshlrev_b32 v3, 4, v3"); p("v_lshrrev_b32 v4, 1, v2")
        p("v_lshl_add_u32 v3, v4, 3, v3"); p(f"v_add_u32 v3, s{f0_sgpr}, v3")
        p("v_lshrrev_b32 v4, 5, v3"); p("v_lshlrev_b32 v4, 10, v4"); p("v_bfe_u32 v3, v3, 3, 2"); p("v_lshl_add_u32 v4, v3, 8, v4")
        p("v_and_b32 v3, 15, v1"); p("v_lshl_add_u32 v6, v3, 4, v4")
        if nb % 2:
            p(f"v_lshlrev_b32 v4, 2, v2"); p(f"v_add_u32 v4, s{f0_sgpr}, v4"); p(f"v_add_u32 v4, {16*(nb-1)}, v4")
            p("v_lshrrev_b32 v7, 5, v4"); p("v_lshlrev_b32 v7, 10, v7"); p("v_bfe_u32 v2, v4, 3, 2"); p("v_lshl_add_u32 v7, v2, 8, v7")
            p("v_bfe_u32 v2, v4, 2, 1"); p("v_lshl_add_u32 v7, v2, 3, v7"); p("v_lshl_add_u32 v7, v3, 4, v7")
        p(f"s_lshl_b32 s86, s{S_MT}, 4"); p("s_lshl_b32 s87, s3, 1"); p("s_add_u32 s86, s86, s87"); p("s_mul_i32 s86, s86, 114688")
        p("s_waitcnt lgkmcnt(0)")
        BF = SH
        for n0 in range(0, nb, 2):
            pair = blocks_idx[n0:n0 + 2]
            for k_, b in enumerate(pair):
                for h in range(2):
                    p(f"v_lshlrev_b32 v{BF+4*k_+2*h}, 16, v{BP+2*(n0+k_)+h}")
                    p(f"v_and_b32 v{BF+4*k_+2*h+1}, 0xffff0000, v{BP+2*(n0+k_)+h}")
            src = []; bs = []
            for i in range(2):
                for k_, b in enumerate(pair):
                    src += [ACC + (b * 2 + i) * 4 + r for r in range(4)]
                    bs += [BF + 4 * k_ + r for r in range(4)]
            T0 = SH + 8 + (40 if (n0 // 2) % 2 else 0)
            gelu_batch(p, src, bs, T0, len(src), 90, 5)
            for i in range(2):
                p(f"s_add_u32 s87, s86, {114688*i + (1024*(n0//2) if len(pair)==2 else 0)}")
                if len(pair) == 2:
                    t = T0 + 4 * i
                    if i == 0: p("s_nop 0")
                    p(f"v_permlane16_swap_b32 v{t}, v{t+2}"); p(f"v_permlane16_swap_b32 v{t+1}, v{t+3}")
                    p(f"buffer_store_dwordx4 v[{t}:{t+3}], v6, s[8:11], s87 offen{K1ST}")
                else:
                    t = T0 + 2 * i
                    p(f"buffer_store_dwordx2 v[{t}:{t+1}], v7, s[8:11], s87 offen{K1ST}")

    def sigma(i):
        p(f"s_mul_i32 s86, s3, 3"); p(f"s_add_u32 s86, s86, {i}")
    p.label("k1_typeD")
    voffK_lane(p, V, 5, 2048, 0)
    for i in range(3):
        sigma(i)
        if i >= 1:
            lab = p.newlabel("k1d"); lab2 = p.newlabel("k1d")
            p("s_cmp_ge_u32 s86, 22"); p(f"s_cbranch_scc1 {lab}")
            slot_D(i, 5); p(f"s_branch {lab2}")
            p.label(lab); slot_dummy(i); p.label(lab2)
        else:
            slot_D(i, 5)
    for w in range(nwin): addrK_setup(p, V, V_AK + 2 * w, V_AK + 2 * w + 1, w * WIN)
    blocks = [('K', 2048 * b) for b in range(11)]
    reads, mfmas = make(blocks)
    gemm_mainloop(p, "k1d", 16, NS, NPS, S_CNT, mfmas, reads, dmas, privs, pf=pf, read_frac=cfg.get("k1_rf", 0.7))
    p("s_nop 7"); p("s_nop 7")
    epi_D(list(range(11)))
    fin(p, 1)
    p("s_endpgm")
    p.label("k1_typeW")
    p(f"s_sub_u32 s91, s{S_N0}, 2048")
    bias_dma(91)
    p("s_and_b32 s88, s3, 1"); p("s_lshl_b32 s88, s88, 2")
    for i in range(3):
        d = S_SRDS + 4 * i
        p(f"v_add_u32 v2, {64*i}, v1")
        p("v_mul_u32_u24 v3, 2731, v2"); p("v_lshrrev_b32 v3, 16, v3")
        p("v_mul_u32_u24 v4, 24, v3"); p("v_sub_u32 v2, v2, v4")
        p("v_bfe_u32 v4, v3, 1, 1"); p("v_lshlrev_b32 v4, 1, v4"); p("v_or_b32 v4, s88, v4")
        p("v_xor_b32 v2, v2, v4")
        p("v_mul_u32_u24 v3, 7168, v3"); p("v_lshl_add_u32 v3, v2, 4, v3")
        p("s_mul_i32 s86, s3, 57344")
        p("s_lshl_b32 s87, s91, 1"); p("s_add_u32 s86, s86, s87")
        p("v_add_u32 v3, s86, v3")
        p("v_cmp_gt_u32 vcc, 22, v2")
        p("v_mov_b32 v4, 0x80000000")
        p("s_nop 0")
        p(f"v_cndmask_b32 v{V_VD+i}, v4, v3, vcc")
        p(f"s_mov_b32 s{d}, s{S_W1}"); p(f"s_mov_b32 s{d+1}, s{S_W1+1}"); p(f"s_mov_b32 s{d+2}, 7340032"); p(f"s_mov_b32 s{d+3}, 0x20000")
        p(f"s_mov_b32 s{S_SOFF+i}, 0"); p(f"s_mov_b32 s{S_DLT+i}, {64*7168}")
    for w in range(nwin): addrT_setup(p, V, V_AT + 4 * w, 384, w * WIN)
    blocks = [('T', b & 3, 32 * 384, 4 * 384, (b >> 2) * 128) for b in range(11)]
    reads, mfmas = make(blocks)
    gemm_mainloop(p, "k1w", 16, NS, NPS, S_CNT, mfmas, reads, dmas, privs, pf=pf, read_frac=cfg.get("k1_rf", 0.7))
    p("s_nop 7"); p("s_nop 7")
    epi_W(list(range(11)), 91)
    fin(p, 1)
    p("s_endpgm")
    p.label("k1_typeM")
    p("s_mov_b32 s91, 0")
    bias_dma(91)
    voffK_lane(p, V, 5, 2048, 0)
    voffT8_lane(p, V, 7, 7168, 0)
    for i in range(3):
        d = S_SRDS + 4 * i
        l1 = p.newlabel("k1m"); l2 = p.newlabel("k1m"); l3 = p.newlabel("k1m")
        sigma(i)
        p("s_cmp_ge_u32 s86, 22"); p(f"s_cbranch_scc1 {l2}")
        p("s_cmp_ge_u32 s86, 14"); p(f"s_cbranch_scc1 {l1}")
        slot_D(i, 5); p(f"s_branch {l3}")
        p.label(l1)
        p("s_sub_u32 s87, s86, 14"); p("s_mul_i32 s87, s87, 57344")
        p("s_and_b32 s88, s86, 1"); p("s_lshl_b32 s88, s88, 6")
        p(f"v_xor_b32 v{V_VD+i}, s88, v7")
        p(f"v_add_u32 v{V_VD+i}, s87, v{V_VD+i}")
        p(f"s_mov_b32 s{d}, s{S_W1}"); p(f"s_mov_b32 s{d+1}, s{S_W1+1}"); p(f"s_mov_b32 s{d+2}, 7340032"); p(f"s_mov_b32 s{d+3}, 0x20000")
        p(f"s_mov_b32 s{S_SOFF+i}, 0"); p(f"s_mov_b32 s{S_DLT+i}, {64*7168}")
        p(f"s_branch {l3}")
        p.label(l2); slot_dummy(i)
        p.label(l3)
    for w in range(nwin):
        addrK_setup(p, V, V_AK + 2 * w, V_AK + 2 * w + 1, w * WIN)
        addrT_setup(p, V, V_AT + 4 * w, 128, w * WIN)
    blocks = [('K', 2048 * b) for b in range(7)] + [('T', b, 4096, 512, 14336) for b in range(4)]
    reads, mfmas = make(blocks)
    gemm_mainloop(p, "k1m", 16, NS, NPS, S_CNT, mfmas, reads, dmas, privs, pf=pf, read_frac=cfg.get("k1_rf", 0.7))
    p("s_nop 7"); p("s_nop 7")
    epi_D(list(range(7)))
    p("s_nop 1")
    epi_W([7, 8, 9, 10], 91)
    fin(p, 1)
    p.label("k1_end")
    p("s_endpgm")
    return name, 208 + NPS * 8, 102, 208

def gen_k2(p, cfg):
    name = "k2_kernel"
    NS, NPS = cfg["k2_ns"], cfg["k2_nps"]
    STG = 16384; WIN = 65536
    SC = {0: " sc0 sc1", 1: " sc1"}[cfg.get("k2sc", 1)]
    nwin = (NS * STG + WIN - 1) // WIN
    kernel_head(p, name)
    p("s_cmp_ge_u32 s2, 256"); p("s_cbranch_scc1 k2_end")
    load_ptrs(p)
    V = dict(lane=1, t0=2, t1=3, t2=4)
    V_VP, V_VD, V_AK, V_AT = 8, 10, 20, 20
    ACC = 32; SH = 96
    A_P = 0
    S_SRDP, S_SRDS = 4, 8
    S_SOFF, S_KP, S_M0B, S_CNT, S_TA, S_TB, S_ROLE, S_FLAG = 44, 45, 46, 47, 48, 49, 50, 51
    S_R, S_C, S_RG, S_CG = 56, 57, 58, 59
    lane_consts(p, V)
    p("s_and_b32 s86, s2, 7"); p("s_lshr_b32 s87, s2, 3")
    p(f"s_lshr_b32 s{S_ROLE}, s86, 1"); p("s_and_b32 s88, s86, 1")
    p(f"s_lshl_b32 s{S_M0B}, s3, 11")
    p("s_waitcnt lgkmcnt(0)")
    stamp(p, 0)
    p(f"s_cmp_lt_u32 s{S_ROLE}, 2"); p("s_cbranch_scc1 k2_typeY")

    def privs(kappa):
        out = []
        for i in range(2):
            pre = []
            if i == 0 and kappa % 4 == 0 and kappa > 0: pre = [f"s_add_u32 s{S_KP}, s{S_KP}, 4096"]
            a = A_P + (kappa % NPS) * 8 + 4 * i
            out.append((pre, f"buffer_load_dwordx4 {ar(a,4)}, v{V_VP+i}, s[{S_SRDP}:{S_SRDP+3}], s{S_KP} offen offset:{(kappa%4)*1024}"))
        return out
    def mk_dmas(delta):
        def dmas(stage):
            out = []
            for i in range(2):
                pre = [f"s_add_u32 m0, s{S_M0B}, {(stage % NS) * STG + 1024 * i}"]
                if i == 0 and stage > 0: pre.insert(0, f"s_add_u32 s{S_SOFF}, s{S_SOFF}, {delta}")
                out.append((pre, f"buffer_load_dwordx4 v{V_VD+i}, s[{S_SRDS}:{S_SRDS+3}], s{S_SOFF} offen lds"))
            return out
        return dmas

    p("s_lshl_b32 s88, s88, 2"); p("s_and_b32 s89, s87, 3"); p(f"s_add_u32 s{S_TB}, s88, s89"); p(f"s_lshr_b32 s{S_TA}, s87, 2")
    p(f"s_and_b32 s89, s{S_ROLE}, 1")
    p(f"s_mul_i32 s{S_KP}, s89, {56*1024}")
    p(f"s_mul_i32 s{S_SOFF}, s89, {1792*2048}")
    srd(p, S_SRDP, S_WS, S_WS + 1, HF_SZ, HF_OFF)
    srd(p, S_SRDS, S_W2, S_W2 + 1, 7340032)
    p(f"s_lshl_b32 s86, s{S_TB}, 4"); p("s_lshl_b32 s87, s3, 1"); p("s_add_u32 s86, s86, s87"); p("s_mul_i32 s86, s86, 114688")
    p(f"v_lshlrev_b32 v{V_VP}, 4, v1"); p(f"v_add_u32 v{V_VP}, s86, v{V_VP}"); p(f"v_add_u32 v{V_VP+1}, 114688, v{V_VP}")
    voffT8_lane(p, V, 5, 2048, 0)
    p("s_and_b32 s86, s3, 3"); p("s_lshl_b32 s86, s86, 15"); p("s_lshr_b32 s87, s3, 2"); p("s_lshl_b32 s87, s87, 7"); p("s_add_u32 s86, s86, s87")
    p(f"s_lshl_b32 s87, s{S_TA}, 8"); p("s_add_u32 s86, s86, s87")
    p(f"v_add_u32 v{V_VD}, s86, v5")
    p(f"v_xor_b32 v{V_VD+1}, 64, v{V_VD}"); p(f"v_add_u32 v{V_VD+1}, 16384, v{V_VD+1}")
    for w in range(nwin): addrT_setup(p, V, V_AT + 4 * w, 128, w * WIN)
    def reads_o(kappa):
        s, kk = divmod(kappa, 2)
        out = []
        for b in range(8):
            for hh in range(2):
                off = (s % NS) * STG + (b >> 2) * 8192 + kk * 4096 + hh * 512; w = off // WIN
                out.append(f"ds_read_b64_tr_b16 {vr(SH + kk*32 + 4*b + 2*hh, 2)}, v{V_AT+4*w+(b&3)} offset:{off - w*WIN}")
        return out
    def mfmas_o(kappa):
        kk = kappa % 2
        out = []
        if cfg.get("fake32"):
            for b in range(4):
                for h in range(2):
                    acc = ACC + b * 16
                    c = vr(acc, 16) if (kappa > 0 or h) else "0"
                    out.append(f"v_mfma_f32_32x32x16_bf16 {vr(acc,16)}, {vr(SH+kk*32+4*(2*b+h),4)}, {ar(A_P+(kappa%NPS)*8+4*h,4)}, {c}")
            return out
        for b in range(8):
            for i in range(2):
                acc = ACC + (b * 2 + i) * 4
                c = vr(acc, 4) if kappa > 0 else "0"
                out.append(f"{MF} {vr(acc,4)}, {vr(SH+kk*32+4*b,4)}, {ar(A_P+(kappa%NPS)*8+4*i,4)}, {c}")
        return out
    gemm_mainloop(p, "k2o", 28, NS, NPS, S_CNT, mfmas_o, reads_o, mk_dmas(131072), privs, read_frac=cfg.get("k2o_rf", 0.7))
    p(f"s_and_b32 s89, s{S_ROLE}, 1"); p("s_lshl_b32 s89, s89, 23"); p(f"s_add_u32 s89, s89, {O1_OFF}")
    p(f"s_add_u32 s8, s{S_WS}, s89"); p(f"s_addc_u32 s9, s{S_WS+1}, 0"); p("s_mov_b32 s10, 8388608"); p("s_mov_b32 s11, 0x20000")
    p("v_and_b32 v2, 15, v1"); p("v_lshlrev_b32 v2, 12, v2"); p("v_lshrrev_b32 v3, 4, v1"); p("v_lshl_add_u32 v2, v3, 4, v2")
    p(f"s_lshl_b32 s86, s{S_TB}, 20"); p("s_lshl_b32 s87, s3, 17"); p("s_add_u32 s86, s86, s87"); p(f"s_lshl_b32 s87, s{S_TA}, 9"); p("s_add_u32 s86, s86, s87")
    p("v_add_u32 v2, s86, v2"); p("v_add_u32 v3, 0x10000, v2")
    p("s_nop 6")
    for b in range(8):
        for i in range(2):
            acc = ACC + (b * 2 + i) * 4
            p(f"buffer_store_dwordx4 {vr(acc,4)}, v{2+i}, s[8:11], 0 offen offset:{64*b}{SC}")
    p(f"s_lshl_b32 s86, s{S_TB}, 3"); p(f"s_add_u32 s86, s86, s{S_TA}"); p(f"s_lshl_b32 s87, s{S_ROLE}, 6"); p(f"s_add_u32 s{S_FLAG}, s86, s87")
    p(f"s_mov_b32 s{S_R}, s{S_TB}"); p(f"s_lshr_b32 s{S_C}, s{S_TA}, 1"); p(f"s_and_b32 s{S_CG}, s{S_TA}, 1")
    p(f"s_and_b32 s86, s{S_ROLE}, 1"); p("s_lshl_b32 s86, s86, 1"); p(f"s_add_u32 s{S_RG}, s86, 1")
    p("s_branch k2_publish")

    p.label("k2_typeY")
    p("s_lshl_b32 s88, s88, 3"); p("s_lshr_b32 s89, s87, 2"); p(f"s_add_u32 s{S_TB}, s88, s89"); p(f"s_and_b32 s{S_TA}, s87, 3")
    p(f"s_lshl_b32 s{S_KP}, s{S_ROLE}, 16")
    p(f"s_mov_b32 s{S_SOFF}, 0")
    srd(p, S_SRDP, S_WS, S_WS + 1, ABF_SZ, ABF_OFF)
    p(f"s_cmp_eq_u32 s{S_ROLE}, 0")
    p(f"s_cselect_b32 s{S_SRDS}, s{S_CR}, s{S_CI}"); p(f"s_cselect_b32 s{S_SRDS+1}, s{S_CR+1}, s{S_CI+1}")
    p(f"s_mov_b32 s{S_SRDS+2}, 8388608"); p(f"s_mov_b32 s{S_SRDS+3}, 0x20000")
    p(f"s_lshl_b32 s86, s{S_TA}, 4"); p("s_lshl_b32 s87, s3, 1"); p("s_add_u32 s86, s86, s87"); p("s_lshl_b32 s86, s86, 17")
    p(f"v_lshlrev_b32 v{V_VP}, 4, v1"); p(f"v_add_u32 v{V_VP}, s86, v{V_VP}"); p(f"v_add_u32 v{V_VP+1}, 131072, v{V_VP}")
    voffK_lane(p, V, 5, 4096, 0)
    p(f"s_lshl_b32 s86, s{S_TB}, 7"); p("s_lshl_b32 s87, s3, 4"); p("s_add_u32 s86, s86, s87"); p("s_lshl_b32 s86, s86, 12")
    p(f"v_add_u32 v{V_VD}, s86, v5")
    p(f"v_xor_b32 v{V_VD+1}, 64, v{V_VD}"); p(f"v_add_u32 v{V_VD+1}, 32768, v{V_VD+1}")
    for w in range(nwin): addrK_setup(p, V, V_AK + 2 * w, V_AK + 2 * w + 1, w * WIN)
    def reads_y(kappa):
        s, kk = divmod(kappa, 2)
        out = []
        for b in range(8):
            off = (s % NS) * STG + 2048 * b; w = off // WIN
            out.append(f"ds_read_b128 {vr(SH + kk*32 + 4*b, 4)}, v{V_AK+2*w+kk} offset:{off - w*WIN}")
        return out
    def mfmas_y(kappa):
        kk = kappa % 2
        out = []
        if cfg.get("fake32"):
            for b in range(4):
                for h in range(2):
                    acc = ACC + b * 16
                    c = vr(acc, 16) if (kappa > 0 or h) else "0"
                    out.append(f"v_mfma_f32_32x32x16_bf16 {vr(acc,16)}, {ar(A_P+(kappa%NPS)*8+4*h,4)}, {vr(SH+kk*32+4*(2*b+h),4)}, {c}")
            return out
        for b in range(8):
            for i in range(2):
                acc = ACC + (i * 8 + b) * 4
                c = vr(acc, 4) if kappa > 0 else "0"
                out.append(f"{MF} {vr(acc,4)}, {ar(A_P+(kappa%NPS)*8+4*i,4)}, {vr(SH+kk*32+4*b,4)}, {c}")
        return out
    gemm_mainloop(p, "k2y", 32, NS, NPS, S_CNT, mfmas_y, reads_y, mk_dmas(128), privs, read_frac=cfg.get("k2y_rf", 0.7))
    p(f"s_lshl_b32 s89, s{S_ROLE}, 22"); p(f"s_add_u32 s89, s89, {PP_OFF}")
    p(f"s_add_u32 s8, s{S_WS}, s89"); p(f"s_addc_u32 s9, s{S_WS+1}, 0"); p("s_mov_b32 s10, 4194304"); p("s_mov_b32 s11, 0x20000")
    p("v_lshrrev_b32 v2, 4, v1"); p("v_and_b32 v3, 1, v2"); p("v_lshlrev_b32 v3, 5, v3"); p("v_lshrrev_b32 v2, 1, v2"); p("v_lshl_add_u32 v3, v2, 4, v3")
    p("v_and_b32 v2, 15, v1"); p("v_lshl_add_u32 v3, v2, 11, v3")
    p(f"s_lshl_b32 s86, s{S_TB}, 18"); p(f"s_lshl_b32 s87, s{S_TA}, 9"); p("s_add_u32 s86, s86, s87"); p("s_lshl_b32 s87, s3, 6"); p("s_add_u32 s86, s86, s87")
    p("v_add_u32 v3, s86, v3")
    for tj in range(8):
        t = SH + 4 * tj
        a0 = ACC + tj * 4; a1 = ACC + (8 + tj) * 4
        p(f"v_cvt_pk_bf16_f32 v{t}, v{a0}, v{a0+1}"); p(f"v_cvt_pk_bf16_f32 v{t+1}, v{a0+2}, v{a0+3}")
        p(f"v_cvt_pk_bf16_f32 v{t+2}, v{a1}, v{a1+1}"); p(f"v_cvt_pk_bf16_f32 v{t+3}, v{a1+2}, v{a1+3}")
        p(f"s_mov_b32 s87, {32768*tj}"); p("s_nop 0")
        p(f"v_permlane16_swap_b32 v{t}, v{t+2}"); p(f"v_permlane16_swap_b32 v{t+1}, v{t+3}")
        p(f"buffer_store_dwordx4 v[{t}:{t+3}], v3, s[8:11], s87 offen{SC}")
    p(f"s_lshl_b32 s86, s{S_TB}, 2"); p(f"s_add_u32 s86, s86, s{S_TA}"); p(f"s_lshl_b32 s87, s{S_ROLE}, 6"); p(f"s_add_u32 s{S_FLAG}, s86, s87")
    p(f"s_lshr_b32 s{S_R}, s{S_TB}, 1"); p(f"s_mov_b32 s{S_C}, s{S_TA}"); p(f"s_mov_b32 s{S_CG}, s{S_ROLE}")
    p(f"s_and_b32 s86, s{S_TB}, 1"); p(f"s_lshl_b32 s{S_RG}, s86, 1")

    p.label("k2_publish")
    stamp(p, 2)
    srd(p, 12, S_WS, S_WS + 1, FL2_SZ, FL2_OFF)
    srd(p, 4, S_X, S_X + 1, 4194304)
    srd(p, 60, S_B2, S_B2 + 1, 2048)
    srd(p, 64, S_WS, S_WS + 1, 4194304, PP_OFF)
    srd(p, 68, S_WS, S_WS + 1, 4194304, QP_OFF)
    srd(p, 72, S_WS, S_WS + 1, 8388608, O1_OFF)
    srd(p, 76, S_WS, S_WS + 1, 8388608, O2_OFF)
    srd(p, 52, S_OUT, S_OUT + 1, 4194304)
    p(f"s_lshl_b32 s86, s{S_R}, 8"); p(f"s_lshl_b32 s87, s{S_RG}, 6"); p("s_add_u32 s86, s86, s87"); p("s_lshl_b32 s86, s86, 10")
    p(f"s_lshl_b32 s87, s{S_C}, 8"); p(f"s_lshl_b32 s88, s{S_CG}, 7"); p("s_add_u32 s87, s87, s88")
    p("v_and_b32 v4, 15, v0"); p("v_lshlrev_b32 v4, 3, v4"); p("v_add_u32 v4, s87, v4")
    p("v_lshrrev_b32 v5, 4, v0"); p("v_lshl_add_u32 v5, v5, 10, v4"); p("v_add_u32 v5, s86, v5")
    p("v_lshlrev_b32 v4, 1, v4")
    p("v_lshlrev_b32 v6, 2, v5")
    p("v_lshlrev_b32 v5, 1, v5")
    p("s_mov_b32 s90, 65536"); p("s_mov_b32 s91, 131072")
    p("s_waitcnt vmcnt(0)")
    p("s_barrier")
    XR, BR, O1R, O2R, PR, QR = 32, 40, 44, 60, 76, 84
    p(f"buffer_load_dwordx4 v[{XR}:{XR+3}], v5, s[4:7], 0 offen")
    p(f"buffer_load_dwordx4 v[{XR+4}:{XR+7}], v5, s[4:7], s90 offen")
    p(f"buffer_load_dwordx4 v[{BR}:{BR+3}], v4, s[60:63], 0 offen")
    p("s_cmp_lg_u32 s3, 0"); p("s_cbranch_scc1 k2_w_o")
    p(f"s_lshl_b32 s86, s{S_FLAG}, 7"); p("v_mov_b32 v2, s86"); p("v_mov_b32 v3, 1")
    p("s_mov_b64 exec, 1")
    p(f"buffer_store_dword v3, v2, s[12:15], 0 offen{SC}")
    p("s_mov_b64 exec, -1")
    p("v_and_b32 v2, 1, v1"); p("v_lshlrev_b32 v2, 13, v2")
    p(f"s_lshl_b32 s86, s{S_R}, 3"); p(f"s_lshl_b32 s87, s{S_C}, 1"); p("s_add_u32 s86, s86, s87"); p(f"s_add_u32 s86, s86, s{S_CG}"); p("s_add_u32 s86, s86, 128"); p("s_lshl_b32 s86, s86, 7")
    p("v_add_u32 v7, s86, v2")
    p(f"s_lshl_b32 s86, s{S_R}, 1"); p(f"s_lshr_b32 s87, s{S_RG}, 1"); p("s_add_u32 s86, s86, s87"); p("s_lshl_b32 s86, s86, 2"); p(f"s_add_u32 s86, s86, s{S_C}"); p("s_lshl_b32 s86, s86, 7")
    p("v_add_u32 v8, s86, v2")
    p.label("k2_poll_o")
    p(f"buffer_load_dword v9, v7, s[12:15], 0 offen{SC}")
    p("s_waitcnt vmcnt(0)")
    p("v_cmp_ne_u32 vcc, 1, v9")
    p("s_cbranch_vccz k2_w_o")
    p("s_sleep 1")
    p("s_branch k2_poll_o")
    p.label("k2_w_o")
    p("s_barrier")
    for ps in range(2):
        so = "0" if ps == 0 else "s91"
        p(f"buffer_load_dwordx4 v[{O1R+8*ps}:{O1R+8*ps+3}], v6, s[72:75], {so} offen{SC}")
        p(f"buffer_load_dwordx4 v[{O1R+8*ps+4}:{O1R+8*ps+7}], v6, s[72:75], {so} offen offset:16{SC}")
        p(f"buffer_load_dwordx4 v[{O2R+8*ps}:{O2R+8*ps+3}], v6, s[76:79], {so} offen{SC}")
        p(f"buffer_load_dwordx4 v[{O2R+8*ps+4}:{O2R+8*ps+7}], v6, s[76:79], {so} offen offset:16{SC}")
    p(f"s_mov_b32 s92, {hex(f2u(-math.log2(math.e)))}")
    p("s_waitcnt vmcnt(0)")
    B_ = 96; U_ = 104; W_ = 120; T = 136; GR = 144
    for i in range(4):
        p(f"v_lshlrev_b32 v{B_+2*i}, 16, v{BR+i}"); p(f"v_and_b32 v{B_+2*i+1}, 0xffff0000, v{BR+i}")
    for i in range(16): p(f"v_add_f32 v{U_+i}, v{O1R+i}, v{O2R+i}")
    for i in range(8): p(f"v_cvt_pk_bf16_f32 v{T+i}, v{U_+2*i}, v{U_+2*i+1}")
    for i in range(8):
        p(f"v_lshlrev_b32 v{U_+2*i}, 16, v{T+i}"); p(f"v_and_b32 v{U_+2*i+1}, 0xffff0000, v{T+i}")
    for i in range(16): p(f"v_add_f32 v{U_+i}, v{U_+i}, v{B_+(i%8)}")
    for i in range(8): p(f"v_cvt_pk_bf16_f32 v{T+i}, v{U_+2*i}, v{U_+2*i+1}")
    for i in range(8):
        p(f"v_lshlrev_b32 v{U_+2*i}, 16, v{T+i}"); p(f"v_and_b32 v{U_+2*i+1}, 0xffff0000, v{T+i}")
    for i in range(16): p(f"v_mul_f32 v{W_+i}, s92, v{U_+i}")
    for i in range(16): p(f"v_exp_f32 v{W_+i}, v{W_+i}")
    for i in range(16): p(f"v_add_f32 v{W_+i}, 1.0, v{W_+i}")
    for i in range(16): p(f"v_rcp_f32 v{W_+i}, v{W_+i}")
    for i in range(16): p(f"v_mul_f32 v{W_+i}, v{W_+i}, v{U_+i}")
    for i in range(8): p(f"v_cvt_pk_bf16_f32 v{T+i}, v{W_+2*i}, v{W_+2*i+1}")
    for i in range(8):
        p(f"v_lshlrev_b32 v{GR+2*i}, 16, v{T+i}"); p(f"v_and_b32 v{GR+2*i+1}, 0xffff0000, v{T+i}")
    for i in range(8):
        p(f"v_lshlrev_b32 v{O1R+2*i}, 16, v{XR+i}"); p(f"v_and_b32 v{O1R+2*i+1}, 0xffff0000, v{XR+i}")
    p("s_cmp_lg_u32 s3, 0"); p("s_cbranch_scc1 k2_w_y")
    p.label("k2_poll_y")
    p(f"buffer_load_dword v9, v8, s[12:15], 0 offen{SC}")
    p("s_waitcnt vmcnt(0)")
    p("v_cmp_ne_u32 vcc, 1, v9")
    p("s_cbranch_vccz k2_w_y")
    p("s_sleep 1")
    p("s_branch k2_poll_y")
    p.label("k2_w_y")
    p("s_barrier")
    for ps in range(2):
        so = "0" if ps == 0 else "s90"
        p(f"buffer_load_dwordx4 v[{PR+4*ps}:{PR+4*ps+3}], v5, s[64:67], {so} offen{SC}")
        p(f"buffer_load_dwordx4 v[{QR+4*ps}:{QR+4*ps+3}], v5, s[68:71], {so} offen{SC}")
    p("s_waitcnt vmcnt(0)")
    for i in range(8):
        p(f"v_lshlrev_b32 v{U_+2*i}, 16, v{PR+i}"); p(f"v_and_b32 v{U_+2*i+1}, 0xffff0000, v{PR+i}")
        p(f"v_lshlrev_b32 v{W_+2*i}, 16, v{QR+i}"); p(f"v_and_b32 v{W_+2*i+1}, 0xffff0000, v{QR+i}")
    for i in range(16): p(f"v_sub_f32 v{U_+i}, v{U_+i}, v{W_+i}")
    for i in range(8): p(f"v_cvt_pk_bf16_f32 v{T+i}, v{U_+2*i}, v{U_+2*i+1}")
    for i in range(8):
        p(f"v_lshlrev_b32 v{U_+2*i}, 16, v{T+i}"); p(f"v_and_b32 v{U_+2*i+1}, 0xffff0000, v{T+i}")
    for i in range(16): p(f"v_mul_f32 v{U_+i}, v{U_+i}, v{GR+i}")
    for i in range(8): p(f"v_cvt_pk_bf16_f32 v{T+i}, v{U_+2*i}, v{U_+2*i+1}")
    for i in range(8):
        p(f"v_lshlrev_b32 v{U_+2*i}, 16, v{T+i}"); p(f"v_and_b32 v{U_+2*i+1}, 0xffff0000, v{T+i}")
    for i in range(16): p(f"v_add_f32 v{U_+i}, v{U_+i}, v{O1R+i}")
    for i in range(8): p(f"v_cvt_pk_bf16_f32 v{T+i}, v{U_+2*i}, v{U_+2*i+1}")
    p(f"buffer_store_dwordx4 v[{T}:{T+3}], v5, s[52:55], 0 offen")
    p(f"buffer_store_dwordx4 v[{T+4}:{T+7}], v5, s[52:55], s90 offen")
    fin(p, 2)
    p.label("k2_end")
    p("s_endpgm")
    return name, 160 + NPS * 8, 102, 160

def generate(cfg, kernels=("k0", "k1", "k2")):
    CFG.clear(); CFG.update(cfg); CFG["ts_sbase"] = 98
    body = Prog()
    info = []
    lds = {"k0": 0, "k1": cfg["k1_ns"] * 24576 + 8192, "k2": cfg["k2_ns"] * 16384}
    blk = {"k0": 512, "k1": 512, "k2": 512}
    info.append(("k0",) + gen.gen_k0(body)); CFG["ts_cbase"] = 64; info.append(("k1",) + gen_k1(body, cfg)); CFG["ts_cbase"] = 80; info.append(("k2",) + gen_k2(body, cfg))
    out = ["; FNet (dense DFT matmuls) + GELU FFN fused block; generated by dev/gen2.py"]
    for k in kernels:
        out.append(f"; @launch kernel={k}_kernel grid=(256,1,1) block=({blk[k]},1,1) lds={lds[k]}")
    out.append('.amdgcn_target "amdgcn-amd-amdhsa--gfx950"')
    out.append(".text")
    out += body.L
    out.append('.section .rodata,"a"')
    for k, name, nfv, nfs, acc in info:
        out += [".p2align 6", f".amdhsa_kernel {name}", f"  .amdhsa_next_free_vgpr {nfv}", f"  .amdhsa_next_free_sgpr {nfs}",
                f"  .amdhsa_accum_offset {acc}", "  .amdhsa_group_segment_fixed_size 0", "  .amdhsa_kernarg_size 104",
                "  .amdhsa_user_sgpr_count 2", "  .amdhsa_user_sgpr_kernarg_segment_ptr 1", "  .amdhsa_system_sgpr_workgroup_id_x 1",
                ".end_amdhsa_kernel"]
    return "\n".join(out) + "\n"

DEFAULT = dict(k1_ns=4, k1_nps=4, k2_ns=4, k2_nps=8)
if __name__ == "__main__":
    cfg = dict(DEFAULT)
    fn = sys.argv[1] if len(sys.argv) > 1 else "full2.s"
    for a in sys.argv[2:]:
        k, v = a.split("=")
        cfg[k] = float(v) if "." in v else int(v)
    kern = ("k0", "k1", "k2", "k2") if cfg.get("k2twice") else ("k0", "k1", "k2")
    open(fn, "w").write(generate(cfg, kern))
```

```python
import sys, math
import gen
from gen import *

PP_OFF = WSB + (28 << 20)
QP_OFF = WSB + (32 << 20)
O1_OFF = WSB + (36 << 20)
O2_OFF = WSB + (44 << 20)
gen.FL_OFF = FL2_OFF = WSB + (52 << 20)
gen.FL_SZ = FL2_SZ = 256 * 128
gen.TS_OFF = WSB + (56 << 20)

def gelu_batch(p, src, bias, T, n, s_c2, v_c1):
    Pk = T; U_ = T + n // 2; W_ = U_ + n
    for i in range(n // 2): p(f"v_cvt_pk_bf16_f32 v{Pk+i}, v{src[2*i]}, v{src[2*i+1]}")
    for i in range(n // 2):
        p(f"v_lshlrev_b32 v{U_+2*i}, 16, v{Pk+i}"); p(f"v_and_b32 v{U_+2*i+1}, 0xffff0000, v{Pk+i}")
    for i in range(n): p(f"v_add_f32 v{U_+i}, v{U_+i}, v{bias[i]}")
    for i in range(n // 2): p(f"v_cvt_pk_bf16_f32 v{Pk+i}, v{U_+2*i}, v{U_+2*i+1}")
    for i in range(n // 2):
        p(f"v_lshlrev_b32 v{U_+2*i}, 16, v{Pk+i}"); p(f"v_and_b32 v{U_+2*i+1}, 0xffff0000, v{Pk+i}")
    for i in range(n): p(f"v_mul_f32 v{W_+i}, v{U_+i}, v{U_+i}")
    for i in range(n): p(f"v_fma_f32 v{W_+i}, v{W_+i}, s{s_c2}, v{v_c1}")
    for i in range(n): p(f"v_mul_f32 v{W_+i}, v{W_+i}, v{U_+i}")
    for i in range(n): p(f"v_exp_f32 v{W_+i}, v{W_+i}")
    for i in range(n): p(f"v_add_f32 v{W_+i}, 1.0, v{W_+i}")
    for i in range(n): p(f"v_rcp_f32 v{W_+i}, v{W_+i}")
    for i in range(n): p(f"v_mul_f32 v{W_+i}, v{W_+i}, v{U_+i}")
    for i in range(n // 2): p(f"v_cvt_pk_bf16_f32 v{Pk+i}, v{W_+2*i}, v{W_+2*i+1}")

def fin(p, k):
    if CFG.get("ts"): p("s_waitcnt vmcnt(0)")
    stamp(p, 3); stamp_store(p, k, 4)

def gen_k1(p, cfg):
    name = "k1_kernel"
    NS, NPS = cfg["k1_ns"], cfg["k1_nps"]
    STG = 24576; WIN = 65536
    nwin = (NS * STG + WIN - 1) // WIN
    BIAS_LDS = NS * STG
    K1ST = {0: "", 1: " sc1", 2: " nt", 3: " sc0 sc1"}[cfg.get("k1st", 0)]
    kernel_head(p, name)
    p("s_cmp_ge_u32 s2, 256"); p("s_cbranch_scc1 k1_end")
    load_ptrs(p)
    V = dict(lane=1, t0=2, t1=3, t2=4)
    V_VP, V_VD, V_PF, V_DUM, V_AK, V_AT = 8, 10, 13, 16, 20, 24
    assert nwin <= 2
    ACC = 32; SH = 120
    A_P = 0
    S_SRDP, S_SRDS, S_SOFF, S_DLT = 4, 44, 56, 59
    S_KP, S_M0B, S_CNT, S_MT, S_NT, S_N0 = 80, 81, 82, 83, 84, 85
    lane_consts(p, V)
    p("s_and_b32 s86, s2, 7"); p("s_lshr_b32 s87, s2, 3")
    p("s_and_b32 s88, s86, 1"); p("s_lshl_b32 s88, s88, 2"); p("s_and_b32 s89, s87, 3"); p(f"s_add_u32 s{S_MT}, s88, s89")
    p("s_lshr_b32 s88, s86, 1"); p("s_lshr_b32 s89, s87, 2"); p("s_lshl_b32 s89, s89, 2"); p(f"s_add_u32 s{S_NT}, s88, s89")
    p(f"s_mul_i32 s{S_N0}, s{S_NT}, 176")
    p(f"s_mul_i32 s{S_M0B}, s3, 3072")
    p(f"s_mov_b32 s{S_KP}, 0")
    p(f"s_lshl_b32 s86, s{S_MT}, 4"); p("s_lshl_b32 s87, s3, 1"); p("s_add_u32 s86, s86, s87"); p("s_lshl_b32 s86, s86, 15")
    p(f"v_lshlrev_b32 v{V_VP}, 4, v1"); p(f"v_add_u32 v{V_VP}, s86, v{V_VP}"); p(f"v_add_u32 v{V_VP+1}, 32768, v{V_VP}")
    p("s_lshl_b32 s86, s2, 3"); p("s_add_u32 s86, s86, s3"); p("s_lshl_b32 s87, s86, 12"); p("s_mul_i32 s86, s86, 3584")
    if cfg.get("pf1", 1) == 2:
        p(f"v_lshlrev_b32 v{V_PF+1}, 7, v1"); p(f"v_add_u32 v{V_PF}, s87, v{V_PF+1}"); p(f"v_add_u32 v{V_PF+1}, s86, v{V_PF+1}")
        p("v_mov_b32 v2, 0x80000000")
        p("v_cmp_gt_u32 vcc, 32, v1"); p("s_nop 1"); p(f"v_cndmask_b32 v{V_PF}, v2, v{V_PF}, vcc")
        p("v_cmp_gt_u32 vcc, 28, v1"); p("s_nop 1"); p(f"v_cndmask_b32 v{V_PF+1}, v2, v{V_PF+1}, vcc")
    else:
        p(f"v_lshlrev_b32 v{V_PF+1}, 4, v1"); p(f"v_add_u32 v{V_PF}, s87, v{V_PF+1}"); p(f"v_add_u32 v{V_PF+1}, s86, v{V_PF+1}")
    p("s_waitcnt lgkmcnt(0)")
    stamp(p, 0)
    srd(p, S_SRDP, S_WS, S_WS + 1, XF_SZ, XF_OFF)
    p(f"s_cmp_lt_u32 s{S_NT}, 11"); p("s_cbranch_scc1 k1_typeD")
    p(f"s_cmp_eq_u32 s{S_NT}, 11"); p("s_cbranch_scc1 k1_typeM")
    p("s_branch k1_typeW")

    def slot_D(i, pv):
        d = S_SRDS + 4 * i
        p(f"s_lshl_b32 s87, s86, 3"); p(f"s_add_u32 s87, s87, s{S_N0}")
        p("s_cmp_lt_u32 s87, 1024")
        p(f"s_cselect_b32 s{d}, s{S_DR}, s{S_DI}"); p(f"s_cselect_b32 s{d+1}, s{S_DR+1}, s{S_DI+1}")
        p(f"s_mov_b32 s{d+2}, 2097152"); p(f"s_mov_b32 s{d+3}, 0x20000")
        p("s_and_b32 s87, s87, 1023"); p("s_lshl_b32 s87, s87, 11")
        p("s_and_b32 s88, s86, 1"); p("s_lshl_b32 s88, s88, 6")
        p(f"v_xor_b32 v{V_VD+i}, s88, v{pv}")
        p(f"v_add_u32 v{V_VD+i}, s87, v{V_VD+i}")
        p(f"s_mov_b32 s{S_SOFF+i}, 0"); p(f"s_mov_b32 s{S_DLT+i}, 128")
    def slot_dummy(i):
        d = S_SRDS + 4 * i
        p(f"s_mov_b32 s{d}, s{S_W1}"); p(f"s_mov_b32 s{d+1}, s{S_W1+1}")
        p(f"s_mov_b32 s{d+2}, 0"); p(f"s_mov_b32 s{d+3}, 0x20000")
        p(f"v_mov_b32 v{V_VD+i}, 0")
        p(f"s_mov_b32 s{S_SOFF+i}, 0"); p(f"s_mov_b32 s{S_DLT+i}, 0")
    def dmas(stage):
        out = []
        for i in range(3):
            pre = [f"s_add_u32 m0, s{S_M0B}, {(stage % NS) * STG + 1024 * i}"]
            if stage > 0: pre.insert(0, f"s_add_u32 s{S_SOFF+i}, s{S_SOFF+i}, s{S_DLT+i}")
            d = S_SRDS + 4 * i
            out.append((pre, f"buffer_load_dwordx4 v{V_VD+i}, s[{d}:{d+3}], s{S_SOFF+i} offen lds"))
        return out
    def privs(kappa):
        out = []
        for i in range(2):
            pre = []
            if i == 0 and kappa % 4 == 0 and kappa > 0: pre = [f"s_add_u32 s{S_KP}, s{S_KP}, 4096"]
            a = A_P + (kappa % NPS) * 8 + 4 * i
            out.append((pre, f"buffer_load_dwordx4 {ar(a,4)}, v{V_VP+i}, s[{S_SRDP}:{S_SRDP+3}], s{S_KP} offen offset:{(kappa%4)*1024}"))
        return out
    def pf(kappa):
        if cfg.get("pf1", 1) == 2:
            ks = cfg.get("pf1_ks", (2, 10, 18))
            if kappa not in ks: return []
            m = ks.index(kappa)
            b = (S_CR, S_CI, S_W2)[m]
            pre = [f"s_mov_b32 s8, s{b}", f"s_mov_b32 s9, s{b+1}", f"s_mov_b32 s10, {(8388608, 8388608, 7340032)[m]}", "s_mov_b32 s11, 0x20000"]
            return [(pre, f"buffer_load_dword v{V_DUM}, v{V_PF + (1 if m == 2 else 0)}, s[8:11], 0 offen")]
        if not cfg.get("pf1", 1): return []
        st = cfg.get("pf1_step", 2)
        j = kappa - cfg.get("pf1_start", 0)
        if j < 0 or j % st or j // st >= 12: return []
        j //= st
        m, jj = divmod(j, 4)
        pre = []
        if jj == 0:
            b = (S_CR, S_CI, S_W2)[m]
            pre = [f"s_mov_b32 s8, s{b}", f"s_mov_b32 s9, s{b+1}", f"s_mov_b32 s10, {(8388608, 8388608, 7340032)[m]}", "s_mov_b32 s11, 0x20000"]
        return [(pre, f"buffer_load_dwordx4 v[{V_DUM}:{V_DUM+3}], v{V_PF + (1 if m == 2 else 0)}, s[8:11], 0 offen offset:{jj*1024}")]
    def make(blocks):
        def reads(kappa):
            s, kk = divmod(kappa, 2)
            ring = (s % NS) * STG
            out = []
            for b, bl in enumerate(blocks):
                a = SH + kk * 44 + 4 * b
                if bl[0] == 'K':
                    off = ring + bl[1]; w = off // WIN
                    out.append(f"ds_read_b128 {vr(a,4)}, v{V_AK+2*w+kk} offset:{off - w*WIN}")
                else:
                    for hh in range(2):
                        off = ring + bl[4] + kk * bl[2] + hh * bl[3]; w = off // WIN
                        out.append(f"ds_read_b64_tr_b16 {vr(a+2*hh,2)}, v{V_AT+4*w+bl[1]} offset:{off - w*WIN}")
            return out
        def mfmas(kappa):
            kk = kappa % 2
            out = []
            for b, bl in enumerate(blocks):
                for i in range(2):
                    acc = ACC + (b * 2 + i) * 4
                    S = vr(SH + kk * 44 + 4 * b, 4); P = ar(A_P + (kappa % NPS) * 8 + 4 * i, 4)
                    c = vr(acc, 4) if kappa > 0 else "0"
                    if bl[0] == 'K': out.append(f"{MF} {vr(acc,4)}, {P}, {S}, {c}")
                    else: out.append(f"{MF} {vr(acc,4)}, {S}, {P}, {c}")
            return out
        return reads, mfmas

    def epi_D(blocks_idx):
        srd(p, 8, S_WS, S_WS + 1, ABF_SZ, ABF_OFF)
        p("v_lshrrev_b32 v2, 4, v1"); p("v_and_b32 v3, 1, v2"); p("v_lshlrev_b32 v3, 1, v3"); p("v_lshrrev_b32 v2, 1, v2")
        p("v_or_b32 v2, v2, v3"); p("v_lshlrev_b32 v2, 8, v2"); p("v_and_b32 v3, 15, v1"); p("v_lshl_add_u32 v2, v3, 4, v2")
        p(f"s_lshl_b32 s86, s{S_MT}, 3"); p("s_add_u32 s86, s86, s3"); p("s_lshl_b32 s86, s86, 10")
        p("v_add_u32 v2, s86, v2")
        for n, b in enumerate(blocks_idx):
            t = SH + 4 * n
            a0 = ACC + b * 8; a1 = a0 + 4
            p(f"v_cvt_pk_bf16_f32 v{t}, v{a0}, v{a0+1}"); p(f"v_cvt_pk_bf16_f32 v{t+1}, v{a0+2}, v{a0+3}")
            p(f"v_cvt_pk_bf16_f32 v{t+2}, v{a1}, v{a1+1}"); p(f"v_cvt_pk_bf16_f32 v{t+3}, v{a1+2}, v{a1+3}")
            p(f"s_add_u32 s87, s{S_N0}, {16*b}")
            p("s_lshr_b32 s88, s87, 10"); p("s_lshl_b32 s88, s88, 16")
            p("s_and_b32 s87, s87, 1023"); p("s_lshl_b32 s87, s87, 13")
            p("s_add_u32 s87, s87, s88")
            p(f"v_permlane16_swap_b32 v{t}, v{t+2}"); p(f"v_permlane16_swap_b32 v{t+1}, v{t+3}")
            p(f"buffer_store_dwordx4 v[{t}:{t+3}], v2, s[8:11], s87 offen{K1ST}")

    def bias_dma(f0_sgpr):
        srd(p, 12, S_B1, S_B1 + 1, 7168)
        p("v_lshlrev_b32 v2, 4, v1")
        p(f"s_lshl_b32 s86, s{f0_sgpr}, 1")
        p("s_lshl_b32 s87, s3, 10"); p(f"s_add_u32 m0, s87, {BIAS_LDS}")
        p("s_nop 0")
        p("buffer_load_dwordx4 v2, s[12:15], s86 offen lds")

    def epi_W(blocks_idx, f0_sgpr):
        srd(p, 8, S_WS, S_WS + 1, HF_SZ, HF_OFF)
        nb = len(blocks_idx)
        BP = 8
        p("v_lshrrev_b32 v2, 4, v1")
        p("s_lshl_b32 s87, s3, 10"); p(f"s_add_u32 s87, s87, {BIAS_LDS}")
        p("v_lshlrev_b32 v3, 3, v2"); p("v_add_u32 v3, s87, v3")
        for n in range(nb): p(f"ds_read_b64 v[{BP+2*n}:{BP+2*n+1}], v3 offset:{32*n}")
        p(f"s_mov_b32 s90, {hex(f2u(C2))}"); p(f"v_mov_b32 v5, {hex(f2u(C1))}")
        p("v_and_b32 v3, 1, v2"); p("v_lshlrev_b32 v3, 4, v3"); p("v_lshrrev_b32 v4, 1, v2")
        p("v_lshl_add_u32 v3, v4, 3, v3"); p(f"v_add_u32 v3, s{f0_sgpr}, v3")
        p("v_lshrrev_b32 v4, 5, v3"); p("v_lshlrev_b32 v4, 10, v4"); p("v_bfe_u32 v3, v3, 3, 2"); p("v_lshl_add_u32 v4, v3, 8, v4")
        p("v_and_b32 v3, 15, v1"); p("v_lshl_add_u32 v6, v3, 4, v4")
        if nb % 2:
            p(f"v_lshlrev_b32 v4, 2, v2"); p(f"v_add_u32 v4, s{f0_sgpr}, v4"); p(f"v_add_u32 v4, {16*(nb-1)}, v4")
            p("v_lshrrev_b32 v7, 5, v4"); p("v_lshlrev_b32 v7, 10, v7"); p("v_bfe_u32 v2, v4, 3, 2"); p("v_lshl_add_u32 v7, v2, 8, v7")
            p("v_bfe_u32 v2, v4, 2, 1"); p("v_lshl_add_u32 v7, v2, 3, v7"); p("v_lshl_add_u32 v7, v3, 4, v7")
        p(f"s_lshl_b32 s86, s{S_MT}, 4"); p("s_lshl_b32 s87, s3, 1"); p("s_add_u32 s86, s86, s87"); p("s_mul_i32 s86, s86, 114688")
        p("s_waitcnt lgkmcnt(0)")
        BF = SH
        for n0 in range(0, nb, 2):
            pair = blocks_idx[n0:n0 + 2]
            for k_, b in enumerate(pair):
                for h in range(2):
                    p(f"v_lshlrev_b32 v{BF+4*k_+2*h}, 16, v{BP+2*(n0+k_)+h}")
                    p(f"v_and_b32 v{BF+4*k_+2*h+1}, 0xffff0000, v{BP+2*(n0+k_)+h}")
            src = []; bs = []
            for i in range(2):
                for k_, b in enumerate(pair):
                    src += [ACC + (b * 2 + i) * 4 + r for r in range(4)]
                    bs += [BF + 4 * k_ + r for r in range(4)]
            T0 = SH + 8 + (40 if (n0 // 2) % 2 else 0)
            gelu_batch(p, src, bs, T0, len(src), 90, 5)
            for i in range(2):
                p(f"s_add_u32 s87, s86, {114688*i + (1024*(n0//2) if len(pair)==2 else 0)}")
                if len(pair) == 2:
                    t = T0 + 4 * i
                    if i == 0: p("s_nop 0")
                    p(f"v_permlane16_swap_b32 v{t}, v{t+2}"); p(f"v_permlane16_swap_b32 v{t+1}, v{t+3}")
                    p(f"buffer_store_dwordx4 v[{t}:{t+3}], v6, s[8:11], s87 offen{K1ST}")
                else:
                    t = T0 + 2 * i
                    p(f"buffer_store_dwordx2 v[{t}:{t+1}], v7, s[8:11], s87 offen{K1ST}")

    def sigma(i):
        p(f"s_mul_i32 s86, s3, 3"); p(f"s_add_u32 s86, s86, {i}")
    p.label("k1_typeD")
    voffK_lane(p, V, 5, 2048, 0)
    for i in range(3):
        sigma(i)
        if i >= 1:
            lab = p.newlabel("k1d"); lab2 = p.newlabel("k1d")
            p("s_cmp_ge_u32 s86, 22"); p(f"s_cbranch_scc1 {lab}")
            slot_D(i, 5); p(f"s_branch {lab2}")
            p.label(lab); slot_dummy(i); p.label(lab2)
        else:
            slot_D(i, 5)
    for w in range(nwin): addrK_setup(p, V, V_AK + 2 * w, V_AK + 2 * w + 1, w * WIN)
    blocks = [('K', 2048 * b) for b in range(11)]
    reads, mfmas = make(blocks)
    gemm_mainloop(p, "k1d", 16, NS, NPS, S_CNT, mfmas, reads, dmas, privs, pf=pf, read_frac=cfg.get("k1_rf", 0.7))
    p("s_nop 7"); p("s_nop 7")
    epi_D(list(range(11)))
    fin(p, 1)
    p("s_endpgm")
    p.label("k1_typeW")
    p(f"s_sub_u32 s91, s{S_N0}, 2048")
    bias_dma(91)
    p("s_and_b32 s88, s3, 1"); p("s_lshl_b32 s88, s88, 2")
    for i in range(3):
        d = S_SRDS + 4 * i
        p(f"v_add_u32 v2, {64*i}, v1")
        p("v_mul_u32_u24 v3, 2731, v2"); p("v_lshrrev_b32 v3, 16, v3")
        p("v_mul_u32_u24 v4, 24, v3"); p("v_sub_u32 v2, v2, v4")
        p("v_bfe_u32 v4, v3, 1, 1"); p("v_lshlrev_b32 v4, 1, v4"); p("v_or_b32 v4, s88, v4")
        p("v_xor_b32 v2, v2, v4")
        p("v_mul_u32_u24 v3, 7168, v3"); p("v_lshl_add_u32 v3, v2, 4, v3")
        p("s_mul_i32 s86, s3, 57344")
        p("s_lshl_b32 s87, s91, 1"); p("s_add_u32 s86, s86, s87")
        p("v_add_u32 v3, s86, v3")
        p("v_cmp_gt_u32 vcc, 22, v2")
        p("v_mov_b32 v4, 0x80000000")
        p("s_nop 0")
        p(f"v_cndmask_b32 v{V_VD+i}, v4, v3, vcc")
        p(f"s_mov_b32 s{d}, s{S_W1}"); p(f"s_mov_b32 s{d+1}, s{S_W1+1}"); p(f"s_mov_b32 s{d+2}, 7340032"); p(f"s_mov_b32 s{d+3}, 0x20000")
        p(f"s_mov_b32 s{S_SOFF+i}, 0"); p(f"s_mov_b32 s{S_DLT+i}, {64*7168}")
    for w in range(nwin): addrT_setup(p, V, V_AT + 4 * w, 384, w * WIN)
    blocks = [('T', b & 3, 32 * 384, 4 * 384, (b >> 2) * 128) for b in range(11)]
    reads, mfmas = make(blocks)
    gemm_mainloop(p, "k1w", 16, NS, NPS, S_CNT, mfmas, reads, dmas, privs, pf=pf, read_frac=cfg.get("k1_rf", 0.7))
    p("s_nop 7"); p("s_nop 7")
    epi_W(list(range(11)), 91)
    fin(p, 1)
    p("s_endpgm")
    p.label("k1_typeM")
    p("s_mov_b32 s91, 0")
    bias_dma(91)
    voffK_lane(p, V, 5, 2048, 0)
    voffT8_lane(p, V, 7, 7168, 0)
    for i in range(3):
        d = S_SRDS + 4 * i
        l1 = p.newlabel("k1m"); l2 = p.newlabel("k1m"); l3 = p.newlabel("k1m")
        sigma(i)
        p("s_cmp_ge_u32 s86, 22"); p(f"s_cbranch_scc1 {l2}")
        p("s_cmp_ge_u32 s86, 14"); p(f"s_cbranch_scc1 {l1}")
        slot_D(i, 5); p(f"s_branch {l3}")
        p.label(l1)
        p("s_sub_u32 s87, s86, 14"); p("s_mul_i32 s87, s87, 57344")
        p("s_and_b32 s88, s86, 1"); p("s_lshl_b32 s88, s88, 6")
        p(f"v_xor_b32 v{V_VD+i}, s88, v7")
        p(f"v_add_u32 v{V_VD+i}, s87, v{V_VD+i}")
        p(f"s_mov_b32 s{d}, s{S_W1}"); p(f"s_mov_b32 s{d+1}, s{S_W1+1}"); p(f"s_mov_b32 s{d+2}, 7340032"); p(f"s_mov_b32 s{d+3}, 0x20000")
        p(f"s_mov_b32 s{S_SOFF+i}, 0"); p(f"s_mov_b32 s{S_DLT+i}, {64*7168}")
        p(f"s_branch {l3}")
        p.label(l2); slot_dummy(i)
        p.label(l3)
    for w in range(nwin):
        addrK_setup(p, V, V_AK + 2 * w, V_AK + 2 * w + 1, w * WIN)
        addrT_setup(p, V, V_AT + 4 * w, 128, w * WIN)
    blocks = [('K', 2048 * b) for b in range(7)] + [('T', b, 4096, 512, 14336) for b in range(4)]
    reads, mfmas = make(blocks)
    gemm_mainloop(p, "k1m", 16, NS, NPS, S_CNT, mfmas, reads, dmas, privs, pf=pf, read_frac=cfg.get("k1_rf", 0.7))
    p("s_nop 7"); p("s_nop 7")
    epi_D(list(range(7)))
    p("s_nop 1")
    epi_W([7, 8, 9, 10], 91)
    fin(p, 1)
    p.label("k1_end")
    p("s_endpgm")
    return name, 208 + NPS * 8, 102, 208

def gen_k2(p, cfg):
    name = "k2_kernel"
    NS, NPS = cfg["k2_ns"], cfg["k2_nps"]
    STG = 16384; WIN = 65536
    SC = {0: " sc0 sc1", 1: " sc1"}[cfg.get("k2sc", 1)]
    nwin = (NS * STG + WIN - 1) // WIN
    kernel_head(p, name)
    p("s_cmp_ge_u32 s2, 256"); p("s_cbranch_scc1 k2_end")
    load_ptrs(p)
    V = dict(lane=1, t0=2, t1=3, t2=4)
    V_VP, V_VD, V_AK, V_AT = 8, 10, 20, 20
    ACC = 32; SH = 96
    A_P = 0
    S_SRDP, S_SRDS = 4, 8
    S_SOFF, S_KP, S_M0B, S_CNT, S_TA, S_TB, S_ROLE, S_FLAG = 44, 45, 46, 47, 48, 49, 50, 51
    S_R, S_C, S_RG, S_CG = 56, 57, 58, 59
    lane_consts(p, V)
    p("s_and_b32 s86, s2, 7"); p("s_lshr_b32 s87, s2, 3")
    p(f"s_lshr_b32 s{S_ROLE}, s86, 1"); p("s_and_b32 s88, s86, 1")
    p(f"s_lshl_b32 s{S_M0B}, s3, 11")
    p("s_waitcnt lgkmcnt(0)")
    stamp(p, 0)
    p(f"s_cmp_lt_u32 s{S_ROLE}, 2"); p("s_cbranch_scc1 k2_typeY")

    def privs(kappa):
        out = []
        for i in range(2):
            pre = []
            if i == 0 and kappa % 4 == 0 and kappa > 0: pre = [f"s_add_u32 s{S_KP}, s{S_KP}, 4096"]
            a = A_P + (kappa % NPS) * 8 + 4 * i
            out.append((pre, f"buffer_load_dwordx4 {ar(a,4)}, v{V_VP+i}, s[{S_SRDP}:{S_SRDP+3}], s{S_KP} offen offset:{(kappa%4)*1024}"))
        return out
    def mk_dmas(delta):
        def dmas(stage):
            out = []
            for i in range(2):
                pre = [f"s_add_u32 m0, s{S_M0B}, {(stage % NS) * STG + 1024 * i}"]
                if i == 0 and stage > 0: pre.insert(0, f"s_add_u32 s{S_SOFF}, s{S_SOFF}, {delta}")
                out.append((pre, f"buffer_load_dwordx4 v{V_VD+i}, s[{S_SRDS}:{S_SRDS+3}], s{S_SOFF} offen lds"))
            return out
        return dmas

    p("s_lshl_b32 s88, s88, 2"); p("s_and_b32 s89, s87, 3"); p(f"s_add_u32 s{S_TB}, s88, s89"); p(f"s_lshr_b32 s{S_TA}, s87, 2")
    if cfg.get("same"): p(f"s_mov_b32 s{S_TA}, 0"); p(f"s_mov_b32 s{S_TB}, 0")
    p(f"s_and_b32 s89, s{S_ROLE}, 1")
    p(f"s_mul_i32 s{S_KP}, s89, {56*1024}")
    p(f"s_mul_i32 s{S_SOFF}, s89, {1792*2048}")
    srd(p, S_SRDP, S_WS, S_WS + 1, HF_SZ, HF_OFF)
    srd(p, S_SRDS, S_W2, S_W2 + 1, 7340032)
    p(f"s_lshl_b32 s86, s{S_TB}, 4"); p("s_lshl_b32 s87, s3, 1"); p("s_add_u32 s86, s86, s87"); p("s_mul_i32 s86, s86, 114688")
    p(f"v_lshlrev_b32 v{V_VP}, 4, v1"); p(f"v_add_u32 v{V_VP}, s86, v{V_VP}"); p(f"v_add_u32 v{V_VP+1}, 114688, v{V_VP}")
    voffT8_lane(p, V, 5, 2048, 0)
    p("s_and_b32 s86, s3, 3"); p("s_lshl_b32 s86, s86, 15"); p("s_lshr_b32 s87, s3, 2"); p("s_lshl_b32 s87, s87, 7"); p("s_add_u32 s86, s86, s87")
    p(f"s_lshl_b32 s87, s{S_TA}, 8"); p("s_add_u32 s86, s86, s87")
    p(f"v_add_u32 v{V_VD}, s86, v5")
    p(f"v_xor_b32 v{V_VD+1}, 64, v{V_VD}"); p(f"v_add_u32 v{V_VD+1}, 16384, v{V_VD+1}")
    for w in range(nwin): addrT_setup(p, V, V_AT + 4 * w, 128, w * WIN)
    def reads_o(kappa):
        s, kk = divmod(kappa, 2)
        out = []
        for b in range(8):
            for hh in range(2):
                off = (s % NS) * STG + (b >> 2) * 8192 + kk * 4096 + hh * 512; w = off // WIN
                out.append(f"ds_read_b64_tr_b16 {vr(SH + kk*32 + 4*b + 2*hh, 2)}, v{V_AT+4*w+(b&3)} offset:{off - w*WIN}")
        return out
    def mfmas_o(kappa):
        kk = kappa % 2
        out = []
        if cfg.get("fake32"):
            for b in range(4):
                for h in range(2):
                    acc = ACC + b * 16
                    c = vr(acc, 16) if (kappa > 0 or h) else "0"
                    out.append(f"v_mfma_f32_32x32x16_bf16 {vr(acc,16)}, {vr(SH+kk*32+4*(2*b+h),4)}, {ar(A_P+(kappa%NPS)*8+4*h,4)}, {c}")
            return out
        for b in range(8):
            for i in range(2):
                acc = ACC + (b * 2 + i) * 4
                c = vr(acc, 4) if kappa > 0 else "0"
                out.append(f"{MF} {vr(acc,4)}, {vr(SH+kk*32+4*b,4)}, {ar(A_P+(kappa%NPS)*8+4*i,4)}, {c}")
        return out
    gemm_mainloop(p, "k2o", 28, NS, NPS, S_CNT, mfmas_o, reads_o, mk_dmas(131072), privs, read_frac=cfg.get("k2o_rf", 0.7))
    p(f"s_and_b32 s89, s{S_ROLE}, 1"); p("s_lshl_b32 s89, s89, 23"); p(f"s_add_u32 s89, s89, {O1_OFF}")
    p(f"s_add_u32 s8, s{S_WS}, s89"); p(f"s_addc_u32 s9, s{S_WS+1}, 0"); p("s_mov_b32 s10, 8388608"); p("s_mov_b32 s11, 0x20000")
    p("v_and_b32 v2, 15, v1"); p("v_lshlrev_b32 v2, 12, v2"); p("v_lshrrev_b32 v3, 4, v1"); p("v_lshl_add_u32 v2, v3, 4, v2")
    p(f"s_lshl_b32 s86, s{S_TB}, 20"); p("s_lshl_b32 s87, s3, 17"); p("s_add_u32 s86, s86, s87"); p(f"s_lshl_b32 s87, s{S_TA}, 9"); p("s_add_u32 s86, s86, s87")
    p("v_add_u32 v2, s86, v2"); p("v_add_u32 v3, 0x10000, v2")
    p("s_nop 6")
    for b in range(8):
        for i in range(2):
            acc = ACC + (b * 2 + i) * 4
            p(f"buffer_store_dwordx4 {vr(acc,4)}, v{2+i}, s[8:11], 0 offen offset:{64*b}{SC}")
    p(f"s_lshl_b32 s86, s{S_TB}, 3"); p(f"s_add_u32 s86, s86, s{S_TA}"); p(f"s_lshl_b32 s87, s{S_ROLE}, 6"); p(f"s_add_u32 s{S_FLAG}, s86, s87")
    p(f"s_mov_b32 s{S_R}, s{S_TB}"); p(f"s_lshr_b32 s{S_C}, s{S_TA}, 1"); p(f"s_and_b32 s{S_CG}, s{S_TA}, 1")
    p(f"s_and_b32 s86, s{S_ROLE}, 1"); p("s_lshl_b32 s86, s86, 1"); p(f"s_add_u32 s{S_RG}, s86, 1")
    p("s_branch k2_publish")

    p.label("k2_typeY")
    p("s_lshl_b32 s88, s88, 3"); p("s_lshr_b32 s89, s87, 2"); p(f"s_add_u32 s{S_TB}, s88, s89"); p(f"s_and_b32 s{S_TA}, s87, 3")
    if cfg.get("same"): p(f"s_mov_b32 s{S_TA}, 0"); p(f"s_mov_b32 s{S_TB}, 0")
    p(f"s_lshl_b32 s{S_KP}, s{S_ROLE}, 16")
    p(f"s_mov_b32 s{S_SOFF}, 0")
    srd(p, S_SRDP, S_WS, S_WS + 1, ABF_SZ, ABF_OFF)
    p(f"s_cmp_eq_u32 s{S_ROLE}, 0")
    p(f"s_cselect_b32 s{S_SRDS}, s{S_CR}, s{S_CI}"); p(f"s_cselect_b32 s{S_SRDS+1}, s{S_CR+1}, s{S_CI+1}")
    p(f"s_mov_b32 s{S_SRDS+2}, 8388608"); p(f"s_mov_b32 s{S_SRDS+3}, 0x20000")
    p(f"s_lshl_b32 s86, s{S_TA}, 4"); p("s_lshl_b32 s87, s3, 1"); p("s_add_u32 s86, s86, s87"); p("s_lshl_b32 s86, s86, 17")
    p(f"v_lshlrev_b32 v{V_VP}, 4, v1"); p(f"v_add_u32 v{V_VP}, s86, v{V_VP}"); p(f"v_add_u32 v{V_VP+1}, 131072, v{V_VP}")
    voffK_lane(p, V, 5, 4096, 0)
    p(f"s_lshl_b32 s86, s{S_TB}, 7"); p("s_lshl_b32 s87, s3, 4"); p("s_add_u32 s86, s86, s87"); p("s_lshl_b32 s86, s86, 12")
    p(f"v_add_u32 v{V_VD}, s86, v5")
    p(f"v_xor_b32 v{V_VD+1}, 64, v{V_VD}"); p(f"v_add_u32 v{V_VD+1}, 32768, v{V_VD+1}")
    for w in range(nwin): addrK_setup(p, V, V_AK + 2 * w, V_AK + 2 * w + 1, w * WIN)
    def reads_y(kappa):
        s, kk = divmod(kappa, 2)
        out = []
        for b in range(8):
            off = (s % NS) * STG + 2048 * b; w = off // WIN
            out.append(f"ds_read_b128 {vr(SH + kk*32 + 4*b, 4)}, v{V_AK+2*w+kk} offset:{off - w*WIN}")
        return out
    def mfmas_y(kappa):
        kk = kappa % 2
        out = []
        if cfg.get("fake32"):
            for b in range(4):
                for h in range(2):
                    acc = ACC + b * 16
                    c = vr(acc, 16) if (kappa > 0 or h) else "0"
                    out.append(f"v_mfma_f32_32x32x16_bf16 {vr(acc,16)}, {ar(A_P+(kappa%NPS)*8+4*h,4)}, {vr(SH+kk*32+4*(2*b+h),4)}, {c}")
            return out
        for b in range(8):
            for i in range(2):
                acc = ACC + (i * 8 + b) * 4
                c = vr(acc, 4) if kappa > 0 else "0"
                out.append(f"{MF} {vr(acc,4)}, {ar(A_P+(kappa%NPS)*8+4*i,4)}, {vr(SH+kk*32+4*b,4)}, {c}")
        return out
    gemm_mainloop(p, "k2y", 32, NS, NPS, S_CNT, mfmas_y, reads_y, mk_dmas(128), privs, read_frac=cfg.get("k2y_rf", 0.7))
    p(f"s_lshl_b32 s89, s{S_ROLE}, 22"); p(f"s_add_u32 s89, s89, {PP_OFF}")
    p(f"s_add_u32 s8, s{S_WS}, s89"); p(f"s_addc_u32 s9, s{S_WS+1}, 0"); p("s_mov_b32 s10, 4194304"); p("s_mov_b32 s11, 0x20000")
    p("v_lshrrev_b32 v2, 4, v1"); p("v_and_b32 v3, 1, v2"); p("v_lshlrev_b32 v3, 5, v3"); p("v_lshrrev_b32 v2, 1, v2"); p("v_lshl_add_u32 v3, v2, 4, v3")
    p("v_and_b32 v2, 15, v1"); p("v_lshl_add_u32 v3, v2, 11, v3")
    p(f"s_lshl_b32 s86, s{S_TB}, 18"); p(f"s_lshl_b32 s87, s{S_TA}, 9"); p("s_add_u32 s86, s86, s87"); p("s_lshl_b32 s87, s3, 6"); p("s_add_u32 s86, s86, s87")
    p("v_add_u32 v3, s86, v3")
    for tj in range(8):
        t = SH + 4 * tj
        a0 = ACC + tj * 4; a1 = ACC + (8 + tj) * 4
        p(f"v_cvt_pk_bf16_f32 v{t}, v{a0}, v{a0+1}"); p(f"v_cvt_pk_bf16_f32 v{t+1}, v{a0+2}, v{a0+3}")
        p(f"v_cvt_pk_bf16_f32 v{t+2}, v{a1}, v{a1+1}"); p(f"v_cvt_pk_bf16_f32 v{t+3}, v{a1+2}, v{a1+3}")
        p(f"s_mov_b32 s87, {32768*tj}"); p("s_nop 0")
        p(f"v_permlane16_swap_b32 v{t}, v{t+2}"); p(f"v_permlane16_swap_b32 v{t+1}, v{t+3}")
        p(f"buffer_store_dwordx4 v[{t}:{t+3}], v3, s[8:11], s87 offen{SC}")
    p(f"s_lshl_b32 s86, s{S_TB}, 2"); p(f"s_add_u32 s86, s86, s{S_TA}"); p(f"s_lshl_b32 s87, s{S_ROLE}, 6"); p(f"s_add_u32 s{S_FLAG}, s86, s87")
    p(f"s_lshr_b32 s{S_R}, s{S_TB}, 1"); p(f"s_mov_b32 s{S_C}, s{S_TA}"); p(f"s_mov_b32 s{S_CG}, s{S_ROLE}")
    p(f"s_and_b32 s86, s{S_TB}, 1"); p(f"s_lshl_b32 s{S_RG}, s86, 1")

    p.label("k2_publish")
    stamp(p, 2)
    if cfg.get("same"):
        fin(p, 2); p("s_endpgm")
    srd(p, 12, S_WS, S_WS + 1, FL2_SZ, FL2_OFF)
    srd(p, 4, S_X, S_X + 1, 4194304)
    srd(p, 60, S_B2, S_B2 + 1, 2048)
    srd(p, 64, S_WS, S_WS + 1, 4194304, PP_OFF)
    srd(p, 68, S_WS, S_WS + 1, 4194304, QP_OFF)
    srd(p, 72, S_WS, S_WS + 1, 8388608, O1_OFF)
    srd(p, 76, S_WS, S_WS + 1, 8388608, O2_OFF)
    srd(p, 52, S_OUT, S_OUT + 1, 4194304)
    p(f"s_lshl_b32 s86, s{S_R}, 8"); p(f"s_lshl_b32 s87, s{S_RG}, 6"); p("s_add_u32 s86, s86, s87"); p("s_lshl_b32 s86, s86, 10")
    p(f"s_lshl_b32 s87, s{S_C}, 8"); p(f"s_lshl_b32 s88, s{S_CG}, 7"); p("s_add_u32 s87, s87, s88")
    p("v_and_b32 v4, 15, v0"); p("v_lshlrev_b32 v4, 3, v4"); p("v_add_u32 v4, s87, v4")
    p("v_lshrrev_b32 v5, 4, v0"); p("v_lshl_add_u32 v5, v5, 10, v4"); p("v_add_u32 v5, s86, v5")
    p("v_lshlrev_b32 v4, 1, v4")
    p("v_lshlrev_b32 v6, 2, v5")
    p("v_lshlrev_b32 v5, 1, v5")
    p("s_mov_b32 s90, 65536"); p("s_mov_b32 s91, 131072")
    p("s_waitcnt vmcnt(0)")
    p("s_barrier")
    XR, BR, O1R, O2R, PR, QR = 32, 40, 44, 60, 76, 84
    p(f"buffer_load_dwordx4 v[{XR}:{XR+3}], v5, s[4:7], 0 offen")
    p(f"buffer_load_dwordx4 v[{XR+4}:{XR+7}], v5, s[4:7], s90 offen")
    p(f"buffer_load_dwordx4 v[{BR}:{BR+3}], v4, s[60:63], 0 offen")
    p("s_cmp_lg_u32 s3, 0"); p("s_cbranch_scc1 k2_w_o")
    p(f"s_lshl_b32 s86, s{S_FLAG}, 7"); p("v_mov_b32 v2, s86"); p("v_mov_b32 v3, 1")
    p("s_mov_b64 exec, 1")
    p(f"buffer_store_dword v3, v2, s[12:15], 0 offen{SC}")
    p("s_mov_b64 exec, -1")
    p("v_and_b32 v2, 1, v1"); p("v_lshlrev_b32 v2, 13, v2")
    p(f"s_lshl_b32 s86, s{S_R}, 3"); p(f"s_lshl_b32 s87, s{S_C}, 1"); p("s_add_u32 s86, s86, s87"); p(f"s_add_u32 s86, s86, s{S_CG}"); p("s_add_u32 s86, s86, 128"); p("s_lshl_b32 s86, s86, 7")
    p("v_add_u32 v7, s86, v2")
    p(f"s_lshl_b32 s86, s{S_R}, 1"); p(f"s_lshr_b32 s87, s{S_RG}, 1"); p("s_add_u32 s86, s86, s87"); p("s_lshl_b32 s86, s86, 2"); p(f"s_add_u32 s86, s86, s{S_C}"); p("s_lshl_b32 s86, s86, 7")
    p("v_add_u32 v8, s86, v2")
    p.label("k2_poll_o")
    p(f"buffer_load_dword v9, v7, s[12:15], 0 offen{SC}")
    p("s_waitcnt vmcnt(0)")
    p("v_cmp_ne_u32 vcc, 1, v9")
    p("s_cbranch_vccz k2_w_o")
    p("s_sleep 1")
    p("s_branch k2_poll_o")
    p.label("k2_w_o")
    p("s_barrier")
    for ps in range(2):
        so = "0" if ps == 0 else "s91"
        p(f"buffer_load_dwordx4 v[{O1R+8*ps}:{O1R+8*ps+3}], v6, s[72:75], {so} offen{SC}")
        p(f"buffer_load_dwordx4 v[{O1R+8*ps+4}:{O1R+8*ps+7}], v6, s[72:75], {so} offen offset:16{SC}")
        p(f"buffer_load_dwordx4 v[{O2R+8*ps}:{O2R+8*ps+3}], v6, s[76:79], {so} offen{SC}")
        p(f"buffer_load_dwordx4 v[{O2R+8*ps+4}:{O2R+8*ps+7}], v6, s[76:79], {so} offen offset:16{SC}")
    p(f"s_mov_b32 s92, {hex(f2u(-math.log2(math.e)))}")
    p("s_waitcnt vmcnt(0)")
    B_ = 96; U_ = 104; W_ = 120; T = 136; GR = 144
    for i in range(4):
        p(f"v_lshlrev_b32 v{B_+2*i}, 16, v{BR+i}"); p(f"v_and_b32 v{B_+2*i+1}, 0xffff0000, v{BR+i}")
    for i in range(16): p(f"v_add_f32 v{U_+i}, v{O1R+i}, v{O2R+i}")
    for i in range(8): p(f"v_cvt_pk_bf16_f32 v{T+i}, v{U_+2*i}, v{U_+2*i+1}")
    for i in range(8):
        p(f"v_lshlrev_b32 v{U_+2*i}, 16, v{T+i}"); p(f"v_and_b32 v{U_+2*i+1}, 0xffff0000, v{T+i}")
    for i in range(16): p(f"v_add_f32 v{U_+i}, v{U_+i}, v{B_+(i%8)}")
    for i in range(8): p(f"v_cvt_pk_bf16_f32 v{T+i}, v{U_+2*i}, v{U_+2*i+1}")
    for i in range(8):
        p(f"v_lshlrev_b32 v{U_+2*i}, 16, v{T+i}"); p(f"v_and_b32 v{U_+2*i+1}, 0xffff0000, v{T+i}")
    for i in range(16): p(f"v_mul_f32 v{W_+i}, s92, v{U_+i}")
    for i in range(16): p(f"v_exp_f32 v{W_+i}, v{W_+i}")
    for i in range(16): p(f"v_add_f32 v{W_+i}, 1.0, v{W_+i}")
    for i in range(16): p(f"v_rcp_f32 v{W_+i}, v{W_+i}")
    for i in range(16): p(f"v_mul_f32 v{W_+i}, v{W_+i}, v{U_+i}")
    for i in range(8): p(f"v_cvt_pk_bf16_f32 v{T+i}, v{W_+2*i}, v{W_+2*i+1}")
    for i in range(8):
        p(f"v_lshlrev_b32 v{GR+2*i}, 16, v{T+i}"); p(f"v_and_b32 v{GR+2*i+1}, 0xffff0000, v{T+i}")
    for i in range(8):
        p(f"v_lshlrev_b32 v{O1R+2*i}, 16, v{XR+i}"); p(f"v_and_b32 v{O1R+2*i+1}, 0xffff0000, v{XR+i}")
    p("s_cmp_lg_u32 s3, 0"); p("s_cbranch_scc1 k2_w_y")
    p.label("k2_poll_y")
    p(f"buffer_load_dword v9, v8, s[12:15], 0 offen{SC}")
    p("s_waitcnt vmcnt(0)")
    p("v_cmp_ne_u32 vcc, 1, v9")
    p("s_cbranch_vccz k2_w_y")
    p("s_sleep 1")
    p("s_branch k2_poll_y")
    p.label("k2_w_y")
    p("s_barrier")
    for ps in range(2):
        so = "0" if ps == 0 else "s90"
        p(f"buffer_load_dwordx4 v[{PR+4*ps}:{PR+4*ps+3}], v5, s[64:67], {so} offen{SC}")
        p(f"buffer_load_dwordx4 v[{QR+4*ps}:{QR+4*ps+3}], v5, s[68:71], {so} offen{SC}")
    p("s_waitcnt vmcnt(0)")
    for i in range(8):
        p(f"v_lshlrev_b32 v{U_+2*i}, 16, v{PR+i}"); p(f"v_and_b32 v{U_+2*i+1}, 0xffff0000, v{PR+i}")
        p(f"v_lshlrev_b32 v{W_+2*i}, 16, v{QR+i}"); p(f"v_and_b32 v{W_+2*i+1}, 0xffff0000, v{QR+i}")
    for i in range(16): p(f"v_sub_f32 v{U_+i}, v{U_+i}, v{W_+i}")
    for i in range(8): p(f"v_cvt_pk_bf16_f32 v{T+i}, v{U_+2*i}, v{U_+2*i+1}")
    for i in range(8):
        p(f"v_lshlrev_b32 v{U_+2*i}, 16, v{T+i}"); p(f"v_and_b32 v{U_+2*i+1}, 0xffff0000, v{T+i}")
    for i in range(16): p(f"v_mul_f32 v{U_+i}, v{U_+i}, v{GR+i}")
    for i in range(8): p(f"v_cvt_pk_bf16_f32 v{T+i}, v{U_+2*i}, v{U_+2*i+1}")
    for i in range(8):
        p(f"v_lshlrev_b32 v{U_+2*i}, 16, v{T+i}"); p(f"v_and_b32 v{U_+2*i+1}, 0xffff0000, v{T+i}")
    for i in range(16): p(f"v_add_f32 v{U_+i}, v{U_+i}, v{O1R+i}")
    for i in range(8): p(f"v_cvt_pk_bf16_f32 v{T+i}, v{U_+2*i}, v{U_+2*i+1}")
    p(f"buffer_store_dwordx4 v[{T}:{T+3}], v5, s[52:55], 0 offen")
    p(f"buffer_store_dwordx4 v[{T+4}:{T+7}], v5, s[52:55], s90 offen")
    fin(p, 2)
    p.label("k2_end")
    p("s_endpgm")
    return name, 160 + NPS * 8, 102, 160

def generate(cfg, kernels=("k0", "k1", "k2")):
    CFG.clear(); CFG.update(cfg); CFG["ts_sbase"] = 98
    body = Prog()
    info = []
    lds = {"k0": 0, "k1": cfg["k1_ns"] * 24576 + 8192, "k2": cfg["k2_ns"] * 16384}
    blk = {"k0": 512, "k1": 512, "k2": 512}
    info.append(("k0",) + gen.gen_k0(body)); CFG["ts_cbase"] = 64; info.append(("k1",) + gen_k1(body, cfg)); CFG["ts_cbase"] = 80; info.append(("k2",) + gen_k2(body, cfg))
    out = ["; FNet (dense DFT matmuls) + GELU FFN fused block; generated by dev/gen2.py"]
    for k in kernels:
        out.append(f"; @launch kernel={k}_kernel grid=(256,1,1) block=({blk[k]},1,1) lds={lds[k]}")
    out.append('.amdgcn_target "amdgcn-amd-amdhsa--gfx950"')
    out.append(".text")
    out += body.L
    out.append('.section .rodata,"a"')
    for k, name, nfv, nfs, acc in info:
        out += [".p2align 6", f".amdhsa_kernel {name}", f"  .amdhsa_next_free_vgpr {nfv}", f"  .amdhsa_next_free_sgpr {nfs}",
                f"  .amdhsa_accum_offset {acc}", "  .amdhsa_group_segment_fixed_size 0", "  .amdhsa_kernarg_size 104",
                "  .amdhsa_user_sgpr_count 2", "  .amdhsa_user_sgpr_kernarg_segment_ptr 1", "  .amdhsa_system_sgpr_workgroup_id_x 1",
                ".end_amdhsa_kernel"]
    return "\n".join(out) + "\n"

DEFAULT = dict(k1_ns=4, k1_nps=4, k2_ns=4, k2_nps=8)
if __name__ == "__main__":
    cfg = dict(DEFAULT)
    fn = sys.argv[1] if len(sys.argv) > 1 else "full2.s"
    for a in sys.argv[2:]:
        k, v = a.split("=")
        cfg[k] = float(v) if "." in v else int(v)
    kern = ("k0", "k1", "k2", "k2") if cfg.get("k2twice") else ("k0", "k1", "k2")
    open(fn, "w").write(generate(cfg, kern))
```

```python
import sys, math
import gen, gen2
from gen import *
from gen2 import gelu_batch, FL2_OFF, FL2_SZ
TY_OFF, TG_OFF = WSB + (28 << 20), WSB + (32 << 20)

def gelu_pk(p, src, bias, T, n):
    Pk = T; U_ = T + n // 2; W_ = U_ + n
    pr = lambda r: f"v[{r}:{r+1}]"
    for i in range(n // 2): p(f"v_cvt_pk_bf16_f32 v{Pk+i}, v{src[2*i]}, v{src[2*i+1]}")
    for i in range(n // 2):
        p(f"v_lshlrev_b32 v{U_+2*i}, 16, v{Pk+i}"); p(f"v_and_b32 v{U_+2*i+1}, 0xffff0000, v{Pk+i}")
    for i in range(0, n, 2): p(f"v_pk_add_f32 {pr(U_+i)}, {pr(U_+i)}, {pr(bias[i])}")
    for i in range(n // 2): p(f"v_cvt_pk_bf16_f32 v{Pk+i}, v{U_+2*i}, v{U_+2*i+1}")
    for i in range(n // 2):
        p(f"v_lshlrev_b32 v{U_+2*i}, 16, v{Pk+i}"); p(f"v_and_b32 v{U_+2*i+1}, 0xffff0000, v{Pk+i}")
    for i in range(0, n, 2): p(f"v_pk_mul_f32 {pr(W_+i)}, {pr(U_+i)}, {pr(U_+i)}")
    for i in range(0, n, 2): p(f"v_pk_fma_f32 {pr(W_+i)}, {pr(W_+i)}, s[90:91], v[2:3]")
    for i in range(0, n, 2): p(f"v_pk_mul_f32 {pr(W_+i)}, {pr(W_+i)}, {pr(U_+i)}")
    for i in range(n): p(f"v_exp_f32 v{W_+i}, v{W_+i}")
    for i in range(0, n, 2): p(f"v_pk_add_f32 {pr(W_+i)}, {pr(W_+i)}, 1.0 op_sel_hi:[1,0]")
    for i in range(n): p(f"v_rcp_f32 v{W_+i}, v{W_+i}")
    for i in range(0, n, 2): p(f"v_pk_mul_f32 {pr(W_+i)}, {pr(W_+i)}, {pr(U_+i)}")
    for i in range(n // 2): p(f"v_cvt_pk_bf16_f32 v{Pk+i}, v{W_+2*i}, v{W_+2*i+1}")

def gen_kf(p, cfg):
    name = "kf_kernel"
    CY, CO = 32, 192
    NSD, NSY, NSO, NS2, NPS2 = cfg["nsd"], cfg["nsy"], cfg["nso"], cfg["k2_ns"], cfg["k2_nps"]
    WIN = 65536
    BIAS_LDS = 131072
    SC = " sc1"
    tm = cfg.get("tsmode", 0)
    kernel_head(p, name)
    p("s_cmp_ge_u32 s2, 256"); p("s_cbranch_scc1 kf_end")
    load_ptrs(p)
    V = dict(lane=1, t0=2, t1=3, t2=4)
    V_VP, V_VD, V_PF, V_DUM, V_AK, V_AT = 8, 10, 13, 7, 16, 20
    V_VD2 = 28
    ACC = 32
    S_SRDP, S_SRDS, S_SOFF = 4, 44, 56
    S_KP, S_M0B, S_CNT, S_MT, S_NT = 80, 81, 82, 83, 84
    S2_SRDS, S2_SOFF, S2_M0B, S_TA, S_TB, S_G, S_X7, S_M, S_WQ, S_TILE = 64, 68, 69, 70, 71, 72, 73, 74, 76, 77
    S_FSRD = 48
    lane_consts(p, V)
    p(f"s_and_b32 s{S_X7}, s2, 7"); p("s_lshr_b32 s87, s2, 3"); p(f"s_lshr_b32 s{S_M}, s87, 1"); p("s_and_b32 s75, s87, 1")
    p(f"s_and_b32 s88, s{S_X7}, 1"); p("s_lshl_b32 s88, s88, 2"); p(f"s_and_b32 s89, s{S_M}, 3"); p(f"s_add_u32 s{S_MT}, s88, s89")
    p(f"s_lshr_b32 s88, s{S_X7}, 1"); p("s_lshl_b32 s88, s88, 2"); p(f"s_lshr_b32 s89, s{S_M}, 2"); p(f"s_add_u32 s{S_NT}, s88, s89")
    p(f"s_mov_b32 s{S_TA}, s{S_MT}"); p(f"s_mov_b32 s{S_TB}, s{S_NT}")
    p(f"s_lshl_b32 s{S_TILE}, s{S_TB}, 3"); p(f"s_add_u32 s{S_TILE}, s{S_TILE}, s{S_TA}")
    p(f"s_lshr_b32 s{S_G}, s3, 2"); p(f"s_and_b32 s{S_WQ}, s3, 3")
    p(f"s_lshl_b32 s{S2_M0B}, s3, 12")
    p(f"s_mov_b32 s{S_KP}, 0")
    p(f"s_lshl_b32 s86, s{S_MT}, 4"); p("s_lshl_b32 s87, s3, 1"); p("s_add_u32 s86, s86, s87"); p("s_lshl_b32 s86, s86, 15")
    p(f"v_lshlrev_b32 v{V_VP}, 4, v1"); p(f"v_add_u32 v{V_VP}, s86, v{V_VP}"); p(f"v_add_u32 v{V_VP+1}, 32768, v{V_VP}")
    p("s_lshl_b32 s86, s2, 3"); p("s_add_u32 s86, s86, s3"); p("s_lshl_b32 s87, s86, 12"); p("s_mul_i32 s86, s86, 3584")
    p(f"v_lshlrev_b32 v{V_PF+1}, 7, v1"); p(f"v_add_u32 v{V_PF}, s87, v{V_PF+1}"); p(f"v_add_u32 v{V_PF+1}, s86, v{V_PF+1}")
    if cfg.get("pf1", 2) == 3:
        p("v_mul_u32_u24 v3, 21846, v1"); p("v_lshrrev_b32 v3, 16, v3"); p("v_lshlrev_b32 v3, 28, v3")
        p("v_mov_b32 v2, 0xf0000000")
        p("v_cmp_gt_u32 vcc, 32, v1"); p("s_nop 1"); p("v_cndmask_b32 v4, v2, v3, vcc"); p(f"v_add_u32 v{V_PF}, v4, v{V_PF}")
        p("v_cmp_gt_u32 vcc, 28, v1"); p("s_nop 1"); p("v_cndmask_b32 v4, v2, v3, vcc"); p(f"v_add_u32 v{V_PF+1}, v4, v{V_PF+1}")
    else:
        p("v_mov_b32 v2, 0x80000000")
        p("v_cmp_gt_u32 vcc, 32, v1"); p("s_nop 1"); p(f"v_cndmask_b32 v{V_PF}, v2, v{V_PF}, vcc")
        p("v_cmp_gt_u32 vcc, 28, v1"); p("s_nop 1"); p(f"v_cndmask_b32 v{V_PF+1}, v2, v{V_PF+1}, vcc")
    p("s_waitcnt lgkmcnt(0)")
    stamp(p, 0)
    srd(p, S_SRDP, S_WS, S_WS + 1, XF_SZ, XF_OFF)
    srd(p, S_FSRD, S_WS, S_WS + 1, FL2_SZ, FL2_OFF)
    srd(p, 8, S_X, S_X + 1, 4194304)
    srd(p, 12, S_DBG, S_DBG + 1, 256)
    p(f"s_lshl_b32 s86, s75, 4"); p(f"s_add_u32 s79, s86, s{S_NT}")
    p(f"s_lshl_b32 s86, s{S_MT}, 5"); p("s_add_u32 s86, s86, s79"); p("s_lshl_b32 s86, s86, 3"); p("s_add_u32 s86, s86, s3")
    p("s_lshl_b32 s87, s86, 11")
    p("v_lshlrev_b32 v40, 4, v1")
    p("buffer_load_dwordx4 v[48:51], v40, s[8:11], s87 offen")
    p("buffer_load_dwordx4 v[52:55], v40, s[8:11], s87 offen offset:1024")
    p("v_mov_b32 v44, 0")
    p(f"s_lshl_b32 s87, s{S_MT}, 8"); p("s_lshl_b32 s88, s79, 3"); p("s_add_u32 s60, s87, s88")
    p("s_or_b32 s87, s2, s3"); p("s_cmp_lg_u32 s87, 0"); p("s_cbranch_scc1 kf_notok")
    p("s_memrealtime s[88:89]"); p("s_waitcnt lgkmcnt(0)")
    p("s_or_b32 s88, s88, 1"); p("s_xor_b32 s89, s89, 0x5bd1e995")
    p("v_mov_b32 v42, s88"); p("v_mov_b32 v43, s89")
    p("s_mov_b64 exec, 1")
    p("buffer_store_dwordx2 v[42:43], v44, s[12:15], 0 offen sc1")
    p("s_mov_b64 exec, -1")
    p("s_waitcnt vmcnt(0)")
    p.label("kf_notok")
    p("s_lshr_b32 s87, s86, 4"); p("s_lshl_b32 s87, s87, 15"); p("s_and_b32 s88, s86, 8"); p("s_lshl_b32 s88, s88, 4"); p("s_add_u32 s61, s87, s88")
    p("s_lshl_b32 s87, s3, 12"); p("s_add_u32 s61, s61, s87")
    p("v_lshrrev_b32 v45, 5, v1"); p("v_lshlrev_b32 v45, 10, v45"); p("v_bfe_u32 v46, v1, 3, 2"); p("v_lshl_add_u32 v45, v46, 8, v45")
    p("v_and_b32 v46, 7, v1"); p("v_lshl_add_u32 v45, v46, 4, v45")
    p("s_lshl_b32 s87, s3, 4"); p("s_add_u32 s87, s87, 98304"); p("v_lshlrev_b32 v46, 7, v1"); p("v_add_u32 v46, s87, v46")
    p("s_lshl_b32 s87, s3, 11"); p("s_add_u32 s87, s87, 98304"); p("v_add_u32 v47, s87, v40")
    X0 = 56
    p("s_waitcnt vmcnt(1)")
    for i in range(4):
        p(f"v_lshlrev_b32 v{X0+2*i}, 16, v{48+i}"); p(f"v_and_b32 v{X0+1+2*i}, 0xffff0000, v{48+i}")
    p("s_waitcnt vmcnt(0)")
    for i in range(4, 8):
        p(f"v_lshlrev_b32 v{X0+2*i}, 16, v{48+i}"); p(f"v_and_b32 v{X0+1+2*i}, 0xffff0000, v{48+i}")
    def wave_sum(src, tmp, sbase):
        for ctl in ("quad_perm:[1,0,3,2]", "quad_perm:[2,3,0,1]", "row_half_mirror", "row_mirror"):
            p("s_nop 1")
            p(f"v_add_f32_dpp v{tmp}, v{src}, v{src} {ctl} row_mask:0xf bank_mask:0xf")
            p(f"v_mov_b32 v{src}, v{tmp}")
        p("s_nop 0")
        for i in range(4): p(f"v_readlane_b32 s{sbase+i}, v{src}, {16*i}")
        p("s_nop 1")
        p(f"v_mov_b32 v{src}, s{sbase}")
        for i in range(1, 4): p(f"v_add_f32 v{src}, s{sbase+i}, v{src}")
    A_ = 72; D_ = 84
    for i in range(8): p(f"v_add_f32 v{A_+i}, v{X0+2*i}, v{X0+1+2*i}")
    for st in (4, 2, 1):
        for i in range(st): p(f"v_add_f32 v{A_+i}, v{A_+i}, v{A_+i+st}")
    wave_sum(A_, A_ + 1, 86)
    p(f"v_mul_f32 v{A_}, {hex(f2u(1.0/1024))}, v{A_}")
    for i in range(16): p(f"v_sub_f32 v{D_+i}, v{X0+i}, v{A_}")
    for i in range(8):
        p(f"v_mul_f32 v{A_+2+i}, v{D_+2*i}, v{D_+2*i}"); p(f"v_fmac_f32 v{A_+2+i}, v{D_+1+2*i}, v{D_+1+2*i}")
    for st in (4, 2, 1):
        for i in range(st): p(f"v_add_f32 v{A_+2+i}, v{A_+2+i}, v{A_+2+i+st}")
    wave_sum(A_ + 2, A_ + 3, 86)
    M_, V_, R_ = A_, A_ + 2, A_ + 3
    p(f"v_mul_f32 v{V_}, {hex(f2u(1.0/1024))}, v{V_}")
    p(f"v_cvt_pk_bf16_f32 v{R_}, v{M_}, v{V_}")
    p(f"v_lshlrev_b32 v{M_}, 16, v{R_}"); p(f"v_and_b32 v{V_}, 0xffff0000, v{R_}")
    p(f"v_add_f32 v{V_}, {hex(f2u(1e-5))}, v{V_}")
    p(f"v_cvt_pk_bf16_f32 v{V_}, v{V_}, v{V_}"); p(f"v_lshlrev_b32 v{V_}, 16, v{V_}")
    p(f"v_sqrt_f32 v{V_}, v{V_}"); p("s_nop 0")
    p(f"v_cvt_pk_bf16_f32 v{V_}, v{V_}, v{V_}"); p(f"v_lshlrev_b32 v{V_}, 16, v{V_}")
    p(f"v_rcp_f32 v{R_}, v{V_}")
    for i in range(16): p(f"v_sub_f32 v{X0+i}, v{X0+i}, v{M_}")
    for i in range(8): p(f"v_cvt_pk_bf16_f32 v{48+i}, v{X0+2*i}, v{X0+1+2*i}")
    for i in range(8):
        p(f"v_lshlrev_b32 v{X0+2*i}, 16, v{48+i}"); p(f"v_and_b32 v{X0+1+2*i}, 0xffff0000, v{48+i}")
    for i in range(16): p(f"v_mul_f32 v{D_+i}, v{X0+i}, v{R_}")
    for i in range(16): p(f"v_fma_f32 v{X0+i}, -v{D_+i}, v{V_}, v{X0+i}")
    for i in range(16): p(f"v_fmac_f32 v{D_+i}, v{X0+i}, v{R_}")
    for i in range(8): p(f"v_cvt_pk_bf16_f32 v{48+i}, v{D_+2*i}, v{D_+1+2*i}")
    p("ds_write_b128 v46, v[48:51]"); p("ds_write_b128 v46, v[52:55] offset:8192")
    p("buffer_load_dwordx2 v[42:43], v44, s[12:15], 0 offen sc1")
    p("s_waitcnt lgkmcnt(0)"); p("s_barrier")
    p("ds_read_b128 v[48:51], v47"); p("ds_read_b128 v[52:55], v47 offset:1024")
    p("s_waitcnt lgkmcnt(0)")
    p(f"buffer_store_dwordx4 v[48:51], v45, s[{S_SRDP}:{S_SRDP+3}], s61 offen sc1")
    p(f"buffer_store_dwordx4 v[52:55], v45, s[{S_SRDP}:{S_SRDP+3}], s61 offen offset:2048 sc1")
    p("s_cmp_eq_u32 s75, 1"); p("s_cbranch_scc1 kf_typeO")

    def hookX(tag, ndma):
        p(f"s_waitcnt vmcnt({ndma})"); p("s_barrier")
        p("s_cmp_lg_u32 s3, 0"); p(f"s_cbranch_scc1 {tag}_w")
        p("v_readfirstlane_b32 s78, v42"); p("v_readfirstlane_b32 s79, v43")
        p("s_cmp_lg_u32 s78, 0"); p(f"s_cbranch_scc1 {tag}_t2")
        srd(p, 12, S_DBG, S_DBG + 1, 256)
        p("v_mov_b32 v2, 0")
        p.label(tag + "_t")
        p("buffer_load_dwordx2 v[4:5], v2, s[12:15], 0 offen sc1")
        p("s_waitcnt vmcnt(0)")
        p("v_readfirstlane_b32 s78, v4"); p("v_readfirstlane_b32 s79, v5")
        p("s_cmp_lg_u32 s78, 0"); p(f"s_cbranch_scc1 {tag}_t2")
        p("s_sleep 1"); p(f"s_branch {tag}_t")
        p.label(tag + "_t2")
        p("v_mov_b32 v4, s78"); p("v_mov_b32 v5, s79")
        p("v_mov_b32 v2, s60")
        p("s_mov_b64 exec, 1")
        p(f"buffer_store_dwordx2 v[4:5], v2, s[{S_FSRD}:{S_FSRD+3}], 0 offen sc1")
        p("s_mov_b64 exec, -1")
        p("v_and_b32 v2, 31, v1"); p("v_lshlrev_b32 v2, 3, v2"); p(f"s_lshl_b32 s86, s{S_MT}, 8"); p("v_add_u32 v2, s86, v2")
        p.label(tag + "_p")
        p(f"buffer_load_dwordx2 v[4:5], v2, s[{S_FSRD}:{S_FSRD+3}], 0 offen sc1")
        p("s_waitcnt vmcnt(0)")
        p("v_cmp_ne_u64 vcc, s[78:79], v[4:5]")
        p(f"s_cbranch_vccz {tag}_w")
        p("s_sleep 1"); p(f"s_branch {tag}_p")
        p.label(tag + "_w")
        p("s_barrier")

    def mkpreg(vbase, nv):
        return lambda r: vr(vbase + r, 4) if r < nv else ar(r - nv, 4)
    def pf(kappa):
        if cfg.get("pf1", 2) == 3:
            m, j = (0, kappa) if kappa < 11 else ((1, kappa - 11) if kappa < 22 else (2, kappa - 22))
            b = (S_CR, S_CI, S_W2)[m]
            pre = [] if j else [f"s_mov_b32 s8, s{b}", f"s_mov_b32 s9, s{b+1}", f"s_mov_b32 s10, {(8388608, 8388608, 7340032)[m]}", "s_mov_b32 s11, 0x20000"]
            pre = pre + [f"v_add_u32 v6, {hex((-(j << 28)) & 0xffffffff)}, v{V_PF + (1 if m == 2 else 0)}"]
            return [(pre, f"buffer_load_dword v{V_DUM}, v6, s[8:11], 0 offen")]
        if not cfg.get("pf1", 2): return []
        ks = (cfg.get("pfk0", 8), cfg.get("pfk1", 16), cfg.get("pfk2", 24))
        if kappa not in ks: return []
        m = ks.index(kappa)
        b = (S_CR, S_CI, S_W2)[m]
        pre = [f"s_mov_b32 s8, s{b}", f"s_mov_b32 s9, s{b+1}", f"s_mov_b32 s10, {(8388608, 8388608, 7340032)[m]}", "s_mov_b32 s11, 0x20000"]
        return [(pre, f"buffer_load_dword v{V_DUM}, v{V_PF + (1 if m == 2 else 0)}, s[8:11], 0 offen")]
    def flag_ops(vaddr, off):
        return (["s_mov_b64 exec, 1"], f"buffer_store_dword v7, v{vaddr}, s[{S_FSRD}:{S_FSRD+3}], 0 offen offset:{off}{SC}", ["s_mov_b64 exec, -1"])

    def phase1(pp, tag, blocks, NS, STG, nslot, delta, SH, PV, NPS, use_pf, dmas_fn=None, **kw):
        nb = len(blocks)
        preg = mkpreg(PV, 224 - PV)
        def dmas(stage):
            out = []
            for i in range(nslot):
                pre = [f"s_add_u32 m0, s{S_M0B}, {(stage % NS) * STG + 1024 * i}"]
                if i == 0 and stage > 0: pre.insert(0, f"s_add_u32 s{S_SOFF}, s{S_SOFF}, {delta}")
                out.append((pre, f"buffer_load_dwordx4 v{V_VD+i}, s[{S_SRDS}:{S_SRDS+3}], s{S_SOFF} offen lds"))
            return out
        def privs(kappa):
            out = []
            for i in range(2):
                pre = []
                if i == 0 and kappa % 4 == 0 and kappa > 0: pre = [f"s_add_u32 s{S_KP}, s{S_KP}, 4096"]
                out.append((pre, f"buffer_load_dwordx4 {preg((kappa % NPS) * 8 + 4 * i)}, v{V_VP+i}, s[{S_SRDP}:{S_SRDP+3}], s{S_KP} offen offset:{(kappa%4)*1024}{SC}"))
            return out
        def reads(kappa):
            s, kk = divmod(kappa, 2)
            ring = (s % NS) * STG
            out = []
            for b, bl in enumerate(blocks):
                a = SH + kk * nb * 4 + 4 * b
                if bl[0] == 'K':
                    off = ring + bl[1]; w = off // WIN
                    out.append(f"ds_read_b128 {vr(a,4)}, v{V_AK+2*w+kk} offset:{off - w*WIN}")
                else:
                    for hh in range(2):
                        off = ring + bl[4] + kk * bl[2] + hh * bl[3]; w = off // WIN
                        out.append(f"ds_read_b64_tr_b16 {vr(a+2*hh,2)}, v{V_AT+4*w+bl[1]} offset:{off - w*WIN}")
            return out
        def mfmas(kappa):
            kk = kappa % 2
            out = []
            for b, bl in enumerate(blocks):
                for i in range(2):
                    acc = ACC + (b * 2 + i) * 4
                    S = vr(SH + kk * nb * 4 + 4 * b, 4); P = preg((kappa % NPS) * 8 + 4 * i)
                    c = vr(acc, 4) if kappa > 0 else "0"
                    out.append(f"{MF} {vr(acc,4)}, {P}, {S}, {c}" if bl[0] == 'K' else f"{MF} {vr(acc,4)}, {S}, {P}, {c}")
            return out
        gemm_mainloop(pp, tag, 16, NS, NPS, S_CNT, mfmas, reads, dmas_fn or dmas, privs, pf=pf if use_pf else None, read_frac=cfg.get("k1_rf", 0.7), **kw)

    def bias_dma(f0):
        srd(p, 12, S_B1, S_B1 + 1, 7168)
        p("v_lshlrev_b32 v2, 4, v1")
        p(f"s_lshl_b32 s86, s{f0}, 1")
        p("s_lshl_b32 s87, s3, 10"); p(f"s_add_u32 m0, s87, {BIAS_LDS}")
        p("s_nop 0")
        p("buffer_load_dwordx4 v2, s[12:15], s86 offen lds")
    def epi_W(nb, f0, TB, b0=0):
        srd(p, 8, S_WS, S_WS + 1, HF_SZ, HF_OFF)
        BPf = lambda n: 8 + 2 * n if n < 10 else 216 + 2 * (n - 10)
        p("v_lshrrev_b32 v2, 4, v1")
        p("s_lshl_b32 s87, s3, 10"); p(f"s_add_u32 s87, s87, {BIAS_LDS}")
        p("v_lshlrev_b32 v3, 3, v2"); p("v_add_u32 v3, s87, v3")
        for n in range(nb): p(f"ds_read_b64 v[{BPf(n)}:{BPf(n)+1}], v3 offset:{32*n}")
        p(f"s_mov_b32 s90, {hex(f2u(C2))}"); p(f"v_mov_b32 v5, {hex(f2u(C1))}")
        p("v_and_b32 v3, 1, v2"); p("v_lshlrev_b32 v3, 1, v3"); p("v_lshrrev_b32 v4, 1, v2"); p("v_or_b32 v3, v3, v4")
        p("v_lshlrev_b32 v3, 8, v3"); p("v_and_b32 v4, 15, v1"); p("v_lshl_add_u32 v4, v4, 4, v3")
        p(f"s_lshl_b32 s86, s{S_MT}, 4"); p("s_lshl_b32 s87, s3, 1"); p("s_add_u32 s86, s86, s87"); p("s_mul_i32 s86, s86, 114688")
        p(f"s_lshl_b32 s87, s{f0}, 5"); p("s_add_u32 s86, s86, s87")
        p(f"s_mov_b32 s91, s90"); p("v_mov_b32 v2, v5"); p("v_mov_b32 v3, v5")
        p("s_waitcnt lgkmcnt(0)")
        BF = TB
        for n0 in range(0, nb, 2):
            for k_ in range(2):
                for h in range(2):
                    p(f"v_lshlrev_b32 v{BF+4*k_+2*h}, 16, v{BPf(n0+k_)+h}")
                    p(f"v_and_b32 v{BF+4*k_+2*h+1}, 0xffff0000, v{BPf(n0+k_)+h}")
            src = []; bs = []
            for i in range(2):
                for k_ in range(2):
                    src += [ACC + ((b0 + n0 + k_) * 2 + i) * 4 + r for r in range(4)]
                    bs += [BF + 4 * k_ + r for r in range(4)]
            T0 = TB + 8 + (40 if (n0 // 2) % 2 else 0)
            gelu_pk(p, src, bs, T0, 16)
            for i in range(2):
                p(f"s_add_u32 s87, s86, {114688*i + 1024*(n0//2)}")
                t = T0 + 4 * i
                if i == 0: p("s_nop 0")
                p(f"v_permlane16_swap_b32 v{t}, v{t+2}"); p(f"v_permlane16_swap_b32 v{t+1}, v{t+3}")
                p(f"buffer_store_dwordx4 v[{t}:{t+3}], v4, s[8:11], s87 offen{SC}")
        return nb

    STG2 = 32768
    V2_VP, V2_A = 8, 20
    SH2 = 96
    preg2 = mkpreg(160, 64)
    S2_SRDP, S2_KP = 4, 80
    def privs2(kappa):
        out = []
        for i in range(2):
            pre = []
            if i == 0 and kappa % 4 == 0 and kappa > 0: pre = [f"s_add_u32 s{S2_KP}, s{S2_KP}, 4096"]
            out.append((pre, f"buffer_load_dwordx4 {preg2((kappa % NPS2) * 8 + 4 * i)}, v{V2_VP+i}, s[{S2_SRDP}:{S2_SRDP+3}], s{S2_KP} offen offset:{(kappa%4)*1024}{SC}"))
        return out
    def mk_dmas2(delta):
        def dmas(stage):
            out = []
            for i in range(4):
                pre = [f"s_add_u32 m0, s{S2_M0B}, {(stage % NS2) * STG2 + 1024 * i}"]
                if i == 0 and stage > 0: pre.insert(0, f"s_add_u32 s{S2_SOFF}, s{S2_SOFF}, {delta}")
                out.append((pre, f"buffer_load_dwordx4 v{V_VD2+i}, s[{S2_SRDS}:{S2_SRDS+3}], s{S2_SOFF} offen lds"))
            return out
        return dmas
    def reads_o(kappa):
        s, kk = divmod(kappa, 2)
        out = []
        for b in range(8):
            for hh in range(2):
                off = (s % NS2) * STG2 + (b >> 2) * 8192 + kk * 4096 + hh * 512; w = off // WIN
                out.append(f"ds_read_b64_tr_b16 {vr(SH2 + kk*32 + 4*b + 2*hh, 2)}, v{V2_A+4*w+(b&3)} offset:{off - w*WIN}")
        return out
    def mfmas_o(kappa):
        kk = kappa % 2
        return [f"{MF} {vr(ACC+(b*2+i)*4,4)}, {vr(SH2+kk*32+4*b,4)}, {preg2((kappa%NPS2)*8+4*i)}, {vr(ACC+(b*2+i)*4,4) if kappa > 0 else '0'}"
                for b in range(8) for i in range(2)]
    def reads_y(kappa):
        s, kk = divmod(kappa, 2)
        out = []
        for b in range(8):
            off = (s % NS2) * STG2 + 2048 * b; w = off // WIN
            out.append(f"ds_read_b128 {vr(SH2 + kk*32 + 4*b, 4)}, v{V2_A+2*w+kk} offset:{off - w*WIN}")
        return out
    def mfmas_y(kappa):
        kk = kappa % 2
        return [f"{MF} {vr(ACC+(i*8+b)*4,4)}, {preg2((kappa%NPS2)*8+4*i)}, {vr(SH2+kk*32+4*b,4)}, {vr(ACC+(i*8+b)*4,4) if kappa > 0 else '0'}"
                for b in range(8) for i in range(2)]
    def split(fn):
        tp = Prog(); tp.uid = p.uid
        fn(tp, lambda: tp.raw("@SPLIT"))
        p.uid = tp.uid
        i = tp.L.index("@SPLIT")
        return tp.L[:i], tp.L[i + 1:]

    def poll(label, setup):
        p("s_cmp_lg_u32 s3, 0"); p(f"s_cbranch_scc1 {label}_w")
        setup()
        p.label(label + "_p")
        p(f"buffer_load_dwordx2 v[4:5], v2, s[{S_FSRD}:{S_FSRD+3}], 0 offen{SC}")
        p("s_waitcnt vmcnt(0)")
        p("v_cmp_ne_u64 vcc, s[78:79], v[4:5]")
        p(f"s_cbranch_vccz {label}_w")
        p(f"s_sleep {cfg.get('poll_sleep', 1)}")
        p(f"s_branch {label}_p")
        p.label(label + "_w")
        p("s_barrier")
    def setflags(addr_exprs):
        lab = p.newlabel("sf")
        p("s_cmp_lg_u32 s3, 0"); p(f"s_cbranch_scc1 {lab}")
        p("v_mov_b32 v6, s78"); p("v_mov_b32 v7, s79")
        p("s_mov_b64 exec, 1")
        for f in addr_exprs:
            f(); p("v_mov_b32 v5, s86")
            p(f"buffer_store_dwordx2 v[6:7], v5, s[{S_FSRD}:{S_FSRD+3}], 0 offen{SC}")
        p("s_mov_b64 exec, -1")
        p.label(lab)

    p(f"s_mov_b32 s{S2_SOFF}, 0")
    p(f"s_cmp_eq_u32 s{S_G}, 0")
    p(f"s_cselect_b32 s{S2_SRDS}, s{S_CR}, s{S_CI}"); p(f"s_cselect_b32 s{S2_SRDS+1}, s{S_CR+1}, s{S_CI+1}")
    p(f"s_mov_b32 s{S2_SRDS+2}, 8388608"); p(f"s_mov_b32 s{S2_SRDS+3}, 0x20000")
    voffK_lane(p, V, 5, 4096, 0)
    p(f"s_lshl_b32 s86, s{S_WQ}, 5"); p(f"s_lshl_b32 s87, s{S_G}, 6"); p("s_xor_b32 s86, s86, s87")
    p(f"s_lshl_b32 s87, s{S_TB}, 7"); p("s_add_u32 s86, s86, s87"); p("s_lshl_b32 s86, s86, 12")
    p(f"v_add_u32 v{V_VD2}, s86, v5")
    p(f"v_xor_b32 v{V_VD2+1}, 64, v{V_VD2}"); p(f"v_add_u32 v{V_VD2+1}, 32768, v{V_VD2+1}")
    p(f"v_add_u32 v{V_VD2+2}, 65536, v{V_VD2}"); p(f"v_add_u32 v{V_VD2+3}, 65536, v{V_VD2+1}")
    p(f"s_cmp_lt_u32 s{S_NT}, 8")
    p(f"s_cselect_b32 s{S_SRDS}, s{S_DR}, s{S_DI}"); p(f"s_cselect_b32 s{S_SRDS+1}, s{S_DR+1}, s{S_DI+1}")
    p(f"s_mov_b32 s{S_SRDS+2}, 2097152"); p(f"s_mov_b32 s{S_SRDS+3}, 0x20000")
    srd(p, 52, S_W1, S_W1 + 1, 7340032)
    p(f"s_mov_b32 s{S_SOFF}, 0"); p(f"s_mov_b32 s{S_SOFF+1}, 0"); p(f"s_lshl_b32 s{S_M0B}, s3, 11"); p("s_lshl_b32 s58, s3, 10"); p("s_add_u32 s58, s58, 16384")
    voffK_lane(p, V, 5, 2048, 0)
    p(f"s_and_b32 s86, s{S_NT}, 7"); p("s_lshl_b32 s86, s86, 7"); p("s_lshl_b32 s87, s3, 4"); p("s_add_u32 s86, s86, s87"); p("s_lshl_b32 s86, s86, 11")
    p(f"v_add_u32 v{V_VD}, s86, v5")
    p(f"v_xor_b32 v{V_VD+1}, 64, v{V_VD}"); p(f"v_add_u32 v{V_VD+1}, 16384, v{V_VD+1}")
    p(f"s_mul_i32 s85, s{S_NT}, {CY}")
    bias_dma(85)
    voffT8_lane(p, V, 5, 7168, 0)
    p("s_and_b32 s88, s3, 1"); p("s_lshl_b32 s88, s88, 6"); p("s_mul_i32 s86, s3, 57344"); p("s_lshl_b32 s87, s85, 1"); p("s_add_u32 s86, s86, s87")
    p("v_xor_b32 v5, s88, v5"); p("v_and_b32 v2, 64, v5"); p("v_add_u32 v5, s86, v5")
    p("v_cmp_eq_u32 vcc, 0, v2"); p("v_mov_b32 v4, 0x80000000"); p("s_nop 0"); p(f"v_cndmask_b32 v{V_VD+2}, v4, v5, vcc")
    for w in range(2):
        addrK_setup(p, V, V_AK + 2 * w, V_AK + 2 * w + 1, w * WIN)
        addrT_setup(p, V, V_AT + 4 * w, 128, w * WIN)
    def dmasM(stage):
        ring = (stage % NSD) * 24576
        out = []
        for i in range(2):
            pre = [f"s_add_u32 m0, s{S_M0B}, {ring + 1024 * i}"]
            if i == 0 and stage > 0: pre.insert(0, f"s_add_u32 s{S_SOFF}, s{S_SOFF}, 128")
            out.append((pre, f"buffer_load_dwordx4 v{V_VD+i}, s[{S_SRDS}:{S_SRDS+3}], s{S_SOFF} offen lds"))
        pre = [f"s_add_u32 m0, s58, {ring}"]
        if stage > 0: pre.insert(0, f"s_add_u32 s{S_SOFF+1}, s{S_SOFF+1}, {64*7168}")
        out.append((pre, f"buffer_load_dwordx4 v{V_VD+2}, s[52:55], s{S_SOFF+1} offen lds"))
        return out
    phase1(p, "kfm", [('K', 2048 * b) for b in range(8)] + [('T', b, 4096, 512, 16384) for b in range(2)], NSD, 24576, 3, 0, 112, 192, 8, True,
           dmas_fn=dmasM, st1=(1, 0, 0)[tm], st2=(2, 0, 0)[tm], hook=lambda: hookX("kfxy", 1 + 3 * (NSD - 1)))
    p("s_barrier")
    def epi_D():
        srd(p, 8, S_WS, S_WS + 1, ABF_SZ, ABF_OFF)
        p("v_lshrrev_b32 v2, 4, v1"); p("v_and_b32 v3, 1, v2"); p("v_lshlrev_b32 v3, 1, v3"); p("v_lshrrev_b32 v2, 1, v2")
        p("v_or_b32 v2, v2, v3"); p("v_lshlrev_b32 v2, 8, v2"); p("v_and_b32 v3, 15, v1"); p("v_lshl_add_u32 v2, v3, 4, v2")
        p(f"s_lshl_b32 s86, s{S_MT}, 3"); p("s_add_u32 s86, s86, s3"); p(f"s_lshr_b32 s87, s{S_NT}, 3"); p("s_lshl_b32 s87, s87, 6"); p("s_add_u32 s86, s86, s87")
        p(f"s_and_b32 s87, s{S_NT}, 7"); p("s_lshl_b32 s87, s87, 10"); p("s_add_u32 s86, s86, s87"); p("s_lshl_b32 s86, s86, 10")
        p("v_add_u32 v2, s86, v2")
        for b in range(8):
            t = 200 + 0 * b if False else 112 + 4 * b
            a0 = ACC + b * 8; a1 = a0 + 4
            p(f"v_cvt_pk_bf16_f32 v{t}, v{a0}, v{a0+1}"); p(f"v_cvt_pk_bf16_f32 v{t+1}, v{a0+2}, v{a0+3}")
            p(f"v_cvt_pk_bf16_f32 v{t+2}, v{a1}, v{a1+1}"); p(f"v_cvt_pk_bf16_f32 v{t+3}, v{a1+2}, v{a1+3}")
            p(f"s_mov_b32 s87, {131072*b}"); p("s_nop 0")
            p(f"v_permlane16_swap_b32 v{t}, v{t+2}"); p(f"v_permlane16_swap_b32 v{t+1}, v{t+3}")
            p(f"buffer_store_dwordx4 v[{t}:{t+3}], v2, s[8:11], s87 offen{SC}")
        p("s_nop 1")
    def hookY():
        epi_D()
        epi_W(2, 85, 144, b0=8)
        if tm == 1: stamp(p, 1)
        p("s_waitcnt vmcnt(0)"); p("s_barrier")
        if tm == 1: stamp(p, 2)
        setflags([lambda: (p(f"s_lshl_b32 s86, s{S_NT}, 7"), p(f"s_lshl_b32 s87, s{S_MT}, 3"), p("s_add_u32 s86, s86, s87"), p("s_add_u32 s86, s86, 4096")),
                  lambda: (p(f"s_lshl_b32 s86, s{S_MT}, 8"), p(f"s_lshl_b32 s87, s{S_NT}, 3"), p("s_add_u32 s86, s86, s87"), p("s_add_u32 s86, s86, 8192"))])
        p(f"s_lshl_b32 s{S2_KP}, s{S_G}, 16")
        srd(p, S2_SRDP, S_WS, S_WS + 1, ABF_SZ, ABF_OFF)
        p(f"s_lshl_b32 s86, s{S_TA}, 3"); p(f"s_lshl_b32 s87, s{S_WQ}, 1"); p("s_add_u32 s86, s86, s87"); p("s_lshl_b32 s86, s86, 17")
        p(f"v_lshlrev_b32 v{V2_VP}, 4, v1"); p(f"v_add_u32 v{V2_VP}, s86, v{V2_VP}"); p(f"v_add_u32 v{V2_VP+1}, 131072, v{V2_VP}")
        p(f"s_lshl_b32 s86, s{S_G}, 14")
        for w in range(2):
            addrK_setup(p, V, V2_A + 2 * w, V2_A + 2 * w + 1, w * WIN)
            p(f"v_add_u32 v{V2_A+2*w}, s86, v{V2_A+2*w}"); p(f"v_add_u32 v{V2_A+2*w+1}, s86, v{V2_A+2*w+1}")
        poll("kf_Y2", lambda: (p("v_bfe_u32 v3, v1, 3, 1"), p("v_lshlrev_b32 v3, 10, v3"), p("v_and_b32 v2, 7, v1"), p("v_lshl_add_u32 v2, v2, 3, v3"),
                               p(f"s_lshl_b32 s86, s{S_TA}, 7"), p("s_add_u32 s86, s86, 4096"), p("v_add_u32 v2, s86, v2")))
    gemm_mainloop(p, "kfy", 32, NS2, NPS2, S_CNT, mfmas_y, reads_y, mk_dmas2(128), privs2, read_frac=cfg.get("k2y_rf", 0.7),
                  hook=hookY, st1=(3, 3, 0)[tm], st2=(4, 4, 0)[tm])
    for b in range(8):
        t = SH2 + 4 * b
        a0 = ACC + b * 4; a1 = ACC + (8 + b) * 4
        p(f"v_cvt_pk_bf16_f32 v{t}, v{a0}, v{a0+1}"); p(f"v_cvt_pk_bf16_f32 v{t+1}, v{a0+2}, v{a0+3}")
        p(f"v_cvt_pk_bf16_f32 v{t+2}, v{a1}, v{a1+1}"); p(f"v_cvt_pk_bf16_f32 v{t+3}, v{a1+2}, v{a1+3}")
    p("v_lshlrev_b32 v2, 4, v1"); p("s_lshl_b32 s86, s3, 12"); p("v_add_u32 v3, s86, v2"); p("s_xor_b32 s86, s86, 16384"); p("v_add_u32 v2, s86, v2")
    p("s_barrier")
    for u in range(4): p(f"ds_write_b128 v3, v[{SH2+16+4*u}:{SH2+19+4*u}] offset:{1024*u}")
    p("s_waitcnt lgkmcnt(0)"); p("s_barrier")
    for u in range(4): p(f"ds_read_b128 v[{SH2+16+4*u}:{SH2+19+4*u}], v2 offset:{1024*u}")
    p(f"s_lshl_b32 s90, s{S_G}, 31"); p("s_lshr_b32 s85, s90, 16"); p("s_or_b32 s90, s90, s85")
    p("s_waitcnt lgkmcnt(0)")
    RES = 32
    U_ = 48; W_ = 64
    for hf in range(2):
        for i in range(8):
            r = SH2 + 8 * hf + i
            p(f"v_lshlrev_b32 v{U_+2*i}, 16, v{r}"); p(f"v_and_b32 v{U_+2*i+1}, 0xffff0000, v{r}")
            p(f"v_lshlrev_b32 v{W_+2*i}, 16, v{r+16}"); p(f"v_and_b32 v{W_+2*i+1}, 0xffff0000, v{r+16}")
        for i in range(16): p(f"v_sub_f32 v{U_+i}, v{U_+i}, v{W_+i}")
        for i in range(8): p(f"v_cvt_pk_bf16_f32 v{RES+8*hf+i}, v{U_+2*i}, v{U_+2*i+1}")
    for i in range(16): p(f"v_xor_b32 v{RES+i}, s90, v{RES+i}")
    p("s_nop 1")
    for u in range(4):
        t = RES + 4 * u
        p(f"v_permlane16_swap_b32 v{t}, v{t+2}"); p(f"v_permlane16_swap_b32 v{t+1}, v{t+3}")
    p(f"s_lshl_b32 s86, s{S_WQ}, 3"); p(f"s_lshl_b32 s87, s{S_G}, 2"); p("s_add_u32 s86, s86, s87"); p("s_lshl_b32 s60, s86, 10")
    p("s_mov_b32 s61, 1024"); p("s_mov_b32 s62, 2048"); p("s_mov_b32 s63, 3072")
    p(f"s_lshl_b32 s86, s{S_G}, 17"); p(f"s_lshl_b32 s87, s{S_WQ}, 6"); p("s_add_u32 s56, s86, s87")
    p("s_mov_b32 s57, 32768"); p("s_mov_b32 s58, 65536"); p("s_mov_b32 s59, 98304")
    p(f"s_mov_b32 s52, {TY_OFF}"); p(f"s_mov_b32 s53, {TG_OFF}")
    p("s_branch kf_final")

    p.label("kf_typeO")
    p(f"s_mul_i32 s{S2_SOFF}, s{S_G}, {1792*2048}")
    srd(p, S2_SRDS, S_W2, S_W2 + 1, 7340032)
    voffT8_lane(p, V, 5, 2048, 0)
    p(f"s_and_b32 s86, s{S_WQ}, 1"); p("s_lshl_b32 s86, s86, 16"); p(f"s_lshr_b32 s87, s{S_WQ}, 1"); p(f"s_xor_b32 s87, s87, s{S_G}"); p("s_lshl_b32 s87, s87, 7"); p("s_add_u32 s86, s86, s87")
    p(f"s_lshl_b32 s87, s{S_TA}, 8"); p("s_add_u32 s86, s86, s87")
    p(f"v_add_u32 v{V_VD2}, s86, v5")
    p(f"v_xor_b32 v{V_VD2+1}, 64, v{V_VD2}"); p(f"v_add_u32 v{V_VD2+1}, 16384, v{V_VD2+1}")
    p(f"v_add_u32 v{V_VD2+2}, 32768, v{V_VD2}"); p(f"v_add_u32 v{V_VD2+3}, 32768, v{V_VD2+1}")
    p(f"s_mul_i32 s85, s{S_NT}, {CO}"); p(f"s_add_u32 s85, s85, {16*CY}")
    bias_dma(85)
    p(f"s_mov_b32 s{S_SRDS}, s{S_W1}"); p(f"s_mov_b32 s{S_SRDS+1}, s{S_W1+1}"); p(f"s_mov_b32 s{S_SRDS+2}, 7340032"); p(f"s_mov_b32 s{S_SRDS+3}, 0x20000")
    p(f"s_mov_b32 s{S_SOFF}, 0"); p(f"s_mul_i32 s{S_M0B}, s3, 3072")
    p("s_and_b32 s88, s3, 1"); p("s_lshl_b32 s88, s88, 2")
    for i in range(3):
        p(f"v_add_u32 v2, {64*i}, v1")
        p("v_mul_u32_u24 v3, 2731, v2"); p("v_lshrrev_b32 v3, 16, v3")
        p("v_mul_u32_u24 v4, 24, v3"); p("v_sub_u32 v2, v2, v4")
        p("v_bfe_u32 v4, v3, 1, 1"); p("v_lshlrev_b32 v4, 1, v4"); p("v_or_b32 v4, s88, v4")
        p("v_xor_b32 v2, v2, v4")
        p("v_mul_u32_u24 v3, 7168, v3"); p("v_lshl_add_u32 v3, v2, 4, v3")
        p("s_mul_i32 s86, s3, 57344"); p("s_lshl_b32 s87, s85, 1"); p("s_add_u32 s86, s86, s87")
        p(f"v_add_u32 v{V_VD+i}, s86, v3")
    for w in range(2): addrT_setup(p, V, V_AT + 4 * w, 384, w * WIN)
    phase1(p, "kfW", [('T', b & 3, 32 * 384, 4 * 384, (b >> 2) * 128) for b in range(12)], NSO, 24576, 3, 64 * 7168, 128, 224, 4, True,
           st1=(1, 0, 0)[tm], st2=(2, 0, 0)[tm], hook=lambda: hookX("kfxo", 1 + 3 * (NSO - 1)))
    p("s_barrier")
    def hookO():
        epi_W(12, 85, 128)
        if tm == 1: stamp(p, 1)
        p("s_waitcnt vmcnt(0)"); p("s_barrier")
        if tm == 1: stamp(p, 2)
        setflags([lambda: (p(f"s_lshl_b32 s86, s{S_MT}, 8"), p(f"s_lshl_b32 s87, s{S_NT}, 3"), p("s_add_u32 s86, s86, s87"), p("s_add_u32 s86, s86, 8320"))])
        p(f"s_mul_i32 s{S2_KP}, s{S_G}, {56*1024}")
        srd(p, S2_SRDP, S_WS, S_WS + 1, HF_SZ, HF_OFF)
        p(f"s_lshl_b32 s86, s{S_TB}, 3"); p(f"s_lshl_b32 s87, s{S_WQ}, 1"); p("s_add_u32 s86, s86, s87"); p("s_mul_i32 s86, s86, 114688")
        p(f"v_lshlrev_b32 v{V2_VP}, 4, v1"); p(f"v_add_u32 v{V2_VP}, s86, v{V2_VP}"); p(f"v_add_u32 v{V2_VP+1}, 114688, v{V2_VP}")
        p(f"s_lshl_b32 s86, s{S_G}, 14")
        for w in range(2):
            addrT_setup(p, V, V2_A + 4 * w, 128, w * WIN)
            for b in range(4): p(f"v_add_u32 v{V2_A+4*w+b}, s86, v{V2_A+4*w+b}")
        poll("kf_O2", lambda: (p("v_and_b32 v2, 31, v1"), p("v_lshlrev_b32 v2, 3, v2"), p(f"s_lshr_b32 s86, s{S_TB}, 1"), p("s_lshl_b32 s86, s86, 8"), p("s_add_u32 s86, s86, 8192"), p("v_add_u32 v2, s86, v2")))
    gemm_mainloop(p, "kfo", 28, NS2, NPS2, S_CNT, mfmas_o, reads_o, mk_dmas2(131072), privs2, read_frac=cfg.get("k2o_rf", 0.7),
                  hook=hookO, st1=(3, 3, 0)[tm], st2=(4, 4, 0)[tm])
    srd(p, 12, S_B2, S_B2 + 1, 2048)
    p("v_lshrrev_b32 v2, 4, v1"); p("v_lshlrev_b32 v2, 3, v2"); p(f"s_lshl_b32 s86, s{S_TA}, 8"); p(f"s_lshl_b32 s87, s{S_G}, 7"); p("s_add_u32 s86, s86, s87"); p("v_add_u32 v2, s86, v2")
    for b in range(4): p(f"buffer_load_dwordx2 v[{8+2*b}:{9+2*b}], v2, s[12:15], 0 offen offset:{32*b}")
    p("v_lshlrev_b32 v2, 4, v1"); p("s_lshl_b32 s86, s3, 13"); p("v_add_u32 v3, s86, v2"); p("s_xor_b32 s86, s86, 32768"); p("v_add_u32 v2, s86, v2")
    p("s_barrier")
    for u in range(8): p(f"ds_write_b128 v3, v[{64+4*u}:{67+4*u}] offset:{1024*u}")
    p("s_waitcnt lgkmcnt(0)"); p("s_barrier")
    for u in range(8): p(f"ds_read_b128 v[{64+4*u}:{67+4*u}], v2 offset:{1024*u}")
    p(f"s_mov_b32 s92, {hex(f2u(-math.log2(math.e)))}")
    p("s_waitcnt vmcnt(0) lgkmcnt(0)")
    for i in range(32): p(f"v_add_f32 v{96+i}, v{32+i}, v{64+i}")
    B_ = 16
    for b in range(4):
        for h in range(2):
            p(f"v_lshlrev_b32 v{B_+4*b+2*h}, 16, v{8+2*b+h}"); p(f"v_and_b32 v{B_+4*b+2*h+1}, 0xffff0000, v{8+2*b+h}")
    RES = 32
    for mp in range(2):
        src = [96 + ((2 * mp + k_) * 2 + i) * 4 + r for i in range(2) for k_ in range(2) for r in range(4)]
        bs = [B_ + (2 * mp + k_) * 4 + r for i in range(2) for k_ in range(2) for r in range(4)]
        T = RES + 8 * mp; U_ = 64; W_ = 80
        for i in range(8): p(f"v_cvt_pk_bf16_f32 v{T+i}, v{src[2*i]}, v{src[2*i+1]}")
        for i in range(8):
            p(f"v_lshlrev_b32 v{U_+2*i}, 16, v{T+i}"); p(f"v_and_b32 v{U_+2*i+1}, 0xffff0000, v{T+i}")
        for i in range(16): p(f"v_add_f32 v{U_+i}, v{U_+i}, v{bs[i]}")
        for i in range(8): p(f"v_cvt_pk_bf16_f32 v{T+i}, v{U_+2*i}, v{U_+2*i+1}")
        for i in range(8):
            p(f"v_lshlrev_b32 v{U_+2*i}, 16, v{T+i}"); p(f"v_and_b32 v{U_+2*i+1}, 0xffff0000, v{T+i}")
        for i in range(16): p(f"v_mul_f32 v{W_+i}, s92, v{U_+i}")
        for i in range(16): p(f"v_exp_f32 v{W_+i}, v{W_+i}")
        for i in range(16): p(f"v_add_f32 v{W_+i}, 1.0, v{W_+i}")
        for i in range(16): p(f"v_rcp_f32 v{W_+i}, v{W_+i}")
        for i in range(16): p(f"v_mul_f32 v{W_+i}, v{W_+i}, v{U_+i}")
        for i in range(8): p(f"v_cvt_pk_bf16_f32 v{T+i}, v{W_+2*i}, v{W_+2*i+1}")
    p("s_nop 1")
    for u in range(4):
        t = RES + 4 * u
        p(f"v_permlane16_swap_b32 v{t}, v{t+2}"); p(f"v_permlane16_swap_b32 v{t+1}, v{t+3}")
    p(f"s_lshl_b32 s86, s{S_G}, 4"); p(f"s_lshl_b32 s87, s{S_WQ}, 1"); p("s_add_u32 s86, s86, s87"); p("s_lshl_b32 s60, s86, 10")
    p("s_mov_b32 s61, 1024"); p("s_mov_b32 s62, 8192"); p("s_mov_b32 s63, 9216")
    p(f"s_lshl_b32 s86, s{S_WQ}, 16"); p(f"s_lshl_b32 s87, s{S_G}, 7"); p("s_add_u32 s56, s86, s87")
    p("s_mov_b32 s57, 32768"); p("s_mov_b32 s58, 64"); p("s_mov_b32 s59, 32832")
    p(f"s_mov_b32 s52, {TG_OFF}"); p(f"s_mov_b32 s53, {TY_OFF}")

    p.label("kf_final")
    if tm == 2: stamp(p, 1)
    srd(p, 4, S_X, S_X + 1, 4194304)
    srd(p, 64, S_OUT, S_OUT + 1, 4194304)
    p(f"s_add_u32 s8, s{S_WS}, s52"); p(f"s_addc_u32 s9, s{S_WS+1}, 0"); p("s_mov_b32 s10, 4194304"); p("s_mov_b32 s11, 0x20000")
    p(f"s_add_u32 s12, s{S_WS}, s53"); p(f"s_addc_u32 s13, s{S_WS+1}, 0"); p("s_mov_b32 s14, 4194304"); p("s_mov_b32 s15, 0x20000")
    p("v_lshrrev_b32 v2, 4, v1"); p("v_and_b32 v3, 1, v2"); p("v_lshlrev_b32 v3, 5, v3"); p("v_lshrrev_b32 v2, 1, v2"); p("v_lshl_add_u32 v3, v2, 4, v3")
    p("v_and_b32 v2, 15, v1"); p("v_lshl_add_u32 v3, v2, 11, v3")
    p(f"s_lshl_b32 s86, s{S_TB}, 18"); p(f"s_lshl_b32 s87, s{S_TA}, 8"); p("s_add_u32 s86, s86, s87"); p("s_add_u32 s86, s86, s56")
    p("v_add_u32 v3, s86, v3")
    p(f"s_lshl_b32 s86, s{S_TILE}, 15"); p("s_add_u32 s86, s86, s60")
    p("v_lshlrev_b32 v2, 4, v1"); p("v_add_u32 v2, s86, v2")
    XR, OR = 48, 64
    so_out = ["0", "s57", "s58", "s59"]; so_u = ["0", "s61", "s62", "s63"]
    for u in range(4): p(f"buffer_load_dwordx4 v[{XR+4*u}:{XR+4*u+3}], v3, s[4:7], {so_out[u]} offen")
    p(f"s_lshl_b32 s86, s{S_TILE}, 7"); p("s_add_u32 s86, s86, 16384"); p("s_lshl_b32 s87, s75, 6"); p("s_add_u32 s86, s86, s87")
    p("v_mov_b32 v4, s86"); p("v_xor_b32 v5, 64, v4"); p("v_mov_b32 v6, 65536")
    def peek(off, lab):
        p("s_cmp_lg_u32 s3, 0"); p(f"s_cbranch_scc1 {lab}")
        p(f"buffer_load_dwordx2 v[8:9], v5, s[{S_FSRD}:{S_FSRD+3}], 0 offen{SC}")
        p("s_waitcnt vmcnt(0)")
        p("v_cmp_eq_u64 vcc, s[78:79], v[8:9]")
        p("s_nop 1")
        p("v_cndmask_b32 v8, 0, 1, vcc")
        p(f"ds_write_b32 v6, v8 offset:{off}")
        p("s_waitcnt lgkmcnt(0)")
        p.label(lab)
        p("s_barrier")
        p(f"ds_read_b32 v8, v6 offset:{off}")
        p("s_waitcnt lgkmcnt(0)")
        p("v_readfirstlane_b32 s86, v8")
    peek(0, "kf_f1")
    p("s_cmp_lg_u32 s86, 0"); p("s_cbranch_scc1 kf_combine")
    for u in range(4): p(f"buffer_store_dwordx4 v[{32+4*u}:{35+4*u}], v2, s[8:11], {so_u[u]} offen{SC}")
    p("s_waitcnt vmcnt(0)")
    p("s_barrier")
    p("s_cmp_lg_u32 s3, 0"); p("s_cbranch_scc1 kf_f15")
    p("v_mov_b32 v8, s78"); p("v_mov_b32 v9, s79")
    p("s_mov_b64 exec, 1")
    p(f"buffer_store_dwordx2 v[8:9], v4, s[{S_FSRD}:{S_FSRD+3}], 0 offen{SC}")
    p("s_mov_b64 exec, -1")
    p("s_waitcnt vmcnt(0)")
    p.label("kf_f15")
    peek(4, "kf_f2")
    p("s_cmp_eq_u32 s86, 0"); p("s_cbranch_scc1 kf_done")
    p.label("kf_combine")
    if tm == 2: stamp(p, 2)
    for u in range(4): p(f"buffer_load_dwordx4 v[{OR+4*u}:{OR+4*u+3}], v2, s[12:15], {so_u[u]} offen{SC}")
    U_ = 96; W_ = 128; X_ = 160
    for i in range(16):
        p(f"v_lshlrev_b32 v{U_+2*i}, 16, v{32+i}"); p(f"v_and_b32 v{U_+2*i+1}, 0xffff0000, v{32+i}")
    p("s_waitcnt vmcnt(4)")
    for i in range(16):
        p(f"v_lshlrev_b32 v{X_+2*i}, 16, v{XR+i}"); p(f"v_and_b32 v{X_+2*i+1}, 0xffff0000, v{XR+i}")
    p("s_waitcnt vmcnt(0)")
    for i in range(16):
        p(f"v_lshlrev_b32 v{W_+2*i}, 16, v{OR+i}"); p(f"v_and_b32 v{W_+2*i+1}, 0xffff0000, v{OR+i}")
    for i in range(32): p(f"v_mul_f32 v{U_+i}, v{U_+i}, v{W_+i}")
    for i in range(16): p(f"v_cvt_pk_bf16_f32 v{32+i}, v{U_+2*i}, v{U_+2*i+1}")
    for i in range(16):
        p(f"v_lshlrev_b32 v{U_+2*i}, 16, v{32+i}"); p(f"v_and_b32 v{U_+2*i+1}, 0xffff0000, v{32+i}")
    for i in range(32): p(f"v_add_f32 v{U_+i}, v{U_+i}, v{X_+i}")
    for i in range(16): p(f"v_cvt_pk_bf16_f32 v{32+i}, v{U_+2*i}, v{U_+2*i+1}")
    for u in range(4): p(f"buffer_store_dwordx4 v[{32+4*u}:{35+4*u}], v3, s[64:67], {so_out[u]} offen")
    p.label("kf_done")
    if CFG.get("ts"): p("s_waitcnt vmcnt(0)")
    stamp(p, 5); stamp_store(p, 1, 6)
    p.label("kf_end")
    p("s_endpgm")
    return name, 256, 102, 224

def generate(cfg):
    CFG.clear(); CFG.update(cfg); CFG["ts_noclk"] = 1; CFG["k0_fullflag"] = 1
    body = Prog()
    info = [("kf",) + gen_kf(body, cfg)]
    lds = {"k0": 0, "kf": 131072 + 8192}
    out = ["; FNet (dense DFT matmuls) + GELU FFN fused block; generated by dev/gen6.py"]
    for k in ("kf",):
        out.append(f"; @launch kernel={k}_kernel grid=(256,1,1) block=(512,1,1) lds={lds[k]}")
    out.append('.amdgcn_target "amdgcn-amd-amdhsa--gfx950"')
    out.append(".text")
    out += body.L
    out.append('.section .rodata,"a"')
    for k, name, nfv, nfs, acc in info:
        out += [".p2align 6", f".amdhsa_kernel {name}", f"  .amdhsa_next_free_vgpr {nfv}", f"  .amdhsa_next_free_sgpr {nfs}",
                f"  .amdhsa_accum_offset {acc}", "  .amdhsa_group_segment_fixed_size 0", "  .amdhsa_kernarg_size 104",
                "  .amdhsa_user_sgpr_count 2", "  .amdhsa_user_sgpr_kernarg_segment_ptr 1", "  .amdhsa_system_sgpr_workgroup_id_x 1",
                ".end_amdhsa_kernel"]
    return "\n".join(out) + "\n"

DEFAULT = dict(nsd=5, nsy=8, nso=5, k2_ns=4, k2_nps=12, pf1=2)
if __name__ == "__main__":
    cfg = dict(DEFAULT)
    fn = sys.argv[1] if len(sys.argv) > 1 else "full6.s"
    for a in sys.argv[2:]:
        k, v = a.split("=")
        cfg[k] = float(v) if "." in v else int(v)
    open(fn, "w").write(generate(cfg))
```

```python
import sys, math, struct

KN = "recurrent_scan__spectral_fnet__dense_activation_gelu__prompt"

import os
WSB = int(os.environ.get("WSB", "0")) << 20
XF_OFF, XF_SZ = WSB + 0, 4 << 20
ABF_OFF, ABF_SZ = WSB + (4 << 20), 8 << 20
HF_OFF, HF_SZ = WSB + (12 << 20), 128 * 112 * 1024
G_OFF, G_SZ = WSB + (28 << 20), 4 << 20
FL_OFF, FL_SZ = WSB + (32 << 20), 128 * 128

def f2u(x):
    return struct.unpack("<I", struct.pack("<f", x))[0]

class Prog:
    def __init__(self):
        self.L = []
        self.uid = 0
    def __call__(self, s):
        self.L.append("    " + s)
    def label(self, s):
        self.L.append(s + ":")
    def raw(self, s):
        self.L.append(s)
    def newlabel(self, p="L"):
        self.uid += 1
        return f"{p}_{self.uid}"

def vr(b, n=1):
    return f"v{b}" if n == 1 else f"v[{b}:{b+n-1}]"
def ar(b, n=1):
    return f"a{b}" if n == 1 else f"a[{b}:{b+n-1}]"
def sr(b, n=1):
    return f"s{b}" if n == 1 else f"s[{b}:{b+n-1}]"

CFG = {}
class Op:
    __slots__ = ("kind", "text", "tag")
    def __init__(self, kind, text=None, tag=None):
        self.kind, self.text, self.tag = kind, text, tag

def gemm_mainloop(p, name, nstages, NS, NPS, s_cnt,
                  mfmas,
                  reads,
                  dmas,
                  privs,
                  extra=None,
                  read_frac=0.7, pf=None, hook=None, dma_first=None, st1=1, st2=2, hook_after_priv=False, hook_vm=0, flag_at=None):
    U = NS * NPS // math.gcd(NS * 2, NPS) if (2 * NS) % NPS else NS
    U = NS
    while (2 * U) % NPS: U += NS
    if nstages % U: U = nstages
    PD = NPS - 1
    nk = 2 * nstages
    segs = []
    K0_ = -max(2 * NS, NPS)
    for kappa in range(K0_, nk):
        ops = []
        s, k = divmod(kappa, 2)
        head = []
        if kappa >= 0:
            head.append(Op("wait_vm", tag=("P", kappa)))
        if k == 1 and kappa >= -1 and s + 1 < nstages:
            head.append(Op("wait_vm", tag=("D", s + 1)))
        if flag_at and kappa == flag_at[0]:
            head.append(Op("wait_vm", tag=("S", 0)))
        if kappa >= 0:
            head.append(Op("wait_lgkm0"))
        if k == 1 and kappa >= -1 and s + 1 < nstages:
            head.append(Op("barrier"))
        if flag_at and kappa == flag_at[0]:
            assert k == 1
            for x in flag_at[1]: head.append(Op("salu", x))
            head.append(Op("vm", flag_at[2], ("G", 0)))
            for x in flag_at[3]: head.append(Op("salu", x))
        rd = [Op("lds", t) for t in reads(kappa + 1)] if 0 <= kappa + 1 < nk else []
        vm = []
        ds = s + NS if k == 1 else s - 1 + NS
        if 0 <= ds < nstages:
            d = dmas(ds)
            h = (len(d) + 1) // 2
            part = d[:h] if k == 1 else d[h:]
            for pre, t in part:
                vm.append(([Op("salu", x) for x in pre], Op("vm", t, ("D", ds))))
        pk = kappa + PD
        pv = []
        if 0 <= pk < nk:
            for pre, t in privs(pk):
                pv.append(([Op("salu", x) for x in pre], Op("vm", t, ("P", pk))))
        seq = []
        a, b = list(pv), list(vm)
        while a or b:
            if a: seq.append(a.pop(0))
            if b: seq.append(b.pop(0))
        if pf and kappa >= -2 and kappa != -1:
            for pre, t in pf(kappa):
                seq.append(([Op("salu", x) for x in pre], Op("vm", t, ("F", kappa))))
        ex = [Op("valu", t) for t in extra(kappa)] if (extra and kappa >= 0) else []
        mf = [Op("mfma", t) for t in mfmas(kappa)] if kappa >= 0 else []
        ops += head
        if not mf:
            for pre, v in seq:
                ops += pre
                if pre: ops.append(Op("salu", "s_nop 0"))
                ops.append(v)
            ops += rd
        else:
            n = len(mf)
            gaps = [[] for _ in range(n)]
            nr = len(rd)
            span = max(1, int(n * read_frac))
            for i, r in enumerate(rd):
                gaps[min(n - 1, (i * span) // max(1, nr))].append(r)
            nv = len(seq); lastg = -1
            for i, (pre, v) in enumerate(seq):
                g = 1 + ((2 * i + 1) * (n - 1)) // (2 * nv) if nv else 0
                g = min(n - 1, g)
                assert g != lastg; lastg = g
                gaps[g - 1] += pre
                gaps[g].append(v)
            for i, e in enumerate(ex):
                gaps[min(n - 1, (i * n) // len(ex))].append(e)
            for i in range(n):
                ops.append(mf[i])
                ops += gaps[i]
        if CFG.get("abl_nomfma"): ops = [o for o in ops if o.kind != "mfma"]
        if CFG.get("abl_nolds"): ops = [o for o in ops if o.kind != "lds"]
        if CFG.get("abl_nodma"): ops = [o for o in ops if not (o.kind in ("vm", "wait_vm") and o.tag[0] == "D")]
        if CFG.get("abl_nopriv"): ops = [o for o in ops if not (o.kind in ("vm", "wait_vm") and o.tag[0] == "P")]
        if CFG.get("abl_nobar"): ops = [o for o in ops if o.kind != "barrier"]
        segs.append(ops)
    if hook is not None:
        npro = -K0_ - 1
        dm, pv_ = [], []
        for ops in segs[:npro]:
            cur = []
            for o in ops:
                cur.append(o)
                if o.kind == "vm":
                    (dm if o.tag[0] in "DF" else pv_).extend(cur); cur = []
            assert not cur
        if CFG.get("late2"): segs[:npro] = [[Op("hook")] + dm + pv_] + [[] for _ in range(npro - 1)]
        else: segs[:npro] = [(dm + pv_ + [Op("hook")]) if hook_after_priv else (dm + [Op("hook")] + pv_)] + [[] for _ in range(npro - 1)]
    vmq = []
    done_upto = 0
    lg_out = 0
    texts = []
    for ops in segs:
        out = []
        pend_vm = None; pend_lg = False
        def flush():
            nonlocal pend_vm, pend_lg
            if pend_vm is not None or pend_lg:
                t = "s_waitcnt"
                if pend_vm is not None: t += f" vmcnt({pend_vm})"
                if pend_lg: t += " lgkmcnt(0)"
                out.append(t)
            pend_vm = None; pend_lg = False
        for o in ops:
            if o.kind == "wait_vm":
                idx = max(i for i, t in enumerate(vmq) if t == o.tag) + 1
                if idx > done_upto:
                    done_upto = idx
                    N = len(vmq) - idx
                    assert N <= 63, N
                    pend_vm = N if pend_vm is None else min(pend_vm, N)
            elif o.kind == "wait_lgkm0":
                if lg_out:
                    pend_lg = True; lg_out = 0
            else:
                flush()
                if o.kind == "vm": vmq.append(o.tag)
                if o.kind == "hook": vmq.extend([("S", 0)] * hook_vm)
                if o.kind == "lds": lg_out += 1
                out.append("s_barrier" if o.kind == "barrier" else ("@HOOK" if o.kind == "hook" else o.text))
        flush()
        texts.append(out)
    pro = texts[:-K0_]
    if hook is None: stamp(p, st1)
    for t in pro:
        for x in t:
            if x == "@HOOK":
                hook(); stamp(p, st1)
            else: p(x)
    body = texts[-K0_:]
    its = ["\n".join("\n".join(t) for t in body[2 * U * i:2 * U * (i + 1)]) for i in range(nstages // U)]
    i = 0
    while i < len(its):
        j = i
        while j + 1 < len(its) and its[j + 1] == its[i]: j += 1
        cnt = j - i + 1
        if cnt >= 2:
            lab = p.newlabel(name + "_loop")
            p(f"s_mov_b32 {sr(s_cnt)}, {cnt}")
            p.raw(".p2align 6")
            p.label(lab)
            for x in its[i].split("\n"): p(x)
            p(f"s_sub_u32 {sr(s_cnt)}, {sr(s_cnt)}, 1")
            p(f"s_cmp_lg_u32 {sr(s_cnt)}, 0")
            p(f"s_cbranch_scc1 {lab}")
        else:
            for x in its[i].split("\n"): p(x)
        i = j + 1
    stamp(p, st2)

TS_OFF = 40 << 20
def tsreg(i):
    return (98, 99, 100, 101, 42, 43)[i]
def stamp(p, idx):
    if not CFG.get("ts") or idx is None: return
    p(f"s_memrealtime s[{96}:{97}]")
    p("s_waitcnt lgkmcnt(0)")
    p(f"v_writelane_b32 v255, s96, {idx}") if False else None
    p(f"s_mov_b32 s{tsreg(idx)}, s96")
    if idx in (1, 2) and CFG.get("ts_cbase") and not CFG.get("ts_noclk"):
        p("s_memtime s[96:97]"); p("s_waitcnt lgkmcnt(0)"); p(f"s_mov_b32 s{CFG['ts_cbase']+idx-1}, s96")
def stamp_store(p, kidx, n):
    if not CFG.get("ts"): return
    lab = p.newlabel("ts")
    p("s_cmp_lg_u32 s3, 0"); p(f"s_cbranch_scc1 {lab}")
    srd(p, 92, S_WS, S_WS + 1, 1 << 20, TS_OFF)
    p(f"s_lshl_b32 s96, s2, 5"); p(f"s_add_u32 s96, s96, {kidx * 8192}")
    p("v_mov_b32 v2, s96")
    p("s_mov_b64 exec, 1")
    for i in range(n):
        p(f"v_mov_b32 v3, s{tsreg(i)}")
        p(f"buffer_store_dword v3, v2, s[92:95], 0 offen offset:{4*i}")
    if CFG.get("ts_cbase") and not CFG.get("ts_noclk"):
        for i in range(2):
            p(f"v_mov_b32 v3, s{CFG['ts_cbase']+i}")
            p(f"buffer_store_dword v3, v2, s[92:95], 0 offen offset:{16+4*i}")
    p("s_mov_b64 exec, -1")
    p.label(lab)

def srd(p, d, lo, hi, size, add=0):
    if add:
        p(f"s_add_u32 {sr(d)}, {sr(lo)}, {add}")
        p(f"s_addc_u32 {sr(d+1)}, {sr(hi)}, 0")
    else:
        p(f"s_mov_b32 {sr(d)}, {sr(lo)}")
        p(f"s_mov_b32 {sr(d+1)}, {sr(hi)}")
    p(f"s_mov_b32 {sr(d+2)}, {size}")
    p(f"s_mov_b32 {sr(d+3)}, 0x20000")

def kernel_head(p, name):
    p.raw(f".globl {name}")
    p.raw(".p2align 8")
    p.raw(f".type {name},@function")
    p.label(name)

def load_ptrs(p):
    p("s_load_dwordx16 s[16:31], s[0:1], 0")
    p("s_load_dwordx8 s[32:39], s[0:1], 64")
    p("s_load_dwordx2 s[40:41], s[0:1], 96")
S_X, S_CR, S_CI, S_DR, S_DI, S_BX, S_W1, S_B1, S_W2, S_B2, S_OUT, S_DBG, S_WS = 16, 18, 20, 22, 24, 26, 28, 30, 32, 34, 36, 38, 40

def gen_k0(p):
    name = "k0_kernel"
    kernel_head(p, name)
    p("s_cmp_ge_u32 s2, 256"); p("s_cbranch_scc1 k0_end")
    load_ptrs(p)
    p("v_lshrrev_b32 v1, 6, v0")
    p("v_and_b32 v2, 63, v0")
    p("s_lshl_b32 s3, s2, 3")
    p("v_add_u32 v1, s3, v1")
    p("v_lshlrev_b32 v3, 11, v1")
    p("v_lshl_add_u32 v3, v2, 4, v3")
    p("s_waitcnt lgkmcnt(0)")
    stamp(p, 0); stamp(p, 1)
    srd(p, 4, S_X, S_X + 1, 4194304)
    srd(p, 8, S_WS, S_WS + 1, XF_SZ, XF_OFF)
    srd(p, 12, S_WS, S_WS + 1, FL_SZ, FL_OFF)
    p("buffer_load_dwordx4 v[8:11], v3, s[4:7], 0 offen")
    p("buffer_load_dwordx4 v[12:15], v3, s[4:7], 0 offen offset:1024")
    if CFG.get("pf0", 1) == 2:
        srd(p, 48, S_DR, S_DR + 1, 2097152); srd(p, 52, S_DI, S_DI + 1, 2097152); srd(p, 56, S_W1, S_W1 + 1, 7340032)
        p("v_lshlrev_b32 v60, 10, v1"); p("v_lshl_add_u32 v60, v2, 7, v60")
        p("v_mul_u32_u24 v61, 3584, v1"); p("v_lshl_add_u32 v61, v2, 7, v61")
        p("s_mov_b64 exec, 0xff")
        p("buffer_load_dword v64, v60, s[48:51], 0 offen")
        p("buffer_load_dword v65, v60, s[52:55], 0 offen")
        p("s_mov_b64 exec, 0xfffffff")
        p("buffer_load_dword v66, v61, s[56:59], 0 offen")
        p("s_mov_b64 exec, -1")
    elif CFG.get("pf0", 1):
        srd(p, 48, S_DR, S_DR + 1, 2097152); srd(p, 52, S_DI, S_DI + 1, 2097152); srd(p, 56, S_W1, S_W1 + 1, 7340032)
        p("v_lshlrev_b32 v60, 10, v1"); p("v_lshl_add_u32 v60, v2, 4, v60")
        p("v_mul_u32_u24 v61, 3584, v1"); p("v_lshl_add_u32 v61, v2, 4, v61")
        p("buffer_load_dwordx4 v[64:67], v60, s[48:51], 0 offen")
        p("buffer_load_dwordx4 v[68:71], v60, s[52:55], 0 offen")
        for i in range(3): p(f"buffer_load_dwordx4 v[{72+4*i}:{75+4*i}], v61, s[56:59], 0 offen offset:{1024*i}")
        p("v_cmp_gt_u32 vcc, 32, v2"); p("s_and_saveexec_b64 s[44:45], vcc")
        p("buffer_load_dwordx4 v[84:87], v61, s[56:59], 0 offen offset:3072")
        p("s_mov_b64 exec, s[44:45]")
    p("v_mov_b32 v40, 0")
    p("s_lshl_b32 s3, s2, 7")
    if CFG.get("k0_fullflag"):
        p("v_lshl_add_u32 v41, v0, 2, s3")
        p("v_cmp_gt_u32 vcc, 32, v0")
    else:
        p("v_mov_b32 v41, s3")
        p("v_cmp_eq_u32 vcc, 0, v0")
    p("s_and_saveexec_b64 s[44:45], vcc")
    p("s_cbranch_execz k0_nofl")
    p("buffer_store_dword v40, v41, s[12:15], 0 offen")
    p.label("k0_nofl")
    p("s_mov_b64 exec, s[44:45]")
    p("v_lshrrev_b32 v4, 4, v1"); p("v_lshlrev_b32 v4, 15, v4")
    p("v_lshrrev_b32 v5, 2, v2"); p("v_lshl_add_u32 v4, v5, 10, v4")
    p("v_and_b32 v5, 3, v2"); p("v_lshl_add_u32 v4, v5, 8, v4")
    p("v_and_b32 v5, 15, v1"); p("v_lshl_add_u32 v4, v5, 4, v4")
    npf = {0: 0, 1: 6, 2: 3}[CFG.get("pf0", 1)]
    p(f"s_waitcnt vmcnt({npf+1})")
    for i in range(4):
        p(f"v_lshlrev_b32 v{16+2*i}, 16, v{8+i}"); p(f"v_and_b32 v{17+2*i}, 0xffff0000, v{8+i}")
    p(f"s_waitcnt vmcnt({npf})")
    for i in range(4, 8):
        p(f"v_lshlrev_b32 v{16+2*i}, 16, v{8+i}"); p(f"v_and_b32 v{17+2*i}, 0xffff0000, v{8+i}")
    def wave_sum(src, tmp, sbase):
        for ctl in ("quad_perm:[1,0,3,2]", "quad_perm:[2,3,0,1]", "row_half_mirror", "row_mirror"):
            p("s_nop 1")
            p(f"v_add_f32_dpp v{tmp}, v{src}, v{src} {ctl} row_mask:0xf bank_mask:0xf")
            p(f"v_mov_b32 v{src}, v{tmp}")
        p("s_nop 0")
        for i in range(4): p(f"v_readlane_b32 s{sbase+i}, v{src}, {16*i}")
        p("s_nop 1")
        p(f"v_mov_b32 v{src}, s{sbase}")
        for i in range(1, 4): p(f"v_add_f32 v{src}, s{sbase+i}, v{src}")
    p("v_add_f32 v32, v16, v17")
    for i in range(1, 8): p(f"v_add_f32 v{32+i}, v{16+2*i}, v{17+2*i}")
    for st in (4, 2, 1):
        for i in range(st): p(f"v_add_f32 v{32+i}, v{32+i}, v{32+i+st}")
    wave_sum(32, 33, 46)
    p(f"v_mul_f32 v32, {hex(f2u(1.0/1024))}, v32")
    for i in range(16):
        p(f"v_sub_f32 v{44+i}, v{16+i}, v32")
    for i in range(8):
        p(f"v_mul_f32 v{34+i}, v{44+2*i}, v{44+2*i}")
        p(f"v_fmac_f32 v{34+i}, v{45+2*i}, v{45+2*i}")
    for st in (4, 2, 1):
        for i in range(st): p(f"v_add_f32 v{34+i}, v{34+i}, v{34+i+st}")
    wave_sum(34, 35, 46)
    p(f"v_mul_f32 v34, {hex(f2u(1.0/1024))}, v34")
    p("v_cvt_pk_bf16_f32 v35, v32, v34")
    p("v_lshlrev_b32 v32, 16, v35")
    p("v_and_b32 v34, 0xffff0000, v35")
    p(f"v_add_f32 v34, {hex(f2u(1e-5))}, v34")
    p("v_cvt_pk_bf16_f32 v34, v34, v34")
    p("v_lshlrev_b32 v34, 16, v34")
    p("v_sqrt_f32 v34, v34")
    p("s_nop 0")
    p("v_cvt_pk_bf16_f32 v34, v34, v34")
    p("v_lshlrev_b32 v34, 16, v34")
    p("v_rcp_f32 v35, v34")
    for i in range(16): p(f"v_sub_f32 v{16+i}, v{16+i}, v32")
    for i in range(8): p(f"v_cvt_pk_bf16_f32 v{8+i}, v{16+2*i}, v{17+2*i}")
    for i in range(8):
        p(f"v_lshlrev_b32 v{16+2*i}, 16, v{8+i}"); p(f"v_and_b32 v{17+2*i}, 0xffff0000, v{8+i}")
    for i in range(16): p(f"v_mul_f32 v{44+i}, v{16+i}, v35")
    for i in range(16): p(f"v_fma_f32 v{16+i}, -v{44+i}, v34, v{16+i}")
    for i in range(16): p(f"v_fmac_f32 v{44+i}, v{16+i}, v35")
    for i in range(8): p(f"v_cvt_pk_bf16_f32 v{8+i}, v{44+2*i}, v{45+2*i}")
    p("v_add_u32 v5, 0x4000, v4")
    stamp(p, 2)
    p("buffer_store_dwordx4 v[8:11], v4, s[8:11], 0 offen")
    p("buffer_store_dwordx4 v[12:15], v5, s[8:11], 0 offen")
    if CFG.get("ts"):
        p("s_waitcnt vmcnt(0)"); p("s_barrier")
        p("v_lshrrev_b32 v1, 6, v0"); p("s_nop 0"); p("v_readfirstlane_b32 s3, v1")
    stamp(p, 3); stamp_store(p, 0, 4)
    p.label("k0_end")
    p("s_endpgm")
    return name, 88, 102, 88

def lane_consts(p, V):
    p(f"v_and_b32 v{V['lane']}, 63, v0")
    p(f"v_lshrrev_b32 v{V['t0']}, 6, v0")
    p("s_nop 0")
    p(f"v_readfirstlane_b32 s3, v{V['t0']}")

def addrK_setup(p, V, dst0, dst1, base):
    l, t0, t1 = V['lane'], V['t0'], V['t1']
    p(f"v_and_b32 v{t0}, 15, v{l}")
    p(f"v_lshrrev_b32 v{t1}, 1, v{t0}")
    p(f"v_lshrrev_b32 v{dst0}, 4, v{l}")
    p(f"v_xor_b32 v{t1}, v{t1}, v{dst0}")
    p(f"v_lshlrev_b32 v{t1}, 4, v{t1}")
    p(f"v_lshl_add_u32 v{dst0}, v{t0}, 7, v{t1}")
    if base: p(f"v_add_u32 v{dst0}, {base}, v{dst0}")
    p(f"v_xor_b32 v{dst1}, 64, v{dst0}")

def addrT_setup(p, V, dst4, kpitch, base):
    l, t0, t1, t2 = V['lane'], V['t0'], V['t1'], V['t2']
    p(f"v_lshrrev_b32 v{t0}, 4, v{l}")
    p(f"v_bfe_u32 v{t1}, v{l}, 2, 2")
    p(f"v_lshl_add_u32 v{t2}, v{t0}, 3, v{t1}")
    p(f"v_mul_u32_u24 v{t2}, {kpitch}, v{t2}")
    p(f"v_and_b32 v{t0}, 1, v{t0}"); p(f"v_lshlrev_b32 v{t0}, 1, v{t0}")
    p(f"v_lshrrev_b32 v{t1}, 1, v{t1}"); p(f"v_or_b32 v{t0}, v{t0}, v{t1}")
    p(f"v_lshlrev_b32 v{t0}, 5, v{t0}")
    p(f"v_bfe_u32 v{t1}, v{l}, 1, 1"); p(f"v_lshlrev_b32 v{t1}, 4, v{t1}")
    p(f"v_or_b32 v{t0}, v{t0}, v{t1}")
    p(f"v_and_b32 v{t1}, 1, v{l}"); p(f"v_lshl_add_u32 v{t2}, v{t1}, 3, v{t2}")
    if base: p(f"v_add_u32 v{t2}, {base}, v{t2}")
    for b in range(4):
        p(f"v_xor_b32 v{t1}, {32*b}, v{t0}")
        p(f"v_add_u32 v{dst4+b}, v{t1}, v{t2}")

def voffK_lane(p, V, dst, pitch, par):
    l, t0, t1 = V['lane'], V['t0'], V['t1']
    p(f"v_lshrrev_b32 v{t0}, 4, v{l}")
    if par: p(f"v_or_b32 v{t0}, 4, v{t0}")
    p(f"v_and_b32 v{t1}, 7, v{l}")
    p(f"v_xor_b32 v{t0}, v{t0}, v{t1}")
    p(f"v_lshlrev_b32 v{t0}, 4, v{t0}")
    p(f"v_lshrrev_b32 v{t1}, 3, v{l}")
    p(f"v_mul_u32_u24 v{t1}, {pitch}, v{t1}")
    p(f"v_add_u32 v{dst}, v{t0}, v{t1}")

def voffT8_lane(p, V, dst, pitch, par):
    l, t0, t1 = V['lane'], V['t0'], V['t1']
    p(f"v_bfe_u32 v{t0}, v{l}, 4, 1")
    p(f"v_lshlrev_b32 v{t0}, 1, v{t0}")
    if par: p(f"v_or_b32 v{t0}, 4, v{t0}")
    p(f"v_and_b32 v{t1}, 7, v{l}")
    p(f"v_xor_b32 v{t0}, v{t0}, v{t1}")
    p(f"v_lshlrev_b32 v{t0}, 4, v{t0}")
    p(f"v_lshrrev_b32 v{t1}, 3, v{l}")
    p(f"v_mul_u32_u24 v{t1}, {pitch}, v{t1}")
    p(f"v_add_u32 v{dst}, v{t0}, v{t1}")

MF = "v_mfma_f32_16x16x32_bf16"

C1 = -2.0 * math.sqrt(2.0 / math.pi) * math.log2(math.e)
C2 = C1 * 0.044715

def gen_k1(p, cfg):
    name = "k1_kernel"
    NS, NPS = cfg["k1_ns"], cfg["k1_nps"]
    STG = 24576
    WIN = 49152
    nwin = (NS * STG + WIN - 1) // WIN
    kernel_head(p, name)
    p("s_cmp_ge_u32 s2, 256"); p("s_cbranch_scc1 k1_end")
    load_ptrs(p)
    V = dict(lane=1, t0=2, t1=3, t2=4)
    ACC = 64
    V_VP = 8
    V_VD = 12
    V_AK = 20
    V_AT = 24
    V_BIAS = 32
    A_P = 0
    A_S = NPS * 16
    S_SRDP = 4
    S_SRDS = 44
    S_SOFF = 68
    S_DLT = 74
    S_KP = 80
    S_M0B = 81
    S_CNT = 82
    S_MT, S_NT, S_N0 = 83, 84, 85
    S_T = 86
    lane_consts(p, V)
    p("s_and_b32 s86, s2, 7"); p("s_lshr_b32 s87, s2, 3")
    p("s_and_b32 s88, s86, 1"); p("s_lshl_b32 s88, s88, 2"); p("s_and_b32 s89, s87, 3"); p(f"s_add_u32 s{S_MT}, s88, s89")
    p("s_lshr_b32 s88, s86, 1"); p("s_lshr_b32 s89, s87, 2"); p("s_lshl_b32 s89, s89, 2"); p(f"s_add_u32 s{S_NT}, s88, s89")
    p(f"s_mul_i32 s{S_N0}, s{S_NT}, 176")
    p(f"s_mul_i32 s{S_M0B}, s3, 6144")
    p(f"s_mov_b32 s{S_KP}, 0")
    p(f"s_lshl_b32 s86, s{S_MT}, 4"); p("s_lshl_b32 s87, s3, 2"); p("s_add_u32 s86, s86, s87"); p("s_lshl_b32 s86, s86, 15")
    p(f"v_lshlrev_b32 v{V_VP}, 4, v1"); p(f"v_add_u32 v{V_VP}, s86, v{V_VP}")
    for i in range(1, 4): p(f"v_add_u32 v{V_VP+i}, {32768*i}, v{V_VP}")
    p("s_lshl_b32 s86, s2, 2"); p("s_add_u32 s86, s86, s3"); p("s_lshl_b32 s87, s86, 13"); p("s_mul_i32 s86, s86, 7168")
    p("v_lshlrev_b32 v55, 4, v1"); p("v_add_u32 v54, s87, v55"); p("v_add_u32 v55, s86, v55"); p("s_mov_b32 s92, 4096")
    p("s_waitcnt lgkmcnt(0)")
    stamp(p, 0)
    srd(p, S_SRDP, S_WS, S_WS + 1, XF_SZ, XF_OFF)
    p(f"s_cmp_lt_u32 s{S_NT}, 11"); p("s_cbranch_scc1 k1_typeD")
    p(f"s_cmp_eq_u32 s{S_NT}, 11"); p("s_cbranch_scc1 k1_typeM")
    p("s_branch k1_typeW")

    def slot_D(i, pv):
        d = S_SRDS + 4 * i
        p(f"s_lshl_b32 s87, s86, 3"); p(f"s_add_u32 s87, s87, s{S_N0}")
        p("s_cmp_lt_u32 s87, 1024")
        p(f"s_cselect_b32 s{d}, s{S_DR}, s{S_DI}"); p(f"s_cselect_b32 s{d+1}, s{S_DR+1}, s{S_DI+1}")
        p(f"s_mov_b32 s{d+2}, 2097152"); p(f"s_mov_b32 s{d+3}, 0x20000")
        p("s_and_b32 s87, s87, 1023"); p("s_lshl_b32 s87, s87, 11")
        p(f"v_add_u32 v{V_VD+i}, s87, v{pv[i&1]}")
        p(f"s_mov_b32 s{S_SOFF+i}, 0"); p(f"s_mov_b32 s{S_DLT+i}, 128")
    def slot_dummy(i):
        d = S_SRDS + 4 * i
        p(f"s_mov_b32 s{d}, s{S_W1}"); p(f"s_mov_b32 s{d+1}, s{S_W1+1}")
        p(f"s_mov_b32 s{d+2}, 0"); p(f"s_mov_b32 s{d+3}, 0x20000")
        p(f"v_mov_b32 v{V_VD+i}, 0")
        p(f"s_mov_b32 s{S_SOFF+i}, 0"); p(f"s_mov_b32 s{S_DLT+i}, 0")

    def dmas(stage):
        out = []
        for i in range(6):
            pre = [f"s_add_u32 m0, s{S_M0B}, {(stage % NS) * STG + 1024 * i}"]
            if stage > 0: pre.insert(0, f"s_add_u32 s{S_SOFF+i}, s{S_SOFF+i}, s{S_DLT+i}")
            d = S_SRDS + 4 * i
            out.append((pre, f"buffer_load_dwordx4 v{V_VD+i}, s[{d}:{d+3}], s{S_SOFF+i} offen lds"))
        return out
    def privs(kappa):
        out = []
        for i in range(4):
            pre = []
            if i == 0 and kappa % 4 == 0 and kappa > 0: pre = [f"s_add_u32 s{S_KP}, s{S_KP}, 4096"]
            a = A_P + (kappa % NPS) * 16 + 4 * i
            out.append((pre, f"buffer_load_dwordx4 {ar(a,4)}, v{V_VP+i}, s[{S_SRDP}:{S_SRDP+3}], s{S_KP} offen offset:{(kappa%4)*1024}"))
        return out
    def pf(kappa):
        if not cfg.get("pf1", 1): return []
        j = kappa - cfg.get("pf1_start", 0)
        if j < 0 or j >= 23: return []
        m, jj = (0, j) if j < 8 else ((1, j - 8) if j < 16 else (2, j - 16))
        pre = []
        if jj == 0:
            b = (S_CR, S_CI, S_W2)[m]
            pre = [f"s_mov_b32 s8, s{b}", f"s_mov_b32 s9, s{b+1}", f"s_mov_b32 s10, {(8388608, 8388608, 7340032)[m]}", "s_mov_b32 s11, 0x20000"]
        return [(pre, f"buffer_load_dwordx4 v[56:59], v{54 if m < 2 else 55}, s[8:11], {'s92' if jj >= 4 else '0'} offen offset:{(jj%4)*1024}")]
    def make(blocks):
        def reads(kappa):
            s, kk = divmod(kappa, 2)
            ring = (s % NS) * STG
            out = []
            for b, bl in enumerate(blocks):
                a = A_S + kk * 44 + 4 * b
                if bl[0] == 'K':
                    off = ring + bl[1]; w = off // WIN
                    out.append(f"ds_read_b128 {ar(a,4)}, v{V_AK+2*w+kk} offset:{off - w*WIN}")
                else:
                    for hh in range(2):
                        off = ring + bl[4] + kk * bl[2] + hh * bl[3]; w = off // WIN
                        out.append(f"ds_read_b64_tr_b16 {ar(a+2*hh,2)}, v{V_AT+4*w+bl[1]} offset:{off - w*WIN}")
            return out
        def mfmas(kappa):
            kk = kappa % 2
            out = []
            for b, bl in enumerate(blocks):
                for i in range(4):
                    acc = ACC + (b * 4 + i) * 4
                    S = ar(A_S + kk * 44 + 4 * b, 4); P = ar(A_P + (kappa % NPS) * 16 + 4 * i, 4)
                    c = vr(acc, 4) if kappa > 0 else "0"
                    if bl[0] == 'K': out.append(f"{MF} {vr(acc,4)}, {P}, {S}, {c}")
                    else: out.append(f"{MF} {vr(acc,4)}, {S}, {P}, {c}")
            return out
        return reads, mfmas

    def epi_D(blocks_idx):
        srd(p, 8, S_WS, S_WS + 1, ABF_SZ, ABF_OFF)
        p("v_lshrrev_b32 v2, 4, v1"); p("v_and_b32 v3, 1, v2"); p("v_lshlrev_b32 v3, 1, v3"); p("v_lshrrev_b32 v2, 1, v2")
        p("v_or_b32 v2, v2, v3"); p("v_lshlrev_b32 v2, 8, v2"); p("v_and_b32 v3, 15, v1"); p("v_lshl_add_u32 v2, v3, 4, v2")
        p(f"s_lshl_b32 s86, s{S_MT}, 3"); p("s_lshl_b32 s87, s3, 1"); p("s_add_u32 s86, s86, s87"); p("s_lshl_b32 s86, s86, 10")
        p("v_add_u32 v2, s86, v2")
        for b in blocks_idx:
            p(f"s_add_u32 s87, s{S_N0}, {16*b}")
            p("s_lshr_b32 s88, s87, 10"); p("s_lshl_b32 s88, s88, 16")
            p("s_and_b32 s87, s87, 1023"); p("s_lshl_b32 s87, s87, 13")
            p("s_add_u32 s87, s87, s88")
            for m in range(2):
                a0 = ACC + (b * 4 + 2 * m) * 4; a1 = a0 + 4
                t = 8 + 4 * m
                p(f"v_cvt_pk_bf16_f32 v{t}, v{a0}, v{a0+1}"); p(f"v_cvt_pk_bf16_f32 v{t+1}, v{a0+2}, v{a0+3}")
                p(f"v_cvt_pk_bf16_f32 v{t+2}, v{a1}, v{a1+1}"); p(f"v_cvt_pk_bf16_f32 v{t+3}, v{a1+2}, v{a1+3}")
            p("s_nop 1")
            for m in range(2):
                t = 8 + 4 * m
                p(f"v_permlane16_swap_b32 v{t}, v{t+2}"); p(f"v_permlane16_swap_b32 v{t+1}, v{t+3}")
            for m in range(2):
                t = 8 + 4 * m
                p(f"buffer_store_dwordx4 v[{t}:{t+3}], v2, s[8:11], s87 offen offset:{1024*m}")
            p("s_nop 1")

    def bias_load(blocks_idx, f0_sgpr):
        srd(p, 12, S_B1, S_B1 + 1, 7168)
        p("v_lshrrev_b32 v2, 4, v1"); p("v_lshlrev_b32 v2, 3, v2")
        p(f"s_lshl_b32 s86, s{f0_sgpr}, 1"); p("v_add_u32 v2, s86, v2")
        for n, b in enumerate(blocks_idx):
            p(f"buffer_load_dwordx2 v[{V_BIAS+2*n}:{V_BIAS+2*n+1}], v2, s[12:15], 0 offen offset:{32*n}")

    def gelu8(src, bias, T):
        n = len(src)
        U_ = T + 4; W_ = T + 4 + n; Pk = T
        for i in range(n // 2): p(f"v_cvt_pk_bf16_f32 v{Pk+i}, v{src[2*i]}, v{src[2*i+1]}")
        for i in range(n // 2):
            p(f"v_lshlrev_b32 v{U_+2*i}, 16, v{Pk+i}"); p(f"v_and_b32 v{U_+2*i+1}, 0xffff0000, v{Pk+i}")
        for i in range(n): p(f"v_add_f32 v{U_+i}, v{U_+i}, v{bias[i]}")
        for i in range(n // 2): p(f"v_cvt_pk_bf16_f32 v{Pk+i}, v{U_+2*i}, v{U_+2*i+1}")
        for i in range(n // 2):
            p(f"v_lshlrev_b32 v{U_+2*i}, 16, v{Pk+i}"); p(f"v_and_b32 v{U_+2*i+1}, 0xffff0000, v{Pk+i}")
        for i in range(n): p(f"v_mul_f32 v{W_+i}, v{U_+i}, v{U_+i}")
        for i in range(n): p(f"v_fma_f32 v{W_+i}, v{W_+i}, s90, v5")
        for i in range(n): p(f"v_mul_f32 v{W_+i}, v{W_+i}, v{U_+i}")
        for i in range(n): p(f"v_exp_f32 v{W_+i}, v{W_+i}")
        for i in range(n): p(f"v_add_f32 v{W_+i}, 1.0, v{W_+i}")
        for i in range(n): p(f"v_rcp_f32 v{W_+i}, v{W_+i}")
        for i in range(n): p(f"v_mul_f32 v{W_+i}, v{W_+i}, v{U_+i}")
        for i in range(n // 2): p(f"v_cvt_pk_bf16_f32 v{Pk+i}, v{W_+2*i}, v{W_+2*i+1}")

    def epi_W(blocks_idx, f0_sgpr):
        srd(p, 8, S_WS, S_WS + 1, HF_SZ, HF_OFF)
        p(f"s_mov_b32 s90, {hex(f2u(C2))}"); p(f"v_mov_b32 v5, {hex(f2u(C1))}")
        p("v_lshrrev_b32 v2, 4, v1"); p("v_and_b32 v3, 1, v2"); p("v_lshlrev_b32 v3, 4, v3"); p("v_lshrrev_b32 v4, 1, v2")
        p("v_lshl_add_u32 v3, v4, 3, v3"); p(f"v_add_u32 v3, s{f0_sgpr}, v3")
        p("v_lshrrev_b32 v4, 5, v3"); p("v_lshlrev_b32 v4, 10, v4"); p("v_bfe_u32 v3, v3, 3, 2"); p("v_lshl_add_u32 v4, v3, 8, v4")
        p("v_and_b32 v3, 15, v1"); p("v_lshl_add_u32 v6, v3, 4, v4")
        nb = len(blocks_idx)
        if nb % 2:
            p(f"v_lshlrev_b32 v4, 2, v2"); p(f"v_add_u32 v4, s{f0_sgpr}, v4"); p(f"v_add_u32 v4, {16*(nb-1)}, v4")
            p("v_lshrrev_b32 v7, 5, v4"); p("v_lshlrev_b32 v7, 10, v7"); p("v_bfe_u32 v2, v4, 3, 2"); p("v_lshl_add_u32 v7, v2, 8, v7")
            p("v_bfe_u32 v2, v4, 2, 1"); p("v_lshl_add_u32 v7, v2, 3, v7"); p("v_lshl_add_u32 v7, v3, 4, v7")
        p(f"s_lshl_b32 s86, s{S_MT}, 4"); p("s_lshl_b32 s87, s3, 2"); p("s_add_u32 s86, s86, s87"); p("s_mul_i32 s86, s86, 114688")
        BF = 240
        T0 = 8
        for n0 in range(0, nb, 2):
            pair = blocks_idx[n0:n0 + 2]
            for k_, b in enumerate(pair):
                for h in range(2):
                    p(f"v_lshlrev_b32 v{BF+4*k_+2*h}, 16, v{V_BIAS+2*(n0+k_)+h}")
                    p(f"v_and_b32 v{BF+4*k_+2*h+1}, 0xffff0000, v{V_BIAS+2*(n0+k_)+h}")
            for i in range(4):
                src = []; bs = []
                for k_, b in enumerate(pair):
                    src += [ACC + (b * 4 + i) * 4 + r for r in range(4)]
                    bs += [BF + 4 * k_ + r for r in range(4)]
                gelu8(src, bs, T0)
                p(f"s_add_u32 s87, s86, {114688*i + 1024*(n0//2) if len(pair)==2 else 114688*i}")
                if len(pair) == 2:
                    p("s_nop 0")
                    p(f"v_permlane16_swap_b32 v{T0}, v{T0+2}"); p(f"v_permlane16_swap_b32 v{T0+1}, v{T0+3}")
                    p(f"buffer_store_dwordx4 v[{T0}:{T0+3}], v6, s[8:11], s87 offen")
                else:
                    p(f"buffer_store_dwordx2 v[{T0}:{T0+1}], v7, s[8:11], s87 offen")
                p("s_nop 1")

    p.label("k1_typeD")
    voffK_lane(p, V, 5, 2048, 0); voffK_lane(p, V, 6, 2048, 1)
    for i in range(6):
        p(f"s_mul_i32 s86, s3, 6"); p(f"s_add_u32 s86, s86, {i}")
        if i >= 4:
            lab = p.newlabel("k1d"); lab2 = p.newlabel("k1d")
            p("s_cmp_ge_u32 s86, 22"); p(f"s_cbranch_scc1 {lab}")
            slot_D(i, (5, 6)); p(f"s_branch {lab2}")
            p.label(lab); slot_dummy(i); p.label(lab2)
        else:
            slot_D(i, (5, 6))
    for w in range(nwin): addrK_setup(p, V, V_AK + 2 * w, V_AK + 2 * w + 1, w * WIN)
    blocks = [('K', 2048 * b) for b in range(11)]
    reads, mfmas = make(blocks)
    gemm_mainloop(p, "k1d", 16, NS, NPS, S_CNT, mfmas, reads, dmas, privs, pf=pf)
    p("s_nop 7"); p("s_nop 7")
    epi_D(range(11))
    if CFG.get("ts"): p("s_waitcnt vmcnt(0)")
    stamp(p, 3); stamp_store(p, 1, 4)
    p("s_endpgm")
    p.label("k1_typeW")
    p(f"s_sub_u32 s91, s{S_N0}, 2048")
    bias_load(range(11), 91)
    for i in range(6):
        rho, tp = i % 3, (i // 3) & 1
        d = S_SRDS + 4 * i
        p(f"v_add_u32 v2, {64*rho}, v1")
        p("v_mul_u32_u24 v3, 2731, v2"); p("v_lshrrev_b32 v3, 16, v3")
        p("v_mul_u32_u24 v4, 24, v3"); p("v_sub_u32 v2, v2, v4")
        p("v_bfe_u32 v4, v3, 1, 1"); p("v_lshlrev_b32 v4, 1, v4")
        if tp: p("v_or_b32 v4, 4, v4")
        p("v_xor_b32 v2, v2, v4")
        p("v_mul_u32_u24 v3, 7168, v3"); p("v_lshl_add_u32 v3, v2, 4, v3")
        p(f"s_lshl_b32 s86, s3, 1"); p(f"s_add_u32 s86, s86, {i//3}"); p("s_mul_i32 s86, s86, 57344")
        p("s_lshl_b32 s87, s91, 1"); p("s_add_u32 s86, s86, s87")
        p("v_add_u32 v3, s86, v3")
        p("v_cmp_gt_u32 vcc, 22, v2")
        p("v_mov_b32 v4, 0x80000000")
        p("s_nop 0")
        p(f"v_cndmask_b32 v{V_VD+i}, v4, v3, vcc")
        p(f"s_mov_b32 s{d}, s{S_W1}"); p(f"s_mov_b32 s{d+1}, s{S_W1+1}"); p(f"s_mov_b32 s{d+2}, 7340032"); p(f"s_mov_b32 s{d+3}, 0x20000")
        p(f"s_mov_b32 s{S_SOFF+i}, 0"); p(f"s_mov_b32 s{S_DLT+i}, {64*7168}")
    for w in range(nwin): addrT_setup(p, V, V_AT + 4 * w, 384, w * WIN)
    blocks = [('T', b & 3, 32 * 384, 4 * 384, (b >> 2) * 128) for b in range(11)]
    reads, mfmas = make(blocks)
    gemm_mainloop(p, "k1w", 16, NS, NPS, S_CNT, mfmas, reads, dmas, privs, pf=pf)
    p("s_nop 7"); p("s_nop 7")
    epi_W(list(range(11)), 91)
    if CFG.get("ts"): p("s_waitcnt vmcnt(0)")
    stamp(p, 3); stamp_store(p, 1, 4)
    p("s_endpgm")
    p.label("k1_typeM")
    p("s_mov_b32 s91, 0")
    bias_load(range(4), 91)
    voffK_lane(p, V, 5, 2048, 0); voffK_lane(p, V, 6, 2048, 1)
    voffT8_lane(p, V, 7, 7168, 0); voffT8_lane(p, V, 18, 7168, 1)
    for i in range(6):
        d = S_SRDS + 4 * i
        l1 = p.newlabel("k1m"); l2 = p.newlabel("k1m"); l3 = p.newlabel("k1m")
        p(f"s_mul_i32 s86, s3, 6"); p(f"s_add_u32 s86, s86, {i}")
        p("s_cmp_ge_u32 s86, 22"); p(f"s_cbranch_scc1 {l2}")
        p("s_cmp_ge_u32 s86, 14"); p(f"s_cbranch_scc1 {l1}")
        slot_D(i, (5, 6)); p(f"s_branch {l3}")
        p.label(l1)
        p("s_sub_u32 s87, s86, 14"); p("s_mul_i32 s87, s87, 57344")
        p(f"v_add_u32 v{V_VD+i}, s87, v{(7, 18)[i & 1]}")
        p(f"s_mov_b32 s{d}, s{S_W1}"); p(f"s_mov_b32 s{d+1}, s{S_W1+1}"); p(f"s_mov_b32 s{d+2}, 7340032"); p(f"s_mov_b32 s{d+3}, 0x20000")
        p(f"s_mov_b32 s{S_SOFF+i}, 0"); p(f"s_mov_b32 s{S_DLT+i}, {64*7168}")
        p(f"s_branch {l3}")
        p.label(l2); slot_dummy(i)
        p.label(l3)
    for w in range(nwin):
        addrK_setup(p, V, V_AK + 2 * w, V_AK + 2 * w + 1, w * WIN)
        addrT_setup(p, V, V_AT + 4 * w, 128, w * WIN)
    blocks = [('K', 2048 * b) for b in range(7)] + [('T', b, 4096, 512, 14336) for b in range(4)]
    reads, mfmas = make(blocks)
    gemm_mainloop(p, "k1m", 16, NS, NPS, S_CNT, mfmas, reads, dmas, privs, pf=pf)
    p("s_nop 7"); p("s_nop 7")
    epi_D(range(7))
    epi_W([7, 8, 9, 10], 91)
    if CFG.get("ts"): p("s_waitcnt vmcnt(0)")
    stamp(p, 3); stamp_store(p, 1, 4)
    p.label("k1_end")
    p("s_endpgm")
    return name, 256 + A_S + 88, 102, 256

def gen_k2(p, cfg):
    name = "k2_kernel"
    NS, NPS = cfg["k2_ns"], cfg["k2_nps"]
    STG = 16384
    WIN = 65536
    nwin = (NS * STG + WIN - 1) // WIN
    kernel_head(p, name)
    p("s_cmp_ge_u32 s2, 256"); p("s_cbranch_scc1 k2_end")
    load_ptrs(p)
    V = dict(lane=1, t0=2, t1=3, t2=4)
    ACC = 128
    V_VP = 8; V_VD = 12; V_AK = 20; V_AT = 20
    A_P = 0; A_S = NPS * 8
    S_SRDP, S_SRDS = 4, 8
    S_SOFF, S_KP, S_M0B, S_CNT, S_TA, S_TB, S_TILE = 44, 45, 46, 47, 48, 49, 50
    lane_consts(p, V)
    p("s_and_b32 s86, s2, 7"); p("s_lshr_b32 s87, s2, 3")
    p("s_and_b32 s88, s86, 1"); p("s_lshl_b32 s88, s88, 2"); p("s_and_b32 s89, s87, 3"); p(f"s_add_u32 s{S_TA}, s88, s89")
    p("s_lshr_b32 s88, s86, 1"); p("s_and_b32 s88, s88, 1"); p("s_lshl_b32 s88, s88, 3"); p("s_lshr_b32 s89, s87, 2"); p(f"s_add_u32 s{S_TB}, s88, s89")
    p(f"s_lshl_b32 s{S_TILE}, s{S_TB}, 3"); p(f"s_add_u32 s{S_TILE}, s{S_TILE}, s{S_TA}")
    p(f"s_lshl_b32 s{S_M0B}, s3, 12")
    p(f"s_mov_b32 s{S_KP}, 0"); p(f"s_mov_b32 s{S_SOFF}, 0")
    p("s_waitcnt lgkmcnt(0)")
    stamp(p, 0)
    p("s_cmp_ge_u32 s86, 4"); p("s_cbranch_scc1 k2_typeY")

    def privs(kappa):
        out = []
        for i in range(2):
            pre = []
            if i == 0 and kappa % 4 == 0 and kappa > 0: pre = [f"s_add_u32 s{S_KP}, s{S_KP}, 4096"]
            a = A_P + (kappa % NPS) * 8 + 4 * i
            out.append((pre, f"buffer_load_dwordx4 {ar(a,4)}, v{V_VP+i}, s[{S_SRDP}:{S_SRDP+3}], s{S_KP} offen offset:{(kappa%4)*1024}"))
        return out

    srd(p, S_SRDP, S_WS, S_WS + 1, HF_SZ, HF_OFF)
    srd(p, S_SRDS, S_W2, S_W2 + 1, 7340032)
    p(f"s_lshl_b32 s86, s{S_TB}, 3"); p("s_lshl_b32 s87, s3, 1"); p("s_add_u32 s86, s86, s87"); p("s_mul_i32 s86, s86, 114688")
    p(f"v_lshlrev_b32 v{V_VP}, 4, v1"); p(f"v_add_u32 v{V_VP}, s86, v{V_VP}"); p(f"v_add_u32 v{V_VP+1}, 114688, v{V_VP}")
    srd(p, 12, S_B2, S_B2 + 1, 2048)
    p("v_lshrrev_b32 v2, 4, v1"); p("v_lshlrev_b32 v2, 3, v2"); p(f"s_lshl_b32 s86, s{S_TA}, 8"); p("v_add_u32 v2, s86, v2")
    for di in range(8): p(f"buffer_load_dwordx2 v[{32+2*di}:{33+2*di}], v2, s[12:15], 0 offen offset:{32*di}")
    voffT8_lane(p, V, 5, 2048, 0); voffT8_lane(p, V, 6, 2048, 1)
    p("s_and_b32 s86, s3, 1"); p("s_lshl_b32 s86, s86, 16"); p("s_lshr_b32 s87, s3, 1"); p("s_lshl_b32 s87, s87, 7"); p("s_add_u32 s86, s86, s87")
    p(f"s_lshl_b32 s87, s{S_TA}, 8"); p("s_add_u32 s86, s86, s87")
    for i in range(4):
        p(f"v_add_u32 v{V_VD+i}, s86, v{5+(i&1)}")
        if i: p(f"v_add_u32 v{V_VD+i}, {16384*i}, v{V_VD+i}")
    for w in range(nwin): addrT_setup(p, V, V_AT + 4 * w, 128, w * WIN)
    def dmas_o(stage):
        out = []
        for i in range(4):
            pre = [f"s_add_u32 m0, s{S_M0B}, {(stage % NS) * STG + 1024 * i}"]
            if i == 0 and stage > 0: pre.insert(0, f"s_add_u32 s{S_SOFF}, s{S_SOFF}, 131072")
            out.append((pre, f"buffer_load_dwordx4 v{V_VD+i}, s[{S_SRDS}:{S_SRDS+3}], s{S_SOFF} offen lds"))
        return out
    def reads_o(kappa):
        s, kk = divmod(kappa, 2)
        out = []
        for b in range(8):
            for hh in range(2):
                off = (s % NS) * STG + (b >> 2) * 8192 + kk * 4096 + hh * 512; w = off // WIN
                out.append(f"ds_read_b64_tr_b16 {ar(A_S + kk*32 + 4*b + 2*hh, 2)}, v{V_AT+4*w+(b&3)} offset:{off - w*WIN}")
        return out
    def mfmas_o(kappa):
        kk = kappa % 2
        out = []
        for b in range(8):
            for i in range(2):
                acc = ACC + (b * 2 + i) * 4
                c = vr(acc, 4) if kappa > 0 else "0"
                out.append(f"{MF} {vr(acc,4)}, {ar(A_S+kk*32+4*b,4)}, {ar(A_P+(kappa%NPS)*8+4*i,4)}, {c}")
        return out
    gemm_mainloop(p, "k2o", 56, NS, NPS, S_CNT, mfmas_o, reads_o, dmas_o, privs, read_frac=cfg.get("k2o_rf", 0.7))
    p("s_nop 7"); p("s_nop 7")
    srd(p, 8, S_WS, S_WS + 1, G_SZ, G_OFF)
    srd(p, 12, S_WS, S_WS + 1, FL_SZ, FL_OFF)
    p(f"s_lshl_b32 s86, s{S_TILE}, 15"); p("s_lshl_b32 s87, s3, 11"); p("s_add_u32 s86, s86, s87")
    p("v_lshlrev_b32 v2, 4, v1"); p("v_add_u32 v2, s86, v2")
    p(f"s_mov_b32 s90, {hex(f2u(-math.log2(math.e)))}")
    BF = 56
    for m in range(4):
        for k_ in range(2):
            for h in range(2):
                p(f"v_lshlrev_b32 v{BF+4*k_+2*h}, 16, v{32+2*(2*m+k_)+h}")
                p(f"v_and_b32 v{BF+4*k_+2*h+1}, 0xffff0000, v{32+2*(2*m+k_)+h}")
        for sj in range(2):
            src = [ACC + ((2 * m + k_) * 2 + sj) * 4 + r for k_ in range(2) for r in range(4)]
            T = 64 + 24 * sj; U_ = T + 4; W_ = T + 12
            for i in range(4): p(f"v_cvt_pk_bf16_f32 v{T+i}, v{src[2*i]}, v{src[2*i+1]}")
            for i in range(4):
                p(f"v_lshlrev_b32 v{U_+2*i}, 16, v{T+i}"); p(f"v_and_b32 v{U_+2*i+1}, 0xffff0000, v{T+i}")
            for i in range(8): p(f"v_add_f32 v{U_+i}, v{U_+i}, v{BF+i}")
            for i in range(4): p(f"v_cvt_pk_bf16_f32 v{T+i}, v{U_+2*i}, v{U_+2*i+1}")
            for i in range(4):
                p(f"v_lshlrev_b32 v{U_+2*i}, 16, v{T+i}"); p(f"v_and_b32 v{U_+2*i+1}, 0xffff0000, v{T+i}")
            for i in range(8): p(f"v_mul_f32 v{W_+i}, s90, v{U_+i}")
            for i in range(8): p(f"v_exp_f32 v{W_+i}, v{W_+i}")
            for i in range(8): p(f"v_add_f32 v{W_+i}, 1.0, v{W_+i}")
            for i in range(8): p(f"v_rcp_f32 v{W_+i}, v{W_+i}")
            for i in range(8): p(f"v_mul_f32 v{W_+i}, v{W_+i}, v{U_+i}")
            for i in range(4): p(f"v_cvt_pk_bf16_f32 v{T+i}, v{W_+2*i}, v{W_+2*i+1}")
            p("s_nop 1")
            p(f"v_permlane16_swap_b32 v{T}, v{T+2}"); p(f"v_permlane16_swap_b32 v{T+1}, v{T+3}")
            p(f"s_mov_b32 s87, {8192*m + 1024*sj}")
            p(f"buffer_store_dwordx4 v[{T}:{T+3}], v2, s[8:11], s87 offen sc0 sc1")
    p("s_waitcnt vmcnt(0)")
    p("s_barrier")
    if CFG.get("ts"): p("s_waitcnt vmcnt(0)")
    stamp(p, 3); stamp_store(p, 2, 4)
    p("s_cmp_lg_u32 s3, 0"); p("s_cbranch_scc1 k2_end")
    p(f"s_lshl_b32 s86, s{S_TILE}, 7"); p("v_mov_b32 v2, s86"); p("v_mov_b32 v3, 1")
    p("v_cmp_eq_u32 vcc, 0, v1"); p("s_and_saveexec_b64 s[92:93], vcc")
    p("buffer_store_dword v3, v2, s[12:15], 0 offen sc0 sc1")
    p("s_endpgm")

    p.label("k2_typeY")
    srd(p, S_SRDP, S_WS, S_WS + 1, ABF_SZ, ABF_OFF)
    srd(p, S_SRDS, S_CR, S_CR + 1, 8388608)
    p(f"s_lshl_b32 s86, s{S_TA}, 3"); p("s_lshl_b32 s87, s3, 1"); p("s_add_u32 s86, s86, s87"); p("s_lshl_b32 s86, s86, 17")
    p(f"v_lshlrev_b32 v{V_VP}, 4, v1"); p(f"v_add_u32 v{V_VP}, s86, v{V_VP}"); p(f"v_add_u32 v{V_VP+1}, 131072, v{V_VP}")
    voffK_lane(p, V, 5, 4096, 0); voffK_lane(p, V, 6, 4096, 1)
    p(f"s_lshl_b32 s86, s{S_TB}, 7"); p("s_lshl_b32 s87, s3, 5"); p("s_add_u32 s86, s86, s87"); p("s_lshl_b32 s86, s86, 12")
    for i in range(4):
        p(f"v_add_u32 v{V_VD+i}, s86, v{5+(i&1)}")
        if i: p(f"v_add_u32 v{V_VD+i}, {32768*i}, v{V_VD+i}")
    for w in range(nwin): addrK_setup(p, V, V_AK + 2 * w, V_AK + 2 * w + 1, w * WIN)
    def dmas_y(stage):
        out = []
        for i in range(4):
            pre = [f"s_add_u32 m0, s{S_M0B}, {(stage % NS) * STG + 1024 * i}"]
            if i == 0 and stage > 0:
                if stage == 32:
                    pre = [f"s_mov_b32 s{S_SRDS}, s{S_CI}", f"s_mov_b32 s{S_SRDS+1}, s{S_CI+1}", f"s_mov_b32 s{S_SOFF}, 0"] + pre
                else:
                    pre.insert(0, f"s_add_u32 s{S_SOFF}, s{S_SOFF}, 128")
            out.append((pre, f"buffer_load_dwordx4 v{V_VD+i}, s[{S_SRDS}:{S_SRDS+3}], s{S_SOFF} offen lds"))
        return out
    def reads_y(kappa):
        s, kk = divmod(kappa, 2)
        out = []
        for b in range(8):
            off = (s % NS) * STG + 2048 * b; w = off // WIN
            out.append(f"ds_read_b128 {ar(A_S + kk*32 + 4*b, 4)}, v{V_AK+2*w+kk} offset:{off - w*WIN}")
        return out
    def mfmas_y(kappa):
        kk = kappa % 2
        out = []
        for b in range(8):
            for i in range(2):
                acc = ACC + (64 if kappa >= 64 else 0) + (i * 8 + b) * 4
                c = vr(acc, 4) if kappa not in (0, 64) else "0"
                out.append(f"{MF} {vr(acc,4)}, {ar(A_P+(kappa%NPS)*8+4*i,4)}, {ar(A_S+kk*32+4*b,4)}, {c}")
        return out
    gemm_mainloop(p, "k2y", 64, NS, NPS, S_CNT, mfmas_y, reads_y, dmas_y, privs, read_frac=cfg.get("k2y_rf", 0.7))
    srd(p, 4, S_X, S_X + 1, 4194304)
    srd(p, 8, S_WS, S_WS + 1, G_SZ, G_OFF)
    srd(p, 12, S_WS, S_WS + 1, FL_SZ, FL_OFF)
    srd(p, 52, S_OUT, S_OUT + 1, 4194304)
    p("v_lshrrev_b32 v2, 4, v1"); p("v_and_b32 v3, 1, v2"); p("v_lshlrev_b32 v3, 5, v3"); p("v_lshrrev_b32 v2, 1, v2"); p("v_lshl_add_u32 v3, v2, 4, v3")
    p("v_and_b32 v2, 15, v1"); p("v_lshl_add_u32 v3, v2, 11, v3")
    p(f"s_lshl_b32 s86, s{S_TB}, 18"); p(f"s_lshl_b32 s87, s{S_TA}, 8"); p("s_add_u32 s86, s86, s87"); p("s_lshl_b32 s87, s3, 6"); p("s_add_u32 s86, s86, s87")
    p("v_add_u32 v3, s86, v3")
    XR = 32
    GR = 64
    for tj in range(8):
        p(f"s_mov_b32 s87, {32768*tj}")
        p(f"buffer_load_dwordx4 v[{XR+4*tj}:{XR+4*tj+3}], v3, s[4:7], s87 offen")
    p(f"s_lshl_b32 s86, s{S_TILE}, 7"); p("v_mov_b32 v2, s86")
    p("s_cmp_lg_u32 s3, 0"); p("s_cbranch_scc1 k2y_polled")
    p.label("k2y_poll")
    p("buffer_load_dword v4, v2, s[12:15], 0 offen sc0 sc1")
    p("s_waitcnt vmcnt(0)")
    p("v_readfirstlane_b32 s87, v4")
    p("s_cmp_eq_u32 s87, 1"); p("s_cbranch_scc1 k2y_polled")
    p("s_sleep 2")
    p("s_branch k2y_poll")
    p.label("k2y_polled")
    p("s_barrier")
    p(f"s_lshl_b32 s86, s{S_TILE}, 15"); p("s_lshl_b32 s87, s3, 13"); p("s_add_u32 s86, s86, s87")
    p("v_lshlrev_b32 v2, 4, v1"); p("v_add_u32 v2, s86, v2")
    for tj in range(8):
        p(f"s_mov_b32 s87, {1024*tj}")
        p(f"buffer_load_dwordx4 v[{GR+4*tj}:{GR+4*tj+3}], v2, s[8:11], s87 offen sc0 sc1")
    for tj in range(8):
        T = 96; U_ = 100; W_ = 108
        sp = [ACC + (i * 8 + tj) * 4 + r for i in range(2) for r in range(4)]
        for i in range(4): p(f"v_cvt_pk_bf16_f32 v{T+i}, v{sp[2*i]}, v{sp[2*i+1]}")
        for i in range(4): p(f"v_cvt_pk_bf16_f32 v{T+20+i}, v{sp[2*i]+64}, v{sp[2*i+1]+64}")
        for i in range(4):
            p(f"v_lshlrev_b32 v{U_+2*i}, 16, v{T+i}"); p(f"v_and_b32 v{U_+2*i+1}, 0xffff0000, v{T+i}")
            p(f"v_lshlrev_b32 v{W_+2*i}, 16, v{T+20+i}"); p(f"v_and_b32 v{W_+2*i+1}, 0xffff0000, v{T+20+i}")
        for i in range(8): p(f"v_sub_f32 v{U_+i}, v{U_+i}, v{W_+i}")
        Y = sp[0]
        for i in range(4): p(f"v_cvt_pk_bf16_f32 v{Y+i}, v{U_+2*i}, v{U_+2*i+1}")
        p("s_nop 1")
        p(f"v_permlane16_swap_b32 v{Y}, v{Y+2}"); p(f"v_permlane16_swap_b32 v{Y+1}, v{Y+3}")
    p("s_waitcnt vmcnt(0)")
    for tj in range(8):
        Y = ACC + tj * 4
        U_ = 96; W_ = 104; X_ = 112; T = 120
        for i in range(4):
            p(f"v_lshlrev_b32 v{U_+2*i}, 16, v{Y+i}"); p(f"v_and_b32 v{U_+2*i+1}, 0xffff0000, v{Y+i}")
            p(f"v_lshlrev_b32 v{W_+2*i}, 16, v{GR+4*tj+i}"); p(f"v_and_b32 v{W_+2*i+1}, 0xffff0000, v{GR+4*tj+i}")
            p(f"v_lshlrev_b32 v{X_+2*i}, 16, v{XR+4*tj+i}"); p(f"v_and_b32 v{X_+2*i+1}, 0xffff0000, v{XR+4*tj+i}")
        for i in range(8): p(f"v_mul_f32 v{U_+i}, v{U_+i}, v{W_+i}")
        for i in range(4): p(f"v_cvt_pk_bf16_f32 v{T+i}, v{U_+2*i}, v{U_+2*i+1}")
        for i in range(4):
            p(f"v_lshlrev_b32 v{U_+2*i}, 16, v{T+i}"); p(f"v_and_b32 v{U_+2*i+1}, 0xffff0000, v{T+i}")
        for i in range(8): p(f"v_add_f32 v{U_+i}, v{U_+i}, v{X_+i}")
        for i in range(4): p(f"v_cvt_pk_bf16_f32 v{Y+i}, v{U_+2*i}, v{U_+2*i+1}")
        p(f"s_mov_b32 s87, {32768*tj}")
        p(f"buffer_store_dwordx4 v[{Y}:{Y+3}], v3, s[52:55], s87 offen")
    if CFG.get("ts"): p("s_waitcnt vmcnt(0)")
    stamp(p, 3); stamp_store(p, 2, 4)
    p.label("k2_end")
    p("s_endpgm")
    return name, 256 + A_S + 64, 102, 256

def generate(cfg, kernels=("k0", "k1", "k2")):
    CFG.clear(); CFG.update(cfg); CFG["ts_sbase"] = 98
    p = Prog()
    body = Prog()
    info = []
    lds = {"k0": 0, "k1": cfg["k1_ns"] * 24576, "k2": cfg["k2_ns"] * 16384}
    blk = {"k0": 512, "k1": 256, "k2": 256}
    for k in ("k0", "k1", "k2"):
        info.append((k,) + {"k0": lambda: gen_k0(body), "k1": lambda: gen_k1(body, cfg), "k2": lambda: gen_k2(body, cfg)}[k]())
    out = []
    out.append("; FNet (dense DFT matmuls) + GELU FFN fused block; generated by dev/gen.py")
    for k in kernels:
        out.append(f"; @launch kernel={k}_kernel grid=(256,1,1) block=({blk[k]},1,1) lds={lds[k]}")
    out.append('.amdgcn_target "amdgcn-amd-amdhsa--gfx950"')
    out.append(".text")
    out += body.L
    out.append('.section .rodata,"a"')
    for k, name, nfv, nfs, acc in info:
        out.append(".p2align 6")
        out.append(f".amdhsa_kernel {name}")
        out.append(f"  .amdhsa_next_free_vgpr {nfv}")
        out.append(f"  .amdhsa_next_free_sgpr {nfs}")
        out.append(f"  .amdhsa_accum_offset {acc}")
        out.append("  .amdhsa_group_segment_fixed_size 0")
        out.append("  .amdhsa_kernarg_size 104")
        out.append("  .amdhsa_user_sgpr_count 2")
        out.append("  .amdhsa_user_sgpr_kernarg_segment_ptr 1")
        out.append("  .amdhsa_system_sgpr_workgroup_id_x 1")
        out.append(".end_amdhsa_kernel")
    return "\n".join(out) + "\n"

DEFAULT = dict(k1_ns=4, k1_nps=8, k2_ns=8, k2_nps=16)

if __name__ == "__main__":
    cfg = dict(DEFAULT)
    fn = sys.argv[1] if len(sys.argv) > 1 else "full.s"
    for a in sys.argv[2:]:
        k, v = a.split("=")
        cfg[k] = float(v) if "." in v else int(v)
    kern = ("k0", "k1", "k2", "k2") if cfg.get("k2twice") else ("k0", "k1", "k2")
    open(fn, "w").write(generate(cfg, kern))
```

```python
import sys, math
import gen, gen2
from gen import *
from gen2 import gelu_batch, FL2_OFF, FL2_SZ
TY_OFF, TG_OFF = WSB + (28 << 20), WSB + (32 << 20)

def gelu_pk(p, src, bias, T, n):
    Pk = T; U_ = T + n // 2; W_ = U_ + n
    pr = lambda r: f"v[{r}:{r+1}]"
    for i in range(n // 2): p(f"v_cvt_pk_bf16_f32 v{Pk+i}, v{src[2*i]}, v{src[2*i+1]}")
    for i in range(n // 2):
        p(f"v_lshlrev_b32 v{U_+2*i}, 16, v{Pk+i}"); p(f"v_and_b32 v{U_+2*i+1}, 0xffff0000, v{Pk+i}")
    for i in range(0, n, 2): p(f"v_pk_add_f32 {pr(U_+i)}, {pr(U_+i)}, {pr(bias[i])}")
    for i in range(n // 2): p(f"v_cvt_pk_bf16_f32 v{Pk+i}, v{U_+2*i}, v{U_+2*i+1}")
    for i in range(n // 2):
        p(f"v_lshlrev_b32 v{U_+2*i}, 16, v{Pk+i}"); p(f"v_and_b32 v{U_+2*i+1}, 0xffff0000, v{Pk+i}")
    for i in range(0, n, 2): p(f"v_pk_mul_f32 {pr(W_+i)}, {pr(U_+i)}, {pr(U_+i)}")
    for i in range(0, n, 2): p(f"v_pk_fma_f32 {pr(W_+i)}, {pr(W_+i)}, s[90:91], v[2:3]")
    for i in range(0, n, 2): p(f"v_pk_mul_f32 {pr(W_+i)}, {pr(W_+i)}, {pr(U_+i)}")
    for i in range(n): p(f"v_exp_f32 v{W_+i}, v{W_+i}")
    for i in range(0, n, 2): p(f"v_pk_add_f32 {pr(W_+i)}, {pr(W_+i)}, 1.0 op_sel_hi:[1,0]")
    for i in range(n): p(f"v_rcp_f32 v{W_+i}, v{W_+i}")
    for i in range(0, n, 2): p(f"v_pk_mul_f32 {pr(W_+i)}, {pr(W_+i)}, {pr(U_+i)}")
    for i in range(n // 2): p(f"v_cvt_pk_bf16_f32 v{Pk+i}, v{W_+2*i}, v{W_+2*i+1}")

def gen_kf(p, cfg):
    name = "kf_kernel"
    CY, CO = 32, 192
    NSD, NSY, NSO, NS2, NPS2 = cfg["nsd"], cfg["nsy"], cfg["nso"], cfg["k2_ns"], cfg["k2_nps"]
    WIN = 65536
    BIAS_LDS = 131072
    SC = " sc1"
    tm = cfg.get("tsmode", 0)
    kernel_head(p, name)
    p("s_cmp_ge_u32 s2, 256"); p("s_cbranch_scc1 kf_end")
    load_ptrs(p)
    V = dict(lane=1, t0=2, t1=3, t2=4)
    V_VP, V_VD, V_PF, V_DUM, V_AK, V_AT = 8, 10, 13, 7, 16, 20
    V_VD2 = 28
    ACC = 32
    S_SRDP, S_SRDS, S_SOFF = 4, 44, 56
    S_KP, S_M0B, S_CNT, S_MT, S_NT = 80, 81, 82, 83, 84
    S2_SRDS, S2_SOFF, S2_M0B, S_TA, S_TB, S_G, S_X7, S_M, S_WQ, S_TILE = 64, 68, 69, 70, 71, 72, 73, 74, 76, 77
    S_FSRD = 48
    lane_consts(p, V)
    p(f"s_and_b32 s{S_X7}, s2, 7"); p("s_lshr_b32 s87, s2, 3"); p(f"s_lshr_b32 s{S_M}, s87, 1"); p("s_and_b32 s75, s87, 1")
    p(f"s_and_b32 s88, s{S_X7}, 1"); p("s_lshl_b32 s88, s88, 2"); p(f"s_and_b32 s89, s{S_M}, 3"); p(f"s_add_u32 s{S_MT}, s88, s89")
    p(f"s_lshr_b32 s88, s{S_X7}, 1"); p("s_lshl_b32 s88, s88, 2"); p(f"s_lshr_b32 s89, s{S_M}, 2"); p(f"s_add_u32 s{S_NT}, s88, s89")
    p(f"s_mov_b32 s{S_TA}, s{S_MT}"); p(f"s_mov_b32 s{S_TB}, s{S_NT}")
    if cfg.get("map1"):
        p(f"s_and_b32 s{S_MT}, s{S_M}, 7"); p(f"s_lshr_b32 s88, s{S_M}, 3"); p(f"s_lshl_b32 s89, s{S_X7}, 1"); p(f"s_add_u32 s{S_NT}, s88, s89")
    NT1 = " nt" if cfg.get("nt1") else ""
    JIT = cfg.get("jit", 0); JA = cfg.get("ja", 8)
    NT2 = " nt" if (JIT and cfg.get("nt2", 1)) else ""
    if JIT:
        p(f"s_lshl_b32 s88, s{S_X7}, 1"); p(f"s_lshr_b32 s89, s{S_M}, 3"); p("s_add_u32 s88, s88, s89"); p(f"s_and_b32 s89, s{S_M}, 7")
        p("s_cmp_eq_u32 s75, 0")
        p(f"s_cselect_b32 s{S_TB}, s88, s{S_M}"); p(f"s_cselect_b32 s{S_TA}, s89, s{S_X7}")
    def jit_addr(dst, typ, nst):
        nl = 4 if typ == 0 else 2
        sh = 2 if typ == 0 else 1
        p(f"s_lshl_b32 s86, s{S_M}, 3"); p("s_add_u32 s86, s86, s3"); p(f"s_lshl_b32 s86, s86, {sh}")
        p(f"v_and_b32 v2, {nl-1}, v1"); p(f"v_lshrrev_b32 v3, {sh}, v1")
        if typ == 0:
            p("s_and_b32 s87, s86, 255"); p(f"s_lshl_b32 s88, s{S_X7}, 8"); p("s_add_u32 s87, s87, s88"); p("s_lshl_b32 s87, s87, 12")
            p("v_lshlrev_b32 v2, 12, v2"); p("v_lshl_add_u32 v2, v3, 7, v2"); p("v_add_u32 v2, s87, v2")
        else:
            p("s_lshr_b32 s87, s86, 7"); p("s_mul_i32 s87, s87, 1792"); p("s_lshr_b32 s88, s86, 1"); p("s_and_b32 s88, s88, 63"); p("s_add_u32 s87, s87, s88")
            p("s_lshl_b32 s87, s87, 11"); p(f"s_lshl_b32 s88, s{S_X7}, 8"); p("s_add_u32 s87, s87, s88")
            p("v_lshlrev_b32 v2, 7, v2"); p("v_lshl_add_u32 v2, v3, 17, v2"); p("v_add_u32 v2, s87, v2")
        p("v_mov_b32 v3, 0x80000000")
        p(f"v_cmp_gt_u32 vcc, {nl*nst}, v1"); p("s_nop 1"); p(f"v_cndmask_b32 v{dst}, v3, v2, vcc")
    def jit_srd(typ):
        if typ == 0:
            return [f"s_cmp_lt_u32 s{S_M}, 8", f"s_cselect_b32 s8, s{S_CR}, s{S_CI}", f"s_cselect_b32 s9, s{S_CR+1}, s{S_CI+1}", "s_mov_b32 s10, 8388608", "s_mov_b32 s11, 0x20000"]
        return [f"s_mov_b32 s8, s{S_W2}", f"s_mov_b32 s9, s{S_W2+1}", "s_mov_b32 s10, 7340032", "s_mov_b32 s11, 0x20000"]
    def mk_pfj1(typ):
        def f(kappa):
            if kappa != cfg.get("jk", 22): return []
            return [(jit_srd(typ), f"buffer_load_dword v{V_DUM}, v{V_PF}, s[8:11], 0 offen nt")]
        return f
    def mk_pfj2(typ, nst):
        d = 128 if typ == 0 else 131072
        def f(kappa):
            if kappa < 0 or kappa % 2 or kappa // 2 + JA >= nst: return []
            return [([f"s_add_u32 s54, s54, {d}"] if kappa else [f"s_mov_b32 s54, {d*JA}"], "buffer_load_dword v12, v10, s[8:11], s54 offen nt")]
        return f
    p(f"s_lshl_b32 s{S_TILE}, s{S_TB}, 3"); p(f"s_add_u32 s{S_TILE}, s{S_TILE}, s{S_TA}")
    p(f"s_lshr_b32 s{S_G}, s3, 2"); p(f"s_and_b32 s{S_WQ}, s3, 3")
    p(f"s_lshl_b32 s{S2_M0B}, s3, 12")
    p(f"s_mov_b32 s{S_KP}, 0")
    p(f"s_lshl_b32 s86, s{S_MT}, 4"); p("s_lshl_b32 s87, s3, 1"); p("s_add_u32 s86, s86, s87"); p("s_lshl_b32 s86, s86, 15")
    p(f"v_lshlrev_b32 v{V_VP}, 4, v1"); p(f"v_add_u32 v{V_VP}, s86, v{V_VP}"); p(f"v_add_u32 v{V_VP+1}, 32768, v{V_VP}")
    def pf_setup(dst, part):
        p("s_lshl_b32 s86, s2, 3"); p("s_add_u32 s86, s86, s3"); p("s_lshl_b32 s87, s86, 12"); p("s_lshl_b32 s86, s86, 7")
        p(f"v_lshlrev_b32 v{dst}, 7, v1"); p(f"v_add_u32 v{dst}, s87, v{dst}")
        p(f"v_lshlrev_b32 v{dst+1}, 18, v1"); p(f"v_add_u32 v{dst+1}, s86, v{dst+1}")
        p("v_mov_b32 v2, 0x80000000")
        mc = {None: 0xffffffff, 0: 0xffff, 1: 0xffff0000}[part]
        mw = {None: 0xfffffff, 0: 0x1fc07f, 1: 0xfe03f80}[part]
        p(f"s_mov_b32 vcc_lo, {hex(mc)}"); p("s_mov_b32 vcc_hi, 0"); p("s_nop 0"); p(f"v_cndmask_b32 v{dst}, v2, v{dst}, vcc")
        p(f"s_mov_b32 vcc_lo, {hex(mw)}"); p("s_nop 0"); p(f"v_cndmask_b32 v{dst+1}, v2, v{dst+1}, vcc")
    PFS = cfg.get("pfsplit", 0)
    PFY = cfg.get("pfy", 0)
    if PFY:
        p(f"s_lshl_b32 s86, s{S_M}, 3"); p(f"s_add_u32 s86, s86, s{S_X7}"); p("s_lshl_b32 s86, s86, 3"); p("s_add_u32 s86, s86, s3")
        p("s_lshl_b32 s87, s86, 13"); p("s_mul_i32 s86, s86, 7168")
        p(f"v_lshlrev_b32 v{V_PF+1}, 7, v1"); p(f"v_add_u32 v{V_PF}, s87, v{V_PF+1}"); p(f"v_add_u32 v{V_PF+1}, s86, v{V_PF+1}")
        p("v_mov_b32 v2, 0x80000000")
        p("v_cmp_gt_u32 vcc, 56, v1"); p("s_nop 1"); p(f"v_cndmask_b32 v{V_PF+1}, v2, v{V_PF+1}, vcc")
    else:
        pf_setup(V_PF, 0 if PFS else None)
    p("s_waitcnt lgkmcnt(0)")
    stamp(p, 0)
    srd(p, S_SRDP, S_WS, S_WS + 1, XF_SZ, XF_OFF)
    srd(p, S_FSRD, S_WS, S_WS + 1, FL2_SZ, FL2_OFF)
    srd(p, 8, S_X, S_X + 1, 4194304)
    srd(p, 12, S_DBG, S_DBG + 1, 256)
    p(f"s_lshl_b32 s86, s75, 4"); p(f"s_add_u32 s79, s86, s{S_NT}")
    p(f"s_lshl_b32 s86, s{S_MT}, 5"); p("s_add_u32 s86, s86, s79"); p("s_lshl_b32 s86, s86, 3"); p("s_add_u32 s86, s86, s3")
    p("s_lshl_b32 s87, s86, 11")
    p("v_lshlrev_b32 v40, 4, v1")
    NTX = " nt" if cfg.get("ntx") else ""
    p(f"buffer_load_dwordx4 v[48:51], v40, s[8:11], s87 offen{NTX}")
    p(f"buffer_load_dwordx4 v[52:55], v40, s[8:11], s87 offen offset:1024{NTX}")
    p("v_mov_b32 v44, 0")
    p(f"s_lshl_b32 s87, s{S_MT}, 8"); p("s_lshl_b32 s88, s79, 3"); p("s_add_u32 s60, s87, s88")
    p("s_or_b32 s87, s2, s3"); p("s_cmp_lg_u32 s87, 0"); p("s_cbranch_scc1 kf_notok")
    p("s_memrealtime s[88:89]"); p("s_waitcnt lgkmcnt(0)")
    p("s_or_b32 s88, s88, 1"); p("s_xor_b32 s89, s89, 0x5bd1e995")
    p("v_mov_b32 v42, s88"); p("v_mov_b32 v43, s89")
    p("s_mov_b64 exec, 1")
    p("buffer_store_dwordx2 v[42:43], v44, s[12:15], 0 offen sc1")
    p("s_mov_b64 exec, -1")
    p("s_waitcnt vmcnt(0)")
    p.label("kf_notok")
    p("s_lshr_b32 s87, s86, 4"); p("s_lshl_b32 s87, s87, 15"); p("s_and_b32 s88, s86, 8"); p("s_lshl_b32 s88, s88, 4"); p("s_add_u32 s61, s87, s88")
    p("s_lshl_b32 s87, s3, 12"); p("s_add_u32 s61, s61, s87")
    p("v_lshrrev_b32 v45, 5, v1"); p("v_lshlrev_b32 v45, 10, v45"); p("v_bfe_u32 v46, v1, 3, 2"); p("v_lshl_add_u32 v45, v46, 8, v45")
    p("v_and_b32 v46, 7, v1"); p("v_lshl_add_u32 v45, v46, 4, v45")
    p("s_lshl_b32 s87, s3, 4"); p("s_add_u32 s87, s87, 98304"); p("v_lshlrev_b32 v46, 7, v1"); p("v_add_u32 v46, s87, v46")
    p("s_lshl_b32 s87, s3, 11"); p("s_add_u32 s87, s87, 98304"); p("v_add_u32 v47, s87, v40")
    p("s_cmp_eq_u32 s75, 1"); p("s_cbranch_scc1 kf_typeO")

    def ln_body(ndma):
        X0 = 56
        p(f"s_waitcnt vmcnt({ndma+1})")
        for i in range(4):
            p(f"v_lshlrev_b32 v{X0+2*i}, 16, v{48+i}"); p(f"v_and_b32 v{X0+1+2*i}, 0xffff0000, v{48+i}")
        p(f"s_waitcnt vmcnt({ndma})")
        if tm == 3: stamp(p, 1)
        for i in range(4, 8):
            p(f"v_lshlrev_b32 v{X0+2*i}, 16, v{48+i}"); p(f"v_and_b32 v{X0+1+2*i}, 0xffff0000, v{48+i}")
        def wave_sum(src, tmp, sbase):
            for ctl in ("quad_perm:[1,0,3,2]", "quad_perm:[2,3,0,1]", "row_half_mirror", "row_mirror"):
                p("s_nop 1")
                p(f"v_add_f32_dpp v{tmp}, v{src}, v{src} {ctl} row_mask:0xf bank_mask:0xf")
                p(f"v_mov_b32 v{src}, v{tmp}")
            p("s_nop 0")
            for i in range(4): p(f"v_readlane_b32 s{sbase+i}, v{src}, {16*i}")
            p("s_nop 1")
            p(f"v_mov_b32 v{src}, s{sbase}")
            for i in range(1, 4): p(f"v_add_f32 v{src}, s{sbase+i}, v{src}")
        A_ = 72; D_ = 84
        for i in range(8): p(f"v_add_f32 v{A_+i}, v{X0+2*i}, v{X0+1+2*i}")
        for st in (4, 2, 1):
            for i in range(st): p(f"v_add_f32 v{A_+i}, v{A_+i}, v{A_+i+st}")
        wave_sum(A_, A_ + 1, 86)
        p(f"v_mul_f32 v{A_}, {hex(f2u(1.0/1024))}, v{A_}")
        for i in range(16): p(f"v_sub_f32 v{D_+i}, v{X0+i}, v{A_}")
        for i in range(8):
            p(f"v_mul_f32 v{A_+2+i}, v{D_+2*i}, v{D_+2*i}"); p(f"v_fmac_f32 v{A_+2+i}, v{D_+1+2*i}, v{D_+1+2*i}")
        for st in (4, 2, 1):
            for i in range(st): p(f"v_add_f32 v{A_+2+i}, v{A_+2+i}, v{A_+2+i+st}")
        wave_sum(A_ + 2, A_ + 3, 86)
        M_, V_, R_ = A_, A_ + 2, A_ + 3
        p(f"v_mul_f32 v{V_}, {hex(f2u(1.0/1024))}, v{V_}")
        p(f"v_cvt_pk_bf16_f32 v{R_}, v{M_}, v{V_}")
        p(f"v_lshlrev_b32 v{M_}, 16, v{R_}"); p(f"v_and_b32 v{V_}, 0xffff0000, v{R_}")
        p(f"v_add_f32 v{V_}, {hex(f2u(1e-5))}, v{V_}")
        p(f"v_cvt_pk_bf16_f32 v{V_}, v{V_}, v{V_}"); p(f"v_lshlrev_b32 v{V_}, 16, v{V_}")
        p(f"v_sqrt_f32 v{V_}, v{V_}"); p("s_nop 0")
        p(f"v_cvt_pk_bf16_f32 v{V_}, v{V_}, v{V_}"); p(f"v_lshlrev_b32 v{V_}, 16, v{V_}")
        p(f"v_rcp_f32 v{R_}, v{V_}")
        for i in range(16): p(f"v_sub_f32 v{X0+i}, v{X0+i}, v{M_}")
        for i in range(8): p(f"v_cvt_pk_bf16_f32 v{48+i}, v{X0+2*i}, v{X0+1+2*i}")
        for i in range(8):
            p(f"v_lshlrev_b32 v{X0+2*i}, 16, v{48+i}"); p(f"v_and_b32 v{X0+1+2*i}, 0xffff0000, v{48+i}")
        for i in range(16): p(f"v_mul_f32 v{D_+i}, v{X0+i}, v{R_}")
        for i in range(16): p(f"v_fma_f32 v{X0+i}, -v{D_+i}, v{V_}, v{X0+i}")
        for i in range(16): p(f"v_fmac_f32 v{D_+i}, v{X0+i}, v{R_}")
        for i in range(8): p(f"v_cvt_pk_bf16_f32 v{48+i}, v{D_+2*i}, v{D_+1+2*i}")
        p("ds_write_b128 v46, v[48:51]"); p("ds_write_b128 v46, v[52:55] offset:8192")
        srd(p, 12, S_DBG, S_DBG + 1, 256); p("buffer_load_dwordx2 v[42:43], v44, s[12:15], 0 offen sc1")
        p("s_waitcnt lgkmcnt(0)"); p("s_barrier")
        p("ds_read_b128 v[48:51], v47"); p("ds_read_b128 v[52:55], v47 offset:1024")
        p("s_waitcnt lgkmcnt(0)")
        p(f"buffer_store_dwordx4 v[48:51], v45, s[{S_SRDP}:{S_SRDP+3}], s61 offen sc1")
        p(f"buffer_store_dwordx4 v[52:55], v45, s[{S_SRDP}:{S_SRDP+3}], s61 offen offset:2048 sc1")
        if tm == 3: stamp(p, 2)

    def hookX(tag, ndma):
        ln_body(ndma)
        if tm == 3: stamp(p, 3)
        p(f"s_waitcnt vmcnt(0)"); p("s_barrier")
        if tm == 3: stamp(p, 4)
        p("s_cmp_lg_u32 s3, 0"); p(f"s_cbranch_scc1 {tag}_w")
        p("v_readfirstlane_b32 s78, v42"); p("v_readfirstlane_b32 s79, v43")
        p("s_cmp_lg_u32 s78, 0"); p(f"s_cbranch_scc1 {tag}_t2")
        srd(p, 12, S_DBG, S_DBG + 1, 256)
        p("v_mov_b32 v2, 0")
        p.label(tag + "_t")
        p("buffer_load_dwordx2 v[4:5], v2, s[12:15], 0 offen sc1")
        p("s_waitcnt vmcnt(0)")
        p("v_readfirstlane_b32 s78, v4"); p("v_readfirstlane_b32 s79, v5")
        p("s_cmp_lg_u32 s78, 0"); p(f"s_cbranch_scc1 {tag}_t2")
        p("s_sleep 1"); p(f"s_branch {tag}_t")
        p.label(tag + "_t2")
        p("v_mov_b32 v4, s78"); p("v_mov_b32 v5, s79")
        p("v_mov_b32 v2, s60")
        p("s_mov_b64 exec, 1")
        p(f"buffer_store_dwordx2 v[4:5], v2, s[{S_FSRD}:{S_FSRD+3}], 0 offen sc1")
        p("s_mov_b64 exec, -1")
        p("v_and_b32 v2, 31, v1"); p("v_lshlrev_b32 v2, 3, v2"); p(f"s_lshl_b32 s86, s{S_MT}, 8"); p("v_add_u32 v2, s86, v2")
        p.label(tag + "_p")
        p(f"buffer_load_dwordx2 v[4:5], v2, s[{S_FSRD}:{S_FSRD+3}], 0 offen sc1")
        p("s_waitcnt vmcnt(0)")
        p("v_cmp_ne_u64 vcc, s[78:79], v[4:5]")
        p(f"s_cbranch_vccz {tag}_w")
        p("s_sleep 1"); p(f"s_branch {tag}_p")
        p.label(tag + "_w")
        p("s_barrier")

    def mkpreg(vbase, nv):
        return lambda r: vr(vbase + r, 4) if r < nv else ar(r - nv, 4)
    def pf(kappa):
        if cfg.get("pf1", 2) == 3:
            if kappa < 0: return []
            m, j = (0, kappa) if kappa < 11 else ((1, kappa - 11) if kappa < 22 else (2, kappa - 22))
            b = (S_CR, S_CI, S_W2)[m]
            pre = [] if j else [f"s_mov_b32 s8, s{b}", f"s_mov_b32 s9, s{b+1}", f"s_mov_b32 s10, {(8388608, 8388608, 7340032)[m]}", "s_mov_b32 s11, 0x20000"]
            pre = pre + [f"v_add_u32 v6, {hex((-(j << 28)) & 0xffffffff)}, v{V_PF + (1 if m == 2 else 0)}"]
            return [(pre, f"buffer_load_dword v{V_DUM}, v6, s[8:11], 0 offen")]
        if not cfg.get("pf1", 2): return []
        ks = (cfg.get("pfk0", 8), cfg.get("pfk1", 16), cfg.get("pfk2", 24))
        out = []
        for m in range(3):
            if ks[m] != kappa: continue
            b = (S_CR, S_CI, S_W2)[m]
            pre = [f"s_mov_b32 s8, s{b}", f"s_mov_b32 s9, s{b+1}", f"s_mov_b32 s10, {(8388608, 8388608, 7340032)[m]}", "s_mov_b32 s11, 0x20000"]
            out.append((pre, f"buffer_load_dword v{V_DUM}, v{V_PF + (1 if m == 2 else 0)}, s[8:11], 0 offen"))
        return out
    def pf2(kappa):
        if not PFS: return []
        ks = (cfg.get("pf2k0", 2), cfg.get("pf2k1", 6), cfg.get("pf2k2", 10))
        out = []
        for m in range(3):
            if ks[m] != kappa: continue
            b = (S_CR, S_CI, S_W2)[m]
            pre = [f"s_mov_b32 s8, s{b}", f"s_mov_b32 s9, s{b+1}", f"s_mov_b32 s10, {(8388608, 8388608, 7340032)[m]}", "s_mov_b32 s11, 0x20000"]
            out.append((pre, f"buffer_load_dword v12, v{10 + (1 if m == 2 else 0)}, s[8:11], 0 offen"))
        return out
    def flag_ops(vaddr, off):
        return (["s_mov_b64 exec, 1"], f"buffer_store_dword v7, v{vaddr}, s[{S_FSRD}:{S_FSRD+3}], 0 offen offset:{off}{SC}", ["s_mov_b64 exec, -1"])

    def phase1(pp, tag, blocks, NS, STG, nslot, delta, SH, PV, NPS, use_pf, dmas_fn=None, pf_fn=None, **kw):
        nb = len(blocks)
        preg = mkpreg(PV, 224 - PV)
        def dmas(stage):
            out = []
            for i in range(nslot):
                pre = [f"s_add_u32 m0, s{S_M0B}, {(stage % NS) * STG + 1024 * i}"]
                if i == 0 and stage > 0: pre.insert(0, f"s_add_u32 s{S_SOFF}, s{S_SOFF}, {delta}")
                out.append((pre, f"buffer_load_dwordx4 v{V_VD+i}, s[{S_SRDS}:{S_SRDS+3}], s{S_SOFF} offen{NT1} lds"))
            return out
        def privs(kappa):
            out = []
            for i in range(2):
                pre = []
                if i == 0 and kappa % 4 == 0 and kappa > 0: pre = [f"s_add_u32 s{S_KP}, s{S_KP}, 4096"]
                out.append((pre, f"buffer_load_dwordx4 {preg((kappa % NPS) * 8 + 4 * i)}, v{V_VP+i}, s[{S_SRDP}:{S_SRDP+3}], s{S_KP} offen offset:{(kappa%4)*1024}{SC}"))
            return out
        def reads(kappa):
            s, kk = divmod(kappa, 2)
            ring = (s % NS) * STG
            out = []
            for b, bl in enumerate(blocks):
                a = SH + kk * nb * 4 + 4 * b
                if bl[0] == 'K':
                    off = ring + bl[1]; w = off // WIN
                    out.append(f"ds_read_b128 {vr(a,4)}, v{V_AK+2*w+kk} offset:{off - w*WIN}")
                else:
                    for hh in range(2):
                        off = ring + bl[4] + kk * bl[2] + hh * bl[3]; w = off // WIN
                        out.append(f"ds_read_b64_tr_b16 {vr(a+2*hh,2)}, v{V_AT+4*w+bl[1]} offset:{off - w*WIN}")
            return out
        def mfmas(kappa):
            kk = kappa % 2
            out = []
            for b, bl in enumerate(blocks):
                for i in range(2):
                    acc = ACC + (b * 2 + i) * 4
                    S = vr(SH + kk * nb * 4 + 4 * b, 4); P = preg((kappa % NPS) * 8 + 4 * i)
                    c = vr(acc, 4) if kappa > 0 else "0"
                    out.append(f"{MF} {vr(acc,4)}, {P}, {S}, {c}" if bl[0] == 'K' else f"{MF} {vr(acc,4)}, {S}, {P}, {c}")
            return out
        gemm_mainloop(pp, tag, 16, NS, NPS, S_CNT, mfmas, reads, dmas_fn or dmas, privs, pf=pf_fn if JIT else (pf if use_pf else None), read_frac=cfg.get("k1_rf", 0.7), **kw)

    def bias_dma(f0):
        srd(p, 12, S_B1, S_B1 + 1, 7168)
        p("v_lshlrev_b32 v2, 4, v1")
        p(f"s_lshl_b32 s86, s{f0}, 1")
        p("s_lshl_b32 s87, s3, 10"); p(f"s_add_u32 m0, s87, {BIAS_LDS}")
        p("s_nop 0")
        p("buffer_load_dwordx4 v2, s[12:15], s86 offen lds")
    def epi_W(nb, f0, TB, b0=0):
        srd(p, 8, S_WS, S_WS + 1, HF_SZ, HF_OFF)
        BPf = lambda n: 8 + 2 * n if n < 10 else 216 + 2 * (n - 10)
        p("v_lshrrev_b32 v2, 4, v1")
        p("s_lshl_b32 s87, s3, 10"); p(f"s_add_u32 s87, s87, {BIAS_LDS}")
        p("v_lshlrev_b32 v3, 3, v2"); p("v_add_u32 v3, s87, v3")
        for n in range(nb): p(f"ds_read_b64 v[{BPf(n)}:{BPf(n)+1}], v3 offset:{32*n}")
        p(f"s_mov_b32 s90, {hex(f2u(C2))}"); p(f"v_mov_b32 v5, {hex(f2u(C1))}")
        p("v_and_b32 v3, 1, v2"); p("v_lshlrev_b32 v3, 1, v3"); p("v_lshrrev_b32 v4, 1, v2"); p("v_or_b32 v3, v3, v4")
        p("v_lshlrev_b32 v3, 8, v3"); p("v_and_b32 v4, 15, v1"); p("v_lshl_add_u32 v4, v4, 4, v3")
        p(f"s_lshl_b32 s86, s{S_MT}, 4"); p("s_lshl_b32 s87, s3, 1"); p("s_add_u32 s86, s86, s87"); p("s_mul_i32 s86, s86, 114688")
        p(f"s_lshl_b32 s87, s{f0}, 5"); p("s_add_u32 s86, s86, s87")
        p(f"s_mov_b32 s91, s90"); p("v_mov_b32 v2, v5"); p("v_mov_b32 v3, v5")
        p("s_waitcnt lgkmcnt(0)")
        BF = TB
        for n0 in range(0, nb, 2):
            for k_ in range(2):
                for h in range(2):
                    p(f"v_lshlrev_b32 v{BF+4*k_+2*h}, 16, v{BPf(n0+k_)+h}")
                    p(f"v_and_b32 v{BF+4*k_+2*h+1}, 0xffff0000, v{BPf(n0+k_)+h}")
            src = []; bs = []
            for i in range(2):
                for k_ in range(2):
                    src += [ACC + ((b0 + n0 + k_) * 2 + i) * 4 + r for r in range(4)]
                    bs += [BF + 4 * k_ + r for r in range(4)]
            T0 = TB + 8 + (40 if (n0 // 2) % 2 else 0)
            gelu_pk(p, src, bs, T0, 16)
            for i in range(2):
                p(f"s_add_u32 s87, s86, {114688*i + 1024*(n0//2)}")
                t = T0 + 4 * i
                if i == 0: p("s_nop 0")
                p(f"v_permlane16_swap_b32 v{t}, v{t+2}"); p(f"v_permlane16_swap_b32 v{t+1}, v{t+3}")
                p(f"buffer_store_dwordx4 v[{t}:{t+3}], v4, s[8:11], s87 offen{SC}")
        return nb

    STG2 = 32768
    V2_VP, V2_A = 8, 20
    SH2 = 96
    preg2 = mkpreg(160, 64)
    S2_SRDP, S2_KP = 4, 80
    def privs2(kappa):
        out = []
        for i in range(2):
            pre = []
            if i == 0 and kappa % 4 == 0 and kappa > 0: pre = [f"s_add_u32 s{S2_KP}, s{S2_KP}, 4096"]
            out.append((pre, f"buffer_load_dwordx4 {preg2((kappa % NPS2) * 8 + 4 * i)}, v{V2_VP+i}, s[{S2_SRDP}:{S2_SRDP+3}], s{S2_KP} offen offset:{(kappa%4)*1024}{SC}"))
        return out
    def mk_dmas2(delta):
        def dmas(stage):
            out = []
            for i in range(4):
                pre = [f"s_add_u32 m0, s{S2_M0B}, {(stage % NS2) * STG2 + 1024 * i}"]
                if i == 0 and stage > 0: pre.insert(0, f"s_add_u32 s{S2_SOFF}, s{S2_SOFF}, {delta}")
                out.append((pre, f"buffer_load_dwordx4 v{V_VD2+i}, s[{S2_SRDS}:{S2_SRDS+3}], s{S2_SOFF} offen{NT2} lds"))
            return out
        return dmas
    def reads_o(kappa):
        s, kk = divmod(kappa, 2)
        out = []
        for b in range(8):
            for hh in range(2):
                off = (s % NS2) * STG2 + (b >> 2) * 8192 + kk * 4096 + hh * 512; w = off // WIN
                out.append(f"ds_read_b64_tr_b16 {vr(SH2 + kk*32 + 4*b + 2*hh, 2)}, v{V2_A+4*w+(b&3)} offset:{off - w*WIN}")
        return out
    def mfmas_o(kappa):
        kk = kappa % 2
        return [f"{MF} {vr(ACC+(b*2+i)*4,4)}, {vr(SH2+kk*32+4*b,4)}, {preg2((kappa%NPS2)*8+4*i)}, {vr(ACC+(b*2+i)*4,4) if kappa > 0 else '0'}"
                for b in range(8) for i in range(2)]
    def reads_y(kappa):
        s, kk = divmod(kappa, 2)
        out = []
        for b in range(8):
            off = (s % NS2) * STG2 + 2048 * b; w = off // WIN
            out.append(f"ds_read_b128 {vr(SH2 + kk*32 + 4*b, 4)}, v{V2_A+2*w+kk} offset:{off - w*WIN}")
        return out
    def mfmas_y(kappa):
        kk = kappa % 2
        return [f"{MF} {vr(ACC+(i*8+b)*4,4)}, {preg2((kappa%NPS2)*8+4*i)}, {vr(SH2+kk*32+4*b,4)}, {vr(ACC+(i*8+b)*4,4) if kappa > 0 else '0'}"
                for b in range(8) for i in range(2)]
    def split(fn):
        tp = Prog(); tp.uid = p.uid
        fn(tp, lambda: tp.raw("@SPLIT"))
        p.uid = tp.uid
        i = tp.L.index("@SPLIT")
        return tp.L[:i], tp.L[i + 1:]

    def poll(label, setup):
        p("s_cmp_lg_u32 s3, 0"); p(f"s_cbranch_scc1 {label}_w")
        setup()
        p.label(label + "_p")
        p(f"buffer_load_dwordx2 v[4:5], v2, s[{S_FSRD}:{S_FSRD+3}], 0 offen{SC}")
        p("s_waitcnt vmcnt(0)")
        p("v_cmp_ne_u64 vcc, s[78:79], v[4:5]")
        p(f"s_cbranch_vccz {label}_w")
        p(f"s_sleep {cfg.get('poll_sleep', 1)}")
        p(f"s_branch {label}_p")
        p.label(label + "_w")
        p("s_barrier")
    def setflags(addr_exprs):
        lab = p.newlabel("sf")
        p("s_cmp_lg_u32 s3, 0"); p(f"s_cbranch_scc1 {lab}")
        p("v_mov_b32 v6, s78"); p("v_mov_b32 v7, s79")
        p("s_mov_b64 exec, 1")
        for f in addr_exprs:
            f(); p("v_mov_b32 v5, s86")
            p(f"buffer_store_dwordx2 v[6:7], v5, s[{S_FSRD}:{S_FSRD+3}], 0 offen{SC}")
        p("s_mov_b64 exec, -1")
        p.label(lab)

    XR, OR = 160, 176
    so_out = ["0", "s57", "s58", "s59"]; so_u = ["0", "s61", "s62", "s63"]
    def final_setup():
        srd(p, 4, S_X, S_X + 1, 4194304)
        srd(p, 64, S_OUT, S_OUT + 1, 4194304)
        p(f"s_add_u32 s8, s{S_WS}, s52"); p(f"s_addc_u32 s9, s{S_WS+1}, 0"); p("s_mov_b32 s10, 4194304"); p("s_mov_b32 s11, 0x20000")
        p(f"s_add_u32 s44, s{S_WS}, s53"); p(f"s_addc_u32 s45, s{S_WS+1}, 0"); p("s_mov_b32 s46, 4194304"); p("s_mov_b32 s47, 0x20000")
        p(f"s_lshl_b32 s86, s{S_TILE}, 7"); p("s_add_u32 s86, s86, 16384"); p("s_lshl_b32 s87, s75, 6"); p("s_add_u32 s86, s86, s87")
        p("v_mov_b32 v204, s86"); p("v_xor_b32 v205, 64, v204"); p("v_mov_b32 v206, 65536")
        lab = p.newlabel("fs")
        p("s_cmp_lg_u32 s3, 0"); p(f"s_cbranch_scc1 {lab}")
        p(f"buffer_load_dwordx2 v[200:201], v205, s[{S_FSRD}:{S_FSRD+3}], 0 offen{SC}")
        p.label(lab)
        p("v_lshrrev_b32 v2, 4, v1"); p("v_and_b32 v3, 1, v2"); p("v_lshlrev_b32 v3, 5, v3"); p("v_lshrrev_b32 v2, 1, v2"); p("v_lshl_add_u32 v3, v2, 4, v3")
        p("v_and_b32 v2, 15, v1"); p("v_lshl_add_u32 v3, v2, 11, v3")
        p(f"s_lshl_b32 s86, s{S_TB}, 18"); p(f"s_lshl_b32 s87, s{S_TA}, 8"); p("s_add_u32 s86, s86, s87"); p("s_add_u32 s86, s86, s56")
        p("v_add_u32 v202, s86, v3")
        p(f"s_lshl_b32 s86, s{S_TILE}, 15"); p("s_add_u32 s86, s86, s60")
        p("v_lshlrev_b32 v2, 4, v1"); p("v_add_u32 v203, s86, v2")
        for u in range(4): p(f"buffer_load_dwordx4 v[{XR+4*u}:{XR+4*u+3}], v202, s[4:7], {so_out[u]} offen")
    def decision_write(nyounger):
        lab = p.newlabel("dw")
        p("s_cmp_lg_u32 s3, 0"); p(f"s_cbranch_scc1 {lab}")
        p(f"s_waitcnt vmcnt({nyounger})")
        p("v_cmp_eq_u64 vcc, s[78:79], v[200:201]")
        p("s_nop 1")
        p("v_cndmask_b32 v200, 0, 1, vcc")
        p("ds_write_b32 v206, v200")
        p.label(lab)
    def decision_read():
        p("ds_read_b32 v200, v206")
        p("s_waitcnt lgkmcnt(0)")
        p("v_readfirstlane_b32 s55, v200")
        lab = p.newlabel("dr")
        p("s_cmp_eq_u32 s55, 0"); p(f"s_cbranch_scc1 {lab}")
        for u in range(4): p(f"buffer_load_dwordx4 v[{OR+4*u}:{OR+4*u+3}], v203, s[44:47], {so_u[u]} offen{SC}")
        p.label(lab)

    p(f"s_mov_b32 s{S2_SOFF}, 0")
    p(f"s_cmp_eq_u32 s{S_G}, 0")
    p(f"s_cselect_b32 s{S2_SRDS}, s{S_CR}, s{S_CI}"); p(f"s_cselect_b32 s{S2_SRDS+1}, s{S_CR+1}, s{S_CI+1}")
    p(f"s_mov_b32 s{S2_SRDS+2}, 8388608"); p(f"s_mov_b32 s{S2_SRDS+3}, 0x20000")
    voffK_lane(p, V, 5, 4096, 0)
    p(f"s_lshl_b32 s86, s{S_WQ}, 5"); p(f"s_lshl_b32 s87, s{S_G}, 6"); p("s_xor_b32 s86, s86, s87")
    p(f"s_lshl_b32 s87, s{S_TB}, 7"); p("s_add_u32 s86, s86, s87"); p("s_lshl_b32 s86, s86, 12")
    p(f"v_add_u32 v{V_VD2}, s86, v5")
    p(f"v_xor_b32 v{V_VD2+1}, 64, v{V_VD2}"); p(f"v_add_u32 v{V_VD2+1}, 32768, v{V_VD2+1}")
    p(f"v_add_u32 v{V_VD2+2}, 65536, v{V_VD2}"); p(f"v_add_u32 v{V_VD2+3}, 65536, v{V_VD2+1}")
    if JIT: jit_addr(V_PF, 0, JA)
    p(f"s_cmp_lt_u32 s{S_NT}, 8")
    p(f"s_cselect_b32 s{S_SRDS}, s{S_DR}, s{S_DI}"); p(f"s_cselect_b32 s{S_SRDS+1}, s{S_DR+1}, s{S_DI+1}")
    p(f"s_mov_b32 s{S_SRDS+2}, 2097152"); p(f"s_mov_b32 s{S_SRDS+3}, 0x20000")
    srd(p, 52, S_W1, S_W1 + 1, 7340032)
    p(f"s_mov_b32 s{S_SOFF}, 0"); p(f"s_mov_b32 s{S_SOFF+1}, 0"); p(f"s_lshl_b32 s{S_M0B}, s3, 11"); p("s_lshl_b32 s58, s3, 10"); p("s_add_u32 s58, s58, 16384")
    voffK_lane(p, V, 5, 2048, 0)
    p(f"s_and_b32 s86, s{S_NT}, 7"); p("s_lshl_b32 s86, s86, 7"); p("s_lshl_b32 s87, s3, 4"); p("s_add_u32 s86, s86, s87"); p("s_lshl_b32 s86, s86, 11")
    p(f"v_add_u32 v{V_VD}, s86, v5")
    p(f"v_xor_b32 v{V_VD+1}, 64, v{V_VD}"); p(f"v_add_u32 v{V_VD+1}, 16384, v{V_VD+1}")
    p(f"s_mul_i32 s85, s{S_NT}, {CY}")
    bias_dma(85)
    voffT8_lane(p, V, 5, 7168, 0)
    p("s_and_b32 s88, s3, 1"); p("s_lshl_b32 s88, s88, 6"); p("s_mul_i32 s86, s3, 57344"); p("s_lshl_b32 s87, s85, 1"); p("s_add_u32 s86, s86, s87")
    p("v_xor_b32 v5, s88, v5"); p("v_and_b32 v2, 64, v5"); p("v_add_u32 v5, s86, v5")
    p("v_cmp_eq_u32 vcc, 0, v2"); p("v_mov_b32 v4, 0x80000000"); p("s_nop 0"); p(f"v_cndmask_b32 v{V_VD+2}, v4, v5, vcc")
    for w in range(2):
        addrK_setup(p, V, V_AK + 2 * w, V_AK + 2 * w + 1, w * WIN)
        addrT_setup(p, V, V_AT + 4 * w, 128, w * WIN)
    def dmasM(stage):
        ring = (stage % NSD) * 24576
        out = []
        for i in range(2):
            pre = [f"s_add_u32 m0, s{S_M0B}, {ring + 1024 * i}"]
            if i == 0 and stage > 0: pre.insert(0, f"s_add_u32 s{S_SOFF}, s{S_SOFF}, 128")
            out.append((pre, f"buffer_load_dwordx4 v{V_VD+i}, s[{S_SRDS}:{S_SRDS+3}], s{S_SOFF} offen{NT1} lds"))
        pre = [f"s_add_u32 m0, s58, {ring}"]
        if stage > 0: pre.insert(0, f"s_add_u32 s{S_SOFF+1}, s{S_SOFF+1}, {64*7168}")
        out.append((pre, f"buffer_load_dwordx4 v{V_VD+2}, s[52:55], s{S_SOFF+1} offen{NT1} lds"))
        return out
    phase1(p, "kfm", [('K', 2048 * b) for b in range(8)] + [('T', b, 4096, 512, 16384) for b in range(2)], NSD, 24576, 3, 0, 112, 192, 8, PFY != 2,
           dmas_fn=dmasM, pf_fn=mk_pfj1(0), st1=(1, 0, 0, 5)[tm], st2=(2, 0, 0, 0)[tm] if tm != 3 else None, hook=lambda: hookX("kfxy", 1 + 3 * (NSD - 1) + (0 if (PFY == 2 or JIT) else len(pf(-2)))))
    p("s_barrier")
    def epi_D():
        srd(p, 8, S_WS, S_WS + 1, ABF_SZ, ABF_OFF)
        p("v_lshrrev_b32 v2, 4, v1"); p("v_and_b32 v3, 1, v2"); p("v_lshlrev_b32 v3, 1, v3"); p("v_lshrrev_b32 v2, 1, v2")
        p("v_or_b32 v2, v2, v3"); p("v_lshlrev_b32 v2, 8, v2"); p("v_and_b32 v3, 15, v1"); p("v_lshl_add_u32 v2, v3, 4, v2")
        p(f"s_lshl_b32 s86, s{S_MT}, 3"); p("s_add_u32 s86, s86, s3"); p(f"s_lshr_b32 s87, s{S_NT}, 3"); p("s_lshl_b32 s87, s87, 6"); p("s_add_u32 s86, s86, s87")
        p(f"s_and_b32 s87, s{S_NT}, 7"); p("s_lshl_b32 s87, s87, 10"); p("s_add_u32 s86, s86, s87"); p("s_lshl_b32 s86, s86, 10")
        p("v_add_u32 v2, s86, v2")
        for b in range(8):
            t = 200 + 0 * b if False else 112 + 4 * b
            a0 = ACC + b * 8; a1 = a0 + 4
            p(f"v_cvt_pk_bf16_f32 v{t}, v{a0}, v{a0+1}"); p(f"v_cvt_pk_bf16_f32 v{t+1}, v{a0+2}, v{a0+3}")
            p(f"v_cvt_pk_bf16_f32 v{t+2}, v{a1}, v{a1+1}"); p(f"v_cvt_pk_bf16_f32 v{t+3}, v{a1+2}, v{a1+3}")
            p(f"s_mov_b32 s87, {131072*b}"); p("s_nop 0")
            p(f"v_permlane16_swap_b32 v{t}, v{t+2}"); p(f"v_permlane16_swap_b32 v{t+1}, v{t+3}")
            p(f"buffer_store_dwordx4 v[{t}:{t+3}], v2, s[8:11], s87 offen{SC}")
        p("s_nop 1")
    def hookY():
        epi_D()
        epi_W(2, 85, 144, b0=8)
        if tm == 1: stamp(p, 1)
        p("s_waitcnt vmcnt(0)"); p("s_barrier")
        if tm == 1: stamp(p, 2)
        setflags([lambda: (p(f"s_lshl_b32 s86, s{S_NT}, 7"), p(f"s_lshl_b32 s87, s{S_MT}, 3"), p("s_add_u32 s86, s86, s87"), p("s_add_u32 s86, s86, 4096")),
                  lambda: (p(f"s_lshl_b32 s86, s{S_MT}, 8"), p(f"s_lshl_b32 s87, s{S_NT}, 3"), p("s_add_u32 s86, s86, s87"), p("s_add_u32 s86, s86, 8192"))])
        if PFS: pf_setup(10, 1)
        if JIT:
            jit_addr(10, 0, 1)
            for x_ in jit_srd(0): p(x_)
        p(f"s_lshl_b32 s{S2_KP}, s{S_G}, 16")
        srd(p, S2_SRDP, S_WS, S_WS + 1, ABF_SZ, ABF_OFF)
        p(f"s_lshl_b32 s86, s{S_TA}, 3"); p(f"s_lshl_b32 s87, s{S_WQ}, 1"); p("s_add_u32 s86, s86, s87"); p("s_lshl_b32 s86, s86, 17")
        p(f"v_lshlrev_b32 v{V2_VP}, 4, v1"); p(f"v_add_u32 v{V2_VP}, s86, v{V2_VP}"); p(f"v_add_u32 v{V2_VP+1}, 131072, v{V2_VP}")
        p(f"s_lshl_b32 s86, s{S_G}, 14")
        for w in range(2):
            addrK_setup(p, V, V2_A + 2 * w, V2_A + 2 * w + 1, w * WIN)
            p(f"v_add_u32 v{V2_A+2*w}, s86, v{V2_A+2*w}"); p(f"v_add_u32 v{V2_A+2*w+1}, s86, v{V2_A+2*w+1}")
        poll("kf_Y2", lambda: (p("v_bfe_u32 v3, v1, 3, 1"), p("v_lshlrev_b32 v3, 10, v3"), p("v_and_b32 v2, 7, v1"), p("v_lshl_add_u32 v2, v2, 3, v3"),
                               p(f"s_lshl_b32 s86, s{S_TA}, 7"), p("s_add_u32 s86, s86, 4096"), p("v_add_u32 v2, s86, v2")))
    gemm_mainloop(p, "kfy", 32, NS2, NPS2, S_CNT, mfmas_y, reads_y, mk_dmas2(128), privs2, read_frac=cfg.get("k2y_rf", 0.7),
                  hook=hookY, pf=mk_pfj2(0, 32) if JIT else pf2, st1=(3, 3, 0, None)[tm], st2=(4, 4, 0, None)[tm])
    p(f"s_lshl_b32 s86, s{S_WQ}, 3"); p(f"s_lshl_b32 s87, s{S_G}, 2"); p("s_add_u32 s86, s86, s87"); p("s_lshl_b32 s60, s86, 10")
    p("s_mov_b32 s61, 1024"); p("s_mov_b32 s62, 2048"); p("s_mov_b32 s63, 3072")
    p(f"s_lshl_b32 s86, s{S_G}, 17"); p(f"s_lshl_b32 s87, s{S_WQ}, 6"); p("s_add_u32 s56, s86, s87")
    p("s_mov_b32 s57, 32768"); p("s_mov_b32 s58, 65536"); p("s_mov_b32 s59, 98304")
    p(f"s_mov_b32 s52, {TY_OFF}"); p(f"s_mov_b32 s53, {TG_OFF}")
    final_setup()
    for b in range(8):
        t = SH2 + 4 * b
        a0 = ACC + b * 4; a1 = ACC + (8 + b) * 4
        p(f"v_cvt_pk_bf16_f32 v{t}, v{a0}, v{a0+1}"); p(f"v_cvt_pk_bf16_f32 v{t+1}, v{a0+2}, v{a0+3}")
        p(f"v_cvt_pk_bf16_f32 v{t+2}, v{a1}, v{a1+1}"); p(f"v_cvt_pk_bf16_f32 v{t+3}, v{a1+2}, v{a1+3}")
    p("v_lshlrev_b32 v2, 4, v1"); p("s_lshl_b32 s86, s3, 12"); p("v_add_u32 v3, s86, v2"); p("s_xor_b32 s86, s86, 16384"); p("v_add_u32 v2, s86, v2")
    p("s_barrier")
    for u in range(4): p(f"ds_write_b128 v3, v[{SH2+16+4*u}:{SH2+19+4*u}] offset:{1024*u}")
    decision_write(4)
    p("s_waitcnt lgkmcnt(0)"); p("s_barrier")
    for u in range(4): p(f"ds_read_b128 v[{SH2+16+4*u}:{SH2+19+4*u}], v2 offset:{1024*u}")
    decision_read()
    p(f"s_lshl_b32 s90, s{S_G}, 31"); p("s_lshr_b32 s85, s90, 16"); p("s_or_b32 s90, s90, s85")
    p("s_waitcnt lgkmcnt(0)")
    RES = 32
    U_ = 48; W_ = 64
    for hf in range(2):
        for i in range(8):
            r = SH2 + 8 * hf + i
            p(f"v_lshlrev_b32 v{U_+2*i}, 16, v{r}"); p(f"v_and_b32 v{U_+2*i+1}, 0xffff0000, v{r}")
            p(f"v_lshlrev_b32 v{W_+2*i}, 16, v{r+16}"); p(f"v_and_b32 v{W_+2*i+1}, 0xffff0000, v{r+16}")
        for i in range(16): p(f"v_sub_f32 v{U_+i}, v{U_+i}, v{W_+i}")
        for i in range(8): p(f"v_cvt_pk_bf16_f32 v{RES+8*hf+i}, v{U_+2*i}, v{U_+2*i+1}")
    for i in range(16): p(f"v_xor_b32 v{RES+i}, s90, v{RES+i}")
    p("s_nop 1")
    for u in range(4):
        t = RES + 4 * u
        p(f"v_permlane16_swap_b32 v{t}, v{t+2}"); p(f"v_permlane16_swap_b32 v{t+1}, v{t+3}")
    p("s_branch kf_final")

    p.label("kf_typeO")
    p(f"s_mul_i32 s{S2_SOFF}, s{S_G}, {1792*2048}")
    srd(p, S2_SRDS, S_W2, S_W2 + 1, 7340032)
    voffT8_lane(p, V, 5, 2048, 0)
    p(f"s_and_b32 s86, s{S_WQ}, 1"); p("s_lshl_b32 s86, s86, 16"); p(f"s_lshr_b32 s87, s{S_WQ}, 1"); p(f"s_xor_b32 s87, s87, s{S_G}"); p("s_lshl_b32 s87, s87, 7"); p("s_add_u32 s86, s86, s87")
    p(f"s_lshl_b32 s87, s{S_TA}, 8"); p("s_add_u32 s86, s86, s87")
    p(f"v_add_u32 v{V_VD2}, s86, v5")
    p(f"v_xor_b32 v{V_VD2+1}, 64, v{V_VD2}"); p(f"v_add_u32 v{V_VD2+1}, 16384, v{V_VD2+1}")
    p(f"v_add_u32 v{V_VD2+2}, 32768, v{V_VD2}"); p(f"v_add_u32 v{V_VD2+3}, 32768, v{V_VD2+1}")
    if JIT: jit_addr(V_PF, 1, JA)
    p(f"s_mul_i32 s85, s{S_NT}, {CO}"); p(f"s_add_u32 s85, s85, {16*CY}")
    bias_dma(85)
    p(f"s_mov_b32 s{S_SRDS}, s{S_W1}"); p(f"s_mov_b32 s{S_SRDS+1}, s{S_W1+1}"); p(f"s_mov_b32 s{S_SRDS+2}, 7340032"); p(f"s_mov_b32 s{S_SRDS+3}, 0x20000")
    p(f"s_mov_b32 s{S_SOFF}, 0"); p(f"s_mul_i32 s{S_M0B}, s3, 3072")
    p("s_and_b32 s88, s3, 1"); p("s_lshl_b32 s88, s88, 2")
    for i in range(3):
        p(f"v_add_u32 v2, {64*i}, v1")
        p("v_mul_u32_u24 v3, 2731, v2"); p("v_lshrrev_b32 v3, 16, v3")
        p("v_mul_u32_u24 v4, 24, v3"); p("v_sub_u32 v2, v2, v4")
        p("v_bfe_u32 v4, v3, 1, 1"); p("v_lshlrev_b32 v4, 1, v4"); p("v_or_b32 v4, s88, v4")
        p("v_xor_b32 v2, v2, v4")
        p("v_mul_u32_u24 v3, 7168, v3"); p("v_lshl_add_u32 v3, v2, 4, v3")
        p("s_mul_i32 s86, s3, 57344"); p("s_lshl_b32 s87, s85, 1"); p("s_add_u32 s86, s86, s87")
        p(f"v_add_u32 v{V_VD+i}, s86, v3")
    for w in range(2): addrT_setup(p, V, V_AT + 4 * w, 384, w * WIN)
    phase1(p, "kfW", [('T', b & 3, 32 * 384, 4 * 384, (b >> 2) * 128) for b in range(12)], NSO, 24576, 3, 64 * 7168, 128, 224, 4, PFY != 1, pf_fn=mk_pfj1(1),
           st1=(1, 0, 0, 5)[tm], st2=(2, 0, 0, 0)[tm] if tm != 3 else None, hook=lambda: hookX("kfxo", 1 + 3 * (NSO - 1) + (0 if (PFY == 1 or JIT) else len(pf(-2)))))
    p("s_barrier")
    def hookO():
        epi_W(12, 85, 128)
        if tm == 1: stamp(p, 1)
        p("s_waitcnt vmcnt(0)"); p("s_barrier")
        if tm == 1: stamp(p, 2)
        setflags([lambda: (p(f"s_lshl_b32 s86, s{S_MT}, 8"), p(f"s_lshl_b32 s87, s{S_NT}, 3"), p("s_add_u32 s86, s86, s87"), p("s_add_u32 s86, s86, 8320"))])
        if PFS: pf_setup(10, 1)
        if JIT:
            jit_addr(10, 1, 1)
            for x_ in jit_srd(1): p(x_)
        p(f"s_mul_i32 s{S2_KP}, s{S_G}, {56*1024}")
        srd(p, S2_SRDP, S_WS, S_WS + 1, HF_SZ, HF_OFF)
        p(f"s_lshl_b32 s86, s{S_TB}, 3"); p(f"s_lshl_b32 s87, s{S_WQ}, 1"); p("s_add_u32 s86, s86, s87"); p("s_mul_i32 s86, s86, 114688")
        p(f"v_lshlrev_b32 v{V2_VP}, 4, v1"); p(f"v_add_u32 v{V2_VP}, s86, v{V2_VP}"); p(f"v_add_u32 v{V2_VP+1}, 114688, v{V2_VP}")
        p(f"s_lshl_b32 s86, s{S_G}, 14")
        for w in range(2):
            addrT_setup(p, V, V2_A + 4 * w, 128, w * WIN)
            for b in range(4): p(f"v_add_u32 v{V2_A+4*w+b}, s86, v{V2_A+4*w+b}")
        poll("kf_O2", lambda: (p("v_and_b32 v2, 31, v1"), p("v_lshlrev_b32 v2, 3, v2"), p(f"s_lshr_b32 s86, s{S_TB}, 1"), p("s_lshl_b32 s86, s86, 8"), p("s_add_u32 s86, s86, 8192"), p("v_add_u32 v2, s86, v2")))
    gemm_mainloop(p, "kfo", 28, NS2, NPS2, S_CNT, mfmas_o, reads_o, mk_dmas2(131072), privs2, read_frac=cfg.get("k2o_rf", 0.7),
                  hook=hookO, pf=mk_pfj2(1, 28) if JIT else pf2, st1=(3, 3, 0, None)[tm], st2=(4, 4, 0, None)[tm])
    p(f"s_lshl_b32 s86, s{S_G}, 4"); p(f"s_lshl_b32 s87, s{S_WQ}, 1"); p("s_add_u32 s86, s86, s87"); p("s_lshl_b32 s60, s86, 10")
    p("s_mov_b32 s61, 1024"); p("s_mov_b32 s62, 8192"); p("s_mov_b32 s63, 9216")
    p(f"s_lshl_b32 s86, s{S_WQ}, 16"); p(f"s_lshl_b32 s87, s{S_G}, 7"); p("s_add_u32 s56, s86, s87")
    p("s_mov_b32 s57, 32768"); p("s_mov_b32 s58, 64"); p("s_mov_b32 s59, 32832")
    p(f"s_mov_b32 s52, {TG_OFF}"); p(f"s_mov_b32 s53, {TY_OFF}")

    final_setup()
    srd(p, 12, S_B2, S_B2 + 1, 2048)
    p("v_lshrrev_b32 v2, 4, v1"); p("v_lshlrev_b32 v2, 3, v2"); p(f"s_lshl_b32 s86, s{S_TA}, 8"); p(f"s_lshl_b32 s87, s{S_G}, 7"); p("s_add_u32 s86, s86, s87"); p("v_add_u32 v2, s86, v2")
    for b in range(4): p(f"buffer_load_dwordx2 v[{8+2*b}:{9+2*b}], v2, s[12:15], 0 offen offset:{32*b}")
    p("v_lshlrev_b32 v2, 4, v1"); p("s_lshl_b32 s86, s3, 13"); p("v_add_u32 v3, s86, v2"); p("s_xor_b32 s86, s86, 32768"); p("v_add_u32 v2, s86, v2")
    p("s_barrier")
    for u in range(8): p(f"ds_write_b128 v3, v[{64+4*u}:{67+4*u}] offset:{1024*u}")
    decision_write(8)
    p("s_waitcnt vmcnt(0) lgkmcnt(0)"); p("s_barrier")
    for u in range(8): p(f"ds_read_b128 v[{64+4*u}:{67+4*u}], v2 offset:{1024*u}")
    p(f"s_mov_b32 s92, {hex(f2u(-math.log2(math.e)))}")
    decision_read()
    for i in range(32): p(f"v_add_f32 v{96+i}, v{32+i}, v{64+i}")
    B_ = 16
    for b in range(4):
        for h in range(2):
            p(f"v_lshlrev_b32 v{B_+4*b+2*h}, 16, v{8+2*b+h}"); p(f"v_and_b32 v{B_+4*b+2*h+1}, 0xffff0000, v{8+2*b+h}")
    RES = 32
    for mp in range(2):
        src = [96 + ((2 * mp + k_) * 2 + i) * 4 + r for i in range(2) for k_ in range(2) for r in range(4)]
        bs = [B_ + (2 * mp + k_) * 4 + r for i in range(2) for k_ in range(2) for r in range(4)]
        T = RES + 8 * mp; U_ = 64; W_ = 80
        for i in range(8): p(f"v_cvt_pk_bf16_f32 v{T+i}, v{src[2*i]}, v{src[2*i+1]}")
        for i in range(8):
            p(f"v_lshlrev_b32 v{U_+2*i}, 16, v{T+i}"); p(f"v_and_b32 v{U_+2*i+1}, 0xffff0000, v{T+i}")
        for i in range(16): p(f"v_add_f32 v{U_+i}, v{U_+i}, v{bs[i]}")
        for i in range(8): p(f"v_cvt_pk_bf16_f32 v{T+i}, v{U_+2*i}, v{U_+2*i+1}")
        for i in range(8):
            p(f"v_lshlrev_b32 v{U_+2*i}, 16, v{T+i}"); p(f"v_and_b32 v{U_+2*i+1}, 0xffff0000, v{T+i}")
        for i in range(16): p(f"v_mul_f32 v{W_+i}, s92, v{U_+i}")
        for i in range(16): p(f"v_exp_f32 v{W_+i}, v{W_+i}")
        for i in range(16): p(f"v_add_f32 v{W_+i}, 1.0, v{W_+i}")
        for i in range(16): p(f"v_rcp_f32 v{W_+i}, v{W_+i}")
        for i in range(16): p(f"v_mul_f32 v{W_+i}, v{W_+i}, v{U_+i}")
        for i in range(8): p(f"v_cvt_pk_bf16_f32 v{T+i}, v{W_+2*i}, v{W_+2*i+1}")
    p("s_nop 1")
    for u in range(4):
        t = RES + 4 * u
        p(f"v_permlane16_swap_b32 v{t}, v{t+2}"); p(f"v_permlane16_swap_b32 v{t+1}, v{t+3}")

    p.label("kf_final")
    if tm == 2: stamp(p, 1)
    p("s_cmp_lg_u32 s55, 0"); p("s_cbranch_scc1 kf_combine2")
    if cfg.get("peek2", 1):
        p("s_cmp_lg_u32 s3, 0"); p("s_cbranch_scc1 kf_f1")
        p(f"buffer_load_dwordx2 v[8:9], v205, s[{S_FSRD}:{S_FSRD+3}], 0 offen{SC}")
        p("s_waitcnt vmcnt(0)")
        p("v_cmp_eq_u64 vcc, s[78:79], v[8:9]")
        p("s_nop 1")
        p("v_cndmask_b32 v8, 0, 1, vcc")
        p("ds_write_b32 v206, v8 offset:8")
        p("s_waitcnt lgkmcnt(0)")
        p.label("kf_f1")
        p("s_barrier")
        p("ds_read_b32 v8, v206 offset:8")
        p("s_waitcnt lgkmcnt(0)")
        p("v_readfirstlane_b32 s86, v8")
        p("s_cmp_lg_u32 s86, 0"); p("s_cbranch_scc1 kf_combine1")
    for u in range(4): p(f"buffer_store_dwordx4 v[{32+4*u}:{35+4*u}], v203, s[8:11], {so_u[u]} offen{SC}")
    p("s_waitcnt vmcnt(0)")
    p("s_barrier")
    p("s_cmp_lg_u32 s3, 0"); p("s_cbranch_scc1 kf_f2")
    p("v_mov_b32 v8, s78"); p("v_mov_b32 v9, s79")
    p("s_mov_b64 exec, 1")
    p(f"buffer_store_dwordx2 v[8:9], v204, s[{S_FSRD}:{S_FSRD+3}], 0 offen{SC}")
    p("s_mov_b64 exec, -1")
    p("s_waitcnt vmcnt(0)")
    p(f"buffer_load_dwordx2 v[8:9], v205, s[{S_FSRD}:{S_FSRD+3}], 0 offen{SC}")
    p("s_waitcnt vmcnt(0)")
    p("v_cmp_eq_u64 vcc, s[78:79], v[8:9]")
    p("s_nop 1")
    p("v_cndmask_b32 v8, 0, 1, vcc")
    p("ds_write_b32 v206, v8 offset:4")
    p("s_waitcnt lgkmcnt(0)")
    p.label("kf_f2")
    p("s_barrier")
    p("ds_read_b32 v8, v206 offset:4")
    p("s_waitcnt lgkmcnt(0)")
    p("v_readfirstlane_b32 s86, v8")
    p("s_cmp_eq_u32 s86, 0"); p("s_cbranch_scc1 kf_done")
    p.label("kf_combine1")
    for u in range(4): p(f"buffer_load_dwordx4 v[{OR+4*u}:{OR+4*u+3}], v203, s[44:47], {so_u[u]} offen{SC}")
    p.label("kf_combine2")
    if tm == 2: stamp(p, 2)
    U_ = 96; W_ = 128; X_ = 48
    pr = lambda r: f"v[{r}:{r+1}]"
    for i in range(16):
        p(f"v_lshlrev_b32 v{U_+2*i}, 16, v{32+i}"); p(f"v_and_b32 v{U_+2*i+1}, 0xffff0000, v{32+i}")
    p("s_waitcnt vmcnt(4)")
    for i in range(16):
        p(f"v_lshlrev_b32 v{X_+2*i}, 16, v{XR+i}"); p(f"v_and_b32 v{X_+2*i+1}, 0xffff0000, v{XR+i}")
    p("s_waitcnt vmcnt(0)")
    for i in range(16):
        p(f"v_lshlrev_b32 v{W_+2*i}, 16, v{OR+i}"); p(f"v_and_b32 v{W_+2*i+1}, 0xffff0000, v{OR+i}")
    for i in range(0, 32, 2): p(f"v_pk_mul_f32 {pr(U_+i)}, {pr(U_+i)}, {pr(W_+i)}")
    for i in range(16): p(f"v_cvt_pk_bf16_f32 v{32+i}, v{U_+2*i}, v{U_+2*i+1}")
    for i in range(16):
        p(f"v_lshlrev_b32 v{U_+2*i}, 16, v{32+i}"); p(f"v_and_b32 v{U_+2*i+1}, 0xffff0000, v{32+i}")
    for i in range(0, 32, 2): p(f"v_pk_add_f32 {pr(U_+i)}, {pr(U_+i)}, {pr(X_+i)}")
    for i in range(16): p(f"v_cvt_pk_bf16_f32 v{32+i}, v{U_+2*i}, v{U_+2*i+1}")
    for u in range(4): p(f"buffer_store_dwordx4 v[{32+4*u}:{35+4*u}], v202, s[64:67], {so_out[u]} offen")
    p.label("kf_done")
    if CFG.get("ts"): p("s_waitcnt vmcnt(0)")
    if tm != 3: stamp(p, 5)
    stamp_store(p, 1, 6)
    p.label("kf_end")
    p("s_endpgm")
    return name, 256, 102, 224

def generate(cfg):
    CFG.clear(); CFG.update(cfg); CFG["ts_noclk"] = 1; CFG["k0_fullflag"] = 1
    body = Prog()
    info = [("kf",) + gen_kf(body, cfg)]
    lds = {"k0": 0, "kf": 131072 + 8192}
    out = ["; FNet (dense DFT matmuls) + GELU FFN fused block; generated by dev/gen6.py"]
    for k in ("kf",):
        out.append(f"; @launch kernel={k}_kernel grid=(256,1,1) block=(512,1,1) lds={lds[k]}")
    out.append('.amdgcn_target "amdgcn-amd-amdhsa--gfx950"')
    out.append(".text")
    out += body.L
    out.append('.section .rodata,"a"')
    for k, name, nfv, nfs, acc in info:
        out += [".p2align 6", f".amdhsa_kernel {name}", f"  .amdhsa_next_free_vgpr {nfv}", f"  .amdhsa_next_free_sgpr {nfs}",
                f"  .amdhsa_accum_offset {acc}", "  .amdhsa_group_segment_fixed_size 0", "  .amdhsa_kernarg_size 104",
                "  .amdhsa_user_sgpr_count 2", "  .amdhsa_user_sgpr_kernarg_segment_ptr 1", "  .amdhsa_system_sgpr_workgroup_id_x 1",
                ".end_amdhsa_kernel"]
    return "\n".join(out) + "\n"

DEFAULT = dict(nsd=5, nsy=8, nso=5, k2_ns=4, k2_nps=4, pf1=2, pfk0=10, pfk1=16, pfk2=22, map1=1, nt1=1)
if __name__ == "__main__":
    cfg = dict(DEFAULT)
    fn = sys.argv[1] if len(sys.argv) > 1 else "full6.s"
    for a in sys.argv[2:]:
        k, v = a.split("=")
        cfg[k] = float(v) if "." in v else int(v)
    open(fn, "w").write(generate(cfg))
```

```python
import sys, math
import gen, gen2
from gen import *
from gen2 import gelu_batch, FL2_OFF, FL2_SZ
TY_OFF, TG_OFF = WSB + (28 << 20), WSB + (32 << 20)

def gelu_pk(p, src, bias, T, n):
    Pk = T; U_ = T + n // 2; W_ = U_ + n
    pr = lambda r: f"v[{r}:{r+1}]"
    for i in range(n // 2): p(f"v_cvt_pk_bf16_f32 v{Pk+i}, v{src[2*i]}, v{src[2*i+1]}")
    for i in range(n // 2):
        p(f"v_lshlrev_b32 v{U_+2*i}, 16, v{Pk+i}"); p(f"v_and_b32 v{U_+2*i+1}, 0xffff0000, v{Pk+i}")
    for i in range(0, n, 2): p(f"v_pk_add_f32 {pr(U_+i)}, {pr(U_+i)}, {pr(bias[i])}")
    for i in range(n // 2): p(f"v_cvt_pk_bf16_f32 v{Pk+i}, v{U_+2*i}, v{U_+2*i+1}")
    for i in range(n // 2):
        p(f"v_lshlrev_b32 v{U_+2*i}, 16, v{Pk+i}"); p(f"v_and_b32 v{U_+2*i+1}, 0xffff0000, v{Pk+i}")
    for i in range(0, n, 2): p(f"v_pk_mul_f32 {pr(W_+i)}, {pr(U_+i)}, {pr(U_+i)}")
    for i in range(0, n, 2): p(f"v_pk_fma_f32 {pr(W_+i)}, {pr(W_+i)}, s[90:91], v[2:3]")
    for i in range(0, n, 2): p(f"v_pk_mul_f32 {pr(W_+i)}, {pr(W_+i)}, {pr(U_+i)}")
    for i in range(n): p(f"v_exp_f32 v{W_+i}, v{W_+i}")
    for i in range(0, n, 2): p(f"v_pk_add_f32 {pr(W_+i)}, {pr(W_+i)}, 1.0 op_sel_hi:[1,0]")
    for i in range(n): p(f"v_rcp_f32 v{W_+i}, v{W_+i}")
    for i in range(0, n, 2): p(f"v_pk_mul_f32 {pr(W_+i)}, {pr(W_+i)}, {pr(U_+i)}")
    for i in range(n // 2): p(f"v_cvt_pk_bf16_f32 v{Pk+i}, v{W_+2*i}, v{W_+2*i+1}")

def gen_kf(p, cfg):
    name = "kf_kernel"
    CY, CO = 32, 192
    NSD, NSY, NSO, NS2, NPS2 = cfg["nsd"], cfg["nsy"], cfg["nso"], cfg["k2_ns"], cfg["k2_nps"]
    WIN = 65536
    BIAS_LDS = 131072
    SC = " sc1"
    tm = cfg.get("tsmode", 0)
    kernel_head(p, name)
    p("s_cmp_ge_u32 s2, 256"); p("s_cbranch_scc1 kf_end")
    load_ptrs(p)
    V = dict(lane=1, t0=2, t1=3, t2=4)
    V_VP, V_VD, V_PF, V_DUM, V_AK, V_AT = 8, 10, 13, 7, 16, 20
    V_VD2 = 28
    ACC = 32
    S_SRDP, S_SRDS, S_SOFF = 4, 44, 56
    S_KP, S_M0B, S_CNT, S_MT, S_NT = 80, 81, 82, 83, 84
    S2_SRDS, S2_SOFF, S2_M0B, S_TA, S_TB, S_G, S_X7, S_M, S_WQ, S_TILE = 64, 68, 69, 70, 71, 72, 73, 74, 76, 77
    S_FSRD = 48
    lane_consts(p, V)
    p(f"s_and_b32 s{S_X7}, s2, 7"); p("s_lshr_b32 s87, s2, 3"); p(f"s_lshr_b32 s{S_M}, s87, 1"); p("s_and_b32 s75, s87, 1")
    p(f"s_and_b32 s88, s{S_X7}, 1"); p("s_lshl_b32 s88, s88, 2"); p(f"s_and_b32 s89, s{S_M}, 3"); p(f"s_add_u32 s{S_MT}, s88, s89")
    p(f"s_lshr_b32 s88, s{S_X7}, 1"); p("s_lshl_b32 s88, s88, 2"); p(f"s_lshr_b32 s89, s{S_M}, 2"); p(f"s_add_u32 s{S_NT}, s88, s89")
    p(f"s_mov_b32 s{S_TA}, s{S_MT}"); p(f"s_mov_b32 s{S_TB}, s{S_NT}")
    if cfg.get("map1"):
        p(f"s_and_b32 s{S_MT}, s{S_M}, 7"); p(f"s_lshr_b32 s88, s{S_M}, 3"); p(f"s_lshl_b32 s89, s{S_X7}, 1"); p(f"s_add_u32 s{S_NT}, s88, s89")
    NT1 = " nt" if cfg.get("nt1") else ""
    JIT = cfg.get("jit", 0); JA = cfg.get("ja", 8)
    NT2 = " nt" if (JIT and cfg.get("nt2", 1)) else ""
    if JIT:
        p(f"s_lshl_b32 s88, s{S_X7}, 1"); p(f"s_lshr_b32 s89, s{S_M}, 3"); p("s_add_u32 s88, s88, s89"); p(f"s_and_b32 s89, s{S_M}, 7")
        p("s_cmp_eq_u32 s75, 0")
        p(f"s_cselect_b32 s{S_TB}, s88, s{S_M}"); p(f"s_cselect_b32 s{S_TA}, s89, s{S_X7}")
    def jit_addr(dst, typ, nst):
        nl = 4 if typ == 0 else 2
        sh = 2 if typ == 0 else 1
        p(f"s_lshl_b32 s86, s{S_M}, 3"); p("s_add_u32 s86, s86, s3"); p(f"s_lshl_b32 s86, s86, {sh}")
        p(f"v_and_b32 v2, {nl-1}, v1"); p(f"v_lshrrev_b32 v3, {sh}, v1")
        if typ == 0:
            p("s_and_b32 s87, s86, 255"); p(f"s_lshl_b32 s88, s{S_X7}, 8"); p("s_add_u32 s87, s87, s88"); p("s_lshl_b32 s87, s87, 12")
            p("v_lshlrev_b32 v2, 12, v2"); p("v_lshl_add_u32 v2, v3, 7, v2"); p("v_add_u32 v2, s87, v2")
        else:
            p("s_lshr_b32 s87, s86, 7"); p("s_mul_i32 s87, s87, 1792"); p("s_lshr_b32 s88, s86, 1"); p("s_and_b32 s88, s88, 63"); p("s_add_u32 s87, s87, s88")
            p("s_lshl_b32 s87, s87, 11"); p(f"s_lshl_b32 s88, s{S_X7}, 8"); p("s_add_u32 s87, s87, s88")
            p("v_lshlrev_b32 v2, 7, v2"); p("v_lshl_add_u32 v2, v3, 17, v2"); p("v_add_u32 v2, s87, v2")
        p("v_mov_b32 v3, 0x80000000")
        p(f"v_cmp_gt_u32 vcc, {nl*nst}, v1"); p("s_nop 1"); p(f"v_cndmask_b32 v{dst}, v3, v2, vcc")
    def jit_srd(typ):
        if typ == 0:
            return [f"s_cmp_lt_u32 s{S_M}, 8", f"s_cselect_b32 s8, s{S_CR}, s{S_CI}", f"s_cselect_b32 s9, s{S_CR+1}, s{S_CI+1}", "s_mov_b32 s10, 8388608", "s_mov_b32 s11, 0x20000"]
        return [f"s_mov_b32 s8, s{S_W2}", f"s_mov_b32 s9, s{S_W2+1}", "s_mov_b32 s10, 7340032", "s_mov_b32 s11, 0x20000"]
    def mk_pfj1(typ):
        def f(kappa):
            if kappa != cfg.get("jk", 22): return []
            return [(jit_srd(typ), f"buffer_load_dword v{V_DUM}, v{V_PF}, s[8:11], 0 offen nt")]
        return f
    def mk_pfj2(typ, nst):
        d = 128 if typ == 0 else 131072
        def f(kappa):
            if kappa < 0 or kappa % 2 or kappa // 2 + JA >= nst: return []
            return [([f"s_add_u32 s54, s54, {d}"] if kappa else [f"s_mov_b32 s54, {d*JA}"], "buffer_load_dword v12, v10, s[8:11], s54 offen nt")]
        return f
    p(f"s_lshl_b32 s{S_TILE}, s{S_TB}, 3"); p(f"s_add_u32 s{S_TILE}, s{S_TILE}, s{S_TA}")
    p(f"s_lshr_b32 s{S_G}, s3, 2"); p(f"s_and_b32 s{S_WQ}, s3, 3")
    if cfg.get("prio"):
        p(f"s_cmp_eq_u32 s{S_G}, 0"); p("s_cbranch_scc1 kf_noprio"); p("s_setprio 1"); p.label("kf_noprio")
    p(f"s_lshl_b32 s{S2_M0B}, s3, 12")
    p(f"s_mov_b32 s{S_KP}, 0")
    p(f"s_lshl_b32 s86, s{S_MT}, 4"); p("s_lshl_b32 s87, s3, 1"); p("s_add_u32 s86, s86, s87"); p("s_lshl_b32 s86, s86, 15")
    p(f"v_lshlrev_b32 v{V_VP}, 4, v1"); p(f"v_add_u32 v{V_VP}, s86, v{V_VP}"); p(f"v_add_u32 v{V_VP+1}, 32768, v{V_VP}")
    def pf_setup(dst, part):
        p("s_lshl_b32 s86, s2, 3"); p("s_add_u32 s86, s86, s3"); p("s_lshl_b32 s87, s86, 12"); p("s_lshl_b32 s86, s86, 7")
        p(f"v_lshlrev_b32 v{dst}, 7, v1"); p(f"v_add_u32 v{dst}, s87, v{dst}")
        p(f"v_lshlrev_b32 v{dst+1}, 18, v1"); p(f"v_add_u32 v{dst+1}, s86, v{dst+1}")
        p("v_mov_b32 v2, 0x80000000")
        mc = {None: 0xffffffff, 0: 0xffff, 1: 0xffff0000}[part]
        mw = {None: 0xfffffff, 0: 0x1fc07f, 1: 0xfe03f80}[part]
        p(f"s_mov_b32 vcc_lo, {hex(mc)}"); p("s_mov_b32 vcc_hi, 0"); p("s_nop 0"); p(f"v_cndmask_b32 v{dst}, v2, v{dst}, vcc")
        p(f"s_mov_b32 vcc_lo, {hex(mw)}"); p("s_nop 0"); p(f"v_cndmask_b32 v{dst+1}, v2, v{dst+1}, vcc")
    PFS = cfg.get("pfsplit", 0)
    PFY = cfg.get("pfy", 0)
    if PFY:
        p(f"s_lshl_b32 s86, s{S_M}, 3"); p(f"s_add_u32 s86, s86, s{S_X7}"); p("s_lshl_b32 s86, s86, 3"); p("s_add_u32 s86, s86, s3")
        p("s_lshl_b32 s87, s86, 13"); p("s_mul_i32 s86, s86, 7168")
        p(f"v_lshlrev_b32 v{V_PF+1}, 7, v1"); p(f"v_add_u32 v{V_PF}, s87, v{V_PF+1}"); p(f"v_add_u32 v{V_PF+1}, s86, v{V_PF+1}")
        p("v_mov_b32 v2, 0x80000000")
        p("v_cmp_gt_u32 vcc, 56, v1"); p("s_nop 1"); p(f"v_cndmask_b32 v{V_PF+1}, v2, v{V_PF+1}, vcc")
    else:
        pf_setup(V_PF, 0 if PFS else None)
    p("s_waitcnt lgkmcnt(0)")
    stamp(p, 0)
    srd(p, S_SRDP, S_WS, S_WS + 1, XF_SZ, XF_OFF)
    srd(p, S_FSRD, S_WS, S_WS + 1, FL2_SZ, FL2_OFF)
    srd(p, 8, S_X, S_X + 1, 4194304)
    srd(p, 12, S_DBG, S_DBG + 1, 256)
    p(f"s_lshl_b32 s86, s75, 4"); p(f"s_add_u32 s79, s86, s{S_NT}")
    p(f"s_lshl_b32 s86, s{S_MT}, 5"); p("s_add_u32 s86, s86, s79"); p("s_lshl_b32 s86, s86, 3"); p("s_add_u32 s86, s86, s3")
    p("s_lshl_b32 s87, s86, 11")
    p("v_lshlrev_b32 v40, 4, v1")
    NTX = " nt" if cfg.get("ntx") else ""
    p(f"buffer_load_dwordx4 v[48:51], v40, s[8:11], s87 offen{NTX}")
    p(f"buffer_load_dwordx4 v[52:55], v40, s[8:11], s87 offen offset:1024{NTX}")
    p("v_mov_b32 v44, 0")
    p(f"s_lshl_b32 s87, s{S_MT}, 8"); p("s_lshl_b32 s88, s79, 3"); p("s_add_u32 s60, s87, s88")
    p("s_or_b32 s87, s2, s3"); p("s_cmp_lg_u32 s87, 0"); p("s_cbranch_scc1 kf_notok")
    p("s_memrealtime s[88:89]"); p("s_waitcnt lgkmcnt(0)")
    p("s_or_b32 s88, s88, 1"); p("s_xor_b32 s89, s89, 0x5bd1e995")
    p("v_mov_b32 v42, s88"); p("v_mov_b32 v43, s89")
    p("s_mov_b64 exec, 1")
    p("buffer_store_dwordx2 v[42:43], v44, s[12:15], 0 offen sc1")
    p("s_mov_b64 exec, -1")
    p("s_waitcnt vmcnt(0)")
    p.label("kf_notok")
    p("s_lshr_b32 s87, s86, 4"); p("s_lshl_b32 s87, s87, 15"); p("s_and_b32 s88, s86, 8"); p("s_lshl_b32 s88, s88, 4"); p("s_add_u32 s61, s87, s88")
    p("s_lshl_b32 s87, s3, 12"); p("s_add_u32 s61, s61, s87")
    p("v_lshrrev_b32 v45, 5, v1"); p("v_lshlrev_b32 v45, 10, v45"); p("v_bfe_u32 v46, v1, 3, 2"); p("v_lshl_add_u32 v45, v46, 8, v45")
    p("v_and_b32 v46, 7, v1"); p("v_lshl_add_u32 v45, v46, 4, v45")
    p("s_lshl_b32 s87, s3, 4"); p("s_add_u32 s87, s87, 98304"); p("v_lshlrev_b32 v46, 7, v1"); p("v_add_u32 v46, s87, v46")
    p("s_lshl_b32 s87, s3, 11"); p("s_add_u32 s87, s87, 98304"); p("v_add_u32 v47, s87, v40")
    p("s_cmp_eq_u32 s75, 1"); p("s_cbranch_scc1 kf_typeO")

    def ln_body(ndma):
        X0 = 56
        p(f"s_waitcnt vmcnt({ndma+1})")
        for i in range(4):
            p(f"v_lshlrev_b32 v{X0+2*i}, 16, v{48+i}"); p(f"v_and_b32 v{X0+1+2*i}, 0xffff0000, v{48+i}")
        p(f"s_waitcnt vmcnt({ndma})")
        if tm == 3: stamp(p, 1)
        for i in range(4, 8):
            p(f"v_lshlrev_b32 v{X0+2*i}, 16, v{48+i}"); p(f"v_and_b32 v{X0+1+2*i}, 0xffff0000, v{48+i}")
        def wave_sum(src, tmp, sbase):
            for ctl in ("quad_perm:[1,0,3,2]", "quad_perm:[2,3,0,1]", "row_half_mirror", "row_mirror"):
                p("s_nop 1")
                p(f"v_add_f32_dpp v{tmp}, v{src}, v{src} {ctl} row_mask:0xf bank_mask:0xf")
                p(f"v_mov_b32 v{src}, v{tmp}")
            p("s_nop 0")
            for i in range(4): p(f"v_readlane_b32 s{sbase+i}, v{src}, {16*i}")
            p("s_nop 1")
            p(f"v_mov_b32 v{src}, s{sbase}")
            for i in range(1, 4): p(f"v_add_f32 v{src}, s{sbase+i}, v{src}")
        A_ = 72; D_ = 84
        for i in range(8): p(f"v_add_f32 v{A_+i}, v{X0+2*i}, v{X0+1+2*i}")
        for st in (4, 2, 1):
            for i in range(st): p(f"v_add_f32 v{A_+i}, v{A_+i}, v{A_+i+st}")
        wave_sum(A_, A_ + 1, 86)
        p(f"v_mul_f32 v{A_}, {hex(f2u(1.0/1024))}, v{A_}")
        for i in range(16): p(f"v_sub_f32 v{D_+i}, v{X0+i}, v{A_}")
        for i in range(8):
            p(f"v_mul_f32 v{A_+2+i}, v{D_+2*i}, v{D_+2*i}"); p(f"v_fmac_f32 v{A_+2+i}, v{D_+1+2*i}, v{D_+1+2*i}")
        for st in (4, 2, 1):
            for i in range(st): p(f"v_add_f32 v{A_+2+i}, v{A_+2+i}, v{A_+2+i+st}")
        wave_sum(A_ + 2, A_ + 3, 86)
        M_, V_, R_ = A_, A_ + 2, A_ + 3
        p(f"v_mul_f32 v{V_}, {hex(f2u(1.0/1024))}, v{V_}")
        p(f"v_cvt_pk_bf16_f32 v{R_}, v{M_}, v{V_}")
        p(f"v_lshlrev_b32 v{M_}, 16, v{R_}"); p(f"v_and_b32 v{V_}, 0xffff0000, v{R_}")
        p(f"v_add_f32 v{V_}, {hex(f2u(1e-5))}, v{V_}")
        p(f"v_cvt_pk_bf16_f32 v{V_}, v{V_}, v{V_}"); p(f"v_lshlrev_b32 v{V_}, 16, v{V_}")
        p(f"v_sqrt_f32 v{V_}, v{V_}"); p("s_nop 0")
        p(f"v_cvt_pk_bf16_f32 v{V_}, v{V_}, v{V_}"); p(f"v_lshlrev_b32 v{V_}, 16, v{V_}")
        p(f"v_rcp_f32 v{R_}, v{V_}")
        for i in range(16): p(f"v_sub_f32 v{X0+i}, v{X0+i}, v{M_}")
        for i in range(8): p(f"v_cvt_pk_bf16_f32 v{48+i}, v{X0+2*i}, v{X0+1+2*i}")
        for i in range(8):
            p(f"v_lshlrev_b32 v{X0+2*i}, 16, v{48+i}"); p(f"v_and_b32 v{X0+1+2*i}, 0xffff0000, v{48+i}")
        for i in range(16): p(f"v_mul_f32 v{D_+i}, v{X0+i}, v{R_}")
        for i in range(16): p(f"v_fma_f32 v{X0+i}, -v{D_+i}, v{V_}, v{X0+i}")
        for i in range(16): p(f"v_fmac_f32 v{D_+i}, v{X0+i}, v{R_}")
        for i in range(8): p(f"v_cvt_pk_bf16_f32 v{48+i}, v{D_+2*i}, v{D_+1+2*i}")
        p("ds_write_b128 v46, v[48:51]"); p("ds_write_b128 v46, v[52:55] offset:8192")
        srd(p, 12, S_DBG, S_DBG + 1, 256); p("buffer_load_dwordx2 v[42:43], v44, s[12:15], 0 offen sc1")
        p("s_waitcnt lgkmcnt(0)"); p("s_barrier")
        p("ds_read_b128 v[48:51], v47"); p("ds_read_b128 v[52:55], v47 offset:1024")
        p("s_waitcnt lgkmcnt(0)")
        p(f"buffer_store_dwordx4 v[48:51], v45, s[{S_SRDP}:{S_SRDP+3}], s61 offen sc1")
        p(f"buffer_store_dwordx4 v[52:55], v45, s[{S_SRDP}:{S_SRDP+3}], s61 offen offset:2048 sc1")
        if tm == 3: stamp(p, 2)

    def hookX(tag, ndma):
        ln_body(ndma)
        if tm == 3: stamp(p, 3)
        p(f"s_waitcnt vmcnt(0)"); p("s_barrier")
        if tm == 3: stamp(p, 4)
        p("s_cmp_lg_u32 s3, 0"); p(f"s_cbranch_scc1 {tag}_w")
        p("v_readfirstlane_b32 s78, v42"); p("v_readfirstlane_b32 s79, v43")
        p("s_cmp_lg_u32 s78, 0"); p(f"s_cbranch_scc1 {tag}_t2")
        srd(p, 12, S_DBG, S_DBG + 1, 256)
        p("v_mov_b32 v2, 0")
        p.label(tag + "_t")
        p("buffer_load_dwordx2 v[4:5], v2, s[12:15], 0 offen sc1")
        p("s_waitcnt vmcnt(0)")
        p("v_readfirstlane_b32 s78, v4"); p("v_readfirstlane_b32 s79, v5")
        p("s_cmp_lg_u32 s78, 0"); p(f"s_cbranch_scc1 {tag}_t2")
        p("s_sleep 1"); p(f"s_branch {tag}_t")
        p.label(tag + "_t2")
        p("v_mov_b32 v4, s78"); p("v_mov_b32 v5, s79")
        p("v_mov_b32 v2, s60")
        p("s_mov_b64 exec, 1")
        p(f"buffer_store_dwordx2 v[4:5], v2, s[{S_FSRD}:{S_FSRD+3}], 0 offen sc1")
        p("s_mov_b64 exec, -1")
        p("v_and_b32 v2, 31, v1"); p("v_lshlrev_b32 v2, 3, v2"); p(f"s_lshl_b32 s86, s{S_MT}, 8"); p("v_add_u32 v2, s86, v2")
        p.label(tag + "_p")
        p(f"buffer_load_dwordx2 v[4:5], v2, s[{S_FSRD}:{S_FSRD+3}], 0 offen sc1")
        p("s_waitcnt vmcnt(0)")
        p("v_cmp_ne_u64 vcc, s[78:79], v[4:5]")
        p(f"s_cbranch_vccz {tag}_w")
        p("s_sleep 1"); p(f"s_branch {tag}_p")
        p.label(tag + "_w")
        p("s_barrier")

    def mkpreg(vbase, nv):
        return lambda r: vr(vbase + r, 4) if r < nv else ar(r - nv, 4)
    def pf(kappa):
        if cfg.get("pf1", 2) == 3:
            if kappa < 0: return []
            m, j = (0, kappa) if kappa < 11 else ((1, kappa - 11) if kappa < 22 else (2, kappa - 22))
            b = (S_CR, S_CI, S_W2)[m]
            pre = [] if j else [f"s_mov_b32 s8, s{b}", f"s_mov_b32 s9, s{b+1}", f"s_mov_b32 s10, {(8388608, 8388608, 7340032)[m]}", "s_mov_b32 s11, 0x20000"]
            pre = pre + [f"v_add_u32 v6, {hex((-(j << 28)) & 0xffffffff)}, v{V_PF + (1 if m == 2 else 0)}"]
            return [(pre, f"buffer_load_dword v{V_DUM}, v6, s[8:11], 0 offen")]
        if not cfg.get("pf1", 2): return []
        ks = (cfg.get("pfk0", 8), cfg.get("pfk1", 16), cfg.get("pfk2", 24))
        out = []
        for m in range(3):
            if ks[m] != kappa: continue
            b = (S_CR, S_CI, S_W2)[m]
            pre = [f"s_mov_b32 s8, s{b}", f"s_mov_b32 s9, s{b+1}", f"s_mov_b32 s10, {(8388608, 8388608, 7340032)[m]}", "s_mov_b32 s11, 0x20000"]
            out.append((pre, f"buffer_load_dword v{V_DUM}, v{V_PF + (1 if m == 2 else 0)}, s[8:11], 0 offen"))
        return out
    def pf2(kappa):
        if not PFS: return []
        ks = (cfg.get("pf2k0", 2), cfg.get("pf2k1", 6), cfg.get("pf2k2", 10))
        out = []
        for m in range(3):
            if ks[m] != kappa: continue
            b = (S_CR, S_CI, S_W2)[m]
            pre = [f"s_mov_b32 s8, s{b}", f"s_mov_b32 s9, s{b+1}", f"s_mov_b32 s10, {(8388608, 8388608, 7340032)[m]}", "s_mov_b32 s11, 0x20000"]
            out.append((pre, f"buffer_load_dword v12, v{10 + (1 if m == 2 else 0)}, s[8:11], 0 offen"))
        return out
    def flag_ops(vaddr, off):
        return (["s_mov_b64 exec, 1"], f"buffer_store_dword v7, v{vaddr}, s[{S_FSRD}:{S_FSRD+3}], 0 offen offset:{off}{SC}", ["s_mov_b64 exec, -1"])

    def phase1(pp, tag, blocks, NS, STG, nslot, delta, SH, PV, NPS, use_pf, dmas_fn=None, pf_fn=None, **kw):
        nb = len(blocks)
        preg = mkpreg(PV, 224 - PV)
        def dmas(stage):
            out = []
            for i in range(nslot):
                pre = [f"s_add_u32 m0, s{S_M0B}, {(stage % NS) * STG + 1024 * i}"]
                if i == 0 and stage > 0: pre.insert(0, f"s_add_u32 s{S_SOFF}, s{S_SOFF}, {delta}")
                out.append((pre, f"buffer_load_dwordx4 v{V_VD+i}, s[{S_SRDS}:{S_SRDS+3}], s{S_SOFF} offen{NT1} lds"))
            return out
        def privs(kappa):
            out = []
            for i in range(2):
                pre = []
                if i == 0 and kappa % 4 == 0 and kappa > 0: pre = [f"s_add_u32 s{S_KP}, s{S_KP}, 4096"]
                out.append((pre, f"buffer_load_dwordx4 {preg((kappa % NPS) * 8 + 4 * i)}, v{V_VP+i}, s[{S_SRDP}:{S_SRDP+3}], s{S_KP} offen offset:{(kappa%4)*1024}{SC}"))
            return out
        def reads(kappa):
            s, kk = divmod(kappa, 2)
            ring = (s % NS) * STG
            out = []
            for b, bl in enumerate(blocks):
                a = SH + kk * nb * 4 + 4 * b
                if bl[0] == 'K':
                    off = ring + bl[1]; w = off // WIN
                    out.append(f"ds_read_b128 {vr(a,4)}, v{V_AK+2*w+kk} offset:{off - w*WIN}")
                else:
                    for hh in range(2):
                        off = ring + bl[4] + kk * bl[2] + hh * bl[3]; w = off // WIN
                        out.append(f"ds_read_b64_tr_b16 {vr(a+2*hh,2)}, v{V_AT+4*w+bl[1]} offset:{off - w*WIN}")
            return out
        def mfmas(kappa):
            kk = kappa % 2
            out = []
            for b, bl in enumerate(blocks):
                for i in range(2):
                    acc = ACC + (b * 2 + i) * 4
                    S = vr(SH + kk * nb * 4 + 4 * b, 4); P = preg((kappa % NPS) * 8 + 4 * i)
                    c = vr(acc, 4) if kappa > 0 else "0"
                    out.append(f"{MF} {vr(acc,4)}, {P}, {S}, {c}" if bl[0] == 'K' else f"{MF} {vr(acc,4)}, {S}, {P}, {c}")
            return out
        gemm_mainloop(pp, tag, 16, NS, NPS, S_CNT, mfmas, reads, dmas_fn or dmas, privs, pf=pf_fn if JIT else (pf if use_pf else None), read_frac=cfg.get("k1_rf", 0.7), **kw)

    def bias_dma(f0):
        srd(p, 12, S_B1, S_B1 + 1, 7168)
        p("v_lshlrev_b32 v2, 4, v1")
        p(f"s_lshl_b32 s86, s{f0}, 1")
        p("s_lshl_b32 s87, s3, 10"); p(f"s_add_u32 m0, s87, {BIAS_LDS}")
        p("s_nop 0")
        p("buffer_load_dwordx4 v2, s[12:15], s86 offen lds")
    def epi_W(nb, f0, TB, b0=0):
        srd(p, 8, S_WS, S_WS + 1, HF_SZ, HF_OFF)
        BPf = lambda n: 8 + 2 * n if n < 10 else 216 + 2 * (n - 10)
        p("v_lshrrev_b32 v2, 4, v1")
        p("s_lshl_b32 s87, s3, 10"); p(f"s_add_u32 s87, s87, {BIAS_LDS}")
        p("v_lshlrev_b32 v3, 3, v2"); p("v_add_u32 v3, s87, v3")
        for n in range(nb): p(f"ds_read_b64 v[{BPf(n)}:{BPf(n)+1}], v3 offset:{32*n}")
        p(f"s_mov_b32 s90, {hex(f2u(C2))}"); p(f"v_mov_b32 v5, {hex(f2u(C1))}")
        p("v_and_b32 v3, 1, v2"); p("v_lshlrev_b32 v3, 1, v3"); p("v_lshrrev_b32 v4, 1, v2"); p("v_or_b32 v3, v3, v4")
        p("v_lshlrev_b32 v3, 8, v3"); p("v_and_b32 v4, 15, v1"); p("v_lshl_add_u32 v4, v4, 4, v3")
        p(f"s_lshl_b32 s86, s{S_MT}, 4"); p("s_lshl_b32 s87, s3, 1"); p("s_add_u32 s86, s86, s87"); p("s_mul_i32 s86, s86, 114688")
        p(f"s_lshl_b32 s87, s{f0}, 5"); p("s_add_u32 s86, s86, s87")
        p(f"s_mov_b32 s91, s90"); p("v_mov_b32 v2, v5"); p("v_mov_b32 v3, v5")
        p("s_waitcnt lgkmcnt(0)")
        BF = TB
        for n0 in range(0, nb, 2):
            for k_ in range(2):
                for h in range(2):
                    p(f"v_lshlrev_b32 v{BF+4*k_+2*h}, 16, v{BPf(n0+k_)+h}")
                    p(f"v_and_b32 v{BF+4*k_+2*h+1}, 0xffff0000, v{BPf(n0+k_)+h}")
            src = []; bs = []
            for i in range(2):
                for k_ in range(2):
                    src += [ACC + ((b0 + n0 + k_) * 2 + i) * 4 + r for r in range(4)]
                    bs += [BF + 4 * k_ + r for r in range(4)]
            T0 = TB + 8 + (40 if (n0 // 2) % 2 else 0)
            gelu_pk(p, src, bs, T0, 16)
            for i in range(2):
                p(f"s_add_u32 s87, s86, {114688*i + 1024*(n0//2)}")
                t = T0 + 4 * i
                if i == 0: p("s_nop 0")
                p(f"v_permlane16_swap_b32 v{t}, v{t+2}"); p(f"v_permlane16_swap_b32 v{t+1}, v{t+3}")
                p(f"buffer_store_dwordx4 v[{t}:{t+3}], v4, s[8:11], s87 offen{SC}")
        return nb

    STG2 = 32768
    V2_VP, V2_A = 8, 20
    SH2 = 96
    preg2 = mkpreg(160, 64)
    S2_SRDP, S2_KP = 4, 80
    def privs2(kappa):
        out = []
        for i in range(2):
            pre = []
            if i == 0 and kappa % 4 == 0 and kappa > 0: pre = [f"s_add_u32 s{S2_KP}, s{S2_KP}, 4096"]
            out.append((pre, f"buffer_load_dwordx4 {preg2((kappa % NPS2) * 8 + 4 * i)}, v{V2_VP+i}, s[{S2_SRDP}:{S2_SRDP+3}], s{S2_KP} offen offset:{(kappa%4)*1024}{SC}"))
        return out
    def mk_dmas2(delta):
        def dmas(stage):
            out = []
            for i in range(4):
                pre = [f"s_add_u32 m0, s{S2_M0B}, {(stage % NS2) * STG2 + 1024 * i}"]
                if i == 0 and stage > 0: pre.insert(0, f"s_add_u32 s{S2_SOFF}, s{S2_SOFF}, {delta}")
                out.append((pre, f"buffer_load_dwordx4 v{V_VD2+i}, s[{S2_SRDS}:{S2_SRDS+3}], s{S2_SOFF} offen{NT2} lds"))
            return out
        return dmas
    def reads_o(kappa):
        s, kk = divmod(kappa, 2)
        out = []
        for b in range(8):
            for hh in range(2):
                off = (s % NS2) * STG2 + (b >> 2) * 8192 + kk * 4096 + hh * 512; w = off // WIN
                out.append(f"ds_read_b64_tr_b16 {vr(SH2 + kk*32 + 4*b + 2*hh, 2)}, v{V2_A+4*w+(b&3)} offset:{off - w*WIN}")
        return out
    def mfmas_o(kappa):
        kk = kappa % 2
        return [f"{MF} {vr(ACC+(b*2+i)*4,4)}, {vr(SH2+kk*32+4*b,4)}, {preg2((kappa%NPS2)*8+4*i)}, {vr(ACC+(b*2+i)*4,4) if kappa > 0 else '0'}"
                for b in range(8) for i in range(2)]
    def reads_y(kappa):
        s, kk = divmod(kappa, 2)
        out = []
        for b in range(8):
            off = (s % NS2) * STG2 + 2048 * b; w = off // WIN
            out.append(f"ds_read_b128 {vr(SH2 + kk*32 + 4*b, 4)}, v{V2_A+2*w+kk} offset:{off - w*WIN}")
        return out
    def mfmas_y(kappa):
        kk = kappa % 2
        return [f"{MF} {vr(ACC+(i*8+b)*4,4)}, {preg2((kappa%NPS2)*8+4*i)}, {vr(SH2+kk*32+4*b,4)}, {vr(ACC+(i*8+b)*4,4) if kappa > 0 else '0'}"
                for b in range(8) for i in range(2)]
    def split(fn):
        tp = Prog(); tp.uid = p.uid
        fn(tp, lambda: tp.raw("@SPLIT"))
        p.uid = tp.uid
        i = tp.L.index("@SPLIT")
        return tp.L[:i], tp.L[i + 1:]

    def poll(label, setup):
        p("s_cmp_lg_u32 s3, 0"); p(f"s_cbranch_scc1 {label}_w")
        setup()
        p.label(label + "_p")
        p(f"buffer_load_dwordx2 v[4:5], v2, s[{S_FSRD}:{S_FSRD+3}], 0 offen{SC}")
        p("s_waitcnt vmcnt(0)")
        p("v_cmp_ne_u64 vcc, s[78:79], v[4:5]")
        p(f"s_cbranch_vccz {label}_w")
        p(f"s_sleep {cfg.get('poll_sleep', 1)}")
        p(f"s_branch {label}_p")
        p.label(label + "_w")
        p("s_barrier")
    def setflags(addr_exprs):
        lab = p.newlabel("sf")
        p("s_cmp_lg_u32 s3, 0"); p(f"s_cbranch_scc1 {lab}")
        p("v_mov_b32 v6, s78"); p("v_mov_b32 v7, s79")
        p("s_mov_b64 exec, 1")
        for f in addr_exprs:
            f(); p("v_mov_b32 v5, s86")
            p(f"buffer_store_dwordx2 v[6:7], v5, s[{S_FSRD}:{S_FSRD+3}], 0 offen{SC}")
        p("s_mov_b64 exec, -1")
        p.label(lab)

    XR, OR = 160, 176
    so_out = ["0", "s57", "s58", "s59"]; so_u = ["0", "s61", "s62", "s63"]
    def final_setup():
        srd(p, 4, S_X, S_X + 1, 4194304)
        srd(p, 64, S_OUT, S_OUT + 1, 4194304)
        p(f"s_add_u32 s8, s{S_WS}, s52"); p(f"s_addc_u32 s9, s{S_WS+1}, 0"); p("s_mov_b32 s10, 4194304"); p("s_mov_b32 s11, 0x20000")
        p(f"s_add_u32 s44, s{S_WS}, s53"); p(f"s_addc_u32 s45, s{S_WS+1}, 0"); p("s_mov_b32 s46, 4194304"); p("s_mov_b32 s47, 0x20000")
        p(f"s_lshl_b32 s86, s{S_TILE}, 7"); p("s_add_u32 s86, s86, 16384"); p("s_lshl_b32 s87, s75, 6"); p("s_add_u32 s86, s86, s87")
        p("v_mov_b32 v204, s86"); p("v_xor_b32 v205, 64, v204"); p("v_mov_b32 v206, 65536")
        lab = p.newlabel("fs")
        p("s_cmp_lg_u32 s3, 0"); p(f"s_cbranch_scc1 {lab}")
        p(f"buffer_load_dwordx2 v[200:201], v205, s[{S_FSRD}:{S_FSRD+3}], 0 offen{SC}")
        p.label(lab)
        p("v_lshrrev_b32 v2, 4, v1"); p("v_and_b32 v3, 1, v2"); p("v_lshlrev_b32 v3, 5, v3"); p("v_lshrrev_b32 v2, 1, v2"); p("v_lshl_add_u32 v3, v2, 4, v3")
        p("v_and_b32 v2, 15, v1"); p("v_lshl_add_u32 v3, v2, 11, v3")
        p(f"s_lshl_b32 s86, s{S_TB}, 18"); p(f"s_lshl_b32 s87, s{S_TA}, 8"); p("s_add_u32 s86, s86, s87"); p("s_add_u32 s86, s86, s56")
        p("v_add_u32 v202, s86, v3")
        p(f"s_lshl_b32 s86, s{S_TILE}, 15"); p("s_add_u32 s86, s86, s60")
        p("v_lshlrev_b32 v2, 4, v1"); p("v_add_u32 v203, s86, v2")
        for u in range(4): p(f"buffer_load_dwordx4 v[{XR+4*u}:{XR+4*u+3}], v202, s[4:7], {so_out[u]} offen")
    def decision_write(nyounger):
        lab = p.newlabel("dw")
        p("s_cmp_lg_u32 s3, 0"); p(f"s_cbranch_scc1 {lab}")
        p(f"s_waitcnt vmcnt({nyounger})")
        p("v_cmp_eq_u64 vcc, s[78:79], v[200:201]")
        p("s_nop 1")
        p("v_cndmask_b32 v200, 0, 1, vcc")
        p("ds_write_b32 v206, v200")
        p.label(lab)
    def decision_read():
        p("ds_read_b32 v200, v206")
        p("s_waitcnt lgkmcnt(0)")
        p("v_readfirstlane_b32 s55, v200")
        lab = p.newlabel("dr")
        p("s_cmp_eq_u32 s55, 0"); p(f"s_cbranch_scc1 {lab}")
        for u in range(4): p(f"buffer_load_dwordx4 v[{OR+4*u}:{OR+4*u+3}], v203, s[44:47], {so_u[u]} offen{SC}")
        p.label(lab)

    p(f"s_mov_b32 s{S2_SOFF}, 0")
    p(f"s_cmp_eq_u32 s{S_G}, 0")
    p(f"s_cselect_b32 s{S2_SRDS}, s{S_CR}, s{S_CI}"); p(f"s_cselect_b32 s{S2_SRDS+1}, s{S_CR+1}, s{S_CI+1}")
    p(f"s_mov_b32 s{S2_SRDS+2}, 8388608"); p(f"s_mov_b32 s{S2_SRDS+3}, 0x20000")
    voffK_lane(p, V, 5, 4096, 0)
    p(f"s_lshl_b32 s86, s{S_WQ}, 5"); p(f"s_lshl_b32 s87, s{S_G}, 6"); p("s_xor_b32 s86, s86, s87")
    p(f"s_lshl_b32 s87, s{S_TB}, 7"); p("s_add_u32 s86, s86, s87"); p("s_lshl_b32 s86, s86, 12")
    p(f"v_add_u32 v{V_VD2}, s86, v5")
    p(f"v_xor_b32 v{V_VD2+1}, 64, v{V_VD2}"); p(f"v_add_u32 v{V_VD2+1}, 32768, v{V_VD2+1}")
    p(f"v_add_u32 v{V_VD2+2}, 65536, v{V_VD2}"); p(f"v_add_u32 v{V_VD2+3}, 65536, v{V_VD2+1}")
    if JIT: jit_addr(V_PF, 0, JA)
    p(f"s_cmp_lt_u32 s{S_NT}, 8")
    p(f"s_cselect_b32 s{S_SRDS}, s{S_DR}, s{S_DI}"); p(f"s_cselect_b32 s{S_SRDS+1}, s{S_DR+1}, s{S_DI+1}")
    p(f"s_mov_b32 s{S_SRDS+2}, 2097152"); p(f"s_mov_b32 s{S_SRDS+3}, 0x20000")
    srd(p, 52, S_W1, S_W1 + 1, 7340032)
    p(f"s_mov_b32 s{S_SOFF}, 0"); p(f"s_mov_b32 s{S_SOFF+1}, 0"); p(f"s_lshl_b32 s{S_M0B}, s3, 11"); p("s_lshl_b32 s58, s3, 10"); p("s_add_u32 s58, s58, 16384")
    voffK_lane(p, V, 5, 2048, 0)
    p(f"s_and_b32 s86, s{S_NT}, 7"); p("s_lshl_b32 s86, s86, 7"); p("s_lshl_b32 s87, s3, 4"); p("s_add_u32 s86, s86, s87"); p("s_lshl_b32 s86, s86, 11")
    p(f"v_add_u32 v{V_VD}, s86, v5")
    p(f"v_xor_b32 v{V_VD+1}, 64, v{V_VD}"); p(f"v_add_u32 v{V_VD+1}, 16384, v{V_VD+1}")
    p(f"s_mul_i32 s85, s{S_NT}, {CY}")
    bias_dma(85)
    voffT8_lane(p, V, 5, 7168, 0)
    p("s_and_b32 s88, s3, 1"); p("s_lshl_b32 s88, s88, 6"); p("s_mul_i32 s86, s3, 57344"); p("s_lshl_b32 s87, s85, 1"); p("s_add_u32 s86, s86, s87")
    p("v_xor_b32 v5, s88, v5"); p("v_and_b32 v2, 64, v5"); p("v_add_u32 v5, s86, v5")
    p("v_cmp_eq_u32 vcc, 0, v2"); p("v_mov_b32 v4, 0x80000000"); p("s_nop 0"); p(f"v_cndmask_b32 v{V_VD+2}, v4, v5, vcc")
    for w in range(2):
        addrK_setup(p, V, V_AK + 2 * w, V_AK + 2 * w + 1, w * WIN)
        addrT_setup(p, V, V_AT + 4 * w, 128, w * WIN)
    def dmasM(stage):
        ring = (stage % NSD) * 24576
        out = []
        for i in range(2):
            pre = [f"s_add_u32 m0, s{S_M0B}, {ring + 1024 * i}"]
            if i == 0 and stage > 0: pre.insert(0, f"s_add_u32 s{S_SOFF}, s{S_SOFF}, 128")
            out.append((pre, f"buffer_load_dwordx4 v{V_VD+i}, s[{S_SRDS}:{S_SRDS+3}], s{S_SOFF} offen{NT1} lds"))
        pre = [f"s_add_u32 m0, s58, {ring}"]
        if stage > 0: pre.insert(0, f"s_add_u32 s{S_SOFF+1}, s{S_SOFF+1}, {64*7168}")
        out.append((pre, f"buffer_load_dwordx4 v{V_VD+2}, s[52:55], s{S_SOFF+1} offen{NT1} lds"))
        return out
    phase1(p, "kfm", [('K', 2048 * b) for b in range(8)] + [('T', b, 4096, 512, 16384) for b in range(2)], NSD, 24576, 3, 0, 112, 192, 8, PFY != 2,
           dmas_fn=dmasM, pf_fn=mk_pfj1(0), st1=(1, 0, 0, 5)[tm], st2=(2, 0, 0, 0)[tm] if tm != 3 else None, hook=lambda: hookX("kfxy", 1 + 3 * (NSD - 1) + (0 if (PFY == 2 or JIT) else len(pf(-2)))))
    p("s_barrier")
    def epi_D():
        srd(p, 8, S_WS, S_WS + 1, ABF_SZ, ABF_OFF)
        p("v_lshrrev_b32 v2, 4, v1"); p("v_and_b32 v3, 1, v2"); p("v_lshlrev_b32 v3, 1, v3"); p("v_lshrrev_b32 v2, 1, v2")
        p("v_or_b32 v2, v2, v3"); p("v_lshlrev_b32 v2, 8, v2"); p("v_and_b32 v3, 15, v1"); p("v_lshl_add_u32 v2, v3, 4, v2")
        p(f"s_lshl_b32 s86, s{S_MT}, 3"); p("s_add_u32 s86, s86, s3"); p(f"s_lshr_b32 s87, s{S_NT}, 3"); p("s_lshl_b32 s87, s87, 6"); p("s_add_u32 s86, s86, s87")
        p(f"s_and_b32 s87, s{S_NT}, 7"); p("s_lshl_b32 s87, s87, 10"); p("s_add_u32 s86, s86, s87"); p("s_lshl_b32 s86, s86, 10")
        p("v_add_u32 v2, s86, v2")
        for b in range(8):
            t = 200 + 0 * b if False else 112 + 4 * b
            a0 = ACC + b * 8; a1 = a0 + 4
            p(f"v_cvt_pk_bf16_f32 v{t}, v{a0}, v{a0+1}"); p(f"v_cvt_pk_bf16_f32 v{t+1}, v{a0+2}, v{a0+3}")
            p(f"v_cvt_pk_bf16_f32 v{t+2}, v{a1}, v{a1+1}"); p(f"v_cvt_pk_bf16_f32 v{t+3}, v{a1+2}, v{a1+3}")
            p(f"s_mov_b32 s87, {131072*b}"); p("s_nop 0")
            p(f"v_permlane16_swap_b32 v{t}, v{t+2}"); p(f"v_permlane16_swap_b32 v{t+1}, v{t+3}")
            p(f"buffer_store_dwordx4 v[{t}:{t+3}], v2, s[8:11], s87 offen{SC}")
        p("s_nop 1")
    def hookY():
        epi_D()
        epi_W(2, 85, 144, b0=8)
        if tm == 1: stamp(p, 1)
        p("s_waitcnt vmcnt(0)"); p("s_barrier")
        if tm == 1: stamp(p, 2)
        setflags([lambda: (p(f"s_lshl_b32 s86, s{S_NT}, 7"), p(f"s_lshl_b32 s87, s{S_MT}, 3"), p("s_add_u32 s86, s86, s87"), p("s_add_u32 s86, s86, 4096")),
                  lambda: (p(f"s_lshl_b32 s86, s{S_MT}, 8"), p(f"s_lshl_b32 s87, s{S_NT}, 3"), p("s_add_u32 s86, s86, s87"), p("s_add_u32 s86, s86, 8192"))])
        if PFS: pf_setup(10, 1)
        if JIT:
            jit_addr(10, 0, 1)
            for x_ in jit_srd(0): p(x_)
        p(f"s_lshl_b32 s{S2_KP}, s{S_G}, 16")
        srd(p, S2_SRDP, S_WS, S_WS + 1, ABF_SZ, ABF_OFF)
        p(f"s_lshl_b32 s86, s{S_TA}, 3"); p(f"s_lshl_b32 s87, s{S_WQ}, 1"); p("s_add_u32 s86, s86, s87"); p("s_lshl_b32 s86, s86, 17")
        p(f"v_lshlrev_b32 v{V2_VP}, 4, v1"); p(f"v_add_u32 v{V2_VP}, s86, v{V2_VP}"); p(f"v_add_u32 v{V2_VP+1}, 131072, v{V2_VP}")
        p(f"s_lshl_b32 s86, s{S_G}, 14")
        for w in range(2):
            addrK_setup(p, V, V2_A + 2 * w, V2_A + 2 * w + 1, w * WIN)
            p(f"v_add_u32 v{V2_A+2*w}, s86, v{V2_A+2*w}"); p(f"v_add_u32 v{V2_A+2*w+1}, s86, v{V2_A+2*w+1}")
        poll("kf_Y2", lambda: (p("v_bfe_u32 v3, v1, 3, 1"), p("v_lshlrev_b32 v3, 10, v3"), p("v_and_b32 v2, 7, v1"), p("v_lshl_add_u32 v2, v2, 3, v3"),
                               p(f"s_lshl_b32 s86, s{S_TA}, 7"), p("s_add_u32 s86, s86, 4096"), p("v_add_u32 v2, s86, v2")))
    gemm_mainloop(p, "kfy", 32, NS2, NPS2, S_CNT, mfmas_y, reads_y, mk_dmas2(128), privs2, read_frac=cfg.get("k2y_rf", 0.7),
                  hook=hookY, pf=mk_pfj2(0, 32) if JIT else pf2, st1=(3, 3, 0, None)[tm], st2=(4, 4, 0, None)[tm])
    p(f"s_lshl_b32 s86, s{S_WQ}, 3"); p(f"s_lshl_b32 s87, s{S_G}, 2"); p("s_add_u32 s86, s86, s87"); p("s_lshl_b32 s60, s86, 10")
    p("s_mov_b32 s61, 1024"); p("s_mov_b32 s62, 2048"); p("s_mov_b32 s63, 3072")
    p(f"s_lshl_b32 s86, s{S_G}, 17"); p(f"s_lshl_b32 s87, s{S_WQ}, 6"); p("s_add_u32 s56, s86, s87")
    p("s_mov_b32 s57, 32768"); p("s_mov_b32 s58, 65536"); p("s_mov_b32 s59, 98304")
    p(f"s_mov_b32 s52, {TY_OFF}"); p(f"s_mov_b32 s53, {TG_OFF}")
    final_setup()
    for b in range(8):
        t = SH2 + 4 * b
        a0 = ACC + b * 4; a1 = ACC + (8 + b) * 4
        p(f"v_cvt_pk_bf16_f32 v{t}, v{a0}, v{a0+1}"); p(f"v_cvt_pk_bf16_f32 v{t+1}, v{a0+2}, v{a0+3}")
        p(f"v_cvt_pk_bf16_f32 v{t+2}, v{a1}, v{a1+1}"); p(f"v_cvt_pk_bf16_f32 v{t+3}, v{a1+2}, v{a1+3}")
    p("v_lshlrev_b32 v2, 4, v1"); p("s_lshl_b32 s86, s3, 12"); p("v_add_u32 v3, s86, v2"); p("s_xor_b32 s86, s86, 16384"); p("v_add_u32 v2, s86, v2")
    p("s_barrier")
    for u in range(4): p(f"ds_write_b128 v3, v[{SH2+16+4*u}:{SH2+19+4*u}] offset:{1024*u}")
    decision_write(4)
    p("s_waitcnt lgkmcnt(0)"); p("s_barrier")
    for u in range(4): p(f"ds_read_b128 v[{SH2+16+4*u}:{SH2+19+4*u}], v2 offset:{1024*u}")
    decision_read()
    p(f"s_lshl_b32 s90, s{S_G}, 31"); p("s_lshr_b32 s85, s90, 16"); p("s_or_b32 s90, s90, s85")
    p("s_waitcnt lgkmcnt(0)")
    RES = 32
    U_ = 48; W_ = 64
    for hf in range(2):
        for i in range(8):
            r = SH2 + 8 * hf + i
            p(f"v_lshlrev_b32 v{U_+2*i}, 16, v{r}"); p(f"v_and_b32 v{U_+2*i+1}, 0xffff0000, v{r}")
            p(f"v_lshlrev_b32 v{W_+2*i}, 16, v{r+16}"); p(f"v_and_b32 v{W_+2*i+1}, 0xffff0000, v{r+16}")
        for i in range(16): p(f"v_sub_f32 v{U_+i}, v{U_+i}, v{W_+i}")
        for i in range(8): p(f"v_cvt_pk_bf16_f32 v{RES+8*hf+i}, v{U_+2*i}, v{U_+2*i+1}")
    for i in range(16): p(f"v_xor_b32 v{RES+i}, s90, v{RES+i}")
    p("s_nop 1")
    for u in range(4):
        t = RES + 4 * u
        p(f"v_permlane16_swap_b32 v{t}, v{t+2}"); p(f"v_permlane16_swap_b32 v{t+1}, v{t+3}")
    p("s_branch kf_final")

    p.label("kf_typeO")
    p(f"s_mul_i32 s{S2_SOFF}, s{S_G}, {1792*2048}")
    srd(p, S2_SRDS, S_W2, S_W2 + 1, 7340032)
    voffT8_lane(p, V, 5, 2048, 0)
    p(f"s_and_b32 s86, s{S_WQ}, 1"); p("s_lshl_b32 s86, s86, 16"); p(f"s_lshr_b32 s87, s{S_WQ}, 1"); p(f"s_xor_b32 s87, s87, s{S_G}"); p("s_lshl_b32 s87, s87, 7"); p("s_add_u32 s86, s86, s87")
    p(f"s_lshl_b32 s87, s{S_TA}, 8"); p("s_add_u32 s86, s86, s87")
    p(f"v_add_u32 v{V_VD2}, s86, v5")
    p(f"v_xor_b32 v{V_VD2+1}, 64, v{V_VD2}"); p(f"v_add_u32 v{V_VD2+1}, 16384, v{V_VD2+1}")
    p(f"v_add_u32 v{V_VD2+2}, 32768, v{V_VD2}"); p(f"v_add_u32 v{V_VD2+3}, 32768, v{V_VD2+1}")
    if JIT: jit_addr(V_PF, 1, JA)
    p(f"s_mul_i32 s85, s{S_NT}, {CO}"); p(f"s_add_u32 s85, s85, {16*CY}")
    bias_dma(85)
    p(f"s_mov_b32 s{S_SRDS}, s{S_W1}"); p(f"s_mov_b32 s{S_SRDS+1}, s{S_W1+1}"); p(f"s_mov_b32 s{S_SRDS+2}, 7340032"); p(f"s_mov_b32 s{S_SRDS+3}, 0x20000")
    p(f"s_mov_b32 s{S_SOFF}, 0"); p(f"s_mul_i32 s{S_M0B}, s3, 3072")
    p("s_and_b32 s88, s3, 1"); p("s_lshl_b32 s88, s88, 2")
    for i in range(3):
        p(f"v_add_u32 v2, {64*i}, v1")
        p("v_mul_u32_u24 v3, 2731, v2"); p("v_lshrrev_b32 v3, 16, v3")
        p("v_mul_u32_u24 v4, 24, v3"); p("v_sub_u32 v2, v2, v4")
        p("v_bfe_u32 v4, v3, 1, 1"); p("v_lshlrev_b32 v4, 1, v4"); p("v_or_b32 v4, s88, v4")
        p("v_xor_b32 v2, v2, v4")
        p("v_mul_u32_u24 v3, 7168, v3"); p("v_lshl_add_u32 v3, v2, 4, v3")
        p("s_mul_i32 s86, s3, 57344"); p("s_lshl_b32 s87, s85, 1"); p("s_add_u32 s86, s86, s87")
        p(f"v_add_u32 v{V_VD+i}, s86, v3")
    for w in range(2): addrT_setup(p, V, V_AT + 4 * w, 384, w * WIN)
    phase1(p, "kfW", [('T', b & 3, 32 * 384, 4 * 384, (b >> 2) * 128) for b in range(12)], NSO, 24576, 3, 64 * 7168, 128, 224, 4, PFY != 1, pf_fn=mk_pfj1(1),
           st1=(1, 0, 0, 5)[tm], st2=(2, 0, 0, 0)[tm] if tm != 3 else None, hook=lambda: hookX("kfxo", 1 + 3 * (NSO - 1) + (0 if (PFY == 1 or JIT) else len(pf(-2)))))
    p("s_barrier")
    def hookO():
        epi_W(12, 85, 128)
        if tm == 1: stamp(p, 1)
        p("s_waitcnt vmcnt(0)"); p("s_barrier")
        if tm == 1: stamp(p, 2)
        setflags([lambda: (p(f"s_lshl_b32 s86, s{S_MT}, 8"), p(f"s_lshl_b32 s87, s{S_NT}, 3"), p("s_add_u32 s86, s86, s87"), p("s_add_u32 s86, s86, 8320"))])
        if PFS: pf_setup(10, 1)
        if JIT:
            jit_addr(10, 1, 1)
            for x_ in jit_srd(1): p(x_)
        p(f"s_mul_i32 s{S2_KP}, s{S_G}, {56*1024}")
        srd(p, S2_SRDP, S_WS, S_WS + 1, HF_SZ, HF_OFF)
        p(f"s_lshl_b32 s86, s{S_TB}, 3"); p(f"s_lshl_b32 s87, s{S_WQ}, 1"); p("s_add_u32 s86, s86, s87"); p("s_mul_i32 s86, s86, 114688")
        p(f"v_lshlrev_b32 v{V2_VP}, 4, v1"); p(f"v_add_u32 v{V2_VP}, s86, v{V2_VP}"); p(f"v_add_u32 v{V2_VP+1}, 114688, v{V2_VP}")
        p(f"s_lshl_b32 s86, s{S_G}, 14")
        for w in range(2):
            addrT_setup(p, V, V2_A + 4 * w, 128, w * WIN)
            for b in range(4): p(f"v_add_u32 v{V2_A+4*w+b}, s86, v{V2_A+4*w+b}")
        poll("kf_O2", lambda: (p("v_and_b32 v2, 31, v1"), p("v_lshlrev_b32 v2, 3, v2"), p(f"s_lshr_b32 s86, s{S_TB}, 1"), p("s_lshl_b32 s86, s86, 8"), p("s_add_u32 s86, s86, 8192"), p("v_add_u32 v2, s86, v2")))
    gemm_mainloop(p, "kfo", 28, NS2, NPS2, S_CNT, mfmas_o, reads_o, mk_dmas2(131072), privs2, read_frac=cfg.get("k2o_rf", 0.7),
                  hook=hookO, pf=mk_pfj2(1, 28) if JIT else pf2, st1=(3, 3, 0, None)[tm], st2=(4, 4, 0, None)[tm])
    p(f"s_lshl_b32 s86, s{S_G}, 4"); p(f"s_lshl_b32 s87, s{S_WQ}, 1"); p("s_add_u32 s86, s86, s87"); p("s_lshl_b32 s60, s86, 10")
    p("s_mov_b32 s61, 1024"); p("s_mov_b32 s62, 8192"); p("s_mov_b32 s63, 9216")
    p(f"s_lshl_b32 s86, s{S_WQ}, 16"); p(f"s_lshl_b32 s87, s{S_G}, 7"); p("s_add_u32 s56, s86, s87")
    p("s_mov_b32 s57, 32768"); p("s_mov_b32 s58, 64"); p("s_mov_b32 s59, 32832")
    p(f"s_mov_b32 s52, {TG_OFF}"); p(f"s_mov_b32 s53, {TY_OFF}")

    final_setup()
    srd(p, 12, S_B2, S_B2 + 1, 2048)
    p("v_lshrrev_b32 v2, 4, v1"); p("v_lshlrev_b32 v2, 3, v2"); p(f"s_lshl_b32 s86, s{S_TA}, 8"); p(f"s_lshl_b32 s87, s{S_G}, 7"); p("s_add_u32 s86, s86, s87"); p("v_add_u32 v2, s86, v2")
    for b in range(4): p(f"buffer_load_dwordx2 v[{8+2*b}:{9+2*b}], v2, s[12:15], 0 offen offset:{32*b}")
    p("v_lshlrev_b32 v2, 4, v1"); p("s_lshl_b32 s86, s3, 13"); p("v_add_u32 v3, s86, v2"); p("s_xor_b32 s86, s86, 32768"); p("v_add_u32 v2, s86, v2")
    p("s_barrier")
    for u in range(8): p(f"ds_write_b128 v3, v[{64+4*u}:{67+4*u}] offset:{1024*u}")
    decision_write(8)
    p("s_waitcnt vmcnt(0) lgkmcnt(0)"); p("s_barrier")
    for u in range(8): p(f"ds_read_b128 v[{64+4*u}:{67+4*u}], v2 offset:{1024*u}")
    p(f"s_mov_b32 s92, {hex(f2u(-math.log2(math.e)))}")
    decision_read()
    for i in range(32): p(f"v_add_f32 v{96+i}, v{32+i}, v{64+i}")
    B_ = 16
    for b in range(4):
        for h in range(2):
            p(f"v_lshlrev_b32 v{B_+4*b+2*h}, 16, v{8+2*b+h}"); p(f"v_and_b32 v{B_+4*b+2*h+1}, 0xffff0000, v{8+2*b+h}")
    RES = 32
    for mp in range(2):
        src = [96 + ((2 * mp + k_) * 2 + i) * 4 + r for i in range(2) for k_ in range(2) for r in range(4)]
        bs = [B_ + (2 * mp + k_) * 4 + r for i in range(2) for k_ in range(2) for r in range(4)]
        T = RES + 8 * mp; U_ = 64; W_ = 80
        for i in range(8): p(f"v_cvt_pk_bf16_f32 v{T+i}, v{src[2*i]}, v{src[2*i+1]}")
        for i in range(8):
            p(f"v_lshlrev_b32 v{U_+2*i}, 16, v{T+i}"); p(f"v_and_b32 v{U_+2*i+1}, 0xffff0000, v{T+i}")
        for i in range(16): p(f"v_add_f32 v{U_+i}, v{U_+i}, v{bs[i]}")
        for i in range(8): p(f"v_cvt_pk_bf16_f32 v{T+i}, v{U_+2*i}, v{U_+2*i+1}")
        for i in range(8):
            p(f"v_lshlrev_b32 v{U_+2*i}, 16, v{T+i}"); p(f"v_and_b32 v{U_+2*i+1}, 0xffff0000, v{T+i}")
        for i in range(16): p(f"v_mul_f32 v{W_+i}, s92, v{U_+i}")
        for i in range(16): p(f"v_exp_f32 v{W_+i}, v{W_+i}")
        for i in range(16): p(f"v_add_f32 v{W_+i}, 1.0, v{W_+i}")
        for i in range(16): p(f"v_rcp_f32 v{W_+i}, v{W_+i}")
        for i in range(16): p(f"v_mul_f32 v{W_+i}, v{W_+i}, v{U_+i}")
        for i in range(8): p(f"v_cvt_pk_bf16_f32 v{T+i}, v{W_+2*i}, v{W_+2*i+1}")
    p("s_nop 1")
    for u in range(4):
        t = RES + 4 * u
        p(f"v_permlane16_swap_b32 v{t}, v{t+2}"); p(f"v_permlane16_swap_b32 v{t+1}, v{t+3}")

    p.label("kf_final")
    if tm == 2: stamp(p, 1)
    p("s_cmp_lg_u32 s55, 0"); p("s_cbranch_scc1 kf_combine2")
    if cfg.get("peek2", 1):
        p("s_cmp_lg_u32 s3, 0"); p("s_cbranch_scc1 kf_f1")
        p(f"buffer_load_dwordx2 v[8:9], v205, s[{S_FSRD}:{S_FSRD+3}], 0 offen{SC}")
        p("s_waitcnt vmcnt(0)")
        p("v_cmp_eq_u64 vcc, s[78:79], v[8:9]")
        p("s_nop 1")
        p("v_cndmask_b32 v8, 0, 1, vcc")
        p("ds_write_b32 v206, v8 offset:8")
        p("s_waitcnt lgkmcnt(0)")
        p.label("kf_f1")
        p("s_barrier")
        p("ds_read_b32 v8, v206 offset:8")
        p("s_waitcnt lgkmcnt(0)")
        p("v_readfirstlane_b32 s86, v8")
        p("s_cmp_lg_u32 s86, 0"); p("s_cbranch_scc1 kf_combine1")
    for u in range(4): p(f"buffer_store_dwordx4 v[{32+4*u}:{35+4*u}], v203, s[8:11], {so_u[u]} offen{SC}")
    p("s_waitcnt vmcnt(0)")
    p("s_barrier")
    p("s_cmp_lg_u32 s3, 0"); p("s_cbranch_scc1 kf_f2")
    p("v_mov_b32 v8, s78"); p("v_mov_b32 v9, s79")
    p("s_mov_b64 exec, 1")
    p(f"buffer_store_dwordx2 v[8:9], v204, s[{S_FSRD}:{S_FSRD+3}], 0 offen{SC}")
    p("s_mov_b64 exec, -1")
    p("s_waitcnt vmcnt(0)")
    p(f"buffer_load_dwordx2 v[8:9], v205, s[{S_FSRD}:{S_FSRD+3}], 0 offen{SC}")
    p("s_waitcnt vmcnt(0)")
    p("v_cmp_eq_u64 vcc, s[78:79], v[8:9]")
    p("s_nop 1")
    p("v_cndmask_b32 v8, 0, 1, vcc")
    p("ds_write_b32 v206, v8 offset:4")
    p("s_waitcnt lgkmcnt(0)")
    p.label("kf_f2")
    p("s_barrier")
    p("ds_read_b32 v8, v206 offset:4")
    p("s_waitcnt lgkmcnt(0)")
    p("v_readfirstlane_b32 s86, v8")
    p("s_cmp_eq_u32 s86, 0"); p("s_cbranch_scc1 kf_done")
    p.label("kf_combine1")
    for u in range(4): p(f"buffer_load_dwordx4 v[{OR+4*u}:{OR+4*u+3}], v203, s[44:47], {so_u[u]} offen{SC}")
    p.label("kf_combine2")
    if tm == 2: stamp(p, 2)
    OUTSC = ("", " sc1", " nt")[cfg.get("outsc", 0)]
    U_ = 96; W_ = 128; X_ = 48
    pr = lambda r: f"v[{r}:{r+1}]"
    for i in range(16):
        p(f"v_lshlrev_b32 v{U_+2*i}, 16, v{32+i}"); p(f"v_and_b32 v{U_+2*i+1}, 0xffff0000, v{32+i}")
    p("s_waitcnt vmcnt(4)")
    for i in range(16):
        p(f"v_lshlrev_b32 v{X_+2*i}, 16, v{XR+i}"); p(f"v_and_b32 v{X_+2*i+1}, 0xffff0000, v{XR+i}")
    p("s_waitcnt vmcnt(0)")
    for i in range(16):
        p(f"v_lshlrev_b32 v{W_+2*i}, 16, v{OR+i}"); p(f"v_and_b32 v{W_+2*i+1}, 0xffff0000, v{OR+i}")
    for i in range(0, 32, 2): p(f"v_pk_mul_f32 {pr(U_+i)}, {pr(U_+i)}, {pr(W_+i)}")
    for i in range(16): p(f"v_cvt_pk_bf16_f32 v{32+i}, v{U_+2*i}, v{U_+2*i+1}")
    for i in range(16):
        p(f"v_lshlrev_b32 v{U_+2*i}, 16, v{32+i}"); p(f"v_and_b32 v{U_+2*i+1}, 0xffff0000, v{32+i}")
    for i in range(0, 32, 2): p(f"v_pk_add_f32 {pr(U_+i)}, {pr(U_+i)}, {pr(X_+i)}")
    for i in range(16): p(f"v_cvt_pk_bf16_f32 v{32+i}, v{U_+2*i}, v{U_+2*i+1}")
    for u in range(4): p(f"buffer_store_dwordx4 v[{32+4*u}:{35+4*u}], v202, s[64:67], {so_out[u]} offen{OUTSC}")
    p.label("kf_done")
    if CFG.get("ts"): p("s_waitcnt vmcnt(0)")
    if tm != 3: stamp(p, 5)
    if cfg.get("tsdbg"):
        lab = p.newlabel("tsd"); lab2 = p.newlabel("tsd")
        p("s_cmp_lg_u32 s3, 0"); p(f"s_cbranch_scc1 {lab}")
        srd(p, 92, S_DBG, S_DBG + 1, 256)
        p("s_mov_b64 exec, 1")
        p("v_mov_b32 v2, 0"); p(f"v_mov_b32 v3, s{tsreg(5)}"); p(f"s_not_b32 s96, s{tsreg(0)}"); p("v_mov_b32 v4, s96")
        p("buffer_atomic_umax v3, v2, s[92:95], 0 offen offset:56 sc1")
        p("buffer_atomic_umax v4, v2, s[92:95], 0 offen offset:60 sc1")
        p("s_and_b32 s96, s2, 0xf7"); p("s_cmp_lg_u32 s96, 0"); p(f"s_cbranch_scc1 {lab2}")
        p("s_mul_i32 s96, s75, 24"); p("v_mov_b32 v2, s96")
        for i in range(6):
            p(f"v_mov_b32 v3, s{tsreg(i)}"); p(f"buffer_store_dword v3, v2, s[92:95], 0 offen offset:{8+4*i}")
        p.label(lab2)
        p("s_mov_b64 exec, -1")
        p.label(lab)
    else:
        stamp_store(p, 1, 6)
    p.label("kf_end")
    p("s_endpgm")
    return name, 256, 102, 224

def generate(cfg):
    CFG.clear(); CFG.update(cfg); CFG["ts_noclk"] = 1; CFG["k0_fullflag"] = 1
    body = Prog()
    info = [("kf",) + gen_kf(body, cfg)]
    lds = {"k0": 0, "kf": 131072 + 8192}
    out = ["; FNet (dense DFT matmuls) + GELU FFN fused block; generated by dev/gen6.py"]
    for k in ("kf",):
        out.append(f"; @launch kernel={k}_kernel grid=(256,1,1) block=(512,1,1) lds={lds[k]}")
    out.append('.amdgcn_target "amdgcn-amd-amdhsa--gfx950"')
    out.append(".text")
    out += body.L
    out.append('.section .rodata,"a"')
    for k, name, nfv, nfs, acc in info:
        out += [".p2align 6", f".amdhsa_kernel {name}", f"  .amdhsa_next_free_vgpr {nfv}", f"  .amdhsa_next_free_sgpr {nfs}",
                f"  .amdhsa_accum_offset {acc}", "  .amdhsa_group_segment_fixed_size 0", "  .amdhsa_kernarg_size 104",
                "  .amdhsa_user_sgpr_count 2", "  .amdhsa_user_sgpr_kernarg_segment_ptr 1", "  .amdhsa_system_sgpr_workgroup_id_x 1",
                ".end_amdhsa_kernel"]
    return "\n".join(out) + "\n"

DEFAULT = dict(nsd=5, nsy=8, nso=5, k2_ns=4, k2_nps=4, pf1=2, pfk0=10, pfk1=16, pfk2=22, map1=1, nt1=1)
if __name__ == "__main__":
    cfg = dict(DEFAULT)
    fn = sys.argv[1] if len(sys.argv) > 1 else "full6.s"
    for a in sys.argv[2:]:
        k, v = a.split("=")
        cfg[k] = float(v) if "." in v else int(v)
    open(fn, "w").write(generate(cfg))
```

```python
import sys, math, struct

KN = "recurrent_scan__spectral_fnet__dense_activation_gelu__prompt"

import os
WSB = int(os.environ.get("WSB", "0")) << 20
XF_OFF, XF_SZ = WSB + 0, 4 << 20
ABF_OFF, ABF_SZ = WSB + (4 << 20), 8 << 20
HF_OFF, HF_SZ = WSB + (12 << 20), 128 * 112 * 1024
G_OFF, G_SZ = WSB + (28 << 20), 4 << 20
FL_OFF, FL_SZ = WSB + (32 << 20), 128 * 128

def f2u(x):
    return struct.unpack("<I", struct.pack("<f", x))[0]

class Prog:
    def __init__(self):
        self.L = []
        self.uid = 0
    def __call__(self, s):
        self.L.append("    " + s)
    def label(self, s):
        self.L.append(s + ":")
    def raw(self, s):
        self.L.append(s)
    def newlabel(self, p="L"):
        self.uid += 1
        return f"{p}_{self.uid}"

def vr(b, n=1):
    return f"v{b}" if n == 1 else f"v[{b}:{b+n-1}]"
def ar(b, n=1):
    return f"a{b}" if n == 1 else f"a[{b}:{b+n-1}]"
def sr(b, n=1):
    return f"s{b}" if n == 1 else f"s[{b}:{b+n-1}]"

CFG = {}
class Op:
    __slots__ = ("kind", "text", "tag")
    def __init__(self, kind, text=None, tag=None):
        self.kind, self.text, self.tag = kind, text, tag

def gemm_mainloop(p, name, nstages, NS, NPS, s_cnt,
                  mfmas,
                  reads,
                  dmas,
                  privs,
                  extra=None,
                  read_frac=0.7, pf=None, hook=None, dma_first=None, st1=1, st2=2, hook_after_priv=False, hook_vm=0, flag_at=None, poll_at=None):
    U = NS * NPS // math.gcd(NS * 2, NPS) if (2 * NS) % NPS else NS
    U = NS
    while (2 * U) % NPS: U += NS
    if nstages % U: U = nstages
    PD = NPS - 1
    nk = 2 * nstages
    segs = []
    K0_ = -max(2 * NS, NPS)
    for kappa in range(K0_, nk):
        ops = []
        s, k = divmod(kappa, 2)
        head = []
        if kappa >= 0:
            head.append(Op("wait_vm", tag=("P", kappa)))
        if k == 1 and kappa >= -1 and s + 1 < nstages:
            head.append(Op("wait_vm", tag=("D", s + 1)))
        if flag_at and kappa == flag_at[0]:
            head.append(Op("wait_vm", tag=("S", 0)))
        if kappa >= 0:
            head.append(Op("wait_lgkm0"))
        if poll_at and kappa == poll_at[0]:
            assert k == 1 and kappa + PD >= poll_at[2] and kappa - 1 + PD < poll_at[2]
            for x in poll_at[1]: head.append(Op("salu", x))
        if k == 1 and kappa >= -1 and s + 1 < nstages:
            head.append(Op("barrier"))
        if flag_at and kappa == flag_at[0]:
            assert k == 1
            for x in flag_at[1]: head.append(Op("salu", x))
            head.append(Op("vm", flag_at[2], ("G", 0)))
            for x in flag_at[3]: head.append(Op("salu", x))
        rd = [Op("lds", t) for t in reads(kappa + 1)] if 0 <= kappa + 1 < nk else []
        vm = []
        ds = s + NS if k == 1 else s - 1 + NS
        if 0 <= ds < nstages:
            d = dmas(ds)
            h = (len(d) + 1) // 2
            part = d[:h] if k == 1 else d[h:]
            for pre, t in part:
                vm.append(([Op("salu", x) for x in pre], Op("vm", t, ("D", ds))))
        pk = kappa + PD
        pv = []
        if 0 <= pk < nk:
            for pre, t in privs(pk):
                pv.append(([Op("salu", x) for x in pre], Op("vm", t, ("P", pk))))
        seq = []
        a, b = list(pv), list(vm)
        while a or b:
            if a: seq.append(a.pop(0))
            if b: seq.append(b.pop(0))
        if pf and kappa >= -2 and kappa != -1:
            for pre, t in pf(kappa):
                seq.append(([Op("salu", x) for x in pre], Op("vm", t, ("F", kappa))))
        ex = [Op("valu", t) for t in extra(kappa)] if (extra and kappa >= 0) else []
        mf = [Op("mfma", t) for t in mfmas(kappa)] if kappa >= 0 else []
        ops += head
        if not mf:
            for pre, v in seq:
                ops += pre
                if pre: ops.append(Op("salu", "s_nop 0"))
                ops.append(v)
            ops += rd
        else:
            n = len(mf)
            gaps = [[] for _ in range(n)]
            nr = len(rd)
            span = max(1, int(n * read_frac))
            for i, r in enumerate(rd):
                gaps[min(n - 1, (i * span) // max(1, nr))].append(r)
            nv = len(seq); lastg = -1
            for i, (pre, v) in enumerate(seq):
                g = 1 + ((2 * i + 1) * (n - 1)) // (2 * nv) if nv else 0
                g = min(n - 1, g)
                assert g != lastg; lastg = g
                gaps[g - 1] += pre
                gaps[g].append(v)
            for i, e in enumerate(ex):
                gaps[min(n - 1, (i * n) // len(ex))].append(e)
            for i in range(n):
                ops.append(mf[i])
                ops += gaps[i]
        if CFG.get("abl_nomfma"): ops = [o for o in ops if o.kind != "mfma"]
        if CFG.get("abl_nolds"): ops = [o for o in ops if o.kind != "lds"]
        if CFG.get("abl_nodma"): ops = [o for o in ops if not (o.kind in ("vm", "wait_vm") and o.tag[0] == "D")]
        if CFG.get("abl_nopriv"): ops = [o for o in ops if not (o.kind in ("vm", "wait_vm") and o.tag[0] == "P")]
        if CFG.get("abl_nobar"): ops = [o for o in ops if o.kind != "barrier"]
        segs.append(ops)
    if hook is not None:
        npro = -K0_ - 1
        dm, pv_ = [], []
        for ops in segs[:npro]:
            cur = []
            for o in ops:
                cur.append(o)
                if o.kind == "vm":
                    (dm if o.tag[0] in "DF" else pv_).extend(cur); cur = []
            assert not cur
        if CFG.get("late2"): segs[:npro] = [[Op("hook")] + dm + pv_] + [[] for _ in range(npro - 1)]
        else: segs[:npro] = [(dm + pv_ + [Op("hook")]) if hook_after_priv else (dm + [Op("hook")] + pv_)] + [[] for _ in range(npro - 1)]
    vmq = []
    done_upto = 0
    lg_out = 0
    texts = []
    for ops in segs:
        out = []
        pend_vm = None; pend_lg = False
        def flush():
            nonlocal pend_vm, pend_lg
            if pend_vm is not None or pend_lg:
                t = "s_waitcnt"
                if pend_vm is not None: t += f" vmcnt({pend_vm})"
                if pend_lg: t += " lgkmcnt(0)"
                out.append(t)
            pend_vm = None; pend_lg = False
        for o in ops:
            if o.kind == "wait_vm":
                idx = max(i for i, t in enumerate(vmq) if t == o.tag) + 1
                if idx > done_upto:
                    done_upto = idx
                    N = len(vmq) - idx
                    assert N <= 63, N
                    pend_vm = N if pend_vm is None else min(pend_vm, N)
            elif o.kind == "wait_lgkm0":
                if lg_out:
                    pend_lg = True; lg_out = 0
            else:
                flush()
                if o.kind == "vm": vmq.append(o.tag)
                if o.kind == "hook": vmq.extend([("S", 0)] * hook_vm)
                if o.kind == "lds": lg_out += 1
                out.append("s_barrier" if o.kind == "barrier" else ("@HOOK" if o.kind == "hook" else o.text))
        flush()
        texts.append(out)
    pro = texts[:-K0_]
    if hook is None: stamp(p, st1)
    for t in pro:
        for x in t:
            if x == "@HOOK":
                hook(); stamp(p, st1)
            else: p(x)
    body = texts[-K0_:]
    its = ["\n".join("\n".join(t) for t in body[2 * U * i:2 * U * (i + 1)]) for i in range(nstages // U)]
    i = 0
    while i < len(its):
        j = i
        while j + 1 < len(its) and its[j + 1] == its[i]: j += 1
        cnt = j - i + 1
        if cnt >= 2:
            lab = p.newlabel(name + "_loop")
            p(f"s_mov_b32 {sr(s_cnt)}, {cnt}")
            p.raw(".p2align 6")
            p.label(lab)
            for x in its[i].split("\n"): p(x)
            p(f"s_sub_u32 {sr(s_cnt)}, {sr(s_cnt)}, 1")
            p(f"s_cmp_lg_u32 {sr(s_cnt)}, 0")
            p(f"s_cbranch_scc1 {lab}")
        else:
            for x in its[i].split("\n"): p(x)
        i = j + 1
    stamp(p, st2)

TS_OFF = 40 << 20
def tsreg(i):
    return (98, 99, 100, 101, 42, 43)[i]
def stamp(p, idx):
    if not CFG.get("ts") or idx is None: return
    p(f"s_memrealtime s[{96}:{97}]")
    p("s_waitcnt lgkmcnt(0)")
    p(f"v_writelane_b32 v255, s96, {idx}") if False else None
    p(f"s_mov_b32 s{tsreg(idx)}, s96")
    if idx in (1, 2) and CFG.get("ts_cbase") and not CFG.get("ts_noclk"):
        p("s_memtime s[96:97]"); p("s_waitcnt lgkmcnt(0)"); p(f"s_mov_b32 s{CFG['ts_cbase']+idx-1}, s96")
def stamp_store(p, kidx, n):
    if not CFG.get("ts"): return
    lab = p.newlabel("ts")
    p("s_cmp_lg_u32 s3, 0"); p(f"s_cbranch_scc1 {lab}")
    srd(p, 92, S_WS, S_WS + 1, 1 << 20, TS_OFF)
    p(f"s_lshl_b32 s96, s2, 5"); p(f"s_add_u32 s96, s96, {kidx * 8192}")
    p("v_mov_b32 v2, s96")
    p("s_mov_b64 exec, 1")
    for i in range(n):
        p(f"v_mov_b32 v3, s{tsreg(i)}")
        p(f"buffer_store_dword v3, v2, s[92:95], 0 offen offset:{4*i}")
    if CFG.get("ts_cbase") and not CFG.get("ts_noclk"):
        for i in range(2):
            p(f"v_mov_b32 v3, s{CFG['ts_cbase']+i}")
            p(f"buffer_store_dword v3, v2, s[92:95], 0 offen offset:{16+4*i}")
    p("s_mov_b64 exec, -1")
    p.label(lab)

def srd(p, d, lo, hi, size, add=0):
    if add:
        p(f"s_add_u32 {sr(d)}, {sr(lo)}, {add}")
        p(f"s_addc_u32 {sr(d+1)}, {sr(hi)}, 0")
    else:
        p(f"s_mov_b32 {sr(d)}, {sr(lo)}")
        p(f"s_mov_b32 {sr(d+1)}, {sr(hi)}")
    p(f"s_mov_b32 {sr(d+2)}, {size}")
    p(f"s_mov_b32 {sr(d+3)}, 0x20000")

def kernel_head(p, name):
    p.raw(f".globl {name}")
    p.raw(".p2align 8")
    p.raw(f".type {name},@function")
    p.label(name)

def load_ptrs(p):
    p("s_load_dwordx16 s[16:31], s[0:1], 0")
    p("s_load_dwordx8 s[32:39], s[0:1], 64")
    p("s_load_dwordx2 s[40:41], s[0:1], 96")
S_X, S_CR, S_CI, S_DR, S_DI, S_BX, S_W1, S_B1, S_W2, S_B2, S_OUT, S_DBG, S_WS = 16, 18, 20, 22, 24, 26, 28, 30, 32, 34, 36, 38, 40

def gen_k0(p):
    name = "k0_kernel"
    kernel_head(p, name)
    p("s_cmp_ge_u32 s2, 256"); p("s_cbranch_scc1 k0_end")
    load_ptrs(p)
    p("v_lshrrev_b32 v1, 6, v0")
    p("v_and_b32 v2, 63, v0")
    p("s_lshl_b32 s3, s2, 3")
    p("v_add_u32 v1, s3, v1")
    p("v_lshlrev_b32 v3, 11, v1")
    p("v_lshl_add_u32 v3, v2, 4, v3")
    p("s_waitcnt lgkmcnt(0)")
    stamp(p, 0); stamp(p, 1)
    srd(p, 4, S_X, S_X + 1, 4194304)
    srd(p, 8, S_WS, S_WS + 1, XF_SZ, XF_OFF)
    srd(p, 12, S_WS, S_WS + 1, FL_SZ, FL_OFF)
    p("buffer_load_dwordx4 v[8:11], v3, s[4:7], 0 offen")
    p("buffer_load_dwordx4 v[12:15], v3, s[4:7], 0 offen offset:1024")
    if CFG.get("pf0", 1) == 2:
        srd(p, 48, S_DR, S_DR + 1, 2097152); srd(p, 52, S_DI, S_DI + 1, 2097152); srd(p, 56, S_W1, S_W1 + 1, 7340032)
        p("v_lshlrev_b32 v60, 10, v1"); p("v_lshl_add_u32 v60, v2, 7, v60")
        p("v_mul_u32_u24 v61, 3584, v1"); p("v_lshl_add_u32 v61, v2, 7, v61")
        p("s_mov_b64 exec, 0xff")
        p("buffer_load_dword v64, v60, s[48:51], 0 offen")
        p("buffer_load_dword v65, v60, s[52:55], 0 offen")
        p("s_mov_b64 exec, 0xfffffff")
        p("buffer_load_dword v66, v61, s[56:59], 0 offen")
        p("s_mov_b64 exec, -1")
    elif CFG.get("pf0", 1):
        srd(p, 48, S_DR, S_DR + 1, 2097152); srd(p, 52, S_DI, S_DI + 1, 2097152); srd(p, 56, S_W1, S_W1 + 1, 7340032)
        p("v_lshlrev_b32 v60, 10, v1"); p("v_lshl_add_u32 v60, v2, 4, v60")
        p("v_mul_u32_u24 v61, 3584, v1"); p("v_lshl_add_u32 v61, v2, 4, v61")
        p("buffer_load_dwordx4 v[64:67], v60, s[48:51], 0 offen")
        p("buffer_load_dwordx4 v[68:71], v60, s[52:55], 0 offen")
        for i in range(3): p(f"buffer_load_dwordx4 v[{72+4*i}:{75+4*i}], v61, s[56:59], 0 offen offset:{1024*i}")
        p("v_cmp_gt_u32 vcc, 32, v2"); p("s_and_saveexec_b64 s[44:45], vcc")
        p("buffer_load_dwordx4 v[84:87], v61, s[56:59], 0 offen offset:3072")
        p("s_mov_b64 exec, s[44:45]")
    p("v_mov_b32 v40, 0")
    p("s_lshl_b32 s3, s2, 7")
    if CFG.get("k0_fullflag"):
        p("v_lshl_add_u32 v41, v0, 2, s3")
        p("v_cmp_gt_u32 vcc, 32, v0")
    else:
        p("v_mov_b32 v41, s3")
        p("v_cmp_eq_u32 vcc, 0, v0")
    p("s_and_saveexec_b64 s[44:45], vcc")
    p("s_cbranch_execz k0_nofl")
    p("buffer_store_dword v40, v41, s[12:15], 0 offen")
    p.label("k0_nofl")
    p("s_mov_b64 exec, s[44:45]")
    p("v_lshrrev_b32 v4, 4, v1"); p("v_lshlrev_b32 v4, 15, v4")
    p("v_lshrrev_b32 v5, 2, v2"); p("v_lshl_add_u32 v4, v5, 10, v4")
    p("v_and_b32 v5, 3, v2"); p("v_lshl_add_u32 v4, v5, 8, v4")
    p("v_and_b32 v5, 15, v1"); p("v_lshl_add_u32 v4, v5, 4, v4")
    npf = {0: 0, 1: 6, 2: 3}[CFG.get("pf0", 1)]
    p(f"s_waitcnt vmcnt({npf+1})")
    for i in range(4):
        p(f"v_lshlrev_b32 v{16+2*i}, 16, v{8+i}"); p(f"v_and_b32 v{17+2*i}, 0xffff0000, v{8+i}")
    p(f"s_waitcnt vmcnt({npf})")
    for i in range(4, 8):
        p(f"v_lshlrev_b32 v{16+2*i}, 16, v{8+i}"); p(f"v_and_b32 v{17+2*i}, 0xffff0000, v{8+i}")
    def wave_sum(src, tmp, sbase):
        for ctl in ("quad_perm:[1,0,3,2]", "quad_perm:[2,3,0,1]", "row_half_mirror", "row_mirror"):
            p("s_nop 1")
            p(f"v_add_f32_dpp v{tmp}, v{src}, v{src} {ctl} row_mask:0xf bank_mask:0xf")
            p(f"v_mov_b32 v{src}, v{tmp}")
        p("s_nop 0")
        for i in range(4): p(f"v_readlane_b32 s{sbase+i}, v{src}, {16*i}")
        p("s_nop 1")
        p(f"v_mov_b32 v{src}, s{sbase}")
        for i in range(1, 4): p(f"v_add_f32 v{src}, s{sbase+i}, v{src}")
    p("v_add_f32 v32, v16, v17")
    for i in range(1, 8): p(f"v_add_f32 v{32+i}, v{16+2*i}, v{17+2*i}")
    for st in (4, 2, 1):
        for i in range(st): p(f"v_add_f32 v{32+i}, v{32+i}, v{32+i+st}")
    wave_sum(32, 33, 46)
    p(f"v_mul_f32 v32, {hex(f2u(1.0/1024))}, v32")
    for i in range(16):
        p(f"v_sub_f32 v{44+i}, v{16+i}, v32")
    for i in range(8):
        p(f"v_mul_f32 v{34+i}, v{44+2*i}, v{44+2*i}")
        p(f"v_fmac_f32 v{34+i}, v{45+2*i}, v{45+2*i}")
    for st in (4, 2, 1):
        for i in range(st): p(f"v_add_f32 v{34+i}, v{34+i}, v{34+i+st}")
    wave_sum(34, 35, 46)
    p(f"v_mul_f32 v34, {hex(f2u(1.0/1024))}, v34")
    p("v_cvt_pk_bf16_f32 v35, v32, v34")
    p("v_lshlrev_b32 v32, 16, v35")
    p("v_and_b32 v34, 0xffff0000, v35")
    p(f"v_add_f32 v34, {hex(f2u(1e-5))}, v34")
    p("v_cvt_pk_bf16_f32 v34, v34, v34")
    p("v_lshlrev_b32 v34, 16, v34")
    p("v_sqrt_f32 v34, v34")
    p("s_nop 0")
    p("v_cvt_pk_bf16_f32 v34, v34, v34")
    p("v_lshlrev_b32 v34, 16, v34")
    p("v_rcp_f32 v35, v34")
    for i in range(16): p(f"v_sub_f32 v{16+i}, v{16+i}, v32")
    for i in range(8): p(f"v_cvt_pk_bf16_f32 v{8+i}, v{16+2*i}, v{17+2*i}")
    for i in range(8):
        p(f"v_lshlrev_b32 v{16+2*i}, 16, v{8+i}"); p(f"v_and_b32 v{17+2*i}, 0xffff0000, v{8+i}")
    for i in range(16): p(f"v_mul_f32 v{44+i}, v{16+i}, v35")
    for i in range(16): p(f"v_fma_f32 v{16+i}, -v{44+i}, v34, v{16+i}")
    for i in range(16): p(f"v_fmac_f32 v{44+i}, v{16+i}, v35")
    for i in range(8): p(f"v_cvt_pk_bf16_f32 v{8+i}, v{44+2*i}, v{45+2*i}")
    p("v_add_u32 v5, 0x4000, v4")
    stamp(p, 2)
    p("buffer_store_dwordx4 v[8:11], v4, s[8:11], 0 offen")
    p("buffer_store_dwordx4 v[12:15], v5, s[8:11], 0 offen")
    if CFG.get("ts"):
        p("s_waitcnt vmcnt(0)"); p("s_barrier")
        p("v_lshrrev_b32 v1, 6, v0"); p("s_nop 0"); p("v_readfirstlane_b32 s3, v1")
    stamp(p, 3); stamp_store(p, 0, 4)
    p.label("k0_end")
    p("s_endpgm")
    return name, 88, 102, 88

def lane_consts(p, V):
    p(f"v_and_b32 v{V['lane']}, 63, v0")
    p(f"v_lshrrev_b32 v{V['t0']}, 6, v0")
    p("s_nop 0")
    p(f"v_readfirstlane_b32 s3, v{V['t0']}")

def addrK_setup(p, V, dst0, dst1, base):
    l, t0, t1 = V['lane'], V['t0'], V['t1']
    p(f"v_and_b32 v{t0}, 15, v{l}")
    p(f"v_lshrrev_b32 v{t1}, 1, v{t0}")
    p(f"v_lshrrev_b32 v{dst0}, 4, v{l}")
    p(f"v_xor_b32 v{t1}, v{t1}, v{dst0}")
    p(f"v_lshlrev_b32 v{t1}, 4, v{t1}")
    p(f"v_lshl_add_u32 v{dst0}, v{t0}, 7, v{t1}")
    if base: p(f"v_add_u32 v{dst0}, {base}, v{dst0}")
    p(f"v_xor_b32 v{dst1}, 64, v{dst0}")

def addrT_setup(p, V, dst4, kpitch, base):
    l, t0, t1, t2 = V['lane'], V['t0'], V['t1'], V['t2']
    p(f"v_lshrrev_b32 v{t0}, 4, v{l}")
    p(f"v_bfe_u32 v{t1}, v{l}, 2, 2")
    p(f"v_lshl_add_u32 v{t2}, v{t0}, 3, v{t1}")
    p(f"v_mul_u32_u24 v{t2}, {kpitch}, v{t2}")
    p(f"v_and_b32 v{t0}, 1, v{t0}"); p(f"v_lshlrev_b32 v{t0}, 1, v{t0}")
    p(f"v_lshrrev_b32 v{t1}, 1, v{t1}"); p(f"v_or_b32 v{t0}, v{t0}, v{t1}")
    p(f"v_lshlrev_b32 v{t0}, 5, v{t0}")
    p(f"v_bfe_u32 v{t1}, v{l}, 1, 1"); p(f"v_lshlrev_b32 v{t1}, 4, v{t1}")
    p(f"v_or_b32 v{t0}, v{t0}, v{t1}")
    p(f"v_and_b32 v{t1}, 1, v{l}"); p(f"v_lshl_add_u32 v{t2}, v{t1}, 3, v{t2}")
    if base: p(f"v_add_u32 v{t2}, {base}, v{t2}")
    for b in range(4):
        p(f"v_xor_b32 v{t1}, {32*b}, v{t0}")
        p(f"v_add_u32 v{dst4+b}, v{t1}, v{t2}")

def voffK_lane(p, V, dst, pitch, par):
    l, t0, t1 = V['lane'], V['t0'], V['t1']
    p(f"v_lshrrev_b32 v{t0}, 4, v{l}")
    if par: p(f"v_or_b32 v{t0}, 4, v{t0}")
    p(f"v_and_b32 v{t1}, 7, v{l}")
    p(f"v_xor_b32 v{t0}, v{t0}, v{t1}")
    p(f"v_lshlrev_b32 v{t0}, 4, v{t0}")
    p(f"v_lshrrev_b32 v{t1}, 3, v{l}")
    p(f"v_mul_u32_u24 v{t1}, {pitch}, v{t1}")
    p(f"v_add_u32 v{dst}, v{t0}, v{t1}")

def voffT8_lane(p, V, dst, pitch, par):
    l, t0, t1 = V['lane'], V['t0'], V['t1']
    p(f"v_bfe_u32 v{t0}, v{l}, 4, 1")
    p(f"v_lshlrev_b32 v{t0}, 1, v{t0}")
    if par: p(f"v_or_b32 v{t0}, 4, v{t0}")
    p(f"v_and_b32 v{t1}, 7, v{l}")
    p(f"v_xor_b32 v{t0}, v{t0}, v{t1}")
    p(f"v_lshlrev_b32 v{t0}, 4, v{t0}")
    p(f"v_lshrrev_b32 v{t1}, 3, v{l}")
    p(f"v_mul_u32_u24 v{t1}, {pitch}, v{t1}")
    p(f"v_add_u32 v{dst}, v{t0}, v{t1}")

MF = "v_mfma_f32_16x16x32_bf16"

C1 = -2.0 * math.sqrt(2.0 / math.pi) * math.log2(math.e)
C2 = C1 * 0.044715

def gen_k1(p, cfg):
    name = "k1_kernel"
    NS, NPS = cfg["k1_ns"], cfg["k1_nps"]
    STG = 24576
    WIN = 49152
    nwin = (NS * STG + WIN - 1) // WIN
    kernel_head(p, name)
    p("s_cmp_ge_u32 s2, 256"); p("s_cbranch_scc1 k1_end")
    load_ptrs(p)
    V = dict(lane=1, t0=2, t1=3, t2=4)
    ACC = 64
    V_VP = 8
    V_VD = 12
    V_AK = 20
    V_AT = 24
    V_BIAS = 32
    A_P = 0
    A_S = NPS * 16
    S_SRDP = 4
    S_SRDS = 44
    S_SOFF = 68
    S_DLT = 74
    S_KP = 80
    S_M0B = 81
    S_CNT = 82
    S_MT, S_NT, S_N0 = 83, 84, 85
    S_T = 86
    lane_consts(p, V)
    p("s_and_b32 s86, s2, 7"); p("s_lshr_b32 s87, s2, 3")
    p("s_and_b32 s88, s86, 1"); p("s_lshl_b32 s88, s88, 2"); p("s_and_b32 s89, s87, 3"); p(f"s_add_u32 s{S_MT}, s88, s89")
    p("s_lshr_b32 s88, s86, 1"); p("s_lshr_b32 s89, s87, 2"); p("s_lshl_b32 s89, s89, 2"); p(f"s_add_u32 s{S_NT}, s88, s89")
    p(f"s_mul_i32 s{S_N0}, s{S_NT}, 176")
    p(f"s_mul_i32 s{S_M0B}, s3, 6144")
    p(f"s_mov_b32 s{S_KP}, 0")
    p(f"s_lshl_b32 s86, s{S_MT}, 4"); p("s_lshl_b32 s87, s3, 2"); p("s_add_u32 s86, s86, s87"); p("s_lshl_b32 s86, s86, 15")
    p(f"v_lshlrev_b32 v{V_VP}, 4, v1"); p(f"v_add_u32 v{V_VP}, s86, v{V_VP}")
    for i in range(1, 4): p(f"v_add_u32 v{V_VP+i}, {32768*i}, v{V_VP}")
    p("s_lshl_b32 s86, s2, 2"); p("s_add_u32 s86, s86, s3"); p("s_lshl_b32 s87, s86, 13"); p("s_mul_i32 s86, s86, 7168")
    p("v_lshlrev_b32 v55, 4, v1"); p("v_add_u32 v54, s87, v55"); p("v_add_u32 v55, s86, v55"); p("s_mov_b32 s92, 4096")
    p("s_waitcnt lgkmcnt(0)")
    stamp(p, 0)
    srd(p, S_SRDP, S_WS, S_WS + 1, XF_SZ, XF_OFF)
    p(f"s_cmp_lt_u32 s{S_NT}, 11"); p("s_cbranch_scc1 k1_typeD")
    p(f"s_cmp_eq_u32 s{S_NT}, 11"); p("s_cbranch_scc1 k1_typeM")
    p("s_branch k1_typeW")

    def slot_D(i, pv):
        d = S_SRDS + 4 * i
        p(f"s_lshl_b32 s87, s86, 3"); p(f"s_add_u32 s87, s87, s{S_N0}")
        p("s_cmp_lt_u32 s87, 1024")
        p(f"s_cselect_b32 s{d}, s{S_DR}, s{S_DI}"); p(f"s_cselect_b32 s{d+1}, s{S_DR+1}, s{S_DI+1}")
        p(f"s_mov_b32 s{d+2}, 2097152"); p(f"s_mov_b32 s{d+3}, 0x20000")
        p("s_and_b32 s87, s87, 1023"); p("s_lshl_b32 s87, s87, 11")
        p(f"v_add_u32 v{V_VD+i}, s87, v{pv[i&1]}")
        p(f"s_mov_b32 s{S_SOFF+i}, 0"); p(f"s_mov_b32 s{S_DLT+i}, 128")
    def slot_dummy(i):
        d = S_SRDS + 4 * i
        p(f"s_mov_b32 s{d}, s{S_W1}"); p(f"s_mov_b32 s{d+1}, s{S_W1+1}")
        p(f"s_mov_b32 s{d+2}, 0"); p(f"s_mov_b32 s{d+3}, 0x20000")
        p(f"v_mov_b32 v{V_VD+i}, 0")
        p(f"s_mov_b32 s{S_SOFF+i}, 0"); p(f"s_mov_b32 s{S_DLT+i}, 0")

    def dmas(stage):
        out = []
        for i in range(6):
            pre = [f"s_add_u32 m0, s{S_M0B}, {(stage % NS) * STG + 1024 * i}"]
            if stage > 0: pre.insert(0, f"s_add_u32 s{S_SOFF+i}, s{S_SOFF+i}, s{S_DLT+i}")
            d = S_SRDS + 4 * i
            out.append((pre, f"buffer_load_dwordx4 v{V_VD+i}, s[{d}:{d+3}], s{S_SOFF+i} offen lds"))
        return out
    def privs(kappa):
        out = []
        for i in range(4):
            pre = []
            if i == 0 and kappa % 4 == 0 and kappa > 0: pre = [f"s_add_u32 s{S_KP}, s{S_KP}, 4096"]
            a = A_P + (kappa % NPS) * 16 + 4 * i
            out.append((pre, f"buffer_load_dwordx4 {ar(a,4)}, v{V_VP+i}, s[{S_SRDP}:{S_SRDP+3}], s{S_KP} offen offset:{(kappa%4)*1024}"))
        return out
    def pf(kappa):
        if not cfg.get("pf1", 1): return []
        j = kappa - cfg.get("pf1_start", 0)
        if j < 0 or j >= 23: return []
        m, jj = (0, j) if j < 8 else ((1, j - 8) if j < 16 else (2, j - 16))
        pre = []
        if jj == 0:
            b = (S_CR, S_CI, S_W2)[m]
            pre = [f"s_mov_b32 s8, s{b}", f"s_mov_b32 s9, s{b+1}", f"s_mov_b32 s10, {(8388608, 8388608, 7340032)[m]}", "s_mov_b32 s11, 0x20000"]
        return [(pre, f"buffer_load_dwordx4 v[56:59], v{54 if m < 2 else 55}, s[8:11], {'s92' if jj >= 4 else '0'} offen offset:{(jj%4)*1024}")]
    def make(blocks):
        def reads(kappa):
            s, kk = divmod(kappa, 2)
            ring = (s % NS) * STG
            out = []
            for b, bl in enumerate(blocks):
                a = A_S + kk * 44 + 4 * b
                if bl[0] == 'K':
                    off = ring + bl[1]; w = off // WIN
                    out.append(f"ds_read_b128 {ar(a,4)}, v{V_AK+2*w+kk} offset:{off - w*WIN}")
                else:
                    for hh in range(2):
                        off = ring + bl[4] + kk * bl[2] + hh * bl[3]; w = off // WIN
                        out.append(f"ds_read_b64_tr_b16 {ar(a+2*hh,2)}, v{V_AT+4*w+bl[1]} offset:{off - w*WIN}")
            return out
        def mfmas(kappa):
            kk = kappa % 2
            out = []
            for b, bl in enumerate(blocks):
                for i in range(4):
                    acc = ACC + (b * 4 + i) * 4
                    S = ar(A_S + kk * 44 + 4 * b, 4); P = ar(A_P + (kappa % NPS) * 16 + 4 * i, 4)
                    c = vr(acc, 4) if kappa > 0 else "0"
                    if bl[0] == 'K': out.append(f"{MF} {vr(acc,4)}, {P}, {S}, {c}")
                    else: out.append(f"{MF} {vr(acc,4)}, {S}, {P}, {c}")
            return out
        return reads, mfmas

    def epi_D(blocks_idx):
        srd(p, 8, S_WS, S_WS + 1, ABF_SZ, ABF_OFF)
        p("v_lshrrev_b32 v2, 4, v1"); p("v_and_b32 v3, 1, v2"); p("v_lshlrev_b32 v3, 1, v3"); p("v_lshrrev_b32 v2, 1, v2")
        p("v_or_b32 v2, v2, v3"); p("v_lshlrev_b32 v2, 8, v2"); p("v_and_b32 v3, 15, v1"); p("v_lshl_add_u32 v2, v3, 4, v2")
        p(f"s_lshl_b32 s86, s{S_MT}, 3"); p("s_lshl_b32 s87, s3, 1"); p("s_add_u32 s86, s86, s87"); p("s_lshl_b32 s86, s86, 10")
        p("v_add_u32 v2, s86, v2")
        for b in blocks_idx:
            p(f"s_add_u32 s87, s{S_N0}, {16*b}")
            p("s_lshr_b32 s88, s87, 10"); p("s_lshl_b32 s88, s88, 16")
            p("s_and_b32 s87, s87, 1023"); p("s_lshl_b32 s87, s87, 13")
            p("s_add_u32 s87, s87, s88")
            for m in range(2):
                a0 = ACC + (b * 4 + 2 * m) * 4; a1 = a0 + 4
                t = 8 + 4 * m
                p(f"v_cvt_pk_bf16_f32 v{t}, v{a0}, v{a0+1}"); p(f"v_cvt_pk_bf16_f32 v{t+1}, v{a0+2}, v{a0+3}")
                p(f"v_cvt_pk_bf16_f32 v{t+2}, v{a1}, v{a1+1}"); p(f"v_cvt_pk_bf16_f32 v{t+3}, v{a1+2}, v{a1+3}")
            p("s_nop 1")
            for m in range(2):
                t = 8 + 4 * m
                p(f"v_permlane16_swap_b32 v{t}, v{t+2}"); p(f"v_permlane16_swap_b32 v{t+1}, v{t+3}")
            for m in range(2):
                t = 8 + 4 * m
                p(f"buffer_store_dwordx4 v[{t}:{t+3}], v2, s[8:11], s87 offen offset:{1024*m}")
            p("s_nop 1")

    def bias_load(blocks_idx, f0_sgpr):
        srd(p, 12, S_B1, S_B1 + 1, 7168)
        p("v_lshrrev_b32 v2, 4, v1"); p("v_lshlrev_b32 v2, 3, v2")
        p(f"s_lshl_b32 s86, s{f0_sgpr}, 1"); p("v_add_u32 v2, s86, v2")
        for n, b in enumerate(blocks_idx):
            p(f"buffer_load_dwordx2 v[{V_BIAS+2*n}:{V_BIAS+2*n+1}], v2, s[12:15], 0 offen offset:{32*n}")

    def gelu8(src, bias, T):
        n = len(src)
        U_ = T + 4; W_ = T + 4 + n; Pk = T
        for i in range(n // 2): p(f"v_cvt_pk_bf16_f32 v{Pk+i}, v{src[2*i]}, v{src[2*i+1]}")
        for i in range(n // 2):
            p(f"v_lshlrev_b32 v{U_+2*i}, 16, v{Pk+i}"); p(f"v_and_b32 v{U_+2*i+1}, 0xffff0000, v{Pk+i}")
        for i in range(n): p(f"v_add_f32 v{U_+i}, v{U_+i}, v{bias[i]}")
        for i in range(n // 2): p(f"v_cvt_pk_bf16_f32 v{Pk+i}, v{U_+2*i}, v{U_+2*i+1}")
        for i in range(n // 2):
            p(f"v_lshlrev_b32 v{U_+2*i}, 16, v{Pk+i}"); p(f"v_and_b32 v{U_+2*i+1}, 0xffff0000, v{Pk+i}")
        for i in range(n): p(f"v_mul_f32 v{W_+i}, v{U_+i}, v{U_+i}")
        for i in range(n): p(f"v_fma_f32 v{W_+i}, v{W_+i}, s90, v5")
        for i in range(n): p(f"v_mul_f32 v{W_+i}, v{W_+i}, v{U_+i}")
        for i in range(n): p(f"v_exp_f32 v{W_+i}, v{W_+i}")
        for i in range(n): p(f"v_add_f32 v{W_+i}, 1.0, v{W_+i}")
        for i in range(n): p(f"v_rcp_f32 v{W_+i}, v{W_+i}")
        for i in range(n): p(f"v_mul_f32 v{W_+i}, v{W_+i}, v{U_+i}")
        for i in range(n // 2): p(f"v_cvt_pk_bf16_f32 v{Pk+i}, v{W_+2*i}, v{W_+2*i+1}")

    def epi_W(blocks_idx, f0_sgpr):
        srd(p, 8, S_WS, S_WS + 1, HF_SZ, HF_OFF)
        p(f"s_mov_b32 s90, {hex(f2u(C2))}"); p(f"v_mov_b32 v5, {hex(f2u(C1))}")
        p("v_lshrrev_b32 v2, 4, v1"); p("v_and_b32 v3, 1, v2"); p("v_lshlrev_b32 v3, 4, v3"); p("v_lshrrev_b32 v4, 1, v2")
        p("v_lshl_add_u32 v3, v4, 3, v3"); p(f"v_add_u32 v3, s{f0_sgpr}, v3")
        p("v_lshrrev_b32 v4, 5, v3"); p("v_lshlrev_b32 v4, 10, v4"); p("v_bfe_u32 v3, v3, 3, 2"); p("v_lshl_add_u32 v4, v3, 8, v4")
        p("v_and_b32 v3, 15, v1"); p("v_lshl_add_u32 v6, v3, 4, v4")
        nb = len(blocks_idx)
        if nb % 2:
            p(f"v_lshlrev_b32 v4, 2, v2"); p(f"v_add_u32 v4, s{f0_sgpr}, v4"); p(f"v_add_u32 v4, {16*(nb-1)}, v4")
            p("v_lshrrev_b32 v7, 5, v4"); p("v_lshlrev_b32 v7, 10, v7"); p("v_bfe_u32 v2, v4, 3, 2"); p("v_lshl_add_u32 v7, v2, 8, v7")
            p("v_bfe_u32 v2, v4, 2, 1"); p("v_lshl_add_u32 v7, v2, 3, v7"); p("v_lshl_add_u32 v7, v3, 4, v7")
        p(f"s_lshl_b32 s86, s{S_MT}, 4"); p("s_lshl_b32 s87, s3, 2"); p("s_add_u32 s86, s86, s87"); p("s_mul_i32 s86, s86, 114688")
        BF = 240
        T0 = 8
        for n0 in range(0, nb, 2):
            pair = blocks_idx[n0:n0 + 2]
            for k_, b in enumerate(pair):
                for h in range(2):
                    p(f"v_lshlrev_b32 v{BF+4*k_+2*h}, 16, v{V_BIAS+2*(n0+k_)+h}")
                    p(f"v_and_b32 v{BF+4*k_+2*h+1}, 0xffff0000, v{V_BIAS+2*(n0+k_)+h}")
            for i in range(4):
                src = []; bs = []
                for k_, b in enumerate(pair):
                    src += [ACC + (b * 4 + i) * 4 + r for r in range(4)]
                    bs += [BF + 4 * k_ + r for r in range(4)]
                gelu8(src, bs, T0)
                p(f"s_add_u32 s87, s86, {114688*i + 1024*(n0//2) if len(pair)==2 else 114688*i}")
                if len(pair) == 2:
                    p("s_nop 0")
                    p(f"v_permlane16_swap_b32 v{T0}, v{T0+2}"); p(f"v_permlane16_swap_b32 v{T0+1}, v{T0+3}")
                    p(f"buffer_store_dwordx4 v[{T0}:{T0+3}], v6, s[8:11], s87 offen")
                else:
                    p(f"buffer_store_dwordx2 v[{T0}:{T0+1}], v7, s[8:11], s87 offen")
                p("s_nop 1")

    p.label("k1_typeD")
    voffK_lane(p, V, 5, 2048, 0); voffK_lane(p, V, 6, 2048, 1)
    for i in range(6):
        p(f"s_mul_i32 s86, s3, 6"); p(f"s_add_u32 s86, s86, {i}")
        if i >= 4:
            lab = p.newlabel("k1d"); lab2 = p.newlabel("k1d")
            p("s_cmp_ge_u32 s86, 22"); p(f"s_cbranch_scc1 {lab}")
            slot_D(i, (5, 6)); p(f"s_branch {lab2}")
            p.label(lab); slot_dummy(i); p.label(lab2)
        else:
            slot_D(i, (5, 6))
    for w in range(nwin): addrK_setup(p, V, V_AK + 2 * w, V_AK + 2 * w + 1, w * WIN)
    blocks = [('K', 2048 * b) for b in range(11)]
    reads, mfmas = make(blocks)
    gemm_mainloop(p, "k1d", 16, NS, NPS, S_CNT, mfmas, reads, dmas, privs, pf=pf)
    p("s_nop 7"); p("s_nop 7")
    epi_D(range(11))
    if CFG.get("ts"): p("s_waitcnt vmcnt(0)")
    stamp(p, 3); stamp_store(p, 1, 4)
    p("s_endpgm")
    p.label("k1_typeW")
    p(f"s_sub_u32 s91, s{S_N0}, 2048")
    bias_load(range(11), 91)
    for i in range(6):
        rho, tp = i % 3, (i // 3) & 1
        d = S_SRDS + 4 * i
        p(f"v_add_u32 v2, {64*rho}, v1")
        p("v_mul_u32_u24 v3, 2731, v2"); p("v_lshrrev_b32 v3, 16, v3")
        p("v_mul_u32_u24 v4, 24, v3"); p("v_sub_u32 v2, v2, v4")
        p("v_bfe_u32 v4, v3, 1, 1"); p("v_lshlrev_b32 v4, 1, v4")
        if tp: p("v_or_b32 v4, 4, v4")
        p("v_xor_b32 v2, v2, v4")
        p("v_mul_u32_u24 v3, 7168, v3"); p("v_lshl_add_u32 v3, v2, 4, v3")
        p(f"s_lshl_b32 s86, s3, 1"); p(f"s_add_u32 s86, s86, {i//3}"); p("s_mul_i32 s86, s86, 57344")
        p("s_lshl_b32 s87, s91, 1"); p("s_add_u32 s86, s86, s87")
        p("v_add_u32 v3, s86, v3")
        p("v_cmp_gt_u32 vcc, 22, v2")
        p("v_mov_b32 v4, 0x80000000")
        p("s_nop 0")
        p(f"v_cndmask_b32 v{V_VD+i}, v4, v3, vcc")
        p(f"s_mov_b32 s{d}, s{S_W1}"); p(f"s_mov_b32 s{d+1}, s{S_W1+1}"); p(f"s_mov_b32 s{d+2}, 7340032"); p(f"s_mov_b32 s{d+3}, 0x20000")
        p(f"s_mov_b32 s{S_SOFF+i}, 0"); p(f"s_mov_b32 s{S_DLT+i}, {64*7168}")
    for w in range(nwin): addrT_setup(p, V, V_AT + 4 * w, 384, w * WIN)
    blocks = [('T', b & 3, 32 * 384, 4 * 384, (b >> 2) * 128) for b in range(11)]
    reads, mfmas = make(blocks)
    gemm_mainloop(p, "k1w", 16, NS, NPS, S_CNT, mfmas, reads, dmas, privs, pf=pf)
    p("s_nop 7"); p("s_nop 7")
    epi_W(list(range(11)), 91)
    if CFG.get("ts"): p("s_waitcnt vmcnt(0)")
    stamp(p, 3); stamp_store(p, 1, 4)
    p("s_endpgm")
    p.label("k1_typeM")
    p("s_mov_b32 s91, 0")
    bias_load(range(4), 91)
    voffK_lane(p, V, 5, 2048, 0); voffK_lane(p, V, 6, 2048, 1)
    voffT8_lane(p, V, 7, 7168, 0); voffT8_lane(p, V, 18, 7168, 1)
    for i in range(6):
        d = S_SRDS + 4 * i
        l1 = p.newlabel("k1m"); l2 = p.newlabel("k1m"); l3 = p.newlabel("k1m")
        p(f"s_mul_i32 s86, s3, 6"); p(f"s_add_u32 s86, s86, {i}")
        p("s_cmp_ge_u32 s86, 22"); p(f"s_cbranch_scc1 {l2}")
        p("s_cmp_ge_u32 s86, 14"); p(f"s_cbranch_scc1 {l1}")
        slot_D(i, (5, 6)); p(f"s_branch {l3}")
        p.label(l1)
        p("s_sub_u32 s87, s86, 14"); p("s_mul_i32 s87, s87, 57344")
        p(f"v_add_u32 v{V_VD+i}, s87, v{(7, 18)[i & 1]}")
        p(f"s_mov_b32 s{d}, s{S_W1}"); p(f"s_mov_b32 s{d+1}, s{S_W1+1}"); p(f"s_mov_b32 s{d+2}, 7340032"); p(f"s_mov_b32 s{d+3}, 0x20000")
        p(f"s_mov_b32 s{S_SOFF+i}, 0"); p(f"s_mov_b32 s{S_DLT+i}, {64*7168}")
        p(f"s_branch {l3}")
        p.label(l2); slot_dummy(i)
        p.label(l3)
    for w in range(nwin):
        addrK_setup(p, V, V_AK + 2 * w, V_AK + 2 * w + 1, w * WIN)
        addrT_setup(p, V, V_AT + 4 * w, 128, w * WIN)
    blocks = [('K', 2048 * b) for b in range(7)] + [('T', b, 4096, 512, 14336) for b in range(4)]
    reads, mfmas = make(blocks)
    gemm_mainloop(p, "k1m", 16, NS, NPS, S_CNT, mfmas, reads, dmas, privs, pf=pf)
    p("s_nop 7"); p("s_nop 7")
    epi_D(range(7))
    epi_W([7, 8, 9, 10], 91)
    if CFG.get("ts"): p("s_waitcnt vmcnt(0)")
    stamp(p, 3); stamp_store(p, 1, 4)
    p.label("k1_end")
    p("s_endpgm")
    return name, 256 + A_S + 88, 102, 256

def gen_k2(p, cfg):
    name = "k2_kernel"
    NS, NPS = cfg["k2_ns"], cfg["k2_nps"]
    STG = 16384
    WIN = 65536
    nwin = (NS * STG + WIN - 1) // WIN
    kernel_head(p, name)
    p("s_cmp_ge_u32 s2, 256"); p("s_cbranch_scc1 k2_end")
    load_ptrs(p)
    V = dict(lane=1, t0=2, t1=3, t2=4)
    ACC = 128
    V_VP = 8; V_VD = 12; V_AK = 20; V_AT = 20
    A_P = 0; A_S = NPS * 8
    S_SRDP, S_SRDS = 4, 8
    S_SOFF, S_KP, S_M0B, S_CNT, S_TA, S_TB, S_TILE = 44, 45, 46, 47, 48, 49, 50
    lane_consts(p, V)
    p("s_and_b32 s86, s2, 7"); p("s_lshr_b32 s87, s2, 3")
    p("s_and_b32 s88, s86, 1"); p("s_lshl_b32 s88, s88, 2"); p("s_and_b32 s89, s87, 3"); p(f"s_add_u32 s{S_TA}, s88, s89")
    p("s_lshr_b32 s88, s86, 1"); p("s_and_b32 s88, s88, 1"); p("s_lshl_b32 s88, s88, 3"); p("s_lshr_b32 s89, s87, 2"); p(f"s_add_u32 s{S_TB}, s88, s89")
    p(f"s_lshl_b32 s{S_TILE}, s{S_TB}, 3"); p(f"s_add_u32 s{S_TILE}, s{S_TILE}, s{S_TA}")
    p(f"s_lshl_b32 s{S_M0B}, s3, 12")
    p(f"s_mov_b32 s{S_KP}, 0"); p(f"s_mov_b32 s{S_SOFF}, 0")
    p("s_waitcnt lgkmcnt(0)")
    stamp(p, 0)
    p("s_cmp_ge_u32 s86, 4"); p("s_cbranch_scc1 k2_typeY")

    def privs(kappa):
        out = []
        for i in range(2):
            pre = []
            if i == 0 and kappa % 4 == 0 and kappa > 0: pre = [f"s_add_u32 s{S_KP}, s{S_KP}, 4096"]
            a = A_P + (kappa % NPS) * 8 + 4 * i
            out.append((pre, f"buffer_load_dwordx4 {ar(a,4)}, v{V_VP+i}, s[{S_SRDP}:{S_SRDP+3}], s{S_KP} offen offset:{(kappa%4)*1024}"))
        return out

    srd(p, S_SRDP, S_WS, S_WS + 1, HF_SZ, HF_OFF)
    srd(p, S_SRDS, S_W2, S_W2 + 1, 7340032)
    p(f"s_lshl_b32 s86, s{S_TB}, 3"); p("s_lshl_b32 s87, s3, 1"); p("s_add_u32 s86, s86, s87"); p("s_mul_i32 s86, s86, 114688")
    p(f"v_lshlrev_b32 v{V_VP}, 4, v1"); p(f"v_add_u32 v{V_VP}, s86, v{V_VP}"); p(f"v_add_u32 v{V_VP+1}, 114688, v{V_VP}")
    srd(p, 12, S_B2, S_B2 + 1, 2048)
    p("v_lshrrev_b32 v2, 4, v1"); p("v_lshlrev_b32 v2, 3, v2"); p(f"s_lshl_b32 s86, s{S_TA}, 8"); p("v_add_u32 v2, s86, v2")
    for di in range(8): p(f"buffer_load_dwordx2 v[{32+2*di}:{33+2*di}], v2, s[12:15], 0 offen offset:{32*di}")
    voffT8_lane(p, V, 5, 2048, 0); voffT8_lane(p, V, 6, 2048, 1)
    p("s_and_b32 s86, s3, 1"); p("s_lshl_b32 s86, s86, 16"); p("s_lshr_b32 s87, s3, 1"); p("s_lshl_b32 s87, s87, 7"); p("s_add_u32 s86, s86, s87")
    p(f"s_lshl_b32 s87, s{S_TA}, 8"); p("s_add_u32 s86, s86, s87")
    for i in range(4):
        p(f"v_add_u32 v{V_VD+i}, s86, v{5+(i&1)}")
        if i: p(f"v_add_u32 v{V_VD+i}, {16384*i}, v{V_VD+i}")
    for w in range(nwin): addrT_setup(p, V, V_AT + 4 * w, 128, w * WIN)
    def dmas_o(stage):
        out = []
        for i in range(4):
            pre = [f"s_add_u32 m0, s{S_M0B}, {(stage % NS) * STG + 1024 * i}"]
            if i == 0 and stage > 0: pre.insert(0, f"s_add_u32 s{S_SOFF}, s{S_SOFF}, 131072")
            out.append((pre, f"buffer_load_dwordx4 v{V_VD+i}, s[{S_SRDS}:{S_SRDS+3}], s{S_SOFF} offen lds"))
        return out
    def reads_o(kappa):
        s, kk = divmod(kappa, 2)
        out = []
        for b in range(8):
            for hh in range(2):
                off = (s % NS) * STG + (b >> 2) * 8192 + kk * 4096 + hh * 512; w = off // WIN
                out.append(f"ds_read_b64_tr_b16 {ar(A_S + kk*32 + 4*b + 2*hh, 2)}, v{V_AT+4*w+(b&3)} offset:{off - w*WIN}")
        return out
    def mfmas_o(kappa):
        kk = kappa % 2
        out = []
        for b in range(8):
            for i in range(2):
                acc = ACC + (b * 2 + i) * 4
                c = vr(acc, 4) if kappa > 0 else "0"
                out.append(f"{MF} {vr(acc,4)}, {ar(A_S+kk*32+4*b,4)}, {ar(A_P+(kappa%NPS)*8+4*i,4)}, {c}")
        return out
    gemm_mainloop(p, "k2o", 56, NS, NPS, S_CNT, mfmas_o, reads_o, dmas_o, privs, read_frac=cfg.get("k2o_rf", 0.7))
    p("s_nop 7"); p("s_nop 7")
    srd(p, 8, S_WS, S_WS + 1, G_SZ, G_OFF)
    srd(p, 12, S_WS, S_WS + 1, FL_SZ, FL_OFF)
    p(f"s_lshl_b32 s86, s{S_TILE}, 15"); p("s_lshl_b32 s87, s3, 11"); p("s_add_u32 s86, s86, s87")
    p("v_lshlrev_b32 v2, 4, v1"); p("v_add_u32 v2, s86, v2")
    p(f"s_mov_b32 s90, {hex(f2u(-math.log2(math.e)))}")
    BF = 56
    for m in range(4):
        for k_ in range(2):
            for h in range(2):
                p(f"v_lshlrev_b32 v{BF+4*k_+2*h}, 16, v{32+2*(2*m+k_)+h}")
                p(f"v_and_b32 v{BF+4*k_+2*h+1}, 0xffff0000, v{32+2*(2*m+k_)+h}")
        for sj in range(2):
            src = [ACC + ((2 * m + k_) * 2 + sj) * 4 + r for k_ in range(2) for r in range(4)]
            T = 64 + 24 * sj; U_ = T + 4; W_ = T + 12
            for i in range(4): p(f"v_cvt_pk_bf16_f32 v{T+i}, v{src[2*i]}, v{src[2*i+1]}")
            for i in range(4):
                p(f"v_lshlrev_b32 v{U_+2*i}, 16, v{T+i}"); p(f"v_and_b32 v{U_+2*i+1}, 0xffff0000, v{T+i}")
            for i in range(8): p(f"v_add_f32 v{U_+i}, v{U_+i}, v{BF+i}")
            for i in range(4): p(f"v_cvt_pk_bf16_f32 v{T+i}, v{U_+2*i}, v{U_+2*i+1}")
            for i in range(4):
                p(f"v_lshlrev_b32 v{U_+2*i}, 16, v{T+i}"); p(f"v_and_b32 v{U_+2*i+1}, 0xffff0000, v{T+i}")
            for i in range(8): p(f"v_mul_f32 v{W_+i}, s90, v{U_+i}")
            for i in range(8): p(f"v_exp_f32 v{W_+i}, v{W_+i}")
            for i in range(8): p(f"v_add_f32 v{W_+i}, 1.0, v{W_+i}")
            for i in range(8): p(f"v_rcp_f32 v{W_+i}, v{W_+i}")
            for i in range(8): p(f"v_mul_f32 v{W_+i}, v{W_+i}, v{U_+i}")
            for i in range(4): p(f"v_cvt_pk_bf16_f32 v{T+i}, v{W_+2*i}, v{W_+2*i+1}")
            p("s_nop 1")
            p(f"v_permlane16_swap_b32 v{T}, v{T+2}"); p(f"v_permlane16_swap_b32 v{T+1}, v{T+3}")
            p(f"s_mov_b32 s87, {8192*m + 1024*sj}")
            p(f"buffer_store_dwordx4 v[{T}:{T+3}], v2, s[8:11], s87 offen sc0 sc1")
    p("s_waitcnt vmcnt(0)")
    p("s_barrier")
    if CFG.get("ts"): p("s_waitcnt vmcnt(0)")
    stamp(p, 3); stamp_store(p, 2, 4)
    p("s_cmp_lg_u32 s3, 0"); p("s_cbranch_scc1 k2_end")
    p(f"s_lshl_b32 s86, s{S_TILE}, 7"); p("v_mov_b32 v2, s86"); p("v_mov_b32 v3, 1")
    p("v_cmp_eq_u32 vcc, 0, v1"); p("s_and_saveexec_b64 s[92:93], vcc")
    p("buffer_store_dword v3, v2, s[12:15], 0 offen sc0 sc1")
    p("s_endpgm")

    p.label("k2_typeY")
    srd(p, S_SRDP, S_WS, S_WS + 1, ABF_SZ, ABF_OFF)
    srd(p, S_SRDS, S_CR, S_CR + 1, 8388608)
    p(f"s_lshl_b32 s86, s{S_TA}, 3"); p("s_lshl_b32 s87, s3, 1"); p("s_add_u32 s86, s86, s87"); p("s_lshl_b32 s86, s86, 17")
    p(f"v_lshlrev_b32 v{V_VP}, 4, v1"); p(f"v_add_u32 v{V_VP}, s86, v{V_VP}"); p(f"v_add_u32 v{V_VP+1}, 131072, v{V_VP}")
    voffK_lane(p, V, 5, 4096, 0); voffK_lane(p, V, 6, 4096, 1)
    p(f"s_lshl_b32 s86, s{S_TB}, 7"); p("s_lshl_b32 s87, s3, 5"); p("s_add_u32 s86, s86, s87"); p("s_lshl_b32 s86, s86, 12")
    for i in range(4):
        p(f"v_add_u32 v{V_VD+i}, s86, v{5+(i&1)}")
        if i: p(f"v_add_u32 v{V_VD+i}, {32768*i}, v{V_VD+i}")
    for w in range(nwin): addrK_setup(p, V, V_AK + 2 * w, V_AK + 2 * w + 1, w * WIN)
    def dmas_y(stage):
        out = []
        for i in range(4):
            pre = [f"s_add_u32 m0, s{S_M0B}, {(stage % NS) * STG + 1024 * i}"]
            if i == 0 and stage > 0:
                if stage == 32:
                    pre = [f"s_mov_b32 s{S_SRDS}, s{S_CI}", f"s_mov_b32 s{S_SRDS+1}, s{S_CI+1}", f"s_mov_b32 s{S_SOFF}, 0"] + pre
                else:
                    pre.insert(0, f"s_add_u32 s{S_SOFF}, s{S_SOFF}, 128")
            out.append((pre, f"buffer_load_dwordx4 v{V_VD+i}, s[{S_SRDS}:{S_SRDS+3}], s{S_SOFF} offen lds"))
        return out
    def reads_y(kappa):
        s, kk = divmod(kappa, 2)
        out = []
        for b in range(8):
            off = (s % NS) * STG + 2048 * b; w = off // WIN
            out.append(f"ds_read_b128 {ar(A_S + kk*32 + 4*b, 4)}, v{V_AK+2*w+kk} offset:{off - w*WIN}")
        return out
    def mfmas_y(kappa):
        kk = kappa % 2
        out = []
        for b in range(8):
            for i in range(2):
                acc = ACC + (64 if kappa >= 64 else 0) + (i * 8 + b) * 4
                c = vr(acc, 4) if kappa not in (0, 64) else "0"
                out.append(f"{MF} {vr(acc,4)}, {ar(A_P+(kappa%NPS)*8+4*i,4)}, {ar(A_S+kk*32+4*b,4)}, {c}")
        return out
    gemm_mainloop(p, "k2y", 64, NS, NPS, S_CNT, mfmas_y, reads_y, dmas_y, privs, read_frac=cfg.get("k2y_rf", 0.7))
    srd(p, 4, S_X, S_X + 1, 4194304)
    srd(p, 8, S_WS, S_WS + 1, G_SZ, G_OFF)
    srd(p, 12, S_WS, S_WS + 1, FL_SZ, FL_OFF)
    srd(p, 52, S_OUT, S_OUT + 1, 4194304)
    p("v_lshrrev_b32 v2, 4, v1"); p("v_and_b32 v3, 1, v2"); p("v_lshlrev_b32 v3, 5, v3"); p("v_lshrrev_b32 v2, 1, v2"); p("v_lshl_add_u32 v3, v2, 4, v3")
    p("v_and_b32 v2, 15, v1"); p("v_lshl_add_u32 v3, v2, 11, v3")
    p(f"s_lshl_b32 s86, s{S_TB}, 18"); p(f"s_lshl_b32 s87, s{S_TA}, 8"); p("s_add_u32 s86, s86, s87"); p("s_lshl_b32 s87, s3, 6"); p("s_add_u32 s86, s86, s87")
    p("v_add_u32 v3, s86, v3")
    XR = 32
    GR = 64
    for tj in range(8):
        p(f"s_mov_b32 s87, {32768*tj}")
        p(f"buffer_load_dwordx4 v[{XR+4*tj}:{XR+4*tj+3}], v3, s[4:7], s87 offen")
    p(f"s_lshl_b32 s86, s{S_TILE}, 7"); p("v_mov_b32 v2, s86")
    p("s_cmp_lg_u32 s3, 0"); p("s_cbranch_scc1 k2y_polled")
    p.label("k2y_poll")
    p("buffer_load_dword v4, v2, s[12:15], 0 offen sc0 sc1")
    p("s_waitcnt vmcnt(0)")
    p("v_readfirstlane_b32 s87, v4")
    p("s_cmp_eq_u32 s87, 1"); p("s_cbranch_scc1 k2y_polled")
    p("s_sleep 2")
    p("s_branch k2y_poll")
    p.label("k2y_polled")
    p("s_barrier")
    p(f"s_lshl_b32 s86, s{S_TILE}, 15"); p("s_lshl_b32 s87, s3, 13"); p("s_add_u32 s86, s86, s87")
    p("v_lshlrev_b32 v2, 4, v1"); p("v_add_u32 v2, s86, v2")
    for tj in range(8):
        p(f"s_mov_b32 s87, {1024*tj}")
        p(f"buffer_load_dwordx4 v[{GR+4*tj}:{GR+4*tj+3}], v2, s[8:11], s87 offen sc0 sc1")
    for tj in range(8):
        T = 96; U_ = 100; W_ = 108
        sp = [ACC + (i * 8 + tj) * 4 + r for i in range(2) for r in range(4)]
        for i in range(4): p(f"v_cvt_pk_bf16_f32 v{T+i}, v{sp[2*i]}, v{sp[2*i+1]}")
        for i in range(4): p(f"v_cvt_pk_bf16_f32 v{T+20+i}, v{sp[2*i]+64}, v{sp[2*i+1]+64}")
        for i in range(4):
            p(f"v_lshlrev_b32 v{U_+2*i}, 16, v{T+i}"); p(f"v_and_b32 v{U_+2*i+1}, 0xffff0000, v{T+i}")
            p(f"v_lshlrev_b32 v{W_+2*i}, 16, v{T+20+i}"); p(f"v_and_b32 v{W_+2*i+1}, 0xffff0000, v{T+20+i}")
        for i in range(8): p(f"v_sub_f32 v{U_+i}, v{U_+i}, v{W_+i}")
        Y = sp[0]
        for i in range(4): p(f"v_cvt_pk_bf16_f32 v{Y+i}, v{U_+2*i}, v{U_+2*i+1}")
        p("s_nop 1")
        p(f"v_permlane16_swap_b32 v{Y}, v{Y+2}"); p(f"v_permlane16_swap_b32 v{Y+1}, v{Y+3}")
    p("s_waitcnt vmcnt(0)")
    for tj in range(8):
        Y = ACC + tj * 4
        U_ = 96; W_ = 104; X_ = 112; T = 120
        for i in range(4):
            p(f"v_lshlrev_b32 v{U_+2*i}, 16, v{Y+i}"); p(f"v_and_b32 v{U_+2*i+1}, 0xffff0000, v{Y+i}")
            p(f"v_lshlrev_b32 v{W_+2*i}, 16, v{GR+4*tj+i}"); p(f"v_and_b32 v{W_+2*i+1}, 0xffff0000, v{GR+4*tj+i}")
            p(f"v_lshlrev_b32 v{X_+2*i}, 16, v{XR+4*tj+i}"); p(f"v_and_b32 v{X_+2*i+1}, 0xffff0000, v{XR+4*tj+i}")
        for i in range(8): p(f"v_mul_f32 v{U_+i}, v{U_+i}, v{W_+i}")
        for i in range(4): p(f"v_cvt_pk_bf16_f32 v{T+i}, v{U_+2*i}, v{U_+2*i+1}")
        for i in range(4):
            p(f"v_lshlrev_b32 v{U_+2*i}, 16, v{T+i}"); p(f"v_and_b32 v{U_+2*i+1}, 0xffff0000, v{T+i}")
        for i in range(8): p(f"v_add_f32 v{U_+i}, v{U_+i}, v{X_+i}")
        for i in range(4): p(f"v_cvt_pk_bf16_f32 v{Y+i}, v{U_+2*i}, v{U_+2*i+1}")
        p(f"s_mov_b32 s87, {32768*tj}")
        p(f"buffer_store_dwordx4 v[{Y}:{Y+3}], v3, s[52:55], s87 offen")
    if CFG.get("ts"): p("s_waitcnt vmcnt(0)")
    stamp(p, 3); stamp_store(p, 2, 4)
    p.label("k2_end")
    p("s_endpgm")
    return name, 256 + A_S + 64, 102, 256

def generate(cfg, kernels=("k0", "k1", "k2")):
    CFG.clear(); CFG.update(cfg); CFG["ts_sbase"] = 98
    p = Prog()
    body = Prog()
    info = []
    lds = {"k0": 0, "k1": cfg["k1_ns"] * 24576, "k2": cfg["k2_ns"] * 16384}
    blk = {"k0": 512, "k1": 256, "k2": 256}
    for k in ("k0", "k1", "k2"):
        info.append((k,) + {"k0": lambda: gen_k0(body), "k1": lambda: gen_k1(body, cfg), "k2": lambda: gen_k2(body, cfg)}[k]())
    out = []
    out.append("; FNet (dense DFT matmuls) + GELU FFN fused block; generated by dev/gen.py")
    for k in kernels:
        out.append(f"; @launch kernel={k}_kernel grid=(256,1,1) block=({blk[k]},1,1) lds={lds[k]}")
    out.append('.amdgcn_target "amdgcn-amd-amdhsa--gfx950"')
    out.append(".text")
    out += body.L
    out.append('.section .rodata,"a"')
    for k, name, nfv, nfs, acc in info:
        out.append(".p2align 6")
        out.append(f".amdhsa_kernel {name}")
        out.append(f"  .amdhsa_next_free_vgpr {nfv}")
        out.append(f"  .amdhsa_next_free_sgpr {nfs}")
        out.append(f"  .amdhsa_accum_offset {acc}")
        out.append("  .amdhsa_group_segment_fixed_size 0")
        out.append("  .amdhsa_kernarg_size 104")
        out.append("  .amdhsa_user_sgpr_count 2")
        out.append("  .amdhsa_user_sgpr_kernarg_segment_ptr 1")
        out.append("  .amdhsa_system_sgpr_workgroup_id_x 1")
        out.append(".end_amdhsa_kernel")
    return "\n".join(out) + "\n"

DEFAULT = dict(k1_ns=4, k1_nps=8, k2_ns=8, k2_nps=16)

if __name__ == "__main__":
    cfg = dict(DEFAULT)
    fn = sys.argv[1] if len(sys.argv) > 1 else "full.s"
    for a in sys.argv[2:]:
        k, v = a.split("=")
        cfg[k] = float(v) if "." in v else int(v)
    kern = ("k0", "k1", "k2", "k2") if cfg.get("k2twice") else ("k0", "k1", "k2")
    open(fn, "w").write(generate(cfg, kern))
```

```python
import sys, math
import gen, gen2
from gen import *
from gen2 import gelu_batch, FL2_OFF, FL2_SZ
TY_OFF, TG_OFF = WSB + (28 << 20), WSB + (32 << 20)

def gelu_pk(p, src, bias, T, n):
    Pk = T; U_ = T + n // 2; W_ = U_ + n
    pr = lambda r: f"v[{r}:{r+1}]"
    for i in range(n // 2): p(f"v_cvt_pk_bf16_f32 v{Pk+i}, v{src[2*i]}, v{src[2*i+1]}")
    for i in range(n // 2):
        p(f"v_lshlrev_b32 v{U_+2*i}, 16, v{Pk+i}"); p(f"v_and_b32 v{U_+2*i+1}, 0xffff0000, v{Pk+i}")
    for i in range(0, n, 2): p(f"v_pk_add_f32 {pr(U_+i)}, {pr(U_+i)}, {pr(bias[i])}")
    for i in range(n // 2): p(f"v_cvt_pk_bf16_f32 v{Pk+i}, v{U_+2*i}, v{U_+2*i+1}")
    for i in range(n // 2):
        p(f"v_lshlrev_b32 v{U_+2*i}, 16, v{Pk+i}"); p(f"v_and_b32 v{U_+2*i+1}, 0xffff0000, v{Pk+i}")
    for i in range(0, n, 2): p(f"v_pk_mul_f32 {pr(W_+i)}, {pr(U_+i)}, {pr(U_+i)}")
    for i in range(0, n, 2): p(f"v_pk_fma_f32 {pr(W_+i)}, {pr(W_+i)}, s[90:91], v[2:3]")
    for i in range(0, n, 2): p(f"v_pk_mul_f32 {pr(W_+i)}, {pr(W_+i)}, {pr(U_+i)}")
    for i in range(n): p(f"v_exp_f32 v{W_+i}, v{W_+i}")
    for i in range(0, n, 2): p(f"v_pk_add_f32 {pr(W_+i)}, {pr(W_+i)}, 1.0 op_sel_hi:[1,0]")
    for i in range(n): p(f"v_rcp_f32 v{W_+i}, v{W_+i}")
    for i in range(0, n, 2): p(f"v_pk_mul_f32 {pr(W_+i)}, {pr(W_+i)}, {pr(U_+i)}")
    for i in range(n // 2): p(f"v_cvt_pk_bf16_f32 v{Pk+i}, v{W_+2*i}, v{W_+2*i+1}")

def gen_kf(p, cfg):
    name = "kf_kernel"
    CY, CO = 32, 192
    NSD, NSY, NSO, NS2, NPS2 = cfg["nsd"], cfg["nsy"], cfg["nso"], cfg["k2_ns"], cfg["k2_nps"]
    WIN = 65536
    BIAS_LDS = 131072
    SC = " sc1"
    tm = cfg.get("tsmode", 0)
    kernel_head(p, name)
    p("s_cmp_ge_u32 s2, 256"); p("s_cbranch_scc1 kf_end")
    load_ptrs(p)
    V = dict(lane=1, t0=2, t1=3, t2=4)
    V_VP, V_VD, V_PF, V_DUM, V_AK, V_AT = 8, 10, 13, 7, 16, 20
    V_VD2 = 28
    ACC = 32
    S_SRDP, S_SRDS, S_SOFF = 4, 44, 56
    S_KP, S_M0B, S_CNT, S_MT, S_NT = 80, 81, 82, 83, 84
    S2_SRDS, S2_SOFF, S2_M0B, S_TA, S_TB, S_G, S_X7, S_M, S_WQ, S_TILE = 64, 68, 69, 70, 71, 72, 73, 74, 76, 77
    S_FSRD = 48
    lane_consts(p, V)
    p(f"s_and_b32 s{S_X7}, s2, 7"); p("s_lshr_b32 s87, s2, 3"); p(f"s_lshr_b32 s{S_M}, s87, 1"); p("s_and_b32 s75, s87, 1")
    p(f"s_and_b32 s88, s{S_X7}, 1"); p("s_lshl_b32 s88, s88, 2"); p(f"s_and_b32 s89, s{S_M}, 3"); p(f"s_add_u32 s{S_MT}, s88, s89")
    p(f"s_lshr_b32 s88, s{S_X7}, 1"); p("s_lshl_b32 s88, s88, 2"); p(f"s_lshr_b32 s89, s{S_M}, 2"); p(f"s_add_u32 s{S_NT}, s88, s89")
    p(f"s_mov_b32 s{S_TA}, s{S_MT}"); p(f"s_mov_b32 s{S_TB}, s{S_NT}")
    if cfg.get("map1"):
        p(f"s_and_b32 s{S_MT}, s{S_M}, 7"); p(f"s_lshr_b32 s88, s{S_M}, 3"); p(f"s_lshl_b32 s89, s{S_X7}, 1"); p(f"s_add_u32 s{S_NT}, s88, s89")
    NT1 = " nt" if cfg.get("nt1") else ""
    JIT = cfg.get("jit", 0); JA = cfg.get("ja", 8)
    NT2 = " nt" if (JIT and cfg.get("nt2", 1)) else ""
    if JIT:
        p(f"s_lshl_b32 s88, s{S_X7}, 1"); p(f"s_lshr_b32 s89, s{S_M}, 3"); p("s_add_u32 s88, s88, s89"); p(f"s_and_b32 s89, s{S_M}, 7")
        p("s_cmp_eq_u32 s75, 0")
        p(f"s_cselect_b32 s{S_TB}, s88, s{S_M}"); p(f"s_cselect_b32 s{S_TA}, s89, s{S_X7}")
    def jit_addr(dst, typ, nst):
        nl = 4 if typ == 0 else 2
        sh = 2 if typ == 0 else 1
        p(f"s_lshl_b32 s86, s{S_M}, 3"); p("s_add_u32 s86, s86, s3"); p(f"s_lshl_b32 s86, s86, {sh}")
        p(f"v_and_b32 v2, {nl-1}, v1"); p(f"v_lshrrev_b32 v3, {sh}, v1")
        if typ == 0:
            p("s_and_b32 s87, s86, 255"); p(f"s_lshl_b32 s88, s{S_X7}, 8"); p("s_add_u32 s87, s87, s88"); p("s_lshl_b32 s87, s87, 12")
            p("v_lshlrev_b32 v2, 12, v2"); p("v_lshl_add_u32 v2, v3, 7, v2"); p("v_add_u32 v2, s87, v2")
        else:
            p("s_lshr_b32 s87, s86, 7"); p("s_mul_i32 s87, s87, 1792"); p("s_lshr_b32 s88, s86, 1"); p("s_and_b32 s88, s88, 63"); p("s_add_u32 s87, s87, s88")
            p("s_lshl_b32 s87, s87, 11"); p(f"s_lshl_b32 s88, s{S_X7}, 8"); p("s_add_u32 s87, s87, s88")
            p("v_lshlrev_b32 v2, 7, v2"); p("v_lshl_add_u32 v2, v3, 17, v2"); p("v_add_u32 v2, s87, v2")
        p("v_mov_b32 v3, 0x80000000")
        p(f"v_cmp_gt_u32 vcc, {nl*nst}, v1"); p("s_nop 1"); p(f"v_cndmask_b32 v{dst}, v3, v2, vcc")
    def jit_srd(typ):
        if typ == 0:
            return [f"s_cmp_lt_u32 s{S_M}, 8", f"s_cselect_b32 s8, s{S_CR}, s{S_CI}", f"s_cselect_b32 s9, s{S_CR+1}, s{S_CI+1}", "s_mov_b32 s10, 8388608", "s_mov_b32 s11, 0x20000"]
        return [f"s_mov_b32 s8, s{S_W2}", f"s_mov_b32 s9, s{S_W2+1}", "s_mov_b32 s10, 7340032", "s_mov_b32 s11, 0x20000"]
    def mk_pfj1(typ):
        def f(kappa):
            if kappa != cfg.get("jk", 22): return []
            return [(jit_srd(typ), f"buffer_load_dword v{V_DUM}, v{V_PF}, s[8:11], 0 offen nt")]
        return f
    def mk_pfj2(typ, nst):
        d = 128 if typ == 0 else 131072
        def f(kappa):
            if kappa < 0 or kappa % 2 or kappa // 2 + JA >= nst: return []
            return [([f"s_add_u32 s54, s54, {d}"] if kappa else [f"s_mov_b32 s54, {d*JA}"], "buffer_load_dword v12, v10, s[8:11], s54 offen nt")]
        return f
    p(f"s_lshl_b32 s{S_TILE}, s{S_TB}, 3"); p(f"s_add_u32 s{S_TILE}, s{S_TILE}, s{S_TA}")
    p(f"s_lshr_b32 s{S_G}, s3, 2"); p(f"s_and_b32 s{S_WQ}, s3, 3")
    if cfg.get("prio"):
        p(f"s_cmp_eq_u32 s{S_G}, 0"); p("s_cbranch_scc1 kf_noprio"); p("s_setprio 1"); p.label("kf_noprio")
    p(f"s_lshl_b32 s{S2_M0B}, s3, 12")
    p(f"s_mov_b32 s{S_KP}, 0")
    p(f"s_lshl_b32 s86, s{S_MT}, 4"); p("s_lshl_b32 s87, s3, 1"); p("s_add_u32 s86, s86, s87"); p("s_lshl_b32 s86, s86, 15")
    p(f"v_lshlrev_b32 v{V_VP}, 4, v1"); p(f"v_add_u32 v{V_VP}, s86, v{V_VP}"); p(f"v_add_u32 v{V_VP+1}, 32768, v{V_VP}")
    def pf_setup(dst, part):
        p("s_lshl_b32 s86, s2, 3"); p("s_add_u32 s86, s86, s3"); p("s_lshl_b32 s87, s86, 12"); p("s_lshl_b32 s86, s86, 7")
        p(f"v_lshlrev_b32 v{dst}, 7, v1"); p(f"v_add_u32 v{dst}, s87, v{dst}")
        p(f"v_lshlrev_b32 v{dst+1}, 18, v1"); p(f"v_add_u32 v{dst+1}, s86, v{dst+1}")
        p("v_mov_b32 v2, 0x80000000")
        mc = {None: 0xffffffff, 0: 0xffff, 1: 0xffff0000}[part]
        mw = {None: 0xfffffff, 0: 0x1fc07f, 1: 0xfe03f80}[part]
        p(f"s_mov_b32 vcc_lo, {hex(mc)}"); p("s_mov_b32 vcc_hi, 0"); p("s_nop 0"); p(f"v_cndmask_b32 v{dst}, v2, v{dst}, vcc")
        p(f"s_mov_b32 vcc_lo, {hex(mw)}"); p("s_nop 0"); p(f"v_cndmask_b32 v{dst+1}, v2, v{dst+1}, vcc")
    PFS = cfg.get("pfsplit", 0)
    PFY = cfg.get("pfy", 0)
    if PFY:
        p(f"s_lshl_b32 s86, s{S_M}, 3"); p(f"s_add_u32 s86, s86, s{S_X7}"); p("s_lshl_b32 s86, s86, 3"); p("s_add_u32 s86, s86, s3")
        p("s_lshl_b32 s87, s86, 13"); p("s_mul_i32 s86, s86, 7168")
        p(f"v_lshlrev_b32 v{V_PF+1}, 7, v1"); p(f"v_add_u32 v{V_PF}, s87, v{V_PF+1}"); p(f"v_add_u32 v{V_PF+1}, s86, v{V_PF+1}")
        p("v_mov_b32 v2, 0x80000000")
        p("v_cmp_gt_u32 vcc, 56, v1"); p("s_nop 1"); p(f"v_cndmask_b32 v{V_PF+1}, v2, v{V_PF+1}, vcc")
    else:
        pf_setup(V_PF, 0 if PFS else None)
    p("s_waitcnt lgkmcnt(0)")
    stamp(p, 0)
    srd(p, S_SRDP, S_WS, S_WS + 1, XF_SZ, XF_OFF)
    srd(p, S_FSRD, S_WS, S_WS + 1, FL2_SZ, FL2_OFF)
    srd(p, 8, S_X, S_X + 1, 4194304)
    srd(p, 12, S_DBG, S_DBG + 1, 256)
    p(f"s_lshl_b32 s86, s75, 4"); p(f"s_add_u32 s79, s86, s{S_NT}")
    p(f"s_lshl_b32 s86, s{S_MT}, 5"); p("s_add_u32 s86, s86, s79"); p("s_lshl_b32 s86, s86, 3"); p("s_add_u32 s86, s86, s3")
    p("s_lshl_b32 s87, s86, 11")
    p("v_lshlrev_b32 v40, 4, v1")
    NTX = " nt" if cfg.get("ntx") else ""
    p(f"buffer_load_dwordx4 v[48:51], v40, s[8:11], s87 offen{NTX}")
    p(f"buffer_load_dwordx4 v[52:55], v40, s[8:11], s87 offen offset:1024{NTX}")
    p("v_mov_b32 v44, 0")
    CPF = cfg.get("cpf", 0)
    if CPF:
        p("s_getpc_b64 s[92:93]")
        p.label("kf_pc")
        p("s_sub_u32 s92, s92, kf_pc-kf_kernel"); p("s_subb_u32 s93, s93, 0")
        p("s_mov_b32 s94, kf_codeend-kf_kernel"); p("s_mov_b32 s95, 0x20000")
        p("v_lshlrev_b32 v41, 7, v0")
        for i in range(CPF):
            p(f"s_mov_b32 s87, {65536*i}")
            p(f"buffer_load_dword v39, v41, s[92:95], s87 offen")
    p(f"s_lshl_b32 s87, s{S_MT}, 8"); p("s_lshl_b32 s88, s79, 3"); p("s_add_u32 s60, s87, s88")
    p("s_or_b32 s87, s2, s3"); p("s_cmp_lg_u32 s87, 0"); p("s_cbranch_scc1 kf_notok")
    p("s_memrealtime s[88:89]"); p("s_waitcnt lgkmcnt(0)")
    p("s_or_b32 s88, s88, 1"); p("s_xor_b32 s89, s89, 0x5bd1e995")
    p("v_mov_b32 v42, s88"); p("v_mov_b32 v43, s89")
    p("s_mov_b64 exec, 1")
    p("buffer_store_dwordx2 v[42:43], v44, s[12:15], 0 offen sc1")
    p("s_mov_b64 exec, -1")
    p("s_waitcnt vmcnt(0)")
    p.label("kf_notok")
    p("s_lshr_b32 s87, s86, 4"); p("s_lshl_b32 s87, s87, 15"); p("s_and_b32 s88, s86, 8"); p("s_lshl_b32 s88, s88, 4"); p("s_add_u32 s61, s87, s88")
    p("s_lshl_b32 s87, s3, 12"); p("s_add_u32 s61, s61, s87")
    p("v_lshrrev_b32 v45, 5, v1"); p("v_lshlrev_b32 v45, 10, v45"); p("v_bfe_u32 v46, v1, 3, 2"); p("v_lshl_add_u32 v45, v46, 8, v45")
    p("v_and_b32 v46, 7, v1"); p("v_lshl_add_u32 v45, v46, 4, v45")
    p("s_lshl_b32 s87, s3, 4"); p("s_add_u32 s87, s87, 98304"); p("v_lshlrev_b32 v46, 7, v1"); p("v_add_u32 v46, s87, v46")
    p("s_lshl_b32 s87, s3, 11"); p("s_add_u32 s87, s87, 98304"); p("v_add_u32 v47, s87, v40")
    p("s_cmp_eq_u32 s75, 1"); p("s_cbranch_scc1 kf_typeO")

    def ln_body(ndma):
        X0 = 56
        p(f"s_waitcnt vmcnt({ndma+1})")
        for i in range(4):
            p(f"v_lshlrev_b32 v{X0+2*i}, 16, v{48+i}"); p(f"v_and_b32 v{X0+1+2*i}, 0xffff0000, v{48+i}")
        p(f"s_waitcnt vmcnt({ndma})")
        if tm == 3: stamp(p, 1)
        for i in range(4, 8):
            p(f"v_lshlrev_b32 v{X0+2*i}, 16, v{48+i}"); p(f"v_and_b32 v{X0+1+2*i}, 0xffff0000, v{48+i}")
        def wave_sum(src, tmp, sbase):
            for ctl in ("quad_perm:[1,0,3,2]", "quad_perm:[2,3,0,1]", "row_half_mirror", "row_mirror"):
                p("s_nop 1")
                p(f"v_add_f32_dpp v{tmp}, v{src}, v{src} {ctl} row_mask:0xf bank_mask:0xf")
                p(f"v_mov_b32 v{src}, v{tmp}")
            p("s_nop 0")
            for i in range(4): p(f"v_readlane_b32 s{sbase+i}, v{src}, {16*i}")
            p("s_nop 1")
            p(f"v_mov_b32 v{src}, s{sbase}")
            for i in range(1, 4): p(f"v_add_f32 v{src}, s{sbase+i}, v{src}")
        A_ = 72; D_ = 84
        for i in range(8): p(f"v_add_f32 v{A_+i}, v{X0+2*i}, v{X0+1+2*i}")
        for st in (4, 2, 1):
            for i in range(st): p(f"v_add_f32 v{A_+i}, v{A_+i}, v{A_+i+st}")
        wave_sum(A_, A_ + 1, 86)
        p(f"v_mul_f32 v{A_}, {hex(f2u(1.0/1024))}, v{A_}")
        for i in range(16): p(f"v_sub_f32 v{D_+i}, v{X0+i}, v{A_}")
        for i in range(8):
            p(f"v_mul_f32 v{A_+2+i}, v{D_+2*i}, v{D_+2*i}"); p(f"v_fmac_f32 v{A_+2+i}, v{D_+1+2*i}, v{D_+1+2*i}")
        for st in (4, 2, 1):
            for i in range(st): p(f"v_add_f32 v{A_+2+i}, v{A_+2+i}, v{A_+2+i+st}")
        wave_sum(A_ + 2, A_ + 3, 86)
        M_, V_, R_ = A_, A_ + 2, A_ + 3
        p(f"v_mul_f32 v{V_}, {hex(f2u(1.0/1024))}, v{V_}")
        p(f"v_cvt_pk_bf16_f32 v{R_}, v{M_}, v{V_}")
        p(f"v_lshlrev_b32 v{M_}, 16, v{R_}"); p(f"v_and_b32 v{V_}, 0xffff0000, v{R_}")
        p(f"v_add_f32 v{V_}, {hex(f2u(1e-5))}, v{V_}")
        p(f"v_cvt_pk_bf16_f32 v{V_}, v{V_}, v{V_}"); p(f"v_lshlrev_b32 v{V_}, 16, v{V_}")
        p(f"v_sqrt_f32 v{V_}, v{V_}"); p("s_nop 0")
        p(f"v_cvt_pk_bf16_f32 v{V_}, v{V_}, v{V_}"); p(f"v_lshlrev_b32 v{V_}, 16, v{V_}")
        p(f"v_rcp_f32 v{R_}, v{V_}")
        for i in range(16): p(f"v_sub_f32 v{X0+i}, v{X0+i}, v{M_}")
        for i in range(8): p(f"v_cvt_pk_bf16_f32 v{48+i}, v{X0+2*i}, v{X0+1+2*i}")
        for i in range(8):
            p(f"v_lshlrev_b32 v{X0+2*i}, 16, v{48+i}"); p(f"v_and_b32 v{X0+1+2*i}, 0xffff0000, v{48+i}")
        for i in range(16): p(f"v_mul_f32 v{D_+i}, v{X0+i}, v{R_}")
        for i in range(16): p(f"v_fma_f32 v{X0+i}, -v{D_+i}, v{V_}, v{X0+i}")
        for i in range(16): p(f"v_fmac_f32 v{D_+i}, v{X0+i}, v{R_}")
        for i in range(8): p(f"v_cvt_pk_bf16_f32 v{48+i}, v{D_+2*i}, v{D_+1+2*i}")
        p("ds_write_b128 v46, v[48:51]"); p("ds_write_b128 v46, v[52:55] offset:8192")
        srd(p, 12, S_DBG, S_DBG + 1, 256); p("buffer_load_dwordx2 v[42:43], v44, s[12:15], 0 offen sc1")
        p("s_waitcnt lgkmcnt(0)"); p("s_barrier")
        p("ds_read_b128 v[48:51], v47"); p("ds_read_b128 v[52:55], v47 offset:1024")
        p("s_waitcnt lgkmcnt(0)")
        p(f"buffer_store_dwordx4 v[48:51], v45, s[{S_SRDP}:{S_SRDP+3}], s61 offen sc1")
        p(f"buffer_store_dwordx4 v[52:55], v45, s[{S_SRDP}:{S_SRDP+3}], s61 offen offset:2048 sc1")
        if tm == 3: stamp(p, 2)

    def hookX(tag, ndma):
        ln_body(ndma + CPF)
        if tm == 3: stamp(p, 3)
        p(f"s_waitcnt vmcnt(0)"); p("s_barrier")
        if tm == 3: stamp(p, 4)
        p("s_cmp_lg_u32 s3, 0"); p(f"s_cbranch_scc1 {tag}_w")
        p("v_readfirstlane_b32 s78, v42"); p("v_readfirstlane_b32 s79, v43")
        p("s_cmp_lg_u32 s78, 0"); p(f"s_cbranch_scc1 {tag}_t2")
        srd(p, 12, S_DBG, S_DBG + 1, 256)
        p("v_mov_b32 v2, 0"); p("s_mov_b32 s93, 400000")
        p.label(tag + "_t")
        p("buffer_load_dwordx2 v[4:5], v2, s[12:15], 0 offen sc1")
        p("s_waitcnt vmcnt(0)")
        p("v_readfirstlane_b32 s78, v4"); p("v_readfirstlane_b32 s79, v5")
        p("s_cmp_lg_u32 s78, 0"); p(f"s_cbranch_scc1 {tag}_t2")
        p("s_sleep 1"); p("s_sub_u32 s93, s93, 1"); p("s_cmp_lg_u32 s93, 0"); p(f"s_cbranch_scc1 {tag}_t")
        p.label(tag + "_t2")
        p("v_mov_b32 v4, s78"); p("v_mov_b32 v5, s79")
        p("v_mov_b32 v2, s60")
        p("s_mov_b64 exec, 1")
        p(f"buffer_store_dwordx2 v[4:5], v2, s[{S_FSRD}:{S_FSRD+3}], 0 offen sc1")
        p("s_mov_b64 exec, -1")
        p("v_and_b32 v2, 31, v1"); p("v_lshlrev_b32 v2, 3, v2"); p(f"s_lshl_b32 s86, s{S_MT}, 8"); p("v_add_u32 v2, s86, v2")
        p("s_mov_b32 s93, 400000")
        p.label(tag + "_p")
        p(f"buffer_load_dwordx2 v[4:5], v2, s[{S_FSRD}:{S_FSRD+3}], 0 offen sc1")
        p("s_waitcnt vmcnt(0)")
        p("v_cmp_ne_u64 vcc, s[78:79], v[4:5]")
        p(f"s_cbranch_vccz {tag}_w")
        p("s_sleep 1"); p("s_sub_u32 s93, s93, 1"); p("s_cmp_lg_u32 s93, 0"); p(f"s_cbranch_scc1 {tag}_p")
        p.label(tag + "_w")
        p("s_barrier")

    def mkpreg(vbase, nv):
        return lambda r: vr(vbase + r, 4) if r < nv else ar(r - nv, 4)
    def pf(kappa):
        if cfg.get("pf1", 2) == 3:
            if kappa < 0: return []
            m, j = (0, kappa) if kappa < 11 else ((1, kappa - 11) if kappa < 22 else (2, kappa - 22))
            b = (S_CR, S_CI, S_W2)[m]
            pre = [] if j else [f"s_mov_b32 s8, s{b}", f"s_mov_b32 s9, s{b+1}", f"s_mov_b32 s10, {(8388608, 8388608, 7340032)[m]}", "s_mov_b32 s11, 0x20000"]
            pre = pre + [f"v_add_u32 v6, {hex((-(j << 28)) & 0xffffffff)}, v{V_PF + (1 if m == 2 else 0)}"]
            return [(pre, f"buffer_load_dword v{V_DUM}, v6, s[8:11], 0 offen")]
        if not cfg.get("pf1", 2): return []
        ks = (cfg.get("pfk0", 8), cfg.get("pfk1", 16), cfg.get("pfk2", 24))
        out = []
        for m in range(3):
            if ks[m] != kappa: continue
            b = (S_CR, S_CI, S_W2)[m]
            pre = [f"s_mov_b32 s8, s{b}", f"s_mov_b32 s9, s{b+1}", f"s_mov_b32 s10, {(8388608, 8388608, 7340032)[m]}", "s_mov_b32 s11, 0x20000"]
            out.append((pre, f"buffer_load_dword v{V_DUM}, v{V_PF + (1 if m == 2 else 0)}, s[8:11], 0 offen"))
        return out
    def pf2(kappa):
        if not PFS: return []
        ks = (cfg.get("pf2k0", 2), cfg.get("pf2k1", 6), cfg.get("pf2k2", 10))
        out = []
        for m in range(3):
            if ks[m] != kappa: continue
            b = (S_CR, S_CI, S_W2)[m]
            pre = [f"s_mov_b32 s8, s{b}", f"s_mov_b32 s9, s{b+1}", f"s_mov_b32 s10, {(8388608, 8388608, 7340032)[m]}", "s_mov_b32 s11, 0x20000"]
            out.append((pre, f"buffer_load_dword v12, v{10 + (1 if m == 2 else 0)}, s[8:11], 0 offen"))
        return out
    def flag_ops(vaddr, off):
        return (["s_mov_b64 exec, 1"], f"buffer_store_dword v7, v{vaddr}, s[{S_FSRD}:{S_FSRD+3}], 0 offen offset:{off}{SC}", ["s_mov_b64 exec, -1"])

    def phase1(pp, tag, blocks, NS, STG, nslot, delta, SH, PV, NPS, use_pf, dmas_fn=None, pf_fn=None, **kw):
        nb = len(blocks)
        preg = mkpreg(PV, 224 - PV)
        def dmas(stage):
            out = []
            for i in range(nslot):
                pre = [f"s_add_u32 m0, s{S_M0B}, {(stage % NS) * STG + 1024 * i}"]
                if i == 0 and stage > 0: pre.insert(0, f"s_add_u32 s{S_SOFF}, s{S_SOFF}, {delta}")
                out.append((pre, f"buffer_load_dwordx4 v{V_VD+i}, s[{S_SRDS}:{S_SRDS+3}], s{S_SOFF} offen{NT1} lds"))
            return out
        def privs(kappa):
            out = []
            for i in range(2):
                pre = []
                if i == 0 and kappa % 4 == 0 and kappa > 0: pre = [f"s_add_u32 s{S_KP}, s{S_KP}, 4096"]
                out.append((pre, f"buffer_load_dwordx4 {preg((kappa % NPS) * 8 + 4 * i)}, v{V_VP+i}, s[{S_SRDP}:{S_SRDP+3}], s{S_KP} offen offset:{(kappa%4)*1024}{SC}"))
            return out
        def reads(kappa):
            s, kk = divmod(kappa, 2)
            ring = (s % NS) * STG
            out = []
            for b, bl in enumerate(blocks):
                a = SH + kk * nb * 4 + 4 * b
                if bl[0] == 'K':
                    off = ring + bl[1]; w = off // WIN
                    out.append(f"ds_read_b128 {vr(a,4)}, v{V_AK+2*w+kk} offset:{off - w*WIN}")
                else:
                    for hh in range(2):
                        off = ring + bl[4] + kk * bl[2] + hh * bl[3]; w = off // WIN
                        out.append(f"ds_read_b64_tr_b16 {vr(a+2*hh,2)}, v{V_AT+4*w+bl[1]} offset:{off - w*WIN}")
            return out
        def mfmas(kappa):
            kk = kappa % 2
            out = []
            for b, bl in enumerate(blocks):
                for i in range(2):
                    acc = ACC + (b * 2 + i) * 4
                    S = vr(SH + kk * nb * 4 + 4 * b, 4); P = preg((kappa % NPS) * 8 + 4 * i)
                    c = vr(acc, 4) if kappa > 0 else "0"
                    out.append(f"{MF} {vr(acc,4)}, {P}, {S}, {c}" if bl[0] == 'K' else f"{MF} {vr(acc,4)}, {S}, {P}, {c}")
            return out
        gemm_mainloop(pp, tag, 16, NS, NPS, S_CNT, mfmas, reads, dmas_fn or dmas, privs, pf=pf_fn if JIT else (pf if use_pf else None), read_frac=cfg.get("k1_rf", 0.7), **kw)

    def bias_dma(f0):
        srd(p, 12, S_B1, S_B1 + 1, 7168)
        p("v_lshlrev_b32 v2, 4, v1")
        p(f"s_lshl_b32 s86, s{f0}, 1")
        p("s_lshl_b32 s87, s3, 10"); p(f"s_add_u32 m0, s87, {BIAS_LDS}")
        p("s_nop 0")
        p("buffer_load_dwordx4 v2, s[12:15], s86 offen lds")
    def epi_W(nb, f0, TB, b0=0):
        srd(p, 8, S_WS, S_WS + 1, HF_SZ, HF_OFF)
        BPf = lambda n: 8 + 2 * n if n < 10 else 216 + 2 * (n - 10)
        p("v_lshrrev_b32 v2, 4, v1")
        p("s_lshl_b32 s87, s3, 10"); p(f"s_add_u32 s87, s87, {BIAS_LDS}")
        p("v_lshlrev_b32 v3, 3, v2"); p("v_add_u32 v3, s87, v3")
        for n in range(nb): p(f"ds_read_b64 v[{BPf(n)}:{BPf(n)+1}], v3 offset:{32*n}")
        p(f"s_mov_b32 s90, {hex(f2u(C2))}"); p(f"v_mov_b32 v5, {hex(f2u(C1))}")
        p("v_and_b32 v3, 1, v2"); p("v_lshlrev_b32 v3, 1, v3"); p("v_lshrrev_b32 v4, 1, v2"); p("v_or_b32 v3, v3, v4")
        p("v_lshlrev_b32 v3, 8, v3"); p("v_and_b32 v4, 15, v1"); p("v_lshl_add_u32 v4, v4, 4, v3")
        p(f"s_lshl_b32 s86, s{S_MT}, 4"); p("s_lshl_b32 s87, s3, 1"); p("s_add_u32 s86, s86, s87"); p("s_mul_i32 s86, s86, 114688")
        p(f"s_lshl_b32 s87, s{f0}, 5"); p("s_add_u32 s86, s86, s87")
        p(f"s_mov_b32 s91, s90"); p("v_mov_b32 v2, v5"); p("v_mov_b32 v3, v5")
        p("s_waitcnt lgkmcnt(0)")
        BF = TB
        for n0 in range(0, nb, 2):
            for k_ in range(2):
                for h in range(2):
                    p(f"v_lshlrev_b32 v{BF+4*k_+2*h}, 16, v{BPf(n0+k_)+h}")
                    p(f"v_and_b32 v{BF+4*k_+2*h+1}, 0xffff0000, v{BPf(n0+k_)+h}")
            src = []; bs = []
            for i in range(2):
                for k_ in range(2):
                    src += [ACC + ((b0 + n0 + k_) * 2 + i) * 4 + r for r in range(4)]
                    bs += [BF + 4 * k_ + r for r in range(4)]
            T0 = TB + 8 + (40 if (n0 // 2) % 2 else 0)
            gelu_pk(p, src, bs, T0, 16)
            for i in range(2):
                p(f"s_add_u32 s87, s86, {114688*i + 1024*(n0//2)}")
                t = T0 + 4 * i
                if i == 0: p("s_nop 0")
                p(f"v_permlane16_swap_b32 v{t}, v{t+2}"); p(f"v_permlane16_swap_b32 v{t+1}, v{t+3}")
                p(f"buffer_store_dwordx4 v[{t}:{t+3}], v4, s[8:11], s87 offen{SC}")
        return nb

    STG2 = 32768
    V2_VP, V2_A = 8, 20
    SH2 = 96
    preg2 = mkpreg(160, 64)
    S2_SRDP, S2_KP = 4, 80
    def privs2(kappa):
        out = []
        for i in range(2):
            pre = []
            if i == 0 and kappa % 4 == 0 and kappa > 0: pre = [f"s_add_u32 s{S2_KP}, s{S2_KP}, 4096"]
            out.append((pre, f"buffer_load_dwordx4 {preg2((kappa % NPS2) * 8 + 4 * i)}, v{V2_VP+i}, s[{S2_SRDP}:{S2_SRDP+3}], s{S2_KP} offen offset:{(kappa%4)*1024}{SC}"))
        return out
    def mk_dmas2(delta):
        def dmas(stage):
            out = []
            for i in range(4):
                pre = [f"s_add_u32 m0, s{S2_M0B}, {(stage % NS2) * STG2 + 1024 * i}"]
                if i == 0 and stage > 0: pre.insert(0, f"s_add_u32 s{S2_SOFF}, s{S2_SOFF}, {delta}")
                out.append((pre, f"buffer_load_dwordx4 v{V_VD2+i}, s[{S2_SRDS}:{S2_SRDS+3}], s{S2_SOFF} offen{NT2} lds"))
            return out
        return dmas
    def reads_o(kappa):
        s, kk = divmod(kappa, 2)
        out = []
        for b in range(8):
            for hh in range(2):
                off = (s % NS2) * STG2 + (b >> 2) * 8192 + kk * 4096 + hh * 512; w = off // WIN
                out.append(f"ds_read_b64_tr_b16 {vr(SH2 + kk*32 + 4*b + 2*hh, 2)}, v{V2_A+4*w+(b&3)} offset:{off - w*WIN}")
        return out
    def mfmas_o(kappa):
        kk = kappa % 2
        return [f"{MF} {vr(ACC+(b*2+i)*4,4)}, {vr(SH2+kk*32+4*b,4)}, {preg2((kappa%NPS2)*8+4*i)}, {vr(ACC+(b*2+i)*4,4) if kappa > 0 else '0'}"
                for b in range(8) for i in range(2)]
    def reads_y(kappa):
        s, kk = divmod(kappa, 2)
        out = []
        for b in range(8):
            off = (s % NS2) * STG2 + 2048 * b; w = off // WIN
            out.append(f"ds_read_b128 {vr(SH2 + kk*32 + 4*b, 4)}, v{V2_A+2*w+kk} offset:{off - w*WIN}")
        return out
    def mfmas_y(kappa):
        kk = kappa % 2
        return [f"{MF} {vr(ACC+(i*8+b)*4,4)}, {preg2((kappa%NPS2)*8+4*i)}, {vr(SH2+kk*32+4*b,4)}, {vr(ACC+(i*8+b)*4,4) if kappa > 0 else '0'}"
                for b in range(8) for i in range(2)]
    def split(fn):
        tp = Prog(); tp.uid = p.uid
        fn(tp, lambda: tp.raw("@SPLIT"))
        p.uid = tp.uid
        i = tp.L.index("@SPLIT")
        return tp.L[:i], tp.L[i + 1:]

    def poll(label, setup):
        p("s_cmp_lg_u32 s3, 0"); p(f"s_cbranch_scc1 {label}_w")
        setup()
        p("s_mov_b32 s93, 400000")
        p.label(label + "_p")
        p(f"buffer_load_dwordx2 v[4:5], v2, s[{S_FSRD}:{S_FSRD+3}], 0 offen{SC}")
        p("s_waitcnt vmcnt(0)")
        p("v_cmp_ne_u64 vcc, s[78:79], v[4:5]")
        p(f"s_cbranch_vccz {label}_w")
        p(f"s_sleep {cfg.get('poll_sleep', 1)}")
        p("s_sub_u32 s93, s93, 1"); p("s_cmp_lg_u32 s93, 0")
        p(f"s_cbranch_scc1 {label}_p")
        p.label(label + "_w")
        p("s_barrier")
    def setflags(addr_exprs):
        lab = p.newlabel("sf")
        p("s_cmp_lg_u32 s3, 0"); p(f"s_cbranch_scc1 {lab}")
        p("v_mov_b32 v6, s78"); p("v_mov_b32 v7, s79")
        p("s_mov_b64 exec, 1")
        for f in addr_exprs:
            f(); p("v_mov_b32 v5, s86")
            p(f"buffer_store_dwordx2 v[6:7], v5, s[{S_FSRD}:{S_FSRD+3}], 0 offen{SC}")
        p("s_mov_b64 exec, -1")
        p.label(lab)

    XR, OR = 160, 176
    so_out = ["0", "s57", "s58", "s59"]; so_u = ["0", "s61", "s62", "s63"]
    def final_setup():
        srd(p, 4, S_X, S_X + 1, 4194304)
        srd(p, 64, S_OUT, S_OUT + 1, 4194304)
        p(f"s_add_u32 s8, s{S_WS}, s52"); p(f"s_addc_u32 s9, s{S_WS+1}, 0"); p("s_mov_b32 s10, 4194304"); p("s_mov_b32 s11, 0x20000")
        p(f"s_add_u32 s44, s{S_WS}, s53"); p(f"s_addc_u32 s45, s{S_WS+1}, 0"); p("s_mov_b32 s46, 4194304"); p("s_mov_b32 s47, 0x20000")
        p(f"s_lshl_b32 s86, s{S_TILE}, 7"); p("s_add_u32 s86, s86, 16384"); p("s_lshl_b32 s87, s75, 6"); p("s_add_u32 s86, s86, s87")
        p("v_mov_b32 v204, s86"); p("v_xor_b32 v205, 64, v204"); p("v_mov_b32 v206, 65536")
        lab = p.newlabel("fs")
        p("s_cmp_lg_u32 s3, 0"); p(f"s_cbranch_scc1 {lab}")
        p(f"buffer_load_dwordx2 v[200:201], v205, s[{S_FSRD}:{S_FSRD+3}], 0 offen{SC}")
        p.label(lab)
        p("v_lshrrev_b32 v2, 4, v1"); p("v_and_b32 v3, 1, v2"); p("v_lshlrev_b32 v3, 5, v3"); p("v_lshrrev_b32 v2, 1, v2"); p("v_lshl_add_u32 v3, v2, 4, v3")
        p("v_and_b32 v2, 15, v1"); p("v_lshl_add_u32 v3, v2, 11, v3")
        p(f"s_lshl_b32 s86, s{S_TB}, 18"); p(f"s_lshl_b32 s87, s{S_TA}, 8"); p("s_add_u32 s86, s86, s87"); p("s_add_u32 s86, s86, s56")
        p("v_add_u32 v202, s86, v3")
        p(f"s_lshl_b32 s86, s{S_TILE}, 15"); p("s_add_u32 s86, s86, s60")
        p("v_lshlrev_b32 v2, 4, v1"); p("v_add_u32 v203, s86, v2")
        for u in range(4): p(f"buffer_load_dwordx4 v[{XR+4*u}:{XR+4*u+3}], v202, s[4:7], {so_out[u]} offen")
    def decision_write(nyounger):
        lab = p.newlabel("dw")
        p("s_cmp_lg_u32 s3, 0"); p(f"s_cbranch_scc1 {lab}")
        p(f"s_waitcnt vmcnt({nyounger})")
        p("v_cmp_eq_u64 vcc, s[78:79], v[200:201]")
        p("s_nop 1")
        p("v_cndmask_b32 v200, 0, 1, vcc")
        p("ds_write_b32 v206, v200")
        p.label(lab)
    def decision_read():
        p("ds_read_b32 v200, v206")
        p("s_waitcnt lgkmcnt(0)")
        p("v_readfirstlane_b32 s55, v200")
        lab = p.newlabel("dr")
        p("s_cmp_eq_u32 s55, 0"); p(f"s_cbranch_scc1 {lab}")
        for u in range(4): p(f"buffer_load_dwordx4 v[{OR+4*u}:{OR+4*u+3}], v203, s[44:47], {so_u[u]} offen{SC}")
        p.label(lab)

    p(f"s_mov_b32 s{S2_SOFF}, 0")
    p(f"s_cmp_eq_u32 s{S_G}, 0")
    p(f"s_cselect_b32 s{S2_SRDS}, s{S_CR}, s{S_CI}"); p(f"s_cselect_b32 s{S2_SRDS+1}, s{S_CR+1}, s{S_CI+1}")
    p(f"s_mov_b32 s{S2_SRDS+2}, 8388608"); p(f"s_mov_b32 s{S2_SRDS+3}, 0x20000")
    voffK_lane(p, V, 5, 4096, 0)
    p(f"s_lshl_b32 s86, s{S_WQ}, 5"); p(f"s_lshl_b32 s87, s{S_G}, 6"); p("s_xor_b32 s86, s86, s87")
    p(f"s_lshl_b32 s87, s{S_TB}, 7"); p("s_add_u32 s86, s86, s87"); p("s_lshl_b32 s86, s86, 12")
    p(f"v_add_u32 v{V_VD2}, s86, v5")
    p(f"v_xor_b32 v{V_VD2+1}, 64, v{V_VD2}"); p(f"v_add_u32 v{V_VD2+1}, 32768, v{V_VD2+1}")
    p(f"v_add_u32 v{V_VD2+2}, 65536, v{V_VD2}"); p(f"v_add_u32 v{V_VD2+3}, 65536, v{V_VD2+1}")
    if JIT: jit_addr(V_PF, 0, JA)
    p(f"s_cmp_lt_u32 s{S_NT}, 8")
    p(f"s_cselect_b32 s{S_SRDS}, s{S_DR}, s{S_DI}"); p(f"s_cselect_b32 s{S_SRDS+1}, s{S_DR+1}, s{S_DI+1}")
    p(f"s_mov_b32 s{S_SRDS+2}, 2097152"); p(f"s_mov_b32 s{S_SRDS+3}, 0x20000")
    srd(p, 52, S_W1, S_W1 + 1, 7340032)
    p(f"s_mov_b32 s{S_SOFF}, 0"); p(f"s_mov_b32 s{S_SOFF+1}, 0"); p(f"s_lshl_b32 s{S_M0B}, s3, 11"); p("s_lshl_b32 s58, s3, 10"); p("s_add_u32 s58, s58, 16384")
    voffK_lane(p, V, 5, 2048, 0)
    p(f"s_and_b32 s86, s{S_NT}, 7"); p("s_lshl_b32 s86, s86, 7"); p("s_lshl_b32 s87, s3, 4"); p("s_add_u32 s86, s86, s87"); p("s_lshl_b32 s86, s86, 11")
    p(f"v_add_u32 v{V_VD}, s86, v5")
    p(f"v_xor_b32 v{V_VD+1}, 64, v{V_VD}"); p(f"v_add_u32 v{V_VD+1}, 16384, v{V_VD+1}")
    p(f"s_mul_i32 s85, s{S_NT}, {CY}")
    bias_dma(85)
    voffT8_lane(p, V, 5, 7168, 0)
    p("s_and_b32 s88, s3, 1"); p("s_lshl_b32 s88, s88, 6"); p("s_mul_i32 s86, s3, 57344"); p("s_lshl_b32 s87, s85, 1"); p("s_add_u32 s86, s86, s87")
    p("v_xor_b32 v5, s88, v5"); p("v_and_b32 v2, 64, v5"); p("v_add_u32 v5, s86, v5")
    p("v_cmp_eq_u32 vcc, 0, v2"); p("v_mov_b32 v4, 0x80000000"); p("s_nop 0"); p(f"v_cndmask_b32 v{V_VD+2}, v4, v5, vcc")
    for w in range(2):
        addrK_setup(p, V, V_AK + 2 * w, V_AK + 2 * w + 1, w * WIN)
        addrT_setup(p, V, V_AT + 4 * w, 128, w * WIN)
    def dmasM(stage):
        ring = (stage % NSD) * 24576
        out = []
        for i in range(2):
            pre = [f"s_add_u32 m0, s{S_M0B}, {ring + 1024 * i}"]
            if i == 0 and stage > 0: pre.insert(0, f"s_add_u32 s{S_SOFF}, s{S_SOFF}, 128")
            out.append((pre, f"buffer_load_dwordx4 v{V_VD+i}, s[{S_SRDS}:{S_SRDS+3}], s{S_SOFF} offen{NT1} lds"))
        pre = [f"s_add_u32 m0, s58, {ring}"]
        if stage > 0: pre.insert(0, f"s_add_u32 s{S_SOFF+1}, s{S_SOFF+1}, {64*7168}")
        out.append((pre, f"buffer_load_dwordx4 v{V_VD+2}, s[52:55], s{S_SOFF+1} offen{NT1} lds"))
        return out
    phase1(p, "kfm", [('K', 2048 * b) for b in range(8)] + [('T', b, 4096, 512, 16384) for b in range(2)], NSD, 24576, 3, 0, 112, 192, 8, PFY != 2,
           dmas_fn=dmasM, pf_fn=mk_pfj1(0), st1=(1, 0, 0, 5)[tm], st2=(2, 0, 0, 0)[tm] if tm != 3 else None, hook=lambda: hookX("kfxy", 1 + 3 * (NSD - 1) + (0 if (PFY == 2 or JIT) else len(pf(-2)))))
    p("s_barrier")
    def epi_D():
        srd(p, 8, S_WS, S_WS + 1, ABF_SZ, ABF_OFF)
        p("v_lshrrev_b32 v2, 4, v1"); p("v_and_b32 v3, 1, v2"); p("v_lshlrev_b32 v3, 1, v3"); p("v_lshrrev_b32 v2, 1, v2")
        p("v_or_b32 v2, v2, v3"); p("v_lshlrev_b32 v2, 8, v2"); p("v_and_b32 v3, 15, v1"); p("v_lshl_add_u32 v2, v3, 4, v2")
        p(f"s_lshl_b32 s86, s{S_MT}, 3"); p("s_add_u32 s86, s86, s3"); p(f"s_lshr_b32 s87, s{S_NT}, 3"); p("s_lshl_b32 s87, s87, 6"); p("s_add_u32 s86, s86, s87")
        p(f"s_and_b32 s87, s{S_NT}, 7"); p("s_lshl_b32 s87, s87, 10"); p("s_add_u32 s86, s86, s87"); p("s_lshl_b32 s86, s86, 10")
        p("v_add_u32 v2, s86, v2")
        for b in range(8):
            t = 200 + 0 * b if False else 112 + 4 * b
            a0 = ACC + b * 8; a1 = a0 + 4
            p(f"v_cvt_pk_bf16_f32 v{t}, v{a0}, v{a0+1}"); p(f"v_cvt_pk_bf16_f32 v{t+1}, v{a0+2}, v{a0+3}")
            p(f"v_cvt_pk_bf16_f32 v{t+2}, v{a1}, v{a1+1}"); p(f"v_cvt_pk_bf16_f32 v{t+3}, v{a1+2}, v{a1+3}")
            p(f"s_mov_b32 s87, {131072*b}"); p("s_nop 0")
            p(f"v_permlane16_swap_b32 v{t}, v{t+2}"); p(f"v_permlane16_swap_b32 v{t+1}, v{t+3}")
            p(f"buffer_store_dwordx4 v[{t}:{t+3}], v2, s[8:11], s87 offen{SC}")
        p("s_nop 1")
    def hookY():
        epi_D()
        epi_W(2, 85, 144, b0=8)
        if tm == 1: stamp(p, 1)
        p("s_waitcnt vmcnt(0)"); p("s_barrier")
        if tm == 1: stamp(p, 2)
        setflags([lambda: (p(f"s_lshl_b32 s86, s{S_NT}, 7"), p(f"s_lshl_b32 s87, s{S_MT}, 3"), p("s_add_u32 s86, s86, s87"), p("s_add_u32 s86, s86, 4096")),
                  lambda: (p(f"s_lshl_b32 s86, s{S_MT}, 8"), p(f"s_lshl_b32 s87, s{S_NT}, 3"), p("s_add_u32 s86, s86, s87"), p("s_add_u32 s86, s86, 8192"))])
        if PFS: pf_setup(10, 1)
        if JIT:
            jit_addr(10, 0, 1)
            for x_ in jit_srd(0): p(x_)
        p(f"s_lshl_b32 s{S2_KP}, s{S_G}, 16")
        srd(p, S2_SRDP, S_WS, S_WS + 1, ABF_SZ, ABF_OFF)
        p(f"s_lshl_b32 s86, s{S_TA}, 3"); p(f"s_lshl_b32 s87, s{S_WQ}, 1"); p("s_add_u32 s86, s86, s87"); p("s_lshl_b32 s86, s86, 17")
        p(f"v_lshlrev_b32 v{V2_VP}, 4, v1"); p(f"v_add_u32 v{V2_VP}, s86, v{V2_VP}"); p(f"v_add_u32 v{V2_VP+1}, 131072, v{V2_VP}")
        p(f"s_lshl_b32 s86, s{S_G}, 14")
        for w in range(2):
            addrK_setup(p, V, V2_A + 2 * w, V2_A + 2 * w + 1, w * WIN)
            p(f"v_add_u32 v{V2_A+2*w}, s86, v{V2_A+2*w}"); p(f"v_add_u32 v{V2_A+2*w+1}, s86, v{V2_A+2*w+1}")
        poll("kf_Y2", lambda: (p("v_bfe_u32 v3, v1, 3, 1"), p("v_lshlrev_b32 v3, 10, v3"), p("v_and_b32 v2, 7, v1"), p("v_lshl_add_u32 v2, v2, 3, v3"),
                               p(f"s_lshl_b32 s86, s{S_TA}, 7"), p("s_add_u32 s86, s86, 4096"), p("v_add_u32 v2, s86, v2")))
    gemm_mainloop(p, "kfy", 32, NS2, NPS2, S_CNT, mfmas_y, reads_y, mk_dmas2(128), privs2, read_frac=cfg.get("k2y_rf", 0.7),
                  hook=hookY, pf=mk_pfj2(0, 32) if JIT else pf2, st1=(3, 3, 0, None)[tm], st2=(4, 4, 0, None)[tm])
    p(f"s_lshl_b32 s86, s{S_WQ}, 3"); p(f"s_lshl_b32 s87, s{S_G}, 2"); p("s_add_u32 s86, s86, s87"); p("s_lshl_b32 s60, s86, 10")
    p("s_mov_b32 s61, 1024"); p("s_mov_b32 s62, 2048"); p("s_mov_b32 s63, 3072")
    p(f"s_lshl_b32 s86, s{S_G}, 17"); p(f"s_lshl_b32 s87, s{S_WQ}, 6"); p("s_add_u32 s56, s86, s87")
    p("s_mov_b32 s57, 32768"); p("s_mov_b32 s58, 65536"); p("s_mov_b32 s59, 98304")
    p(f"s_mov_b32 s52, {TY_OFF}"); p(f"s_mov_b32 s53, {TG_OFF}")
    final_setup()
    for b in range(8):
        t = SH2 + 4 * b
        a0 = ACC + b * 4; a1 = ACC + (8 + b) * 4
        p(f"v_cvt_pk_bf16_f32 v{t}, v{a0}, v{a0+1}"); p(f"v_cvt_pk_bf16_f32 v{t+1}, v{a0+2}, v{a0+3}")
        p(f"v_cvt_pk_bf16_f32 v{t+2}, v{a1}, v{a1+1}"); p(f"v_cvt_pk_bf16_f32 v{t+3}, v{a1+2}, v{a1+3}")
    p("v_lshlrev_b32 v2, 4, v1"); p("s_lshl_b32 s86, s3, 12"); p("v_add_u32 v3, s86, v2"); p("s_xor_b32 s86, s86, 16384"); p("v_add_u32 v2, s86, v2")
    p("s_barrier")
    for u in range(4): p(f"ds_write_b128 v3, v[{SH2+16+4*u}:{SH2+19+4*u}] offset:{1024*u}")
    decision_write(4)
    p("s_waitcnt lgkmcnt(0)"); p("s_barrier")
    for u in range(4): p(f"ds_read_b128 v[{SH2+16+4*u}:{SH2+19+4*u}], v2 offset:{1024*u}")
    decision_read()
    p(f"s_lshl_b32 s90, s{S_G}, 31"); p("s_lshr_b32 s85, s90, 16"); p("s_or_b32 s90, s90, s85")
    p("s_waitcnt lgkmcnt(0)")
    RES = 32
    U_ = 48; W_ = 64
    for hf in range(2):
        for i in range(8):
            r = SH2 + 8 * hf + i
            p(f"v_lshlrev_b32 v{U_+2*i}, 16, v{r}"); p(f"v_and_b32 v{U_+2*i+1}, 0xffff0000, v{r}")
            p(f"v_lshlrev_b32 v{W_+2*i}, 16, v{r+16}"); p(f"v_and_b32 v{W_+2*i+1}, 0xffff0000, v{r+16}")
        for i in range(16): p(f"v_sub_f32 v{U_+i}, v{U_+i}, v{W_+i}")
        for i in range(8): p(f"v_cvt_pk_bf16_f32 v{RES+8*hf+i}, v{U_+2*i}, v{U_+2*i+1}")
    for i in range(16): p(f"v_xor_b32 v{RES+i}, s90, v{RES+i}")
    p("s_nop 1")
    for u in range(4):
        t = RES + 4 * u
        p(f"v_permlane16_swap_b32 v{t}, v{t+2}"); p(f"v_permlane16_swap_b32 v{t+1}, v{t+3}")
    p("s_branch kf_final")

    p.label("kf_typeO")
    p(f"s_mul_i32 s{S2_SOFF}, s{S_G}, {1792*2048}")
    srd(p, S2_SRDS, S_W2, S_W2 + 1, 7340032)
    voffT8_lane(p, V, 5, 2048, 0)
    p(f"s_and_b32 s86, s{S_WQ}, 1"); p("s_lshl_b32 s86, s86, 16"); p(f"s_lshr_b32 s87, s{S_WQ}, 1"); p(f"s_xor_b32 s87, s87, s{S_G}"); p("s_lshl_b32 s87, s87, 7"); p("s_add_u32 s86, s86, s87")
    p(f"s_lshl_b32 s87, s{S_TA}, 8"); p("s_add_u32 s86, s86, s87")
    p(f"v_add_u32 v{V_VD2}, s86, v5")
    p(f"v_xor_b32 v{V_VD2+1}, 64, v{V_VD2}"); p(f"v_add_u32 v{V_VD2+1}, 16384, v{V_VD2+1}")
    p(f"v_add_u32 v{V_VD2+2}, 32768, v{V_VD2}"); p(f"v_add_u32 v{V_VD2+3}, 32768, v{V_VD2+1}")
    if JIT: jit_addr(V_PF, 1, JA)
    p(f"s_mul_i32 s85, s{S_NT}, {CO}"); p(f"s_add_u32 s85, s85, {16*CY}")
    bias_dma(85)
    p(f"s_mov_b32 s{S_SRDS}, s{S_W1}"); p(f"s_mov_b32 s{S_SRDS+1}, s{S_W1+1}"); p(f"s_mov_b32 s{S_SRDS+2}, 7340032"); p(f"s_mov_b32 s{S_SRDS+3}, 0x20000")
    p(f"s_mov_b32 s{S_SOFF}, 0"); p(f"s_mul_i32 s{S_M0B}, s3, 3072")
    p("s_and_b32 s88, s3, 1"); p("s_lshl_b32 s88, s88, 2")
    for i in range(3):
        p(f"v_add_u32 v2, {64*i}, v1")
        p("v_mul_u32_u24 v3, 2731, v2"); p("v_lshrrev_b32 v3, 16, v3")
        p("v_mul_u32_u24 v4, 24, v3"); p("v_sub_u32 v2, v2, v4")
        p("v_bfe_u32 v4, v3, 1, 1"); p("v_lshlrev_b32 v4, 1, v4"); p("v_or_b32 v4, s88, v4")
        p("v_xor_b32 v2, v2, v4")
        p("v_mul_u32_u24 v3, 7168, v3"); p("v_lshl_add_u32 v3, v2, 4, v3")
        p("s_mul_i32 s86, s3, 57344"); p("s_lshl_b32 s87, s85, 1"); p("s_add_u32 s86, s86, s87")
        p(f"v_add_u32 v{V_VD+i}, s86, v3")
    for w in range(2): addrT_setup(p, V, V_AT + 4 * w, 384, w * WIN)
    phase1(p, "kfW", [('T', b & 3, 32 * 384, 4 * 384, (b >> 2) * 128) for b in range(12)], NSO, 24576, 3, 64 * 7168, 128, 224, 4, PFY != 1, pf_fn=mk_pfj1(1),
           st1=(1, 0, 0, 5)[tm], st2=(2, 0, 0, 0)[tm] if tm != 3 else None, hook=lambda: hookX("kfxo", 1 + 3 * (NSO - 1) + (0 if (PFY == 1 or JIT) else len(pf(-2)))))
    p("s_barrier")
    def hookO():
        epi_W(12, 85, 128)
        if tm == 1: stamp(p, 1)
        p("s_waitcnt vmcnt(0)"); p("s_barrier")
        if tm == 1: stamp(p, 2)
        setflags([lambda: (p(f"s_lshl_b32 s86, s{S_MT}, 8"), p(f"s_lshl_b32 s87, s{S_NT}, 3"), p("s_add_u32 s86, s86, s87"), p("s_add_u32 s86, s86, 8320"))])
        if PFS: pf_setup(10, 1)
        if JIT:
            jit_addr(10, 1, 1)
            for x_ in jit_srd(1): p(x_)
        p(f"s_mul_i32 s{S2_KP}, s{S_G}, {56*1024}")
        srd(p, S2_SRDP, S_WS, S_WS + 1, HF_SZ, HF_OFF)
        p(f"s_lshl_b32 s86, s{S_TB}, 3"); p(f"s_lshl_b32 s87, s{S_WQ}, 1"); p("s_add_u32 s86, s86, s87"); p("s_mul_i32 s86, s86, 114688")
        p(f"v_lshlrev_b32 v{V2_VP}, 4, v1"); p(f"v_add_u32 v{V2_VP}, s86, v{V2_VP}"); p(f"v_add_u32 v{V2_VP+1}, 114688, v{V2_VP}")
        p(f"s_lshl_b32 s86, s{S_G}, 14")
        for w in range(2):
            addrT_setup(p, V, V2_A + 4 * w, 128, w * WIN)
            for b in range(4): p(f"v_add_u32 v{V2_A+4*w+b}, s86, v{V2_A+4*w+b}")
        poll("kf_O2", lambda: (p("v_and_b32 v2, 31, v1"), p("v_lshlrev_b32 v2, 3, v2"), p(f"s_lshr_b32 s86, s{S_TB}, 1"), p("s_lshl_b32 s86, s86, 8"), p("s_add_u32 s86, s86, 8192"), p("v_add_u32 v2, s86, v2")))
    gemm_mainloop(p, "kfo", 28, NS2, NPS2, S_CNT, mfmas_o, reads_o, mk_dmas2(131072), privs2, read_frac=cfg.get("k2o_rf", 0.7),
                  hook=hookO, pf=mk_pfj2(1, 28) if JIT else pf2, st1=(3, 3, 0, None)[tm], st2=(4, 4, 0, None)[tm])
    p(f"s_lshl_b32 s86, s{S_G}, 4"); p(f"s_lshl_b32 s87, s{S_WQ}, 1"); p("s_add_u32 s86, s86, s87"); p("s_lshl_b32 s60, s86, 10")
    p("s_mov_b32 s61, 1024"); p("s_mov_b32 s62, 8192"); p("s_mov_b32 s63, 9216")
    p(f"s_lshl_b32 s86, s{S_WQ}, 16"); p(f"s_lshl_b32 s87, s{S_G}, 7"); p("s_add_u32 s56, s86, s87")
    p("s_mov_b32 s57, 32768"); p("s_mov_b32 s58, 64"); p("s_mov_b32 s59, 32832")
    p(f"s_mov_b32 s52, {TG_OFF}"); p(f"s_mov_b32 s53, {TY_OFF}")

    final_setup()
    srd(p, 12, S_B2, S_B2 + 1, 2048)
    p("v_lshrrev_b32 v2, 4, v1"); p("v_lshlrev_b32 v2, 3, v2"); p(f"s_lshl_b32 s86, s{S_TA}, 8"); p(f"s_lshl_b32 s87, s{S_G}, 7"); p("s_add_u32 s86, s86, s87"); p("v_add_u32 v2, s86, v2")
    for b in range(4): p(f"buffer_load_dwordx2 v[{8+2*b}:{9+2*b}], v2, s[12:15], 0 offen offset:{32*b}")
    p("v_lshlrev_b32 v2, 4, v1"); p("s_lshl_b32 s86, s3, 13"); p("v_add_u32 v3, s86, v2"); p("s_xor_b32 s86, s86, 32768"); p("v_add_u32 v2, s86, v2")
    p("s_barrier")
    for u in range(8): p(f"ds_write_b128 v3, v[{64+4*u}:{67+4*u}] offset:{1024*u}")
    decision_write(8)
    p("s_waitcnt vmcnt(0) lgkmcnt(0)"); p("s_barrier")
    for u in range(8): p(f"ds_read_b128 v[{64+4*u}:{67+4*u}], v2 offset:{1024*u}")
    p(f"s_mov_b32 s92, {hex(f2u(-math.log2(math.e)))}")
    decision_read()
    for i in range(32): p(f"v_add_f32 v{96+i}, v{32+i}, v{64+i}")
    B_ = 16
    for b in range(4):
        for h in range(2):
            p(f"v_lshlrev_b32 v{B_+4*b+2*h}, 16, v{8+2*b+h}"); p(f"v_and_b32 v{B_+4*b+2*h+1}, 0xffff0000, v{8+2*b+h}")
    RES = 32
    for mp in range(2):
        src = [96 + ((2 * mp + k_) * 2 + i) * 4 + r for i in range(2) for k_ in range(2) for r in range(4)]
        bs = [B_ + (2 * mp + k_) * 4 + r for i in range(2) for k_ in range(2) for r in range(4)]
        T = RES + 8 * mp; U_ = 64; W_ = 80
        for i in range(8): p(f"v_cvt_pk_bf16_f32 v{T+i}, v{src[2*i]}, v{src[2*i+1]}")
        for i in range(8):
            p(f"v_lshlrev_b32 v{U_+2*i}, 16, v{T+i}"); p(f"v_and_b32 v{U_+2*i+1}, 0xffff0000, v{T+i}")
        for i in range(16): p(f"v_add_f32 v{U_+i}, v{U_+i}, v{bs[i]}")
        for i in range(8): p(f"v_cvt_pk_bf16_f32 v{T+i}, v{U_+2*i}, v{U_+2*i+1}")
        for i in range(8):
            p(f"v_lshlrev_b32 v{U_+2*i}, 16, v{T+i}"); p(f"v_and_b32 v{U_+2*i+1}, 0xffff0000, v{T+i}")
        for i in range(16): p(f"v_mul_f32 v{W_+i}, s92, v{U_+i}")
        for i in range(16): p(f"v_exp_f32 v{W_+i}, v{W_+i}")
        for i in range(16): p(f"v_add_f32 v{W_+i}, 1.0, v{W_+i}")
        for i in range(16): p(f"v_rcp_f32 v{W_+i}, v{W_+i}")
        for i in range(16): p(f"v_mul_f32 v{W_+i}, v{W_+i}, v{U_+i}")
        for i in range(8): p(f"v_cvt_pk_bf16_f32 v{T+i}, v{W_+2*i}, v{W_+2*i+1}")
    p("s_nop 1")
    for u in range(4):
        t = RES + 4 * u
        p(f"v_permlane16_swap_b32 v{t}, v{t+2}"); p(f"v_permlane16_swap_b32 v{t+1}, v{t+3}")

    p.label("kf_final")
    if tm == 2: stamp(p, 1)
    p("s_cmp_lg_u32 s55, 0"); p("s_cbranch_scc1 kf_combine2")
    if cfg.get("peek2", 1):
        p("s_cmp_lg_u32 s3, 0"); p("s_cbranch_scc1 kf_f1")
        p(f"buffer_load_dwordx2 v[8:9], v205, s[{S_FSRD}:{S_FSRD+3}], 0 offen{SC}")
        p("s_waitcnt vmcnt(0)")
        p("v_cmp_eq_u64 vcc, s[78:79], v[8:9]")
        p("s_nop 1")
        p("v_cndmask_b32 v8, 0, 1, vcc")
        p("ds_write_b32 v206, v8 offset:8")
        p("s_waitcnt lgkmcnt(0)")
        p.label("kf_f1")
        p("s_barrier")
        p("ds_read_b32 v8, v206 offset:8")
        p("s_waitcnt lgkmcnt(0)")
        p("v_readfirstlane_b32 s86, v8")
        p("s_cmp_lg_u32 s86, 0"); p("s_cbranch_scc1 kf_combine1")
    for u in range(4): p(f"buffer_store_dwordx4 v[{32+4*u}:{35+4*u}], v203, s[8:11], {so_u[u]} offen{SC}")
    p("s_waitcnt vmcnt(0)")
    p("s_barrier")
    p("s_cmp_lg_u32 s3, 0"); p("s_cbranch_scc1 kf_f2")
    p("v_mov_b32 v8, s78"); p("v_mov_b32 v9, s79")
    p("s_mov_b64 exec, 1")
    p(f"buffer_store_dwordx2 v[8:9], v204, s[{S_FSRD}:{S_FSRD+3}], 0 offen{SC}")
    p("s_mov_b64 exec, -1")
    p("s_waitcnt vmcnt(0)")
    p(f"buffer_load_dwordx2 v[8:9], v205, s[{S_FSRD}:{S_FSRD+3}], 0 offen{SC}")
    p("s_waitcnt vmcnt(0)")
    p("v_cmp_eq_u64 vcc, s[78:79], v[8:9]")
    p("s_nop 1")
    p("v_cndmask_b32 v8, 0, 1, vcc")
    p("ds_write_b32 v206, v8 offset:4")
    p("s_waitcnt lgkmcnt(0)")
    p.label("kf_f2")
    p("s_barrier")
    p("ds_read_b32 v8, v206 offset:4")
    p("s_waitcnt lgkmcnt(0)")
    p("v_readfirstlane_b32 s86, v8")
    p("s_cmp_eq_u32 s86, 0"); p("s_cbranch_scc1 kf_done")
    p.label("kf_combine1")
    for u in range(4): p(f"buffer_load_dwordx4 v[{OR+4*u}:{OR+4*u+3}], v203, s[44:47], {so_u[u]} offen{SC}")
    p.label("kf_combine2")
    if tm == 2: stamp(p, 2)
    OUTSC = ("", " sc1", " nt")[cfg.get("outsc", 0)]
    U_ = 96; W_ = 128; X_ = 48
    pr = lambda r: f"v[{r}:{r+1}]"
    for i in range(16):
        p(f"v_lshlrev_b32 v{U_+2*i}, 16, v{32+i}"); p(f"v_and_b32 v{U_+2*i+1}, 0xffff0000, v{32+i}")
    p("s_waitcnt vmcnt(4)")
    for i in range(16):
        p(f"v_lshlrev_b32 v{X_+2*i}, 16, v{XR+i}"); p(f"v_and_b32 v{X_+2*i+1}, 0xffff0000, v{XR+i}")
    p("s_waitcnt vmcnt(0)")
    for i in range(16):
        p(f"v_lshlrev_b32 v{W_+2*i}, 16, v{OR+i}"); p(f"v_and_b32 v{W_+2*i+1}, 0xffff0000, v{OR+i}")
    for i in range(0, 32, 2): p(f"v_pk_mul_f32 {pr(U_+i)}, {pr(U_+i)}, {pr(W_+i)}")
    for i in range(16): p(f"v_cvt_pk_bf16_f32 v{32+i}, v{U_+2*i}, v{U_+2*i+1}")
    for i in range(16):
        p(f"v_lshlrev_b32 v{U_+2*i}, 16, v{32+i}"); p(f"v_and_b32 v{U_+2*i+1}, 0xffff0000, v{32+i}")
    for i in range(0, 32, 2): p(f"v_pk_add_f32 {pr(U_+i)}, {pr(U_+i)}, {pr(X_+i)}")
    for i in range(16): p(f"v_cvt_pk_bf16_f32 v{32+i}, v{U_+2*i}, v{U_+2*i+1}")
    for u in range(4): p(f"buffer_store_dwordx4 v[{32+4*u}:{35+4*u}], v202, s[64:67], {so_out[u]} offen{OUTSC}")
    p.label("kf_done")
    if CFG.get("ts"): p("s_waitcnt vmcnt(0)")
    if tm != 3: stamp(p, 5)
    if cfg.get("tsdbg"):
        lab = p.newlabel("tsd"); lab2 = p.newlabel("tsd")
        p("s_cmp_lg_u32 s3, 0"); p(f"s_cbranch_scc1 {lab}")
        srd(p, 92, S_DBG, S_DBG + 1, 256)
        p("s_mov_b64 exec, 1")
        p("v_mov_b32 v2, 0"); p(f"v_mov_b32 v3, s{tsreg(5)}"); p(f"s_not_b32 s96, s{tsreg(0)}"); p("v_mov_b32 v4, s96")
        p("buffer_atomic_umax v3, v2, s[92:95], 0 offen offset:56 sc1")
        p("buffer_atomic_umax v4, v2, s[92:95], 0 offen offset:60 sc1")
        p("s_and_b32 s96, s2, 0xf7"); p("s_cmp_lg_u32 s96, 0"); p(f"s_cbranch_scc1 {lab2}")
        p("s_mul_i32 s96, s75, 24"); p("v_mov_b32 v2, s96")
        for i in range(6):
            p(f"v_mov_b32 v3, s{tsreg(i)}"); p(f"buffer_store_dword v3, v2, s[92:95], 0 offen offset:{8+4*i}")
        p.label(lab2)
        p("s_mov_b64 exec, -1")
        p.label(lab)
    else:
        stamp_store(p, 1, 6)
    p.label("kf_end")
    p("s_endpgm")
    p.label("kf_codeend")
    return name, 256, 102, 224

def generate(cfg):
    CFG.clear(); CFG.update(cfg); CFG["ts_noclk"] = 1; CFG["k0_fullflag"] = 1
    body = Prog()
    info = [("kf",) + gen_kf(body, cfg)]
    lds = {"k0": 0, "kf": 131072 + 8192}
    out = ["; FNet (dense DFT matmuls) + GELU FFN fused block; generated by dev/gen6.py"]
    for k in ("kf",):
        out.append(f"; @launch kernel={k}_kernel grid=(256,1,1) block=(512,1,1) lds={lds[k]}")
    out.append('.amdgcn_target "amdgcn-amd-amdhsa--gfx950"')
    out.append(".text")
    out += body.L
    out.append('.section .rodata,"a"')
    for k, name, nfv, nfs, acc in info:
        out += [".p2align 6", f".amdhsa_kernel {name}", f"  .amdhsa_next_free_vgpr {nfv}", f"  .amdhsa_next_free_sgpr {nfs}",
                f"  .amdhsa_accum_offset {acc}", "  .amdhsa_group_segment_fixed_size 0", "  .amdhsa_kernarg_size 104",
                "  .amdhsa_user_sgpr_count 2", "  .amdhsa_user_sgpr_kernarg_segment_ptr 1", "  .amdhsa_system_sgpr_workgroup_id_x 1",
                ".end_amdhsa_kernel"]
    return "\n".join(out) + "\n"

DEFAULT = dict(nsd=5, nsy=8, nso=5, k2_ns=4, k2_nps=4, pf1=2, pfk0=14, pfk1=20, pfk2=26, map1=1, nt1=1)
if __name__ == "__main__":
    cfg = dict(DEFAULT)
    fn = sys.argv[1] if len(sys.argv) > 1 else "full6.s"
    for a in sys.argv[2:]:
        k, v = a.split("=")
        cfg[k] = float(v) if "." in v else int(v)
    open(fn, "w").write(generate(cfg))
```

```python
import sys, math
import gen, gen2
from gen import *
from gen2 import gelu_batch, FL2_OFF, FL2_SZ
TY_OFF, TG_OFF = WSB + (28 << 20), WSB + (32 << 20)

def gelu_pk(p, src, bias, T, n):
    Pk = T; U_ = T + n // 2; W_ = U_ + n
    pr = lambda r: f"v[{r}:{r+1}]"
    for i in range(n // 2): p(f"v_cvt_pk_bf16_f32 v{Pk+i}, v{src[2*i]}, v{src[2*i+1]}")
    for i in range(n // 2):
        p(f"v_lshlrev_b32 v{U_+2*i}, 16, v{Pk+i}"); p(f"v_and_b32 v{U_+2*i+1}, 0xffff0000, v{Pk+i}")
    for i in range(0, n, 2): p(f"v_pk_add_f32 {pr(U_+i)}, {pr(U_+i)}, {pr(bias[i])}")
    for i in range(n // 2): p(f"v_cvt_pk_bf16_f32 v{Pk+i}, v{U_+2*i}, v{U_+2*i+1}")
    for i in range(n // 2):
        p(f"v_lshlrev_b32 v{U_+2*i}, 16, v{Pk+i}"); p(f"v_and_b32 v{U_+2*i+1}, 0xffff0000, v{Pk+i}")
    for i in range(0, n, 2): p(f"v_pk_mul_f32 {pr(W_+i)}, {pr(U_+i)}, {pr(U_+i)}")
    for i in range(0, n, 2): p(f"v_pk_fma_f32 {pr(W_+i)}, {pr(W_+i)}, s[90:91], v[2:3]")
    for i in range(0, n, 2): p(f"v_pk_mul_f32 {pr(W_+i)}, {pr(W_+i)}, {pr(U_+i)}")
    for i in range(n): p(f"v_exp_f32 v{W_+i}, v{W_+i}")
    for i in range(0, n, 2): p(f"v_pk_add_f32 {pr(W_+i)}, {pr(W_+i)}, 1.0 op_sel_hi:[1,0]")
    for i in range(n): p(f"v_rcp_f32 v{W_+i}, v{W_+i}")
    for i in range(0, n, 2): p(f"v_pk_mul_f32 {pr(W_+i)}, {pr(W_+i)}, {pr(U_+i)}")
    for i in range(n // 2): p(f"v_cvt_pk_bf16_f32 v{Pk+i}, v{W_+2*i}, v{W_+2*i+1}")

def gen_kf(p, cfg):
    name = "kf_kernel"
    CY, CO = 32, 192
    NSD, NSY, NSO, NS2, NPS2 = cfg["nsd"], cfg["nsy"], cfg["nso"], cfg["k2_ns"], cfg["k2_nps"]
    WIN = 65536
    BIAS_LDS = 131072
    SC = " sc1"
    tm = cfg.get("tsmode", 0)
    kernel_head(p, name)
    p("s_cmp_ge_u32 s2, 256"); p("s_cbranch_scc1 kf_end")
    load_ptrs(p)
    V = dict(lane=1, t0=2, t1=3, t2=4)
    V_VP, V_VD, V_PF, V_DUM, V_AK, V_AT = 8, 10, 13, 7, 16, 20
    V_VD2 = 28
    ACC = 32
    S_SRDP, S_SRDS, S_SOFF = 4, 44, 56
    S_KP, S_M0B, S_CNT, S_MT, S_NT = 80, 81, 82, 83, 84
    S2_SRDS, S2_SOFF, S2_M0B, S_TA, S_TB, S_G, S_X7, S_M, S_WQ, S_TILE = 64, 68, 69, 70, 71, 72, 73, 74, 76, 77
    S_FSRD = 48
    lane_consts(p, V)
    p(f"s_and_b32 s{S_X7}, s2, 7"); p("s_lshr_b32 s87, s2, 3"); p(f"s_lshr_b32 s{S_M}, s87, 1"); p("s_and_b32 s75, s87, 1")
    p(f"s_and_b32 s88, s{S_X7}, 1"); p("s_lshl_b32 s88, s88, 2"); p(f"s_and_b32 s89, s{S_M}, 3"); p(f"s_add_u32 s{S_MT}, s88, s89")
    p(f"s_lshr_b32 s88, s{S_X7}, 1"); p("s_lshl_b32 s88, s88, 2"); p(f"s_lshr_b32 s89, s{S_M}, 2"); p(f"s_add_u32 s{S_NT}, s88, s89")
    p(f"s_mov_b32 s{S_TA}, s{S_MT}"); p(f"s_mov_b32 s{S_TB}, s{S_NT}")
    if cfg.get("map1"):
        p(f"s_and_b32 s{S_MT}, s{S_M}, 7"); p(f"s_lshr_b32 s88, s{S_M}, 3"); p(f"s_lshl_b32 s89, s{S_X7}, 1"); p(f"s_add_u32 s{S_NT}, s88, s89")
    if cfg.get("xun"):
        p(f"s_and_b32 s75, s{S_X7}, 1"); p("s_lshr_b32 s87, s2, 3"); p(f"s_lshr_b32 s88, s{S_X7}, 1")
        p(f"s_and_b32 s{S_MT}, s87, 7"); p("s_lshr_b32 s89, s87, 3"); p("s_lshl_b32 s86, s88, 2"); p(f"s_add_u32 s{S_NT}, s86, s89")
        p("s_and_b32 s86, s88, 1"); p("s_lshl_b32 s86, s86, 2"); p("s_and_b32 s89, s87, 3"); p(f"s_add_u32 s{S_TA}, s86, s89")
        p("s_lshr_b32 s86, s88, 1"); p("s_lshl_b32 s86, s86, 3"); p("s_lshr_b32 s89, s87, 2"); p(f"s_add_u32 s{S_TB}, s86, s89")
    NT1 = " nt" if cfg.get("nt1") else ""
    JIT = cfg.get("jit", 0); JA = cfg.get("ja", 8)
    NT2 = " nt" if (JIT and cfg.get("nt2", 1)) else ""
    if JIT:
        p(f"s_lshl_b32 s88, s{S_X7}, 1"); p(f"s_lshr_b32 s89, s{S_M}, 3"); p("s_add_u32 s88, s88, s89"); p(f"s_and_b32 s89, s{S_M}, 7")
        p("s_cmp_eq_u32 s75, 0")
        p(f"s_cselect_b32 s{S_TB}, s88, s{S_M}"); p(f"s_cselect_b32 s{S_TA}, s89, s{S_X7}")
    def jit_addr(dst, typ, nst):
        nl = 4 if typ == 0 else 2
        sh = 2 if typ == 0 else 1
        p(f"s_lshl_b32 s86, s{S_M}, 3"); p("s_add_u32 s86, s86, s3"); p(f"s_lshl_b32 s86, s86, {sh}")
        p(f"v_and_b32 v2, {nl-1}, v1"); p(f"v_lshrrev_b32 v3, {sh}, v1")
        if typ == 0:
            p("s_and_b32 s87, s86, 255"); p(f"s_lshl_b32 s88, s{S_X7}, 8"); p("s_add_u32 s87, s87, s88"); p("s_lshl_b32 s87, s87, 12")
            p("v_lshlrev_b32 v2, 12, v2"); p("v_lshl_add_u32 v2, v3, 7, v2"); p("v_add_u32 v2, s87, v2")
        else:
            p("s_lshr_b32 s87, s86, 7"); p("s_mul_i32 s87, s87, 1792"); p("s_lshr_b32 s88, s86, 1"); p("s_and_b32 s88, s88, 63"); p("s_add_u32 s87, s87, s88")
            p("s_lshl_b32 s87, s87, 11"); p(f"s_lshl_b32 s88, s{S_X7}, 8"); p("s_add_u32 s87, s87, s88")
            p("v_lshlrev_b32 v2, 7, v2"); p("v_lshl_add_u32 v2, v3, 17, v2"); p("v_add_u32 v2, s87, v2")
        p("v_mov_b32 v3, 0x80000000")
        p(f"v_cmp_gt_u32 vcc, {nl*nst}, v1"); p("s_nop 1"); p(f"v_cndmask_b32 v{dst}, v3, v2, vcc")
    def jit_srd(typ):
        if typ == 0:
            return [f"s_cmp_lt_u32 s{S_M}, 8", f"s_cselect_b32 s8, s{S_CR}, s{S_CI}", f"s_cselect_b32 s9, s{S_CR+1}, s{S_CI+1}", "s_mov_b32 s10, 8388608", "s_mov_b32 s11, 0x20000"]
        return [f"s_mov_b32 s8, s{S_W2}", f"s_mov_b32 s9, s{S_W2+1}", "s_mov_b32 s10, 7340032", "s_mov_b32 s11, 0x20000"]
    def mk_pfj1(typ):
        def f(kappa):
            if kappa != cfg.get("jk", 22): return []
            return [(jit_srd(typ), f"buffer_load_dword v{V_DUM}, v{V_PF}, s[8:11], 0 offen nt")]
        return f
    def mk_pfj2(typ, nst):
        d = 128 if typ == 0 else 131072
        def f(kappa):
            if kappa < 0 or kappa % 2 or kappa // 2 + JA >= nst: return []
            return [([f"s_add_u32 s54, s54, {d}"] if kappa else [f"s_mov_b32 s54, {d*JA}"], "buffer_load_dword v12, v10, s[8:11], s54 offen nt")]
        return f
    p(f"s_lshl_b32 s{S_TILE}, s{S_TB}, 3"); p(f"s_add_u32 s{S_TILE}, s{S_TILE}, s{S_TA}")
    p(f"s_lshr_b32 s{S_G}, s3, 2"); p(f"s_and_b32 s{S_WQ}, s3, 3")
    if cfg.get("prio"):
        p(f"s_cmp_eq_u32 s{S_G}, 0"); p("s_cbranch_scc1 kf_noprio"); p("s_setprio 1"); p.label("kf_noprio")
    p(f"s_lshl_b32 s{S2_M0B}, s3, 12")
    p(f"s_mov_b32 s{S_KP}, 0")
    p(f"s_lshl_b32 s86, s{S_MT}, 4"); p("s_lshl_b32 s87, s3, 1"); p("s_add_u32 s86, s86, s87"); p("s_lshl_b32 s86, s86, 15")
    p(f"v_lshlrev_b32 v{V_VP}, 4, v1"); p(f"v_add_u32 v{V_VP}, s86, v{V_VP}"); p(f"v_add_u32 v{V_VP+1}, 32768, v{V_VP}")
    def pf_setup(dst, part):
        p("s_lshl_b32 s86, s2, 3"); p("s_add_u32 s86, s86, s3"); p("s_lshl_b32 s87, s86, 12"); p("s_lshl_b32 s86, s86, 7")
        p(f"v_lshlrev_b32 v{dst}, 7, v1"); p(f"v_add_u32 v{dst}, s87, v{dst}")
        p(f"v_lshlrev_b32 v{dst+1}, 18, v1"); p(f"v_add_u32 v{dst+1}, s86, v{dst+1}")
        p("v_mov_b32 v2, 0x80000000")
        mc = {None: 0xffffffff, 0: 0xffff, 1: 0xffff0000}[part]
        mw = {None: 0xfffffff, 0: 0x1fc07f, 1: 0xfe03f80}[part]
        p(f"s_mov_b32 vcc_lo, {hex(mc)}"); p("s_mov_b32 vcc_hi, 0"); p("s_nop 0"); p(f"v_cndmask_b32 v{dst}, v2, v{dst}, vcc")
        p(f"s_mov_b32 vcc_lo, {hex(mw)}"); p("s_nop 0"); p(f"v_cndmask_b32 v{dst+1}, v2, v{dst+1}, vcc")
    PFS = cfg.get("pfsplit", 0)
    PFY = cfg.get("pfy", 0)
    if PFY:
        p(f"s_lshl_b32 s86, s{S_M}, 3"); p(f"s_add_u32 s86, s86, s{S_X7}"); p("s_lshl_b32 s86, s86, 3"); p("s_add_u32 s86, s86, s3")
        p("s_lshl_b32 s87, s86, 13"); p("s_mul_i32 s86, s86, 7168")
        p(f"v_lshlrev_b32 v{V_PF+1}, 7, v1"); p(f"v_add_u32 v{V_PF}, s87, v{V_PF+1}"); p(f"v_add_u32 v{V_PF+1}, s86, v{V_PF+1}")
        p("v_mov_b32 v2, 0x80000000")
        p("v_cmp_gt_u32 vcc, 56, v1"); p("s_nop 1"); p(f"v_cndmask_b32 v{V_PF+1}, v2, v{V_PF+1}, vcc")
    else:
        pf_setup(V_PF, 0 if PFS else None)
    p("s_waitcnt lgkmcnt(0)")
    stamp(p, 0)
    srd(p, S_SRDP, S_WS, S_WS + 1, XF_SZ, XF_OFF)
    srd(p, S_FSRD, S_WS, S_WS + 1, FL2_SZ, FL2_OFF)
    srd(p, 8, S_X, S_X + 1, 4194304)
    srd(p, 12, S_DBG, S_DBG + 1, 256)
    p(f"s_lshl_b32 s86, s75, 4"); p(f"s_add_u32 s79, s86, s{S_NT}")
    p(f"s_lshl_b32 s86, s{S_MT}, 5"); p("s_add_u32 s86, s86, s79"); p("s_lshl_b32 s86, s86, 3"); p("s_add_u32 s86, s86, s3")
    p("s_lshl_b32 s87, s86, 11")
    p("v_lshlrev_b32 v40, 4, v1")
    NTX = " nt" if cfg.get("ntx") else ""
    p(f"buffer_load_dwordx4 v[48:51], v40, s[8:11], s87 offen{NTX}")
    p(f"buffer_load_dwordx4 v[52:55], v40, s[8:11], s87 offen offset:1024{NTX}")
    p("v_mov_b32 v44, 0")
    CPF = cfg.get("cpf", 0)
    if CPF:
        p("s_getpc_b64 s[92:93]")
        p.label("kf_pc")
        p("s_sub_u32 s92, s92, kf_pc-kf_kernel"); p("s_subb_u32 s93, s93, 0")
        p("s_mov_b32 s94, kf_codeend-kf_kernel"); p("s_mov_b32 s95, 0x20000")
        p("v_lshlrev_b32 v41, 7, v0")
        for i in range(CPF):
            p(f"s_mov_b32 s87, {65536*i}")
            p(f"buffer_load_dword v39, v41, s[92:95], s87 offen")
    p(f"s_lshl_b32 s87, s{S_MT}, 8"); p("s_lshl_b32 s88, s79, 3"); p("s_add_u32 s60, s87, s88")
    p("s_or_b32 s87, s2, s3"); p("s_cmp_lg_u32 s87, 0"); p("s_cbranch_scc1 kf_notok")
    p("s_memrealtime s[88:89]"); p("s_waitcnt lgkmcnt(0)")
    p("s_or_b32 s88, s88, 1"); p("s_xor_b32 s89, s89, 0x5bd1e995")
    p("v_mov_b32 v42, s88"); p("v_mov_b32 v43, s89")
    p("s_mov_b64 exec, 1")
    p("buffer_store_dwordx2 v[42:43], v44, s[12:15], 0 offen sc1")
    p("s_mov_b64 exec, -1")
    p("s_waitcnt vmcnt(0)")
    p.label("kf_notok")
    p("s_lshr_b32 s87, s86, 4"); p("s_lshl_b32 s87, s87, 15"); p("s_and_b32 s88, s86, 8"); p("s_lshl_b32 s88, s88, 4"); p("s_add_u32 s61, s87, s88")
    p("s_lshl_b32 s87, s3, 12"); p("s_add_u32 s61, s61, s87")
    p("v_lshrrev_b32 v45, 5, v1"); p("v_lshlrev_b32 v45, 10, v45"); p("v_bfe_u32 v46, v1, 3, 2"); p("v_lshl_add_u32 v45, v46, 8, v45")
    p("v_and_b32 v46, 7, v1"); p("v_lshl_add_u32 v45, v46, 4, v45")
    p("s_lshl_b32 s87, s3, 4"); p("s_add_u32 s87, s87, 98304"); p("v_lshlrev_b32 v46, 7, v1"); p("v_add_u32 v46, s87, v46")
    p("s_lshl_b32 s87, s3, 11"); p("s_add_u32 s87, s87, 98304"); p("v_add_u32 v47, s87, v40")
    p("s_cmp_eq_u32 s75, 1"); p("s_cbranch_scc1 kf_typeO")

    def ln_body(ndma):
        X0 = 56
        p(f"s_waitcnt vmcnt({ndma+1})")
        for i in range(4):
            p(f"v_lshlrev_b32 v{X0+2*i}, 16, v{48+i}"); p(f"v_and_b32 v{X0+1+2*i}, 0xffff0000, v{48+i}")
        p(f"s_waitcnt vmcnt({ndma})")
        if tm == 3: stamp(p, 1)
        for i in range(4, 8):
            p(f"v_lshlrev_b32 v{X0+2*i}, 16, v{48+i}"); p(f"v_and_b32 v{X0+1+2*i}, 0xffff0000, v{48+i}")
        def wave_sum(src, tmp, sbase):
            for ctl in ("quad_perm:[1,0,3,2]", "quad_perm:[2,3,0,1]", "row_half_mirror", "row_mirror"):
                p("s_nop 1")
                p(f"v_add_f32_dpp v{tmp}, v{src}, v{src} {ctl} row_mask:0xf bank_mask:0xf")
                p(f"v_mov_b32 v{src}, v{tmp}")
            p("s_nop 0")
            for i in range(4): p(f"v_readlane_b32 s{sbase+i}, v{src}, {16*i}")
            p("s_nop 1")
            p(f"v_mov_b32 v{src}, s{sbase}")
            for i in range(1, 4): p(f"v_add_f32 v{src}, s{sbase+i}, v{src}")
        A_ = 72; D_ = 84
        for i in range(8): p(f"v_add_f32 v{A_+i}, v{X0+2*i}, v{X0+1+2*i}")
        for st in (4, 2, 1):
            for i in range(st): p(f"v_add_f32 v{A_+i}, v{A_+i}, v{A_+i+st}")
        wave_sum(A_, A_ + 1, 86)
        p(f"v_mul_f32 v{A_}, {hex(f2u(1.0/1024))}, v{A_}")
        for i in range(16): p(f"v_sub_f32 v{D_+i}, v{X0+i}, v{A_}")
        for i in range(8):
            p(f"v_mul_f32 v{A_+2+i}, v{D_+2*i}, v{D_+2*i}"); p(f"v_fmac_f32 v{A_+2+i}, v{D_+1+2*i}, v{D_+1+2*i}")
        for st in (4, 2, 1):
            for i in range(st): p(f"v_add_f32 v{A_+2+i}, v{A_+2+i}, v{A_+2+i+st}")
        wave_sum(A_ + 2, A_ + 3, 86)
        M_, V_, R_ = A_, A_ + 2, A_ + 3
        p(f"v_mul_f32 v{V_}, {hex(f2u(1.0/1024))}, v{V_}")
        p(f"v_cvt_pk_bf16_f32 v{R_}, v{M_}, v{V_}")
        p(f"v_lshlrev_b32 v{M_}, 16, v{R_}"); p(f"v_and_b32 v{V_}, 0xffff0000, v{R_}")
        p(f"v_add_f32 v{V_}, {hex(f2u(1e-5))}, v{V_}")
        p(f"v_cvt_pk_bf16_f32 v{V_}, v{V_}, v{V_}"); p(f"v_lshlrev_b32 v{V_}, 16, v{V_}")
        p(f"v_sqrt_f32 v{V_}, v{V_}"); p("s_nop 0")
        p(f"v_cvt_pk_bf16_f32 v{V_}, v{V_}, v{V_}"); p(f"v_lshlrev_b32 v{V_}, 16, v{V_}")
        p(f"v_rcp_f32 v{R_}, v{V_}")
        for i in range(16): p(f"v_sub_f32 v{X0+i}, v{X0+i}, v{M_}")
        for i in range(8): p(f"v_cvt_pk_bf16_f32 v{48+i}, v{X0+2*i}, v{X0+1+2*i}")
        for i in range(8):
            p(f"v_lshlrev_b32 v{X0+2*i}, 16, v{48+i}"); p(f"v_and_b32 v{X0+1+2*i}, 0xffff0000, v{48+i}")
        for i in range(16): p(f"v_mul_f32 v{D_+i}, v{X0+i}, v{R_}")
        for i in range(16): p(f"v_fma_f32 v{X0+i}, -v{D_+i}, v{V_}, v{X0+i}")
        for i in range(16): p(f"v_fmac_f32 v{D_+i}, v{X0+i}, v{R_}")
        for i in range(8): p(f"v_cvt_pk_bf16_f32 v{48+i}, v{D_+2*i}, v{D_+1+2*i}")
        p("ds_write_b128 v46, v[48:51]"); p("ds_write_b128 v46, v[52:55] offset:8192")
        srd(p, 12, S_DBG, S_DBG + 1, 256); p("buffer_load_dwordx2 v[42:43], v44, s[12:15], 0 offen sc1")
        p("s_waitcnt lgkmcnt(0)"); p("s_barrier")
        p("ds_read_b128 v[48:51], v47"); p("ds_read_b128 v[52:55], v47 offset:1024")
        p("s_waitcnt lgkmcnt(0)")
        p(f"buffer_store_dwordx4 v[48:51], v45, s[{S_SRDP}:{S_SRDP+3}], s61 offen sc1")
        p(f"buffer_store_dwordx4 v[52:55], v45, s[{S_SRDP}:{S_SRDP+3}], s61 offen offset:2048 sc1")
        if tm == 3: stamp(p, 2)

    def hookX(tag, ndma):
        ln_body(ndma + CPF)
        if tm == 3: stamp(p, 3)
        p(f"s_waitcnt vmcnt(0)"); p("s_barrier")
        if tm == 3: stamp(p, 4)
        p("s_cmp_lg_u32 s3, 0"); p(f"s_cbranch_scc1 {tag}_w")
        p("v_readfirstlane_b32 s78, v42"); p("v_readfirstlane_b32 s79, v43")
        p("s_cmp_lg_u32 s78, 0"); p(f"s_cbranch_scc1 {tag}_t2")
        srd(p, 12, S_DBG, S_DBG + 1, 256)
        p("v_mov_b32 v2, 0"); p("s_mov_b32 s93, 400000")
        p.label(tag + "_t")
        p("buffer_load_dwordx2 v[4:5], v2, s[12:15], 0 offen sc1")
        p("s_waitcnt vmcnt(0)")
        p("v_readfirstlane_b32 s78, v4"); p("v_readfirstlane_b32 s79, v5")
        p("s_cmp_lg_u32 s78, 0"); p(f"s_cbranch_scc1 {tag}_t2")
        p("s_sleep 1"); p("s_sub_u32 s93, s93, 1"); p("s_cmp_lg_u32 s93, 0"); p(f"s_cbranch_scc1 {tag}_t")
        p.label(tag + "_t2")
        p("v_mov_b32 v4, s78"); p("v_mov_b32 v5, s79")
        p("v_mov_b32 v2, s60")
        p("s_mov_b64 exec, 1")
        p(f"buffer_store_dwordx2 v[4:5], v2, s[{S_FSRD}:{S_FSRD+3}], 0 offen sc1")
        p("s_mov_b64 exec, -1")
        p("v_and_b32 v2, 31, v1"); p("v_lshlrev_b32 v2, 3, v2"); p(f"s_lshl_b32 s86, s{S_MT}, 8"); p("v_add_u32 v2, s86, v2")
        p("s_mov_b32 s93, 400000")
        p.label(tag + "_p")
        p(f"buffer_load_dwordx2 v[4:5], v2, s[{S_FSRD}:{S_FSRD+3}], 0 offen sc1")
        p("s_waitcnt vmcnt(0)")
        p("v_cmp_ne_u64 vcc, s[78:79], v[4:5]")
        p(f"s_cbranch_vccz {tag}_w")
        p("s_sleep 1"); p("s_sub_u32 s93, s93, 1"); p("s_cmp_lg_u32 s93, 0"); p(f"s_cbranch_scc1 {tag}_p")
        p.label(tag + "_w")
        p("s_barrier")

    def mkpreg(vbase, nv):
        return lambda r: vr(vbase + r, 4) if r < nv else ar(r - nv, 4)
    def pf(kappa):
        if cfg.get("pf1", 2) == 3:
            if kappa < 0: return []
            m, j = (0, kappa) if kappa < 11 else ((1, kappa - 11) if kappa < 22 else (2, kappa - 22))
            b = (S_CR, S_CI, S_W2)[m]
            pre = [] if j else [f"s_mov_b32 s8, s{b}", f"s_mov_b32 s9, s{b+1}", f"s_mov_b32 s10, {(8388608, 8388608, 7340032)[m]}", "s_mov_b32 s11, 0x20000"]
            pre = pre + [f"v_add_u32 v6, {hex((-(j << 28)) & 0xffffffff)}, v{V_PF + (1 if m == 2 else 0)}"]
            return [(pre, f"buffer_load_dword v{V_DUM}, v6, s[8:11], 0 offen")]
        if not cfg.get("pf1", 2): return []
        ks = (cfg.get("pfk0", 8), cfg.get("pfk1", 16), cfg.get("pfk2", 24))
        out = []
        for m in range(3):
            if ks[m] != kappa: continue
            b = (S_CR, S_CI, S_W2)[m]
            pre = [f"s_mov_b32 s8, s{b}", f"s_mov_b32 s9, s{b+1}", f"s_mov_b32 s10, {(8388608, 8388608, 7340032)[m]}", "s_mov_b32 s11, 0x20000"]
            out.append((pre, f"buffer_load_dword v{V_DUM}, v{V_PF + (1 if m == 2 else 0)}, s[8:11], 0 offen"))
        return out
    def pf2(kappa):
        if not PFS: return []
        ks = (cfg.get("pf2k0", 2), cfg.get("pf2k1", 6), cfg.get("pf2k2", 10))
        out = []
        for m in range(3):
            if ks[m] != kappa: continue
            b = (S_CR, S_CI, S_W2)[m]
            pre = [f"s_mov_b32 s8, s{b}", f"s_mov_b32 s9, s{b+1}", f"s_mov_b32 s10, {(8388608, 8388608, 7340032)[m]}", "s_mov_b32 s11, 0x20000"]
            out.append((pre, f"buffer_load_dword v12, v{10 + (1 if m == 2 else 0)}, s[8:11], 0 offen"))
        return out
    def flag_ops(vaddr, off):
        return (["s_mov_b64 exec, 1"], f"buffer_store_dword v7, v{vaddr}, s[{S_FSRD}:{S_FSRD+3}], 0 offen offset:{off}{SC}", ["s_mov_b64 exec, -1"])

    def phase1(pp, tag, blocks, NS, STG, nslot, delta, SH, PV, NPS, use_pf, dmas_fn=None, pf_fn=None, **kw):
        nb = len(blocks)
        preg = mkpreg(PV, 224 - PV)
        def dmas(stage):
            out = []
            for i in range(nslot):
                pre = [f"s_add_u32 m0, s{S_M0B}, {(stage % NS) * STG + 1024 * i}"]
                if i == 0 and stage > 0: pre.insert(0, f"s_add_u32 s{S_SOFF}, s{S_SOFF}, {delta}")
                out.append((pre, f"buffer_load_dwordx4 v{V_VD+i}, s[{S_SRDS}:{S_SRDS+3}], s{S_SOFF} offen{NT1} lds"))
            return out
        def privs(kappa):
            out = []
            for i in range(2):
                pre = []
                if i == 0 and kappa % 4 == 0 and kappa > 0: pre = [f"s_add_u32 s{S_KP}, s{S_KP}, 4096"]
                out.append((pre, f"buffer_load_dwordx4 {preg((kappa % NPS) * 8 + 4 * i)}, v{V_VP+i}, s[{S_SRDP}:{S_SRDP+3}], s{S_KP} offen offset:{(kappa%4)*1024}{SC}"))
            return out
        def reads(kappa):
            s, kk = divmod(kappa, 2)
            ring = (s % NS) * STG
            out = []
            for b, bl in enumerate(blocks):
                a = SH + kk * nb * 4 + 4 * b
                if bl[0] == 'K':
                    off = ring + bl[1]; w = off // WIN
                    out.append(f"ds_read_b128 {vr(a,4)}, v{V_AK+2*w+kk} offset:{off - w*WIN}")
                else:
                    for hh in range(2):
                        off = ring + bl[4] + kk * bl[2] + hh * bl[3]; w = off // WIN
                        out.append(f"ds_read_b64_tr_b16 {vr(a+2*hh,2)}, v{V_AT+4*w+bl[1]} offset:{off - w*WIN}")
            return out
        def mfmas(kappa):
            kk = kappa % 2
            out = []
            for b, bl in enumerate(blocks):
                for i in range(2):
                    acc = ACC + (b * 2 + i) * 4
                    S = vr(SH + kk * nb * 4 + 4 * b, 4); P = preg((kappa % NPS) * 8 + 4 * i)
                    c = vr(acc, 4) if kappa > 0 else "0"
                    out.append(f"{MF} {vr(acc,4)}, {P}, {S}, {c}" if bl[0] == 'K' else f"{MF} {vr(acc,4)}, {S}, {P}, {c}")
            return out
        gemm_mainloop(pp, tag, 16, NS, NPS, S_CNT, mfmas, reads, dmas_fn or dmas, privs, pf=pf_fn if JIT else (pf if use_pf else None), read_frac=cfg.get("k1_rf", 0.7), **kw)

    def bias_dma(f0):
        srd(p, 12, S_B1, S_B1 + 1, 7168)
        p("v_lshlrev_b32 v2, 4, v1")
        p(f"s_lshl_b32 s86, s{f0}, 1")
        p("s_lshl_b32 s87, s3, 10"); p(f"s_add_u32 m0, s87, {BIAS_LDS}")
        p("s_nop 0")
        p("buffer_load_dwordx4 v2, s[12:15], s86 offen lds")
    def epi_W(nb, f0, TB, b0=0):
        srd(p, 8, S_WS, S_WS + 1, HF_SZ, HF_OFF)
        BPf = lambda n: 8 + 2 * n if n < 10 else 216 + 2 * (n - 10)
        p("v_lshrrev_b32 v2, 4, v1")
        p("s_lshl_b32 s87, s3, 10"); p(f"s_add_u32 s87, s87, {BIAS_LDS}")
        p("v_lshlrev_b32 v3, 3, v2"); p("v_add_u32 v3, s87, v3")
        for n in range(nb): p(f"ds_read_b64 v[{BPf(n)}:{BPf(n)+1}], v3 offset:{32*n}")
        p(f"s_mov_b32 s90, {hex(f2u(C2))}"); p(f"v_mov_b32 v5, {hex(f2u(C1))}")
        p("v_and_b32 v3, 1, v2"); p("v_lshlrev_b32 v3, 1, v3"); p("v_lshrrev_b32 v4, 1, v2"); p("v_or_b32 v3, v3, v4")
        p("v_lshlrev_b32 v3, 8, v3"); p("v_and_b32 v4, 15, v1"); p("v_lshl_add_u32 v4, v4, 4, v3")
        p(f"s_lshl_b32 s86, s{S_MT}, 4"); p("s_lshl_b32 s87, s3, 1"); p("s_add_u32 s86, s86, s87"); p("s_mul_i32 s86, s86, 114688")
        p(f"s_lshl_b32 s87, s{f0}, 5"); p("s_add_u32 s86, s86, s87")
        p(f"s_mov_b32 s91, s90"); p("v_mov_b32 v2, v5"); p("v_mov_b32 v3, v5")
        p("s_waitcnt lgkmcnt(0)")
        BF = TB
        for n0 in range(0, nb, 2):
            for k_ in range(2):
                for h in range(2):
                    p(f"v_lshlrev_b32 v{BF+4*k_+2*h}, 16, v{BPf(n0+k_)+h}")
                    p(f"v_and_b32 v{BF+4*k_+2*h+1}, 0xffff0000, v{BPf(n0+k_)+h}")
            src = []; bs = []
            for i in range(2):
                for k_ in range(2):
                    src += [ACC + ((b0 + n0 + k_) * 2 + i) * 4 + r for r in range(4)]
                    bs += [BF + 4 * k_ + r for r in range(4)]
            T0 = TB + 8 + (40 if (n0 // 2) % 2 else 0)
            gelu_pk(p, src, bs, T0, 16)
            for i in range(2):
                p(f"s_add_u32 s87, s86, {114688*i + 1024*(n0//2)}")
                t = T0 + 4 * i
                if i == 0: p("s_nop 0")
                p(f"v_permlane16_swap_b32 v{t}, v{t+2}"); p(f"v_permlane16_swap_b32 v{t+1}, v{t+3}")
                p(f"buffer_store_dwordx4 v[{t}:{t+3}], v4, s[8:11], s87 offen{SC}")
        return nb

    STG2 = 32768
    V2_VP, V2_A = 8, 20
    SH2 = 96
    preg2 = mkpreg(160, 64)
    S2_SRDP, S2_KP = 4, 80
    def privs2(kappa):
        out = []
        for i in range(2):
            pre = []
            if i == 0 and kappa % 4 == 0 and kappa > 0: pre = [f"s_add_u32 s{S2_KP}, s{S2_KP}, 4096"]
            out.append((pre, f"buffer_load_dwordx4 {preg2((kappa % NPS2) * 8 + 4 * i)}, v{V2_VP+i}, s[{S2_SRDP}:{S2_SRDP+3}], s{S2_KP} offen offset:{(kappa%4)*1024}{SC}"))
        return out
    def mk_dmas2(delta):
        def dmas(stage):
            out = []
            for i in range(4):
                pre = [f"s_add_u32 m0, s{S2_M0B}, {(stage % NS2) * STG2 + 1024 * i}"]
                if i == 0 and stage > 0: pre.insert(0, f"s_add_u32 s{S2_SOFF}, s{S2_SOFF}, {delta}")
                out.append((pre, f"buffer_load_dwordx4 v{V_VD2+i}, s[{S2_SRDS}:{S2_SRDS+3}], s{S2_SOFF} offen{NT2} lds"))
            return out
        return dmas
    def reads_o(kappa):
        s, kk = divmod(kappa, 2)
        out = []
        for b in range(8):
            for hh in range(2):
                off = (s % NS2) * STG2 + (b >> 2) * 8192 + kk * 4096 + hh * 512; w = off // WIN
                out.append(f"ds_read_b64_tr_b16 {vr(SH2 + kk*32 + 4*b + 2*hh, 2)}, v{V2_A+4*w+(b&3)} offset:{off - w*WIN}")
        return out
    def mfmas_o(kappa):
        kk = kappa % 2
        return [f"{MF} {vr(ACC+(b*2+i)*4,4)}, {vr(SH2+kk*32+4*b,4)}, {preg2((kappa%NPS2)*8+4*i)}, {vr(ACC+(b*2+i)*4,4) if kappa > 0 else '0'}"
                for b in range(8) for i in range(2)]
    def reads_y(kappa):
        s, kk = divmod(kappa, 2)
        out = []
        for b in range(8):
            off = (s % NS2) * STG2 + 2048 * b; w = off // WIN
            out.append(f"ds_read_b128 {vr(SH2 + kk*32 + 4*b, 4)}, v{V2_A+2*w+kk} offset:{off - w*WIN}")
        return out
    def mfmas_y(kappa):
        kk = kappa % 2
        return [f"{MF} {vr(ACC+(i*8+b)*4,4)}, {preg2((kappa%NPS2)*8+4*i)}, {vr(SH2+kk*32+4*b,4)}, {vr(ACC+(i*8+b)*4,4) if kappa > 0 else '0'}"
                for b in range(8) for i in range(2)]
    def split(fn):
        tp = Prog(); tp.uid = p.uid
        fn(tp, lambda: tp.raw("@SPLIT"))
        p.uid = tp.uid
        i = tp.L.index("@SPLIT")
        return tp.L[:i], tp.L[i + 1:]

    def poll(label, setup):
        p("s_cmp_lg_u32 s3, 0"); p(f"s_cbranch_scc1 {label}_w")
        setup()
        p("s_mov_b32 s93, 400000")
        p.label(label + "_p")
        p(f"buffer_load_dwordx2 v[4:5], v2, s[{S_FSRD}:{S_FSRD+3}], 0 offen{SC}")
        p("s_waitcnt vmcnt(0)")
        p("v_cmp_ne_u64 vcc, s[78:79], v[4:5]")
        p(f"s_cbranch_vccz {label}_w")
        p(f"s_sleep {cfg.get('poll_sleep', 1)}")
        p("s_sub_u32 s93, s93, 1"); p("s_cmp_lg_u32 s93, 0")
        p(f"s_cbranch_scc1 {label}_p")
        p.label(label + "_w")
        p("s_barrier")
    def setflags(addr_exprs):
        lab = p.newlabel("sf")
        p("s_cmp_lg_u32 s3, 0"); p(f"s_cbranch_scc1 {lab}")
        p("v_mov_b32 v6, s78"); p("v_mov_b32 v7, s79")
        p("s_mov_b64 exec, 1")
        for f in addr_exprs:
            f(); p("v_mov_b32 v5, s86")
            p(f"buffer_store_dwordx2 v[6:7], v5, s[{S_FSRD}:{S_FSRD+3}], 0 offen{SC}")
        p("s_mov_b64 exec, -1")
        p.label(lab)

    XR, OR = 160, 176
    so_out = ["0", "s57", "s58", "s59"]; so_u = ["0", "s61", "s62", "s63"]
    def final_setup():
        srd(p, 4, S_X, S_X + 1, 4194304)
        srd(p, 64, S_OUT, S_OUT + 1, 4194304)
        p(f"s_add_u32 s8, s{S_WS}, s52"); p(f"s_addc_u32 s9, s{S_WS+1}, 0"); p("s_mov_b32 s10, 4194304"); p("s_mov_b32 s11, 0x20000")
        p(f"s_add_u32 s44, s{S_WS}, s53"); p(f"s_addc_u32 s45, s{S_WS+1}, 0"); p("s_mov_b32 s46, 4194304"); p("s_mov_b32 s47, 0x20000")
        p(f"s_lshl_b32 s86, s{S_TILE}, 7"); p("s_add_u32 s86, s86, 16384"); p("s_lshl_b32 s87, s75, 6"); p("s_add_u32 s86, s86, s87")
        p("v_mov_b32 v204, s86"); p("v_xor_b32 v205, 64, v204"); p("v_mov_b32 v206, 65536")
        lab = p.newlabel("fs")
        p("s_cmp_lg_u32 s3, 0"); p(f"s_cbranch_scc1 {lab}")
        p(f"buffer_load_dwordx2 v[200:201], v205, s[{S_FSRD}:{S_FSRD+3}], 0 offen{SC}")
        p.label(lab)
        p("v_lshrrev_b32 v2, 4, v1"); p("v_and_b32 v3, 1, v2"); p("v_lshlrev_b32 v3, 5, v3"); p("v_lshrrev_b32 v2, 1, v2"); p("v_lshl_add_u32 v3, v2, 4, v3")
        p("v_and_b32 v2, 15, v1"); p("v_lshl_add_u32 v3, v2, 11, v3")
        p(f"s_lshl_b32 s86, s{S_TB}, 18"); p(f"s_lshl_b32 s87, s{S_TA}, 8"); p("s_add_u32 s86, s86, s87"); p("s_add_u32 s86, s86, s56")
        p("v_add_u32 v202, s86, v3")
        p(f"s_lshl_b32 s86, s{S_TILE}, 15"); p("s_add_u32 s86, s86, s60")
        p("v_lshlrev_b32 v2, 4, v1"); p("v_add_u32 v203, s86, v2")
        for u in range(4): p(f"buffer_load_dwordx4 v[{XR+4*u}:{XR+4*u+3}], v202, s[4:7], {so_out[u]} offen")
    def decision_write(nyounger):
        lab = p.newlabel("dw")
        p("s_cmp_lg_u32 s3, 0"); p(f"s_cbranch_scc1 {lab}")
        p(f"s_waitcnt vmcnt({nyounger})")
        p("v_cmp_eq_u64 vcc, s[78:79], v[200:201]")
        p("s_nop 1")
        p("v_cndmask_b32 v200, 0, 1, vcc")
        p("ds_write_b32 v206, v200")
        p.label(lab)
    def decision_read():
        p("ds_read_b32 v200, v206")
        p("s_waitcnt lgkmcnt(0)")
        p("v_readfirstlane_b32 s55, v200")
        lab = p.newlabel("dr")
        p("s_cmp_eq_u32 s55, 0"); p(f"s_cbranch_scc1 {lab}")
        for u in range(4): p(f"buffer_load_dwordx4 v[{OR+4*u}:{OR+4*u+3}], v203, s[44:47], {so_u[u]} offen{SC}")
        p.label(lab)

    p(f"s_mov_b32 s{S2_SOFF}, 0")
    p(f"s_cmp_eq_u32 s{S_G}, 0")
    p(f"s_cselect_b32 s{S2_SRDS}, s{S_CR}, s{S_CI}"); p(f"s_cselect_b32 s{S2_SRDS+1}, s{S_CR+1}, s{S_CI+1}")
    p(f"s_mov_b32 s{S2_SRDS+2}, 8388608"); p(f"s_mov_b32 s{S2_SRDS+3}, 0x20000")
    voffK_lane(p, V, 5, 4096, 0)
    p(f"s_lshl_b32 s86, s{S_WQ}, 5"); p(f"s_lshl_b32 s87, s{S_G}, 6"); p("s_xor_b32 s86, s86, s87")
    p(f"s_lshl_b32 s87, s{S_TB}, 7"); p("s_add_u32 s86, s86, s87"); p("s_lshl_b32 s86, s86, 12")
    p(f"v_add_u32 v{V_VD2}, s86, v5")
    p(f"v_xor_b32 v{V_VD2+1}, 64, v{V_VD2}"); p(f"v_add_u32 v{V_VD2+1}, 32768, v{V_VD2+1}")
    p(f"v_add_u32 v{V_VD2+2}, 65536, v{V_VD2}"); p(f"v_add_u32 v{V_VD2+3}, 65536, v{V_VD2+1}")
    if JIT: jit_addr(V_PF, 0, JA)
    p(f"s_cmp_lt_u32 s{S_NT}, 8")
    p(f"s_cselect_b32 s{S_SRDS}, s{S_DR}, s{S_DI}"); p(f"s_cselect_b32 s{S_SRDS+1}, s{S_DR+1}, s{S_DI+1}")
    p(f"s_mov_b32 s{S_SRDS+2}, 2097152"); p(f"s_mov_b32 s{S_SRDS+3}, 0x20000")
    srd(p, 52, S_W1, S_W1 + 1, 7340032)
    p(f"s_mov_b32 s{S_SOFF}, 0"); p(f"s_mov_b32 s{S_SOFF+1}, 0"); p(f"s_lshl_b32 s{S_M0B}, s3, 11"); p("s_lshl_b32 s58, s3, 10"); p("s_add_u32 s58, s58, 16384")
    voffK_lane(p, V, 5, 2048, 0)
    p(f"s_and_b32 s86, s{S_NT}, 7"); p("s_lshl_b32 s86, s86, 7"); p("s_lshl_b32 s87, s3, 4"); p("s_add_u32 s86, s86, s87"); p("s_lshl_b32 s86, s86, 11")
    p(f"v_add_u32 v{V_VD}, s86, v5")
    p(f"v_xor_b32 v{V_VD+1}, 64, v{V_VD}"); p(f"v_add_u32 v{V_VD+1}, 16384, v{V_VD+1}")
    p(f"s_mul_i32 s85, s{S_NT}, {CY}")
    bias_dma(85)
    voffT8_lane(p, V, 5, 7168, 0)
    p("s_and_b32 s88, s3, 1"); p("s_lshl_b32 s88, s88, 6"); p("s_mul_i32 s86, s3, 57344"); p("s_lshl_b32 s87, s85, 1"); p("s_add_u32 s86, s86, s87")
    p("v_xor_b32 v5, s88, v5"); p("v_and_b32 v2, 64, v5"); p("v_add_u32 v5, s86, v5")
    p("v_cmp_eq_u32 vcc, 0, v2"); p("v_mov_b32 v4, 0x80000000"); p("s_nop 0"); p(f"v_cndmask_b32 v{V_VD+2}, v4, v5, vcc")
    for w in range(2):
        addrK_setup(p, V, V_AK + 2 * w, V_AK + 2 * w + 1, w * WIN)
        addrT_setup(p, V, V_AT + 4 * w, 128, w * WIN)
    def dmasM(stage):
        ring = (stage % NSD) * 24576
        out = []
        for i in range(2):
            pre = [f"s_add_u32 m0, s{S_M0B}, {ring + 1024 * i}"]
            if i == 0 and stage > 0: pre.insert(0, f"s_add_u32 s{S_SOFF}, s{S_SOFF}, 128")
            out.append((pre, f"buffer_load_dwordx4 v{V_VD+i}, s[{S_SRDS}:{S_SRDS+3}], s{S_SOFF} offen{NT1} lds"))
        pre = [f"s_add_u32 m0, s58, {ring}"]
        if stage > 0: pre.insert(0, f"s_add_u32 s{S_SOFF+1}, s{S_SOFF+1}, {64*7168}")
        out.append((pre, f"buffer_load_dwordx4 v{V_VD+2}, s[52:55], s{S_SOFF+1} offen{NT1} lds"))
        return out
    YS = cfg.get("ysplit", 0)
    if not YS:
        phase1(p, "kfm", [('K', 2048 * b) for b in range(8)] + [('T', b, 4096, 512, 16384) for b in range(2)], NSD, 24576, 3, 0, 112, 192, 8, PFY != 2,
               dmas_fn=dmasM, pf_fn=mk_pfj1(0), st1=(1, 0, 0, 5)[tm], st2=(2, 0, 0, 0)[tm] if tm != 3 else None, hook=lambda: hookX("kfxy", 1 + 3 * (NSD - 1) + (0 if (PFY == 2 or JIT) else len(pf(-2)))))
        p("s_barrier")
    else:
        NSD2 = cfg.get("nsd2", 6)
        phase1(p, "kfd", [('K', 2048 * b) for b in range(8)], NSD2, 16384, 2, 128, 96, 160, cfg.get("npsd", 8), PFY != 2,
               st1=(1, 0, 0, 5)[tm], st2=None, hook=lambda: hookX("kfxy", 1 + 2 * (NSD2 - 1) + (0 if PFY == 2 else len(pf(-2)))))
        p("s_barrier")
    def epi_D():
        srd(p, 8, S_WS, S_WS + 1, ABF_SZ, ABF_OFF)
        p("v_lshrrev_b32 v2, 4, v1"); p("v_and_b32 v3, 1, v2"); p("v_lshlrev_b32 v3, 1, v3"); p("v_lshrrev_b32 v2, 1, v2")
        p("v_or_b32 v2, v2, v3"); p("v_lshlrev_b32 v2, 8, v2"); p("v_and_b32 v3, 15, v1"); p("v_lshl_add_u32 v2, v3, 4, v2")
        p(f"s_lshl_b32 s86, s{S_MT}, 3"); p("s_add_u32 s86, s86, s3"); p(f"s_lshr_b32 s87, s{S_NT}, 3"); p("s_lshl_b32 s87, s87, 6"); p("s_add_u32 s86, s86, s87")
        p(f"s_and_b32 s87, s{S_NT}, 7"); p("s_lshl_b32 s87, s87, 10"); p("s_add_u32 s86, s86, s87"); p("s_lshl_b32 s86, s86, 10")
        p("v_add_u32 v2, s86, v2")
        for b in range(8):
            t = (96 if YS else 112) + 4 * b
            a0 = ACC + b * 8; a1 = a0 + 4
            p(f"v_cvt_pk_bf16_f32 v{t}, v{a0}, v{a0+1}"); p(f"v_cvt_pk_bf16_f32 v{t+1}, v{a0+2}, v{a0+3}")
            p(f"v_cvt_pk_bf16_f32 v{t+2}, v{a1}, v{a1+1}"); p(f"v_cvt_pk_bf16_f32 v{t+3}, v{a1+2}, v{a1+3}")
            p(f"s_mov_b32 s87, {131072*b}"); p("s_nop 0")
            p(f"v_permlane16_swap_b32 v{t}, v{t+2}"); p(f"v_permlane16_swap_b32 v{t+1}, v{t+3}")
            p(f"buffer_store_dwordx4 v[{t}:{t+3}], v2, s[8:11], s87 offen{SC}")
        p("s_nop 1")
    def tokflag(addr_fn):
        addr_fn()
        p("s_cmp_eq_u32 s3, 0"); p("s_cselect_b32 s87, 0, 0x80000000"); p("s_or_b32 s86, s86, s87")
        p("v_mov_b32 v13, s86"); p("v_mov_b32 v14, s78"); p("v_mov_b32 v15, s79")
    FO = (["s_mov_b64 exec, 1"], f"buffer_store_dwordx2 v[14:15], v13, s[{S_FSRD}:{S_FSRD+3}], 0 offen{SC}", ["s_mov_b64 exec, -1"])
    if YS:
        p(f"s_mov_b32 s{S_SRDS}, s{S_W1}"); p(f"s_mov_b32 s{S_SRDS+1}, s{S_W1+1}"); p(f"s_mov_b32 s{S_SRDS+2}, 7340032")
        p(f"s_mov_b32 s{S_SOFF}, 0"); p(f"s_lshl_b32 s{S_M0B}, s3, 10"); p(f"s_mov_b32 s{S_KP}, 0")
        p(f"v_mov_b32 v{V_VD}, v{V_VD+2}")
        tokflag(lambda: (p(f"s_lshl_b32 s86, s{S_NT}, 7"), p(f"s_lshl_b32 s87, s{S_MT}, 3"), p("s_add_u32 s86, s86, s87"), p("s_add_u32 s86, s86, 4096")))
        phase1(p, "kfw", [('T', b, 4096, 512, 0) for b in range(2)], 8, 8192, 1, 64 * 7168, 128, 160, cfg.get("npsy", 8), False,
               hook=epi_D, hook_after_priv=True, hook_vm=8, flag_at=(cfg.get("fk_d", 9), FO[0], FO[1], FO[2]), st1=None, st2=(2, 0, 0, None)[tm])
        p("s_barrier")
        tokflag(lambda: (p(f"s_lshl_b32 s86, s{S_MT}, 8"), p(f"s_lshl_b32 s87, s{S_NT}, 3"), p("s_add_u32 s86, s86, s87"), p("s_add_u32 s86, s86, 8192")))
    def hookY():
        if YS:
            epi_W(2, 85, 96, b0=0)
        else:
          epi_D()
          epi_W(2, 85, 144, b0=8)
          if tm == 1: stamp(p, 1)
          p("s_waitcnt vmcnt(0)"); p("s_barrier")
          if tm == 1: stamp(p, 2)
          setflags([lambda: (p(f"s_lshl_b32 s86, s{S_NT}, 7"), p(f"s_lshl_b32 s87, s{S_MT}, 3"), p("s_add_u32 s86, s86, s87"), p("s_add_u32 s86, s86, 4096")),
                  lambda: (p(f"s_lshl_b32 s86, s{S_MT}, 8"), p(f"s_lshl_b32 s87, s{S_NT}, 3"), p("s_add_u32 s86, s86, s87"), p("s_add_u32 s86, s86, 8192"))])
        if PFS: pf_setup(10, 1)
        if JIT:
            jit_addr(10, 0, 1)
            for x_ in jit_srd(0): p(x_)
        p(f"s_lshl_b32 s{S2_KP}, s{S_G}, 16")
        srd(p, S2_SRDP, S_WS, S_WS + 1, ABF_SZ, ABF_OFF)
        p(f"s_lshl_b32 s86, s{S_TA}, 3"); p(f"s_lshl_b32 s87, s{S_WQ}, 1"); p("s_add_u32 s86, s86, s87"); p("s_lshl_b32 s86, s86, 17")
        p(f"v_lshlrev_b32 v{V2_VP}, 4, v1"); p(f"v_add_u32 v{V2_VP}, s86, v{V2_VP}"); p(f"v_add_u32 v{V2_VP+1}, 131072, v{V2_VP}")
        p(f"s_lshl_b32 s86, s{S_G}, 14")
        for w in range(2):
            addrK_setup(p, V, V2_A + 2 * w, V2_A + 2 * w + 1, w * WIN)
            p(f"v_add_u32 v{V2_A+2*w}, s86, v{V2_A+2*w}"); p(f"v_add_u32 v{V2_A+2*w+1}, s86, v{V2_A+2*w+1}")
        poll("kf_Y2", lambda: (p("v_bfe_u32 v3, v1, 3, 1"), p("v_lshlrev_b32 v3, 10, v3"), p("v_and_b32 v2, 7, v1"), p("v_lshl_add_u32 v2, v2, 3, v3"),
                               p(f"s_lshl_b32 s86, s{S_TA}, 7"), p("s_add_u32 s86, s86, 4096"), p("v_add_u32 v2, s86, v2")))
    gemm_mainloop(p, "kfy", 32, NS2, NPS2, S_CNT, mfmas_y, reads_y, mk_dmas2(128), privs2, read_frac=cfg.get("k2y_rf", 0.7),
                  hook=hookY, pf=mk_pfj2(0, 32) if JIT else pf2, hook_vm=2 if YS else 0, flag_at=(cfg.get("fk_w", 5), FO[0], FO[1], FO[2]) if YS else None, st1=(3, 3, 0, None)[tm], st2=(4, 4, 0, None)[tm])
    p(f"s_lshl_b32 s86, s{S_WQ}, 3"); p(f"s_lshl_b32 s87, s{S_G}, 2"); p("s_add_u32 s86, s86, s87"); p("s_lshl_b32 s60, s86, 10")
    p("s_mov_b32 s61, 1024"); p("s_mov_b32 s62, 2048"); p("s_mov_b32 s63, 3072")
    p(f"s_lshl_b32 s86, s{S_G}, 17"); p(f"s_lshl_b32 s87, s{S_WQ}, 6"); p("s_add_u32 s56, s86, s87")
    p("s_mov_b32 s57, 32768"); p("s_mov_b32 s58, 65536"); p("s_mov_b32 s59, 98304")
    p(f"s_mov_b32 s52, {TY_OFF}"); p(f"s_mov_b32 s53, {TG_OFF}")
    final_setup()
    for b in range(8):
        t = SH2 + 4 * b
        a0 = ACC + b * 4; a1 = ACC + (8 + b) * 4
        p(f"v_cvt_pk_bf16_f32 v{t}, v{a0}, v{a0+1}"); p(f"v_cvt_pk_bf16_f32 v{t+1}, v{a0+2}, v{a0+3}")
        p(f"v_cvt_pk_bf16_f32 v{t+2}, v{a1}, v{a1+1}"); p(f"v_cvt_pk_bf16_f32 v{t+3}, v{a1+2}, v{a1+3}")
    p("v_lshlrev_b32 v2, 4, v1"); p("s_lshl_b32 s86, s3, 12"); p("v_add_u32 v3, s86, v2"); p("s_xor_b32 s86, s86, 16384"); p("v_add_u32 v2, s86, v2")
    p("s_barrier")
    for u in range(4): p(f"ds_write_b128 v3, v[{SH2+16+4*u}:{SH2+19+4*u}] offset:{1024*u}")
    decision_write(4)
    p("s_waitcnt lgkmcnt(0)"); p("s_barrier")
    for u in range(4): p(f"ds_read_b128 v[{SH2+16+4*u}:{SH2+19+4*u}], v2 offset:{1024*u}")
    decision_read()
    p(f"s_lshl_b32 s90, s{S_G}, 31"); p("s_lshr_b32 s85, s90, 16"); p("s_or_b32 s90, s90, s85")
    p("s_waitcnt lgkmcnt(0)")
    RES = 32
    U_ = 48; W_ = 64
    for hf in range(2):
        for i in range(8):
            r = SH2 + 8 * hf + i
            p(f"v_lshlrev_b32 v{U_+2*i}, 16, v{r}"); p(f"v_and_b32 v{U_+2*i+1}, 0xffff0000, v{r}")
            p(f"v_lshlrev_b32 v{W_+2*i}, 16, v{r+16}"); p(f"v_and_b32 v{W_+2*i+1}, 0xffff0000, v{r+16}")
        for i in range(16): p(f"v_sub_f32 v{U_+i}, v{U_+i}, v{W_+i}")
        for i in range(8): p(f"v_cvt_pk_bf16_f32 v{RES+8*hf+i}, v{U_+2*i}, v{U_+2*i+1}")
    for i in range(16): p(f"v_xor_b32 v{RES+i}, s90, v{RES+i}")
    p("s_nop 1")
    for u in range(4):
        t = RES + 4 * u
        p(f"v_permlane16_swap_b32 v{t}, v{t+2}"); p(f"v_permlane16_swap_b32 v{t+1}, v{t+3}")
    p("s_branch kf_final")

    p.label("kf_typeO")
    p(f"s_mul_i32 s{S2_SOFF}, s{S_G}, {1792*2048}")
    srd(p, S2_SRDS, S_W2, S_W2 + 1, 7340032)
    voffT8_lane(p, V, 5, 2048, 0)
    p(f"s_and_b32 s86, s{S_WQ}, 1"); p("s_lshl_b32 s86, s86, 16"); p(f"s_lshr_b32 s87, s{S_WQ}, 1"); p(f"s_xor_b32 s87, s87, s{S_G}"); p("s_lshl_b32 s87, s87, 7"); p("s_add_u32 s86, s86, s87")
    p(f"s_lshl_b32 s87, s{S_TA}, 8"); p("s_add_u32 s86, s86, s87")
    p(f"v_add_u32 v{V_VD2}, s86, v5")
    p(f"v_xor_b32 v{V_VD2+1}, 64, v{V_VD2}"); p(f"v_add_u32 v{V_VD2+1}, 16384, v{V_VD2+1}")
    p(f"v_add_u32 v{V_VD2+2}, 32768, v{V_VD2}"); p(f"v_add_u32 v{V_VD2+3}, 32768, v{V_VD2+1}")
    if JIT: jit_addr(V_PF, 1, JA)
    p(f"s_mul_i32 s85, s{S_NT}, {CO}"); p(f"s_add_u32 s85, s85, {16*CY}")
    bias_dma(85)
    p(f"s_mov_b32 s{S_SRDS}, s{S_W1}"); p(f"s_mov_b32 s{S_SRDS+1}, s{S_W1+1}"); p(f"s_mov_b32 s{S_SRDS+2}, 7340032"); p(f"s_mov_b32 s{S_SRDS+3}, 0x20000")
    p(f"s_mov_b32 s{S_SOFF}, 0"); p(f"s_mul_i32 s{S_M0B}, s3, 3072")
    p("s_and_b32 s88, s3, 1"); p("s_lshl_b32 s88, s88, 2")
    for i in range(3):
        p(f"v_add_u32 v2, {64*i}, v1")
        p("v_mul_u32_u24 v3, 2731, v2"); p("v_lshrrev_b32 v3, 16, v3")
        p("v_mul_u32_u24 v4, 24, v3"); p("v_sub_u32 v2, v2, v4")
        p("v_bfe_u32 v4, v3, 1, 1"); p("v_lshlrev_b32 v4, 1, v4"); p("v_or_b32 v4, s88, v4")
        p("v_xor_b32 v2, v2, v4")
        p("v_mul_u32_u24 v3, 7168, v3"); p("v_lshl_add_u32 v3, v2, 4, v3")
        p("s_mul_i32 s86, s3, 57344"); p("s_lshl_b32 s87, s85, 1"); p("s_add_u32 s86, s86, s87")
        p(f"v_add_u32 v{V_VD+i}, s86, v3")
    for w in range(2): addrT_setup(p, V, V_AT + 4 * w, 384, w * WIN)
    phase1(p, "kfW", [('T', b & 3, 32 * 384, 4 * 384, (b >> 2) * 128) for b in range(12)], NSO, 24576, 3, 64 * 7168, 128, 224, 4, PFY != 1, pf_fn=mk_pfj1(1),
           st1=(1, 0, 0, 5)[tm], st2=(2, 0, 0, 0)[tm] if tm != 3 else None, hook=lambda: hookX("kfxo", 1 + 3 * (NSO - 1) + (0 if (PFY == 1 or JIT) else len(pf(-2)))))
    p("s_barrier")
    def hookO():
        epi_W(12, 85, 128)
        if tm == 1: stamp(p, 1)
        p("s_waitcnt vmcnt(0)"); p("s_barrier")
        if tm == 1: stamp(p, 2)
        setflags([lambda: (p(f"s_lshl_b32 s86, s{S_MT}, 8"), p(f"s_lshl_b32 s87, s{S_NT}, 3"), p("s_add_u32 s86, s86, s87"), p("s_add_u32 s86, s86, 8320"))])
        if PFS: pf_setup(10, 1)
        if JIT:
            jit_addr(10, 1, 1)
            for x_ in jit_srd(1): p(x_)
        p(f"s_mul_i32 s{S2_KP}, s{S_G}, {56*1024}")
        srd(p, S2_SRDP, S_WS, S_WS + 1, HF_SZ, HF_OFF)
        p(f"s_lshl_b32 s86, s{S_TB}, 3"); p(f"s_lshl_b32 s87, s{S_WQ}, 1"); p("s_add_u32 s86, s86, s87"); p("s_mul_i32 s86, s86, 114688")
        p(f"v_lshlrev_b32 v{V2_VP}, 4, v1"); p(f"v_add_u32 v{V2_VP}, s86, v{V2_VP}"); p(f"v_add_u32 v{V2_VP+1}, 114688, v{V2_VP}")
        p(f"s_lshl_b32 s86, s{S_G}, 14")
        for w in range(2):
            addrT_setup(p, V, V2_A + 4 * w, 128, w * WIN)
            for b in range(4): p(f"v_add_u32 v{V2_A+4*w+b}, s86, v{V2_A+4*w+b}")
        poll("kf_O2", lambda: (p("v_and_b32 v2, 31, v1"), p("v_lshlrev_b32 v2, 3, v2"), p(f"s_lshr_b32 s86, s{S_TB}, 1"), p("s_lshl_b32 s86, s86, 8"), p("s_add_u32 s86, s86, 8192"), p("v_add_u32 v2, s86, v2")))
    gemm_mainloop(p, "kfo", 28, NS2, NPS2, S_CNT, mfmas_o, reads_o, mk_dmas2(131072), privs2, read_frac=cfg.get("k2o_rf", 0.7),
                  hook=hookO, pf=mk_pfj2(1, 28) if JIT else pf2, st1=(3, 3, 0, None)[tm], st2=(4, 4, 0, None)[tm])
    p(f"s_lshl_b32 s86, s{S_G}, 4"); p(f"s_lshl_b32 s87, s{S_WQ}, 1"); p("s_add_u32 s86, s86, s87"); p("s_lshl_b32 s60, s86, 10")
    p("s_mov_b32 s61, 1024"); p("s_mov_b32 s62, 8192"); p("s_mov_b32 s63, 9216")
    p(f"s_lshl_b32 s86, s{S_WQ}, 16"); p(f"s_lshl_b32 s87, s{S_G}, 7"); p("s_add_u32 s56, s86, s87")
    p("s_mov_b32 s57, 32768"); p("s_mov_b32 s58, 64"); p("s_mov_b32 s59, 32832")
    p(f"s_mov_b32 s52, {TG_OFF}"); p(f"s_mov_b32 s53, {TY_OFF}")

    final_setup()
    srd(p, 12, S_B2, S_B2 + 1, 2048)
    p("v_lshrrev_b32 v2, 4, v1"); p("v_lshlrev_b32 v2, 3, v2"); p(f"s_lshl_b32 s86, s{S_TA}, 8"); p(f"s_lshl_b32 s87, s{S_G}, 7"); p("s_add_u32 s86, s86, s87"); p("v_add_u32 v2, s86, v2")
    for b in range(4): p(f"buffer_load_dwordx2 v[{8+2*b}:{9+2*b}], v2, s[12:15], 0 offen offset:{32*b}")
    p("v_lshlrev_b32 v2, 4, v1"); p("s_lshl_b32 s86, s3, 13"); p("v_add_u32 v3, s86, v2"); p("s_xor_b32 s86, s86, 32768"); p("v_add_u32 v2, s86, v2")
    p("s_barrier")
    for u in range(8): p(f"ds_write_b128 v3, v[{64+4*u}:{67+4*u}] offset:{1024*u}")
    decision_write(8)
    p("s_waitcnt vmcnt(0) lgkmcnt(0)"); p("s_barrier")
    for u in range(8): p(f"ds_read_b128 v[{64+4*u}:{67+4*u}], v2 offset:{1024*u}")
    p(f"s_mov_b32 s92, {hex(f2u(-math.log2(math.e)))}")
    decision_read()
    for i in range(32): p(f"v_add_f32 v{96+i}, v{32+i}, v{64+i}")
    B_ = 16
    for b in range(4):
        for h in range(2):
            p(f"v_lshlrev_b32 v{B_+4*b+2*h}, 16, v{8+2*b+h}"); p(f"v_and_b32 v{B_+4*b+2*h+1}, 0xffff0000, v{8+2*b+h}")
    RES = 32
    for mp in range(2):
        src = [96 + ((2 * mp + k_) * 2 + i) * 4 + r for i in range(2) for k_ in range(2) for r in range(4)]
        bs = [B_ + (2 * mp + k_) * 4 + r for i in range(2) for k_ in range(2) for r in range(4)]
        T = RES + 8 * mp; U_ = 64; W_ = 80
        for i in range(8): p(f"v_cvt_pk_bf16_f32 v{T+i}, v{src[2*i]}, v{src[2*i+1]}")
        for i in range(8):
            p(f"v_lshlrev_b32 v{U_+2*i}, 16, v{T+i}"); p(f"v_and_b32 v{U_+2*i+1}, 0xffff0000, v{T+i}")
        for i in range(16): p(f"v_add_f32 v{U_+i}, v{U_+i}, v{bs[i]}")
        for i in range(8): p(f"v_cvt_pk_bf16_f32 v{T+i}, v{U_+2*i}, v{U_+2*i+1}")
        for i in range(8):
            p(f"v_lshlrev_b32 v{U_+2*i}, 16, v{T+i}"); p(f"v_and_b32 v{U_+2*i+1}, 0xffff0000, v{T+i}")
        for i in range(16): p(f"v_mul_f32 v{W_+i}, s92, v{U_+i}")
        for i in range(16): p(f"v_exp_f32 v{W_+i}, v{W_+i}")
        for i in range(16): p(f"v_add_f32 v{W_+i}, 1.0, v{W_+i}")
        for i in range(16): p(f"v_rcp_f32 v{W_+i}, v{W_+i}")
        for i in range(16): p(f"v_mul_f32 v{W_+i}, v{W_+i}, v{U_+i}")
        for i in range(8): p(f"v_cvt_pk_bf16_f32 v{T+i}, v{W_+2*i}, v{W_+2*i+1}")
    p("s_nop 1")
    for u in range(4):
        t = RES + 4 * u
        p(f"v_permlane16_swap_b32 v{t}, v{t+2}"); p(f"v_permlane16_swap_b32 v{t+1}, v{t+3}")

    p.label("kf_final")
    if tm == 2: stamp(p, 1)
    p("s_cmp_lg_u32 s55, 0"); p("s_cbranch_scc1 kf_combine2")
    if cfg.get("peek2", 1):
        p("s_cmp_lg_u32 s3, 0"); p("s_cbranch_scc1 kf_f1")
        p(f"buffer_load_dwordx2 v[8:9], v205, s[{S_FSRD}:{S_FSRD+3}], 0 offen{SC}")
        p("s_waitcnt vmcnt(0)")
        p("v_cmp_eq_u64 vcc, s[78:79], v[8:9]")
        p("s_nop 1")
        p("v_cndmask_b32 v8, 0, 1, vcc")
        p("ds_write_b32 v206, v8 offset:8")
        p("s_waitcnt lgkmcnt(0)")
        p.label("kf_f1")
        p("s_barrier")
        p("ds_read_b32 v8, v206 offset:8")
        p("s_waitcnt lgkmcnt(0)")
        p("v_readfirstlane_b32 s86, v8")
        p("s_cmp_lg_u32 s86, 0"); p("s_cbranch_scc1 kf_combine1")
    for u in range(4): p(f"buffer_store_dwordx4 v[{32+4*u}:{35+4*u}], v203, s[8:11], {so_u[u]} offen{SC}")
    p("s_waitcnt vmcnt(0)")
    p("s_barrier")
    p("s_cmp_lg_u32 s3, 0"); p("s_cbranch_scc1 kf_f2")
    p("v_mov_b32 v8, s78"); p("v_mov_b32 v9, s79")
    p("s_mov_b64 exec, 1")
    p(f"buffer_store_dwordx2 v[8:9], v204, s[{S_FSRD}:{S_FSRD+3}], 0 offen{SC}")
    p("s_mov_b64 exec, -1")
    p("s_waitcnt vmcnt(0)")
    p(f"buffer_load_dwordx2 v[8:9], v205, s[{S_FSRD}:{S_FSRD+3}], 0 offen{SC}")
    p("s_waitcnt vmcnt(0)")
    p("v_cmp_eq_u64 vcc, s[78:79], v[8:9]")
    p("s_nop 1")
    p("v_cndmask_b32 v8, 0, 1, vcc")
    p("ds_write_b32 v206, v8 offset:4")
    p("s_waitcnt lgkmcnt(0)")
    p.label("kf_f2")
    p("s_barrier")
    p("ds_read_b32 v8, v206 offset:4")
    p("s_waitcnt lgkmcnt(0)")
    p("v_readfirstlane_b32 s86, v8")
    p("s_cmp_eq_u32 s86, 0"); p("s_cbranch_scc1 kf_done")
    p.label("kf_combine1")
    for u in range(4): p(f"buffer_load_dwordx4 v[{OR+4*u}:{OR+4*u+3}], v203, s[44:47], {so_u[u]} offen{SC}")
    p.label("kf_combine2")
    if tm == 2: stamp(p, 2)
    OUTSC = ("", " sc1", " nt")[cfg.get("outsc", 0)]
    U_ = 96; W_ = 128; X_ = 48
    pr = lambda r: f"v[{r}:{r+1}]"
    for i in range(16):
        p(f"v_lshlrev_b32 v{U_+2*i}, 16, v{32+i}"); p(f"v_and_b32 v{U_+2*i+1}, 0xffff0000, v{32+i}")
    p("s_waitcnt vmcnt(4)")
    for i in range(16):
        p(f"v_lshlrev_b32 v{X_+2*i}, 16, v{XR+i}"); p(f"v_and_b32 v{X_+2*i+1}, 0xffff0000, v{XR+i}")
    p("s_waitcnt vmcnt(0)")
    for i in range(16):
        p(f"v_lshlrev_b32 v{W_+2*i}, 16, v{OR+i}"); p(f"v_and_b32 v{W_+2*i+1}, 0xffff0000, v{OR+i}")
    for i in range(0, 32, 2): p(f"v_pk_mul_f32 {pr(U_+i)}, {pr(U_+i)}, {pr(W_+i)}")
    for i in range(16): p(f"v_cvt_pk_bf16_f32 v{32+i}, v{U_+2*i}, v{U_+2*i+1}")
    for i in range(16):
        p(f"v_lshlrev_b32 v{U_+2*i}, 16, v{32+i}"); p(f"v_and_b32 v{U_+2*i+1}, 0xffff0000, v{32+i}")
    for i in range(0, 32, 2): p(f"v_pk_add_f32 {pr(U_+i)}, {pr(U_+i)}, {pr(X_+i)}")
    for i in range(16): p(f"v_cvt_pk_bf16_f32 v{32+i}, v{U_+2*i}, v{U_+2*i+1}")
    for u in range(4): p(f"buffer_store_dwordx4 v[{32+4*u}:{35+4*u}], v202, s[64:67], {so_out[u]} offen{OUTSC}")
    p.label("kf_done")
    if CFG.get("ts"): p("s_waitcnt vmcnt(0)")
    if tm != 3: stamp(p, 5)
    if cfg.get("tsdbg"):
        lab = p.newlabel("tsd"); lab2 = p.newlabel("tsd")
        p("s_cmp_lg_u32 s3, 0"); p(f"s_cbranch_scc1 {lab}")
        srd(p, 92, S_DBG, S_DBG + 1, 256)
        p("s_mov_b64 exec, 1")
        p("v_mov_b32 v2, 0"); p(f"v_mov_b32 v3, s{tsreg(5)}"); p(f"s_not_b32 s96, s{tsreg(0)}"); p("v_mov_b32 v4, s96")
        p("buffer_atomic_umax v3, v2, s[92:95], 0 offen offset:56 sc1")
        p("buffer_atomic_umax v4, v2, s[92:95], 0 offen offset:60 sc1")
        p("s_and_b32 s96, s2, 0xf7"); p("s_cmp_lg_u32 s96, 0"); p(f"s_cbranch_scc1 {lab2}")
        p("s_mul_i32 s96, s75, 24"); p("v_mov_b32 v2, s96")
        for i in range(6):
            p(f"v_mov_b32 v3, s{tsreg(i)}"); p(f"buffer_store_dword v3, v2, s[92:95], 0 offen offset:{8+4*i}")
        p.label(lab2)
        p("s_mov_b64 exec, -1")
        p.label(lab)
    else:
        stamp_store(p, 1, 6)
    p.label("kf_end")
    p("s_endpgm")
    p.label("kf_codeend")
    return name, 256, 102, 224

def generate(cfg):
    CFG.clear(); CFG.update(cfg); CFG["ts_noclk"] = 1; CFG["k0_fullflag"] = 1
    body = Prog()
    info = [("kf",) + gen_kf(body, cfg)]
    lds = {"k0": 0, "kf": 131072 + 8192}
    out = ["; FNet (dense DFT matmuls) + GELU FFN fused block; generated by dev/gen6.py"]
    for k in ("kf",):
        out.append(f"; @launch kernel={k}_kernel grid=(256,1,1) block=(512,1,1) lds={lds[k]}")
    out.append('.amdgcn_target "amdgcn-amd-amdhsa--gfx950"')
    out.append(".text")
    out += body.L
    out.append('.section .rodata,"a"')
    for k, name, nfv, nfs, acc in info:
        out += [".p2align 6", f".amdhsa_kernel {name}", f"  .amdhsa_next_free_vgpr {nfv}", f"  .amdhsa_next_free_sgpr {nfs}",
                f"  .amdhsa_accum_offset {acc}", "  .amdhsa_group_segment_fixed_size 0", "  .amdhsa_kernarg_size 104",
                "  .amdhsa_user_sgpr_count 2", "  .amdhsa_user_sgpr_kernarg_segment_ptr 1", "  .amdhsa_system_sgpr_workgroup_id_x 1",
                ".end_amdhsa_kernel"]
    return "\n".join(out) + "\n"

DEFAULT = dict(nsd=5, nsy=8, nso=5, k2_ns=4, k2_nps=4, pf1=2, pfk0=14, pfk1=20, pfk2=26, map1=1, nt1=1)
if __name__ == "__main__":
    cfg = dict(DEFAULT)
    fn = sys.argv[1] if len(sys.argv) > 1 else "full6.s"
    for a in sys.argv[2:]:
        k, v = a.split("=")
        cfg[k] = float(v) if "." in v else int(v)
    open(fn, "w").write(generate(cfg))
```
